```python
import torch

def _softmax(x, axis=-1):
    return torch.softmax(x, dim=axis)

def _gelu(x):
    return torch.nn.functional.gelu(x, approximate='tanh')

def _silu(x):
    return torch.nn.functional.silu(x)

def _sigmoid(x):
    return torch.sigmoid(x)

def _layernorm(x, axis=-1, eps=1e-05):
    m = x.mean(dim=axis, keepdim=True)
    v = x.var(dim=axis, keepdim=True, unbiased=False)
    return (x - m) / torch.sqrt(v + eps)

def _scatter_add(tgt, idx, src, axis=0):
    return tgt.clone().index_add_(axis, idx, src)

def _segment_sum(src, seg, n):
    out = torch.zeros((n,) + src.shape[1:], dtype=src.dtype)
    return out.index_add_(0, seg, src)

def _pad(x, pw):
    flat = tuple((v for pair in reversed(pw) for v in pair))
    return torch.nn.functional.pad(x, flat)
kernel_name = 'concat_heads__spectral_gfnet__memory_aug_recurrent_mem_tr__prompt'

def setup_inputs():

    _w = lambda a: (lambda t: t.to(torch.bfloat16) if t.is_floating_point() else t)(torch.as_tensor(a))

    def _A_setup():
        B, S, D = (1, 2048, 1024)
        Df = D // 2 + 1
        return {'x': _w((lambda *s: torch.randn(*s, dtype=torch.bfloat16) * 0.05)(B, S, D)), 'w_r': _w((lambda *s: torch.randn(*s, dtype=torch.bfloat16) * 3.2)(S, Df) * 0.02), 'w_i': _w((lambda *s: torch.randn(*s, dtype=torch.bfloat16) * 3.2)(S, Df) * 0.02)}
    _A_in = _A_setup()

    def _B_setup():
        B, S, Dm = (1, 2048, 1024)
        H, Dh = (32, 128)
        M, seg = (8, 32)
        seg = min(seg, S)
        S = S // seg * seg
        return {'x': _w((lambda *s: torch.randn(*s, dtype=torch.bfloat16) * 0.05)(B, S, Dm)), 'mem0': _w((lambda *s: torch.randn(*s, dtype=torch.bfloat16) * 0.4)(B, M, Dm)), 'Wq': _w((lambda *s: torch.randn(*s, dtype=torch.bfloat16) * 6.4)(Dm, H, Dh) * Dm ** (-0.5)), 'Wk': _w((lambda *s: torch.randn(*s, dtype=torch.bfloat16) * 6.4)(Dm, H, Dh) * Dm ** (-0.5)), 'Wv': _w((lambda *s: torch.randn(*s, dtype=torch.bfloat16) * 0.4)(Dm, H, Dh) * Dm ** (-0.5)), 'Wo': _w((lambda *s: torch.randn(*s, dtype=torch.bfloat16) * 0.4)(H, Dh, Dm) * (H * Dh) ** (-0.5)), 'seg_len': seg}
    _B_in = _B_setup()
    return {'A_x': _A_in['x'], 'A_w_r': _A_in['w_r'], 'A_w_i': _A_in['w_i'], 'B_x': _B_in['x'], 'B_mem0': _B_in['mem0'], 'B_Wq': _B_in['Wq'], 'B_Wk': _B_in['Wk'], 'B_Wv': _B_in['Wv'], 'B_Wo': _B_in['Wo'], 'B_seg_len': _B_in['seg_len']}

def reference(A_x, A_w_r, A_w_i, B_x, B_mem0, B_Wq, B_Wk, B_Wv, B_Wo, B_seg_len):

    def _A_ref(x, w_r, w_i):
        B, S, D = x.shape
        X = (lambda x, axes=(-2, -1): torch.fft.rfft2(x.float(), dim=axes))(x, axes=(-2, -1))
        W = w_r + 1j * w_i
        X = X * W
        y = (lambda x, s, axes=(-2, -1): torch.fft.irfft2(x, s=s, dim=axes).to(torch.bfloat16))(X, (S, D), axes=(-2, -1))
        return y

    def _B_ref(x, mem0, Wq, Wk, Wv, Wo, seg_len):
        B, S, Dm = x.shape
        H, Dh = (Wq.shape[1], Wq.shape[2])
        M = mem0.shape[1]
        scale = Dh ** (-0.5)
        n_seg = S // seg_len
        L = M + seg_len
        idx = torch.arange(L)
        mask = (idx[:, None] < M) | (idx[:, None] >= idx[None, :])
        mem = mem0
        outs = []
        for s in range(n_seg):
            xs = x[:, s * seg_len:(s + 1) * seg_len, :].clone()
            h = torch.concatenate([mem, xs], axis=1)
            q = torch.einsum('btd,dhe->bhte', h, Wq)
            k = torch.einsum('btd,dhe->bhte', h, Wk)
            v = torch.einsum('btd,dhe->bhte', h, Wv)
            scores = torch.einsum('bhqe,bhke->bhqk', q, k) * scale
            scores = torch.where(mask[None, None], scores, -1000000000.0)
            p = _softmax(scores, axis=-1)
            o = torch.einsum('bhqk,bhke->bhqe', p, v)
            o = torch.einsum('bhte,hed->btd', o, Wo)
            mem = o[:, :M, :].clone()
            outs.append(o[:, M:, :])
        return torch.concatenate(outs, axis=1)
    a = _A_ref(A_x, A_w_r, A_w_i)
    b = _B_ref(B_x, B_mem0, B_Wq, B_Wk, B_Wv, B_Wo, B_seg_len)
    return torch.concatenate([a, b], axis=-1)
```

```python
import re

def v(n, c=1):
    return f"v{n}" if c == 1 else f"v[{n}:{n+c-1}]"
def a(n, c=1):
    return f"a{n}" if c == 1 else f"a[{n}:{n+c-1}]"
def s(n, c=1):
    return f"s{n}" if c == 1 else f"s[{n}:{n+c-1}]"

_REG = re.compile(r"^(-|abs\(|neg\(|\|)?([vas])(\d+|\[(\d+):(\d+)\])\)?\|?$")

def regs_of(op):
    op = op.strip()
    if op in ("vcc",):
        return {("s", 106), ("s", 107)}
    if op == "vcc_lo": return {("s", 106)}
    if op == "vcc_hi": return {("s", 107)}
    if op == "exec": return {("s", 126), ("s", 127)}
    if op == "exec_lo": return {("s", 126)}
    if op == "exec_hi": return {("s", 127)}
    if op == "m0": return {("s", 124)}
    m = _REG.match(op)
    if not m:
        return set()
    k = m.group(2)
    if m.group(4) is not None:
        return {(k, i) for i in range(int(m.group(4)), int(m.group(5)) + 1)}
    return {(k, int(m.group(3)))}

TRANS = ("v_exp_f32", "v_log_f32", "v_rcp_f32", "v_rsq_f32", "v_sqrt_f32", "v_sin_f32", "v_cos_f32", "v_rcp_iflag_f32")
VCC = {("s", 106), ("s", 107)}
EXEC = {("s", 126), ("s", 127)}
M0 = {("s", 124)}

def mfma_passes(mn):
    if "32x32x16" in mn or "32x32x8" in mn or "32x32x32" in mn: return 8
    if mn in ("v_mfma_f32_32x32x2_f32",): return 16
    if mn in ("v_mfma_f32_16x16x4_f32",): return 8
    if "16x16x32" in mn or "16x16x16" in mn or "16x16x64" in mn: return 4
    raise ValueError(mn)

class Ins:
    __slots__ = ("text", "mn", "ops", "mods", "w", "r", "kind", "passes", "srcc", "srcab", "dpp", "label", "target", "states", "stdata")
    def __init__(self, text):
        self.text = text
        self.label = None; self.target = None
        self.w = set(); self.r = set(); self.kind = "other"; self.passes = 0
        self.srcc = set(); self.srcab = set(); self.dpp = False; self.states = 1; self.stdata = set()
        t = text.split(";")[0].strip()
        if t.endswith(":"):
            self.label = t[:-1]; self.kind = "label"; self.states = 0; self.mn = ""; self.ops = []
            return
        if not t or t.startswith("."):
            self.kind = "directive"; self.states = 0; self.mn = t; self.ops = []
            return
        parts = t.split(None, 1)
        mn = parts[0]; self.mn = mn
        rest = parts[1] if len(parts) > 1 else ""
        ops = []; depth = 0; cur = ""
        for ch in rest:
            if ch in "[(": depth += 1
            if ch in "])": depth -= 1
            if ch == "," and depth == 0:
                ops.append(cur.strip()); cur = ""
            else:
                cur += ch
        if cur.strip(): ops.append(cur.strip())
        mods = ""
        if ops:
            last = ops[-1].split(None, 1)
            ops[-1] = last[0]
            if len(last) > 1: mods = last[1]
        self.ops = ops; self.mods = mods
        R = [regs_of(o) for o in ops]
        def un(l):
            x = set()
            for y in l: x |= y
            return x
        base = mn
        for suf in ("_e32", "_e64", "_dpp", "_sdwa"):
            if base.endswith(suf): base = base[: -len(suf)]
        if mn == "s_nop":
            self.states = int(ops[0], 0) + 1; self.kind = "salu"
        elif mn.startswith("s_cbranch") or mn == "s_branch":
            self.kind = "branch"; self.target = ops[0]
            if "vcc" in mn: self.r = set(VCC)
            if "exec" in mn: self.r = set(EXEC)
        elif mn == "s_endpgm":
            self.kind = "end"
        elif mn.startswith("s_load") or mn.startswith("s_buffer_load") or mn in ("s_memtime", "s_memrealtime") or mn.startswith("s_atomic"):
            self.kind = "smem"; self.w = R[0]; self.r = un(R[1:])
        elif mn.startswith("s_cmp") or mn.startswith("s_bitcmp"):
            self.kind = "salu"; self.r = un(R)
        elif mn in ("s_waitcnt", "s_barrier", "s_sleep", "s_setprio", "s_sendmsg"):
            self.kind = "salu"
        elif mn in ("s_setpc_b64",):
            self.kind = "end"; self.r = un(R)
        elif mn.startswith("s_"):
            self.kind = "salu"; self.w = R[0]; self.r = un(R[1:])
            if "saveexec" in mn: self.w |= EXEC; self.r |= EXEC
            if mn in ("s_addk_i32", "s_mulk_i32", "s_cmovk_i32", "s_cmov_b32", "s_cmov_b64", "s_bitset1_b32", "s_bitset0_b32"): self.r |= R[0]
        elif mn.startswith("v_mfma") or mn.startswith("v_smfmac"):
            self.kind = "mfma"; self.passes = mfma_passes(mn)
            self.w = R[0]
            if mn.startswith("v_smfmac"):
                self.srcab = R[1] | R[2] | R[3]; self.srcc = R[0]
            else:
                self.srcab = R[1] | R[2]; self.srcc = R[3]
            self.r = self.srcab | self.srcc
        elif mn.startswith("v_"):
            self.kind = "valu"
            self.dpp = mn.endswith("_dpp") or "row_" in mods or "quad_perm" in mods
            if base.startswith("v_cmpx"):
                self.w = R[0] | EXEC; self.r = un(R[1:])
            elif base.startswith("v_cmp"):
                self.w = R[0]; self.r = un(R[1:])
            elif base in ("v_add_co_u32", "v_sub_co_u32", "v_subrev_co_u32", "v_addc_co_u32", "v_subb_co_u32", "v_mad_u64_u32", "v_div_scale_f32"):
                self.w = R[0] | R[1]; self.r = un(R[2:])
            elif base.startswith("v_permlane") and "swap" in base:
                self.w = R[0] | R[1]; self.r = R[0] | R[1]
            elif base in ("v_swap_b32",):
                self.w = R[0] | R[1]; self.r = R[0] | R[1]
            elif base == "v_nop":
                pass
            else:
                self.w = R[0]; self.r = un(R[1:])
                if base in ("v_fmac_f32", "v_pk_fmac_f16", "v_writelane_b32", "v_dot2c_f32_bf16") or self.dpp:
                    self.r |= R[0]
        elif mn.startswith("ds_"):
            self.kind = "ds"
            if mn.startswith("ds_read") or mn.startswith("ds_bpermute") or mn.startswith("ds_permute") or mn.startswith("ds_swizzle") or "_rtn" in mn:
                self.w = R[0]; self.r = un(R[1:])
            else:
                self.r = un(R)
            if "addtid" in mn: self.r |= M0
        elif mn.startswith("buffer_") or mn.startswith("global_") or mn.startswith("flat_"):
            self.kind = "vmem"
            islds = mn.startswith("global_load_lds") or re.search(r"\blds\b", mods) is not None
            if mn in ("buffer_wbl2", "buffer_inv"):
                pass
            elif islds:
                self.r = un(R) | M0; self.kind = "vmemlds"
            elif "_load" in mn:
                self.w = R[0]; self.r = un(R[1:])
            elif "_store" in mn:
                self.r = un(R)
                data = R[0] if mn.startswith("buffer_") else R[1]
                if len(data) >= 3: self.stdata = data
            elif "_atomic" in mn:
                ret = re.search(r"\bsc0\b", mods) is not None
                if mn.startswith("buffer_"):
                    self.r = un(R)
                    if ret: self.w = R[0]
                else:
                    if ret: self.w = R[0]; self.r = un(R[1:])
                    else: self.r = un(R)
            else:
                raise ValueError(text)
        else:
            raise ValueError("unknown instruction: " + text)

def _vg(x): return {r for r in x if r[0] in "va"}
def _sg(x): return {r for r in x if r[0] == "s"}

def required(p, c):
    need = 0
    cb = c.mn
    if p.kind == "valu":
        pw_v = _vg(p.w); pw_s = _sg(p.w)
        if c.kind == "mfma" and pw_v & c.r: need = max(need, 2)
        if c.kind == "valu":
            if c.dpp and pw_v & c.r: need = max(need, 2)
            if c.dpp and pw_s & EXEC: need = max(need, 5)
            if cb.startswith("v_permlane"):
                if pw_v & c.r: need = max(need, 2)
                if pw_s & EXEC: need = max(need, 4)
            if cb.startswith("v_readlane") or cb.startswith("v_readfirstlane") or cb.startswith("v_writelane"):
                if pw_v & c.r and not cb.startswith("v_writelane"): need = max(need, 1)
                if pw_s & c.r: need = max(need, 4)
                if pw_s & EXEC: need = max(need, 4)
            if pw_s & c.r: need = max(need, 2)
            if cb.startswith("v_div_fmas") and pw_s & VCC: need = max(need, 4)
            pb = p.mn.replace("_e32", "").replace("_e64", "")
            cbb = cb.replace("_e32", "").replace("_e64", "")
            if pb in TRANS and cbb not in TRANS and pw_v & (c.r | c.w): need = max(need, 1)
            if ("op_sel" in p.mods and not p.mn.startswith("v_pk")) or p.mn.endswith("_sdwa"):
                if pw_v & (c.r | c.w): need = max(need, 1)
        if c.kind in ("vmem", "vmemlds") and pw_s & c.r: need = max(need, 5)
        if c.kind == "mfma" and pw_s & EXEC: need = max(need, 4)
        if c.kind in ("salu", "branch", "smem") and pw_s & c.r: need = max(need, 1)
        pb = p.mn.replace("_e32", "").replace("_e64", "")
        if pb in TRANS and c.kind in ("ds", "vmem", "vmemlds") and pw_v & c.r: need = max(need, 1)
    if p.kind == "salu" and p.w & M0:
        if c.kind == "vmemlds" or (c.kind == "ds" and c.r & M0) or cb.startswith("s_movrel") or cb == "s_sendmsg": need = max(need, 1)
    if p.kind == "mfma":
        ps = p.passes
        sgemm = p.mn.endswith("_f32") and not p.mn.startswith("v_smfmac") and ("x2_f32" in p.mn or "x4_f32" in p.mn)
        d_other = ({2: 5, 4: 8, 8: 12, 16: 20} if not sgemm else {2: 4, 4: 6, 8: 10, 16: 18})[ps]
        d_cpart = ({2: 4, 4: 6, 8: 10, 16: 18} if not sgemm else {2: 2, 4: 4, 8: 8, 16: 16})[ps]
        if c.kind == "mfma":
            if p.w & c.srcab: need = max(need, d_other)
            if p.w & c.srcc:
                if p.w == c.srcc and c.passes == ps: need = max(need, 2 if ps == 2 else 0)
                else: need = max(need, d_cpart)
            elif p.w & c.w:
                need = max(need, d_cpart if p.w != c.w or c.passes != ps else 0)
        elif c.kind in ("valu", "ds", "vmem", "vmemlds"):
            if p.w & (c.r | c.w): need = max(need, d_other)
        if c.kind == "valu" and not sgemm and p.srcc & c.w: need = max(need, {2: 1, 4: 3, 8: 7, 16: 15}[ps])
    if p.stdata:
        if p.stdata & c.w: need = max(need, 2 if c.kind in ("valu", "mfma") else 1)
    return need

MAXD = 20

class Asm:
    def __init__(self):
        self.ins = []
        self.nlabel = 0
    def __call__(self, text):
        for line in text.split("\n"):
            line = line.strip()
            if not line: continue
            if line.startswith(";"):
                self.ins.append(Ins(line)); continue
            self.ins.append(Ins(line))
    def label(self, name):
        self.ins.append(Ins(name + ":"))
    def newlabel(self, stem="L"):
        self.nlabel += 1
        return f"{stem}_{self.nlabel}"
    def fix_hazards(self, verbose=False):
        ins = self.ins
        lab = {x.label: i for i, x in enumerate(ins) if x.label}
        jumps = {}
        for i, x in enumerate(ins):
            if x.kind == "branch":
                jumps.setdefault(lab[x.target], []).append(i)
        def preds(i):
            out = []
            if i > 0:
                q = ins[i - 1]
                if not (q.kind == "end" or q.mn == "s_branch"):
                    out.append(i - 1)
            out += jumps.get(i, [])
            return out
        pad = [0] * len(ins)
        total = 0
        for i, c in enumerate(ins):
            if c.states and (c.r or c.w):
                worst = 0; why = None
                stack = [(p, 0) for p in preds(i)]
                seen = {}
                while stack:
                    j, d = stack.pop()
                    if d >= MAXD or seen.get(j, 99) <= d: continue
                    seen[j] = d
                    p = ins[j]
                    if p.states and (p.kind in ("valu", "mfma", "salu") or p.stdata):
                        n = required(p, c)
                        if n - d > worst:
                            worst = n - d; why = p.text
                    st_ = p.states
                    if p.kind == "mfma" and j > 0 and ins[j-1].kind == "mfma" and ins[j-1].passes >= 4 and pad[j] == 0: st_ = 3
                    nd = d + st_ + pad[j]
                    for q in preds(j): stack.append((q, nd))
                if worst > 0:
                    if verbose: print(f"pad {worst} before [{c.text}] for [{why}]")
                    pad[i] = worst; total += worst
        out = []
        for i, c in enumerate(ins):
            w = pad[i]
            while w > 0:
                k = min(w, 16)
                out.append(Ins(f"s_nop {k-1}")); w -= k
            out.append(c)
        self.ins = out
        return total
    def text(self):
        out = []
        for x in self.ins:
            out.append(x.text if x.kind in ("label", "directive") else "    " + x.text)
        return "\n".join(out) + "\n"
```

```python
from asmlib import *
from layout import *
from stream import *
import struct, math
def f32bits(x): return struct.unpack("<I", struct.pack("<f", x))[0]
SPIN = 1 << 20

def gen_T(A, sHead, done, sGive):
    R = SR
    sSeg, sC, sCnt, sQ, sKm, sOo, sT2 = 28, 29, 30, 31, 32, 33, 34
    sMask = 36
    vQa, vKa, vKma, vVma, vOa, vFa, vFl, vTf, vMx, vSm = range(10, 20)
    vQ, vK, vV, vKM, vVM = 20, 52, 84, 116, 148
    vS, vSM, vP = 164, 180, 196
    vO = 20
    vPk = 208
    pi_lane(A, R.vT2, R.vL, R.vT0, R.vT1)
    A(f"""
    v_lshrrev_b32 {v(R.vT0)}, 5, {v(R.vL)}            ; h2
    v_and_b32 {v(R.vT1)}, 31, {v(R.vL)}               ; q / row
    v_lshlrev_b32 {v(R.vT3)}, 4, {v(R.vT0)}
    v_lshl_add_u32 {v(vQa)}, {v(R.vT1)}, 6, {v(R.vT3)}
    v_lshl_add_u32 {v(vKa)}, {v(R.vT2)}, 6, {v(R.vT3)}
    v_mov_b32 {v(vTf)}, {OOB}
    v_cmp_gt_u32 vcc, 8, {v(R.vT1)}
    v_cndmask_b32 {v(vKma)}, {v(vTf)}, {v(vQa)}, vcc
    v_lshlrev_b32 {v(vVma)}, 3, {v(R.vT0)}
    v_lshl_add_u32 {v(vVma)}, {v(R.vT2)}, 4, {v(vVma)}
    ; O address: (q>>4)*128K + h2*256 + (q&15)*16
    v_and_b32 {v(vOa)}, 15, {v(R.vL)}
    v_lshlrev_b32 {v(vOa)}, 4, {v(vOa)}
    v_lshl_add_u32 {v(vOa)}, {v(R.vT0)}, 8, {v(vOa)}
    v_bfe_u32 {v(R.vT3)}, {v(R.vL)}, 4, 1
    v_lshl_add_u32 {v(vOa)}, {v(R.vT3)}, 17, {v(vOa)}
    v_lshrrev_b32 {v(vFa)}, 2, {v(R.vL)}
    v_and_b32 {v(R.vT3)}, 3, {v(R.vL)}
    v_lshl_add_u32 {v(vFa)}, {v(vFa)}, 7, {v(R.vT3)}
    s_lshl_b32 {s(R.sT0)}, {s(sHead)}, 2
    v_add_u32 {v(vFa)}, {s(R.sT0)}, {v(vFa)}
    v_lshlrev_b32 {v(vFa)}, 7, {v(vFa)}
    v_add_u32 {v(vFa)}, {WS_FLAG + FLAG_P}, {v(vFa)}
    v_mov_b32 {v(vFl)}, 0
    s_lshl_b32 {s(R.sT1)}, {s(R.sWv)}, 7
    s_add_u32 {s(R.sT1)}, {s(R.sT1)}, {s(R.sT0)}
    s_add_u32 {s(R.sT1)}, {s(R.sT1)}, {WS_FLAG + FLAG_T}
    v_mov_b32 {v(R.vFlag)}, {s(R.sT1)}
    v_cmp_eq_u32 vcc, 0, {v(R.vL)}
    v_cndmask_b32 {v(R.vFlag)}, {v(vTf)}, {v(R.vFlag)}, vcc
    v_lshlrev_b32 {v(R.vT0)}, 3, {v(R.vT0)}
    v_sub_u32 {v(R.vT1)}, {v(R.vT1)}, {v(R.vT0)}      ; q - 8*h2 (signed)
    s_mov_b32 {s(sC)}, {f32bits(128 ** -0.5 * math.log2(math.e))}
    s_mov_b32 {s(sSeg)}, {s(R.sWv)}
    s_mul_i32 {s(sQ)}, {s(R.sT0)}, {BLK}
    s_lshl_b32 {s(R.sT1)}, {s(sSeg)}, 11
    s_add_u32 {s(sQ)}, {s(sQ)}, {s(R.sT1)}
    s_mul_i32 {s(sKm)}, {s(R.sT0)}, {MBLK}
    s_lshl_b32 {s(R.sT1)}, {s(sSeg)}, 9
    s_add_u32 {s(sKm)}, {s(sKm)}, {s(R.sT1)}
    s_add_u32 {s(sKm)}, {s(sKm)}, {WS_KM}
    s_lshl_b32 {s(sOo)}, {s(sSeg)}, 18
    s_lshl_b32 {s(R.sT1)}, {s(sHead)}, 12
    s_add_u32 {s(sOo)}, {s(sOo)}, {s(R.sT1)}
    s_add_u32 {s(sOo)}, {s(sOo)}, {WS_O}
    v_mov_b32 {v(vTf)}, 0xff800000
    """)
    for r in range(16): A(f"v_cmp_le_i32 {s(sMask+2*r,2)}, {16*(r>>3) + (r&7)}, {v(R.vT1)}")
    for es in range(4):
        A(f"v_mov_b32 {v(vVM+4*es+2)}, 0"); A(f"v_mov_b32 {v(vVM+4*es+3)}, 0")
    A(f"v_mov_b32 {v(vP+10)}, 0"); A(f"v_mov_b32 {v(vP+11)}, 0")
    A.label("T_top")
    A(f"s_mov_b32 {s(sCnt)}, {s(sGive)}")
    A.label("T_fl")
    A(f"""v_cmp_ge_u32 vcc, {s(sSeg)}, {v(vFl)}
    s_and_b32 {s(R.sT0)}, vcc_lo, 0xfff
    s_cbranch_scc0 T_go
    s_cmp_ge_u32 {s(sCnt)}, {SPIN}
    s_cselect_b32 {s(sGive)}, {SPIN}, {s(sGive)}
    s_cbranch_scc1 T_go
    s_add_u32 {s(sCnt)}, {s(sCnt)}, 1
    s_mov_b64 exec, 0xfff
    buffer_load_dword {v(vFl)}, {v(vFa)}, {s(R.sWS,4)}, 0 offen sc1
    s_mov_b64 exec, -1
    s_sleep 8
    s_waitcnt vmcnt(0)
    s_branch T_fl""")
    A.label("T_go")
    for mat, reg, va in ((0, vQ, vQa), (1, vK, vKa), (2, vV, vKa)):
        for es in range(4):
            A(f"s_add_u32 {s(R.sT0)}, {s(sQ)}, {mat*QKV_STRIDE + es*BLK}")
            for u in range(2):
                A(f"buffer_load_dwordx4 {v(reg+(es*2+u)*4,4)}, {v(va)}, {s(R.sWS,4)}, {s(R.sT0)} offen offset:{32*u} sc1")
    def ldm():
        for es in range(4):
            A(f"s_add_u32 {s(R.sT0)}, {s(sKm)}, {es*MBLK}")
            A(f"s_add_u32 {s(R.sT1)}, {s(sKm)}, {es*MBLK + WS_VMT - WS_KM}")
            for u in range(2):
                A(f"buffer_load_dwordx4 {v(vKM+(es*2+u)*4,4)}, {v(vKma)}, {s(R.sWS,4)}, {s(R.sT0)} offen offset:{32*u} sc1")
            A(f"buffer_load_dwordx2 {v(vVM+4*es,2)}, {v(vVma)}, {s(R.sWS,4)}, {s(R.sT1)} offen sc1")
    ldm()
    A("s_waitcnt vmcnt(20)")
    for k in range(8):
        A(f"v_mfma_f32_32x32x16_bf16 {v(vS,16)}, {v(vK+4*k,4)}, {v(vQ+4*k,4)}, {v(vS,16) if k else 0}")
    A(f"s_mov_b32 {s(sCnt)}, {s(sGive)}")
    for r in range(16): A(f"v_cndmask_b32 {v(vS+r)}, {v(vTf)}, {v(vS+r)}, {s(sMask+2*r,2)}")
    A(f"v_max3_f32 {v(vMx)}, {v(vS)}, {v(vS+1)}, {v(vS+2)}")
    for r in range(3, 15, 2): A(f"v_max3_f32 {v(vMx)}, {v(vMx)}, {v(vS+r)}, {v(vS+r+1)}")
    A(f"v_max_f32 {v(vMx)}, {v(vMx)}, {v(vS+15)}")
    A.label("T_mw")
    A("s_waitcnt vmcnt(0)")
    regs = list(range(vKM, vKM + 32)) + [vVM + 4*es + k for es in range(4) for k in range(2)]
    A(f"v_max_u32 {v(R.vT0)}, {v(regs[0])}, {v(regs[1])}")
    for k in range(2, 40, 2): A(f"v_max3_u32 {v(R.vT0)}, {v(R.vT0)}, {v(regs[k])}, {v(regs[k+1])}")
    A(f"""v_cmp_eq_u32 vcc, -1, {v(R.vT0)}
    s_cbranch_vccz T_mok
    s_cmp_ge_u32 {s(sCnt)}, {SPIN}
    s_cselect_b32 {s(sGive)}, {SPIN}, {s(sGive)}
    s_cbranch_scc1 T_mok
    s_add_u32 {s(sCnt)}, {s(sCnt)}, 1
    s_sleep 4""")
    ldm()
    A("s_branch T_mw")
    A.label("T_mok")
    for k in range(8):
        A(f"v_mfma_f32_32x32x16_bf16 {v(vSM,16)}, {v(vKM+4*k,4)}, {v(vQ+4*k,4)}, {v(vSM,16) if k else 0}")
    A(f"v_max3_f32 {v(vMx)}, {v(vMx)}, {v(vSM)}, {v(vSM+1)}")
    A(f"v_max3_f32 {v(vMx)}, {v(vMx)}, {v(vSM+2)}, {v(vSM+3)}")
    def x32(op, x):
        A(f"""v_mov_b32 {v(R.vT0)}, {v(x)}
        v_permlane32_swap_b32 {v(x)}, {v(R.vT0)}
        {op} {v(x)}, {v(x)}, {v(R.vT0)}""")
    x32("v_max_f32", vMx)
    A(f"v_mul_f32 {v(vMx)}, {s(sC)}, {v(vMx)}")
    for r in range(20): A(f"v_fma_f32 {v(vS+r)}, {v(vS+r)}, {s(sC)}, -{v(vMx)}")
    for r in range(20): A(f"v_exp_f32 {v(vS+r)}, {v(vS+r)}")
    A(f"v_add_f32 {v(vSm)}, {v(vS)}, {v(vS+1)}")
    A(f"v_add_f32 {v(R.vT1)}, {v(vS+2)}, {v(vS+3)}")
    for r in range(4, 20, 2):
        A(f"v_add_f32 {v(vSm)}, {v(vSm)}, {v(vS+r)}")
        A(f"v_add_f32 {v(R.vT1)}, {v(R.vT1)}, {v(vS+r+1)}")
    A(f"v_add_f32 {v(vSm)}, {v(vSm)}, {v(R.vT1)}")
    x32("v_add_f32", vSm)
    A(f"v_rcp_f32 {v(vSm)}, {v(vSm)}")
    for r in range(20): A(f"v_mul_f32 {v(vS+r)}, {v(vS+r)}, {v(vSm)}")
    for r in range(10): A(f"v_cvt_pk_bf16_f32 {v(vP+r)}, {v(vS+2*r)}, {v(vS+2*r+1)}")
    for es in range(4):
        d = v(vO + 16*es, 16)
        A(f"v_mfma_f32_32x32x16_bf16 {d}, {v(vV+8*es,4)}, {v(vP,4)}, 0")
        A(f"v_mfma_f32_32x32x16_bf16 {d}, {v(vV+8*es+4,4)}, {v(vP+4,4)}, {d}")
        A(f"v_mfma_f32_32x32x16_bf16 {d}, {v(vVM+4*es,4)}, {v(vP+8,4)}, {d}")
        if es >= 1:
            e = es - 1
            for r in range(8): A(f"v_cvt_pk_bf16_f32 {v(vPk+8*e+r)}, {v(vO+16*e+2*r)}, {v(vO+16*e+2*r+1)}")
            for u in range(2): A(f"buffer_store_dwordx4 {v(vPk+8*e+4*u,4)}, {v(vOa)}, {s(R.sWS,4)}, {s(sOo)} offen offset:{1024*e + 512*u} sc1")
    e = 3
    for r in range(8): A(f"v_cvt_pk_bf16_f32 {v(vPk+8*e+r)}, {v(vO+16*e+2*r)}, {v(vO+16*e+2*r+1)}")
    for u in range(2): A(f"buffer_store_dwordx4 {v(vPk+8*e+4*u,4)}, {v(vOa)}, {s(R.sWS,4)}, {s(sOo)} offen offset:{1024*e + 512*u} sc1")
    A(f"""s_add_u32 {s(sSeg)}, {s(sSeg)}, 4
    s_lshr_b32 {s(R.sT0)}, {s(sSeg)}, 2
    v_mov_b32 {v(R.vFv)}, {s(R.sT0)}
    s_add_u32 {s(sQ)}, {s(sQ)}, {4*2048}
    s_add_u32 {s(sKm)}, {s(sKm)}, {4*512}
    s_add_u32 {s(sOo)}, {s(sOo)}, {4 << 18}
    s_waitcnt vmcnt(0)
    buffer_store_dword {v(R.vFv)}, {v(R.vFlag)}, {s(R.sWS,4)}, 0 offen sc1
    s_cmp_lt_u32 {s(sSeg)}, 64
    s_cbranch_scc1 T_top
    s_branch {done}""")

def gen_U(A, sGrp, sCol, done, sGive, ngrp=3, ts=False):
    R = SR
    sN, sCnt, sLd, sOut, sPar, sNx = 28, 29, 30, 31, 32, 33
    vLa, vFa, vFl, vOa, vLw, vLr = range(10, 16)
    vAcc = 16
    vRed = 24
    vF = 64
    A(f"""
    s_load_dwordx2 {s(R.sX,2)}, s[0:1], {KA_WO}
    s_load_dwordx2 {s(R.sO,2)}, s[0:1], {KA_OUT}
    s_mov_b32 {s(R.sX+2)}, {8*MB}
    s_mov_b32 {s(R.sX+3)}, 0x20000
    s_mov_b32 {s(R.sO+2)}, {8*MB}
    s_mov_b32 {s(R.sO+3)}, 0x20000
    s_lshl_b32 {s(R.sSrc)}, {s(R.sWv)}, 21
    s_lshl_b32 {s(R.sT0)}, {s(sCol)}, 6
    s_add_u32 {s(R.sSrc)}, {s(R.sSrc)}, {s(R.sT0)}
    s_waitcnt lgkmcnt(0)
    s_barrier
    """)
    load_weights_tr(A, R, R.sX, R.sSrc, 2048)
    if ts: tstamp(A, R, 3)
    A(f"""
    v_lshlrev_b32 {v(vLr)}, 4, {v(R.vL)}
    s_lshl_b32 {s(R.sT0)}, {s(R.sWv)}, 15
    v_add_u32 {v(vLa)}, {s(R.sT0)}, {v(vLr)}
    s_lshl_b32 {s(R.sT0)}, {s(R.sWv)}, 11
    v_add_u32 {v(vLw)}, {s(R.sT0)}, {v(vLr)}
    v_bfe_u32 {v(vFa)}, {v(R.vL)}, 3, 2
    v_and_b32 {v(R.vT0)}, 7, {v(R.vL)}
    v_lshlrev_b32 {v(R.vT0)}, 2, {v(R.vT0)}
    v_lshl_add_u32 {v(vFa)}, {v(vFa)}, 7, {v(R.vT0)}
    s_lshl_b32 {s(R.sT0)}, {s(R.sWv)}, 5
    s_add_u32 {s(R.sT0)}, {s(R.sT0)}, {WS_FLAG + FLAG_T}
    v_add_u32 {v(vFa)}, {s(R.sT0)}, {v(vFa)}
    v_mov_b32 {v(vFl)}, 0
    v_and_b32 {v(vOa)}, 15, {v(R.vL)}
    v_and_b32 {v(R.vT0)}, 48, {v(R.vL)}
    v_lshl_add_u32 {v(vOa)}, {v(vOa)}, 12, {v(R.vT0)}
    s_lshl_b32 {s(R.sT0)}, {s(sCol)}, 6
    s_add_u32 {s(R.sT0)}, {s(R.sT0)}, 2048
    v_add_u32 {v(vOa)}, {s(R.sT0)}, {v(vOa)}
    s_mov_b32 {s(sN)}, {s(sGrp)}
    s_mov_b32 {s(sPar)}, 0
    s_barrier
    """)
    def ready(sItem):
        return [f"s_lshr_b32 {s(R.sT0)}, {s(sItem)}, 3",
                f"v_cmp_ge_u32 vcc, {s(R.sT0)}, {v(vFl)}",
                f"s_lshl_b32 {s(R.sT1)}, {s(sItem)}, 2",
                f"s_and_b32 {s(R.sT1)}, {s(R.sT1)}, 24",
                f"s_lshr_b32 {s(R.sT0)}, vcc_lo, {s(R.sT1)}",
                f"s_and_b32 {s(R.sT0)}, {s(R.sT0)}, 0xff"]
    def ld(ks):
        o = []
        if ks % 4 == 0 and ks: o.append(f"s_add_u32 {s(sLd)}, {s(sLd)}, 4096")
        o.append(f"buffer_load_dwordx4 {v(vF+4*ks,4)}, {v(vLa)}, {s(R.sWS,4)}, {s(sLd)} offen offset:{(ks%4)*1024} sc1")
        return o
    def setld(sItem):
        return [f"s_lshl_b32 {s(sLd)}, {s(sItem)}, 17", f"s_add_u32 {s(sLd)}, {s(sLd)}, {WS_O}"]
    A.label("U_wait")
    A(f"s_mov_b32 {s(sCnt)}, {s(sGive)}")
    A.label("U_fl")
    for x in ready(sN): A(x)
    A(f"""s_cbranch_scc0 U_go
    s_cmp_ge_u32 {s(sCnt)}, {SPIN}
    s_cselect_b32 {s(sGive)}, {SPIN}, {s(sGive)}
    s_cbranch_scc1 U_go
    s_add_u32 {s(sCnt)}, {s(sCnt)}, 1
    s_mov_b64 exec, 0xffffffff
    buffer_load_dword {v(vFl)}, {v(vFa)}, {s(R.sWS,4)}, 0 offen sc1
    s_mov_b64 exec, -1
    s_sleep 2
    s_waitcnt vmcnt(0)
    s_branch U_fl""")
    A.label("U_go")
    for x in setld(sN): A(x)
    for ks in range(32):
        for x in ld(ks): A(x)
    A.label("U_item")
    A(f"s_add_u32 {s(sNx)}, {s(sN)}, {ngrp}")
    for x in ready(sNx): A(x)
    A("s_cbranch_scc1 U_b")
    def mm(ks):
        for t in range(2):
            d = v(vAcc + 4*t, 4)
            A(f"v_mfma_f32_16x16x32_bf16 {d}, {a(aw(t, ks),4)}, {v(vF+4*ks,4)}, {d if ks else 0}")
    def fin(nxt):
        L = A.newlabel("Uf")
        A(f"""s_lshl_b32 {s(sOut)}, {s(sN)}, 16
        v_add_u32 {v(R.vT0)}, {s(sPar)}, {v(vLw)}
        v_add_u32 {v(R.vT1)}, {s(sPar)}, {v(vLr)}
        s_xor_b32 {s(sPar)}, {s(sPar)}, 8192
        s_mov_b32 {s(sN)}, {s(sNx)}
        ds_write_b128 {v(R.vT0)}, {v(vAcc,4)}
        ds_write_b128 {v(R.vT0)}, {v(vAcc+4,4)} offset:1024
        s_waitcnt lgkmcnt(0)
        s_barrier
        s_cmp_lg_u32 {s(R.sWv)}, 0
        s_cbranch_scc1 {L}""")
        for k in range(6): A(f"ds_read_b128 {v(vRed+4*k,4)}, {v(R.vT1)} offset:{2048 + 1024*k}")
        A("s_waitcnt lgkmcnt(4)")
        for r in range(8): A(f"v_add_f32 {v(vRed+r)}, {v(vAcc+r)}, {v(vRed+r)}")
        A("s_waitcnt lgkmcnt(0)")
        for r in range(8): A(f"v_add_f32 {v(vRed+8+r)}, {v(vRed+8+r)}, {v(vRed+16+r)}")
        for r in range(8): A(f"v_add_f32 {v(vRed+r)}, {v(vRed+r)}, {v(vRed+8+r)}")
        for r in range(4): A(f"v_cvt_pk_bf16_f32 {v(vRed+24+r)}, {v(vRed+2*r)}, {v(vRed+2*r+1)}")
        A(f"buffer_store_dwordx4 {v(vRed+24,4)}, {v(vOa)}, {s(R.sO,4)}, {s(sOut)} offen")
        A.label(L)
        A(f"""s_cmp_lt_u32 {s(sN)}, 128
        s_cbranch_scc1 {nxt}
        s_branch {done}""")
    for x in setld(sNx): A(x)
    for ks in range(32):
        A(f"s_waitcnt vmcnt({31 if ks == 0 else 30})")
        mm(ks)
        if ks:
            for x in ld(ks - 1): A(x)
    A("s_nop 7")
    for x in ld(31): A(x)
    fin("U_item")
    A.label("U_b")
    for ks in range(32):
        A(f"s_waitcnt vmcnt({31 - ks})")
        mm(ks)
    fin("U_wait")
```

```python
import sys
from asmlib import *
from layout import *

HEADER = open("/code/" + NAME + ".s.ref").read().split("; Override launch")[0] if __import__("os").path.exists("/code/" + NAME + ".s.ref") else ""

def kernel_text(name, A, vgpr=512, sgpr=102, accum=256):
    A.fix_hazards()
    body = A.text()
    return (f".globl {name}\n.p2align 8\n.type {name},@function\n{name}:\n{body}",
            f""".p2align 6
.amdhsa_kernel {name}
  .amdhsa_next_free_vgpr {vgpr}
  .amdhsa_next_free_sgpr {sgpr}
  .amdhsa_accum_offset {accum}
  .amdhsa_group_segment_fixed_size 0
  .amdhsa_kernarg_size 104
  .amdhsa_user_sgpr_count 2
  .amdhsa_user_sgpr_kernarg_segment_ptr 1
  .amdhsa_system_sgpr_workgroup_id_x 1
  .amdhsa_float_denorm_mode_32 3
.end_amdhsa_kernel
""")

def assemble_file(launches, kernels):
    out = HEADER
    for n, g, b, l in launches:
        out += f"; @launch kernel={n} grid=({g},1,1) block=({b},1,1) lds={l}\n"
    out += '.amdgcn_target "amdgcn-amd-amdhsa--gfx950"\n.text\n'
    for t, d in kernels: out += t
    out += '.section .rodata,"a"\n'
    for t, d in kernels: out += d
    return out
```

```python
from asmlib import *
from layout import *
from stream import *
import struct, math
def f32bits(x): return struct.unpack("<I", struct.pack("<f", x))[0]
SPIN = 1 << 20
ZCH = 32768 + 256

def gen_dft_weights(A, R, name, vB, vD1, vD2, vInc):
    vP = 40; vC = 48; vK = 56
    A(f"""v_lshlrev_b32 {v(R.vT3)}, 4, {v(R.vL)}
    s_lshl_b32 {s(R.sT1)}, {s(R.sWv)}, 15
    v_add_u32 {v(R.vT3)}, {s(R.sT1)}, {v(R.vT3)}""")
    for rnd in range(2):
        L = f"{name}_g{rnd}"
        A(f"""v_mov_b32 {v(R.vT2)}, {v(R.vT3)}
        s_mov_b32 {s(R.sIt)}, 0""")
        A.label(L)
        for t in range(2):
            A(f"v_fract_f32 {v(vP)}, {v(vB+t)}")
            for j in range(1, 8): A(f"v_add_f32 {v(vP+j)}, {v(vP+j-1)}, {v((vD1 if j & 1 else vD2)+t)}")
            A(f"v_add_f32 {v(vB+t)}, {v(vP)}, {v(vInc+t)}")
            for j in range(8): A(f"v_cos_f32 {v(vC+j)}, {v(vP+j)}")
            for j in range(4): A(f"v_cvt_pk_bf16_f32 {v(vK+4*t+j)}, {v(vC+2*j)}, {v(vC+2*j+1)}")
            A(f"ds_write_b128 {v(R.vT2)}, {v(vK+4*t,4)} offset:{1024*t}")
        A(f"""v_add_u32 {v(R.vT2)}, 2048, {v(R.vT2)}
        s_add_u32 {s(R.sIt)}, {s(R.sIt)}, 1
        s_cmp_lt_u32 {s(R.sIt)}, 16
        s_waitcnt lgkmcnt(0)
        s_cbranch_scc1 {L}""")
        for k in range(32):
            A(f"ds_read_b128 {a(rnd*128 + 4*k, 4)}, {v(R.vT3)} offset:{1024*k}")
            if k % 8 == 7: A("s_waitcnt lgkmcnt(7)")
        A("s_waitcnt lgkmcnt(0)")

def wait_flags(A, R, name, vFa, nl, thr, sGive, sCnt):
    m = (1 << nl) - 1
    A(f"s_mov_b32 {s(sCnt)}, {s(sGive)}")
    A.label(name)
    A(f"""buffer_load_dword {v(R.vT0)}, {v(vFa)}, {s(R.sWS,4)}, 0 offen sc1
    s_waitcnt vmcnt(0)
    v_cmp_gt_u32 vcc, {thr}, {v(R.vT0)}""")
    if nl == 64: A("s_cmp_lg_u64 vcc, 0")
    else: A(f"s_and_b32 {s(R.sT0)}, vcc_lo, {m}")
    A(f"""s_cbranch_scc0 {name}_ok
    s_cmp_ge_u32 {s(sCnt)}, {SPIN}
    s_cselect_b32 {s(sGive)}, {SPIN}, {s(sGive)}
    s_cbranch_scc1 {name}_ok
    s_add_u32 {s(sCnt)}, {s(sCnt)}, 1
    s_sleep 8
    s_branch {name}""")
    A.label(name + "_ok")

def gen_F(A, sCu, done, sGive, rdv=None, ts=False):
    R = SR
    sTg, sBlk, sCnt, sT2 = 28, 29, 30, 31
    vB, vD1, vD2, vInc = 30, 32, 34, 36
    sWr, sWi = R.sX, R.sO
    vPi, vH, vAd, vSh, vWa = 10, 11, 12, 13, 14
    vIn, vOut = 20, 100
    pi_lane(A, vPi, R.vL, R.vT0, R.vT1)
    A(f"""
    s_load_dwordx2 {s(sWr,2)}, s[0:1], {KA_WR}
    s_load_dwordx2 {s(sWi,2)}, s[0:1], {KA_WI}
    s_mov_b32 {s(sWr+2)}, {2048*1026}
    s_mov_b32 {s(sWr+3)}, 0x20000
    s_mov_b32 {s(sWi+2)}, {2048*1026}
    s_mov_b32 {s(sWi+3)}, 0x20000
    v_lshrrev_b32 {v(vH)}, 5, {v(R.vL)}
    v_lshl_add_u32 {v(vAd)}, {v(vH)}, 9, {v(vPi)}             ; pi + 512 h
    v_mul_u32_u24 {v(vAd)}, 1026, {v(vAd)}
    v_and_b32 {v(vSh)}, 1, {v(R.vL)}
    v_lshlrev_b32 {v(vSh)}, 4, {v(vSh)}
    v_lshlrev_b32 {v(vWa)}, 4, {v(R.vL)}
    s_lshr_b32 {s(R.sT0)}, {s(R.sWv)}, 1
    s_and_b32 {s(R.sT1)}, {s(R.sWv)}, 1
    s_lshl_b32 {s(R.sT0)}, {s(R.sT0)}, 5
    s_lshl_b32 {s(R.sT1)}, {s(R.sT1)}, 10
    s_add_u32 {s(R.sT0)}, {s(R.sT0)}, {s(R.sT1)}
    s_mul_i32 {s(R.sSrc)}, {s(R.sT0)}, 1026
    s_lshl_b32 {s(R.sT0)}, {s(sCu)}, 5
    s_add_u32 {s(R.sSrc)}, {s(R.sSrc)}, {s(R.sT0)}
    s_lshl_b32 {s(R.sDst)}, {s(sCu)}, 17
    s_lshl_b32 {s(R.sT0)}, {s(R.sWv)}, 11
    s_add_u32 {s(R.sDst)}, {s(R.sDst)}, {s(R.sT0)}
    s_add_u32 {s(R.sDst)}, {s(R.sDst)}, {WS_WT}
    v_and_b32 {v(R.vT2)}, -4, {v(vAd)}
    s_mov_b32 {s(sTg)}, 0x05040100
    s_mov_b32 {s(sBlk)}, 0x07060302
    s_waitcnt lgkmcnt(0)
    """)
    for q in range(2):
        for jj in range(4):
            for m, srd in enumerate((sWr, sWi)):
                b = vIn + jj*20 + m*10
                A(f"buffer_load_dwordx4 {v(b,4)}, {v(R.vT2)}, {s(srd,4)}, {s(R.sSrc)} offen")
                A(f"buffer_load_dwordx4 {v(b+4,4)}, {v(R.vT2)}, {s(srd,4)}, {s(R.sSrc)} offen offset:16")
                A(f"buffer_load_dword {v(b+8)}, {v(R.vT2)}, {s(srd,4)}, {s(R.sSrc)} offen offset:32")
            A(f"s_add_u32 {s(R.sSrc)}, {s(R.sSrc)}, {64*1026}")
        A("s_waitcnt vmcnt(0)")
        for jj in range(4):
            for m in range(2):
                b = vIn + jj*20 + m*10
                for k in range(8): A(f"v_alignbit_b32 {v(b+k)}, {v(b+k+1)}, {v(b+k)}, {v(vSh)}")
            b = vIn + jj*20
            for k in range(8):
                A(f"v_perm_b32 {v(vOut + (2*k)*4 + jj)}, {v(b+10+k)}, {v(b+k)}, {s(sTg)}")
                A(f"v_perm_b32 {v(vOut + (2*k+1)*4 + jj)}, {v(b+10+k)}, {v(b+k)}, {s(sBlk)}")
        for cc in range(16):
            A(f"s_add_u32 {s(R.sT0)}, {s(R.sDst)}, {cc*8192 + q*1024}")
            A(f"buffer_store_dwordx4 {v(vOut+4*cc,4)}, {v(vWa)}, {s(R.sWS,4)}, {s(R.sT0)} offen")
    A(f"""s_cmp_lg_u32 {s(sCu)}, 0
    s_cbranch_scc1 F_no512
    s_sub_u32 {s(R.sSrc)}, {s(R.sSrc)}, {8*64*1026 - 1024}""")
    for j in range(8):
        A(f"buffer_load_ushort {v(vIn+j)}, {v(vAd)}, {s(sWr,4)}, {s(R.sSrc)} offen")
        A(f"buffer_load_ushort {v(vIn+8+j)}, {v(vAd)}, {s(sWi,4)}, {s(R.sSrc)} offen")
        A(f"s_add_u32 {s(R.sSrc)}, {s(R.sSrc)}, {64*1026}")
    A("s_waitcnt vmcnt(0)")
    for j in range(8): A(f"v_lshl_or_b32 {v(vIn+j)}, {v(vIn+8+j)}, 16, {v(vIn+j)}")
    A(f"""s_add_u32 {s(R.sT0)}, {s(R.sDst)}, {512*8192}
    buffer_store_dwordx4 {v(vIn,4)}, {v(vWa)}, {s(R.sWS,4)}, {s(R.sT0)} offen
    buffer_store_dwordx4 {v(vIn+4,4)}, {v(vWa)}, {s(R.sWS,4)}, {s(R.sT0)} offen offset:1024""")
    A.label("F_no512")
    A(f"""
    s_load_dwordx2 {s(R.sX,2)}, s[0:1], {KA_AX}
    s_load_dwordx2 {s(R.sO,2)}, s[0:1], {KA_OUT}
    s_mov_b32 {s(R.sX+2)}, {4*MB}
    s_mov_b32 {s(R.sO+2)}, {8*MB}
    s_lshr_b32 {s(sTg)}, {s(sCu)}, 3
    s_and_b32 {s(sBlk)}, {s(sCu)}, 7
    s_lshl_b32 {s(sBlk)}, {s(sBlk)}, 2
    s_add_u32 {s(sBlk)}, {s(sBlk)}, {s(R.sWv)}
    s_waitcnt vmcnt(0) lgkmcnt(0)
    """)
    def colidx(dst):
        perm16(A, dst, R.vL, R.vT0, False)
        A(f"""s_lshl_b32 {s(R.sT0)}, {s(sBlk)}, 5
        v_add_u32 {v(dst)}, {s(R.sT0)}, {v(dst)}""")
    colidx(R.vT2)
    A(f"""v_lshrrev_b32 {v(R.vT3)}, 4, {v(R.vL)}
    v_cvt_f32_u32 {v(R.vT3)}, {v(R.vT3)}
    s_mov_b32 {s(sT2)}, {f32bits(1/1024)}""")
    for t in range(2):
        A(f"""v_add_u32 {v(R.vT0)}, {4*t}, {v(R.vT2)}
        v_lshrrev_b32 {v(R.vT1)}, 1, {v(R.vT0)}
        v_and_b32 {v(vB+t)}, 1, {v(R.vT0)}
        v_cmp_eq_u32 vcc, 1, {v(R.vT0)}
        v_mov_b32 {v(R.vT0)}, 512
        v_cndmask_b32 {v(R.vT1)}, {v(R.vT1)}, {v(R.vT0)}, vcc
        v_cndmask_b32 {v(vB+t)}, {v(vB+t)}, 0, vcc
        v_cvt_f32_u32 {v(R.vT1)}, {v(R.vT1)}
        v_cvt_f32_u32 {v(vB+t)}, {v(vB+t)}
        v_mul_f32 {v(vD1+t)}, {s(sT2)}, {v(R.vT1)}
        v_mul_f32 {v(vB+t)}, 0x3e800000, {v(vB+t)}
        v_mov_b32 {v(vD2+t)}, {v(vD1+t)}
        v_mul_f32 {v(vInc+t)}, 0x42000000, {v(vD1+t)}
        v_mul_f32 {v(R.vT0)}, 0x41000000, {v(vD1+t)}
        v_fma_f32 {v(vB+t)}, {v(R.vT0)}, {v(R.vT3)}, {v(vB+t)}""")
    gen_dft_weights(A, R, "F1", vB, vD1, vD2, vInc)
    if rdv: rdv()
    if ts: tstamp(A, R, 1)
    setup_reads(A, R)
    dma_rows(A, R, R.vT2, R.vT3)
    perm16(A, R.vSrc, R.vT2, R.vT0, True)
    perm16(A, R.vDst, R.vL, R.vT0, False)
    A(f"""
    v_lshlrev_b32 {v(R.vSrc)}, 16, {v(R.vSrc)}
    v_lshl_add_u32 {v(R.vSrc)}, {v(R.vT3)}, 4, {v(R.vSrc)}
    v_and_b32 {v(R.vT0)}, 48, {v(R.vL)}
    v_lshl_add_u32 {v(R.vDst)}, {v(R.vDst)}, 6, {v(R.vT0)}
    s_mul_i32 {s(R.sDst)}, {s(sBlk)}, {BLK}
    s_lshl_b32 {s(R.sT0)}, {s(sTg)}, 15
    s_add_u32 {s(R.sDst)}, {s(R.sDst)}, {s(R.sT0)}
    s_add_u32 {s(R.sDst)}, {s(R.sDst)}, {WS_Y}
    s_and_b32 {s(R.sSrc)}, {s(sTg)}, 1
    s_lshl_b32 {s(R.sSrc)}, {s(R.sSrc)}, 15
    s_lshr_b32 {s(R.sT0)}, {s(sTg)}, 1
    s_lshl_b32 {s(R.sT0)}, {s(R.sT0)}, 21
    s_add_u32 {s(R.sSrc)}, {s(R.sSrc)}, {s(R.sT0)}
    s_mov_b32 {s(R.sSrcStep)}, 2048
    s_mov_b32 {s(R.sDstStep)}, 2048
    s_barrier
    """)
    def dma1(half, b, lds):
        off = half * 1024 + b * 128
        return [f"s_add_u32 m0, {s(R.sM0)}, {lds - off}", f"buffer_load_dwordx4 {v(R.vSrc)}, {s(R.sX,4)}, {s(R.sSrc)} offen offset:{off} lds"]
    def store1(u):
        return [f"buffer_store_dwordx4 {v(R.vPk+4*u,4)}, {v(R.vDst)}, {s(R.sWS,4)}, {s(R.sDst)} offen offset:{256*u} sc1"]
    stream_loop(A, R, "F1", 16, True, dma1, store1, flag=False)
    A("s_barrier")
    def setflag(sIdx, base):
        A(f"""s_lshl_b32 {s(R.sT0)}, {s(sIdx)}, 2
        s_add_u32 {s(R.sT0)}, {s(R.sT0)}, {WS_FLAG + base}
        v_mov_b32 {v(R.vT0)}, {s(R.sT0)}
        v_mov_b32 {v(R.vT1)}, 1
        s_mov_b64 exec, 1
        buffer_store_dword {v(R.vT1)}, {v(R.vT0)}, {s(R.sWS,4)}, 0 offen sc1
        s_mov_b64 exec, -1""")
    A(f"""s_lshl_b32 {s(sT2)}, {s(sBlk)}, 2
    s_add_u32 {s(sT2)}, {s(sT2)}, {s(sTg)}""")
    setflag(sT2, FLAG_F)
    if ts: tstamp(A, R, 2)
    aC64, aS64, aN64, aC32, aS32, aN32, aOut = 0, 32, 64, 96, 104, 112, 120
    vTw = 160
    vAc, vOp, vW = 32, 96, 128
    vZa, vPf, vHf, vSo = 15, 16, 17, 18
    pi_lane(A, vPi, R.vL, R.vT0, R.vT1)
    A(f"""v_lshrrev_b32 {v(vH)}, 5, {v(R.vL)}
    v_cvt_f32_u32 {v(vPf)}, {v(vPi)}
    v_lshlrev_b32 {v(vHf)}, 3, {v(vH)}
    v_cvt_f32_u32 {v(vHf)}, {v(vHf)}
    v_lshlrev_b32 {v(vWa)}, 4, {v(R.vL)}""")
    def consts(dC, dS, dN, add, N, nks):
        A(f"""v_add_f32 {v(R.vT0)}, {f32bits(float(add))}, {v(vPf)}
        v_mul_f32 {v(R.vT0)}, {f32bits(1.0/N)}, {v(R.vT0)}
        v_mul_f32 {v(R.vT1)}, {v(R.vT0)}, {v(vHf)}
        v_mul_f32 {v(R.vT2)}, 0x41800000, {v(R.vT0)}""")
        for ks in range(nks):
            A(f"v_fract_f32 {v(vAc)}, {v(R.vT1)}")
            for j in range(1, 8): A(f"v_add_f32 {v(vAc+j)}, {v(vAc+j-1)}, {v(R.vT0)}")
            A(f"v_add_f32 {v(R.vT1)}, {v(vAc)}, {v(R.vT2)}")
            for j in range(8):
                A(f"v_cos_f32 {v(vAc+8+j)}, {v(vAc+j)}"); A(f"v_sin_f32 {v(vAc+16+j)}, {v(vAc+j)}")
            for j in range(4):
                A(f"v_cvt_pk_bf16_f32 {v(vAc+24)}, {v(vAc+8+2*j)}, {v(vAc+9+2*j)}")
                A(f"v_cvt_pk_bf16_f32 {v(vAc+25)}, {v(vAc+16+2*j)}, {v(vAc+17+2*j)}")
                A(f"v_accvgpr_write_b32 {a(dC+4*ks+j)}, {v(vAc+24)}")
                A(f"v_xor_b32 {v(vAc+26)}, 0x80008000, {v(vAc+25)}")
                A(f"v_accvgpr_write_b32 {a(dS+4*ks+j)}, {v(vAc+25)}")
                A(f"v_accvgpr_write_b32 {a(dN+4*ks+j)}, {v(vAc+26)}")
    for t in range(2): consts(aC64 + 16*t, aS64 + 16*t, aN64 + 16*t, 32*t, 64, 4)
    consts(aC32, aS32, aN32, 0, 32, 2)
    for k, (pa, ra) in enumerate(((0, 0), (32, 0), (0, 32))):
        A(f"""v_add_f32 {v(R.vT0)}, {f32bits(float(pa))}, {v(vPf)}
        v_mul_f32 {v(R.vT0)}, {f32bits(1.0/2048)}, {v(R.vT0)}""")
        for r in range(16):
            A(f"""v_add_f32 {v(R.vT1)}, {f32bits(float(16*(r>>3) + (r&7) + ra))}, {v(vHf)}
            v_mul_f32 {v(R.vT1)}, {v(R.vT1)}, {v(R.vT0)}
            v_cos_f32 {v(vTw+32*k+r)}, {v(R.vT1)}
            v_sin_f32 {v(vTw+32*k+16+r)}, {v(R.vT1)}""")
    sZr, sZi, sWo, sSc, sPass, sNp, sMsk = 32, 33, 34, 35, 36, 37, 38
    A(f"""
    v_lshlrev_b32 {v(vZa)}, 4, {v(vH)}
    v_lshl_add_u32 {v(vZa)}, {v(vPi)}, 11, {v(vZa)}
    v_lshlrev_b32 {v(vSo)}, 12, {v(vH)}
    v_lshl_add_u32 {v(vSo)}, {v(vPi)}, 4, {v(vSo)}
    s_mul_i32 {s(sZr)}, {s(sCu)}, {BLK}
    s_lshl_b32 {s(R.sT0)}, {s(R.sWv)}, 9
    s_add_u32 {s(sZr)}, {s(sZr)}, {s(R.sT0)}
    s_add_u32 {s(sZr)}, {s(sZr)}, {WS_Y}
    s_add_u32 {s(sZi)}, {s(sZr)}, 64
    s_lshl_b32 {s(sT2)}, {s(sCu)}, 2
    s_add_u32 {s(sT2)}, {s(sT2)}, {s(R.sWv)}          ; chunk index
    s_lshl_b32 {s(sWo)}, {s(sT2)}, 15
    s_add_u32 {s(sWo)}, {s(sWo)}, {WS_WT}
    s_mov_b32 {s(sMsk)}, 0xffff0000
    s_mov_b32 {s(sPass)}, 0
    s_cmp_eq_u32 {s(sT2)}, 0
    s_cselect_b32 {s(sNp)}, 5, 4
    s_cselect_b32 {s(sZi)}, {OOB}, {s(sZi)}
    s_cselect_b32 {s(sSc)}, {f32bits(2.0**-21)}, {f32bits(2.0**-20)}
    v_and_b32 {v(R.vT2)}, 3, {v(R.vL)}
    v_lshlrev_b32 {v(R.vT2)}, 2, {v(R.vT2)}
    s_lshl_b32 {s(R.sT0)}, {s(sCu)}, 4
    s_add_u32 {s(R.sT0)}, {s(R.sT0)}, {WS_FLAG + FLAG_F}
    v_add_u32 {v(R.vT2)}, {s(R.sT0)}, {v(R.vT2)}
    """.replace(f"s_cselect_b32 {s(sSc)}, {f32bits(2.0**-21)}, {f32bits(2.0**-20)}", f"s_mov_b32 {s(sSc)}, {f32bits(2.0**-20)}\n s_cselect_b32 {s(sSc)}, {f32bits(2.0**-21)}, {s(sSc)}"))
    wait_flags(A, R, "F2_w", R.vT2, 4, 1, sGive, sCnt)
    if ts: tstamp(A, R, 3, vt=24)
    def op(t_or_ks, im, u=None):
        ks = t_or_ks if u is None else 2*t_or_ks + u
        return v(vOp + 16*im + 4*ks, 4)
    def acc(t, im): return vAc + 32*t + 16*im
    def MF(d, x, y, first):
        A(f"v_mfma_f32_32x32x16_bf16 {v(d,16)}, {x}, {y}, {0 if first else v(d,16)}")
    def cmul_pack(tw, sign):
        for t in range(2):
            c0, s0 = tw(t)
            for r in range(0, 16, 2):
                for e in range(2):
                    re, im = acc(t, 0) + r + e, acc(t, 1) + r + e
                    A(f"v_mul_f32 {v(R.vT0+e)}, {v(re)}, {v(c0+r+e)}")
                    A(f"v_mul_f32 {v(R.vT2+e)}, {v(im)}, {v(c0+r+e)}")
                    A(f"v_fma_f32 {v(R.vT0+e)}, {'-' if sign > 0 else ''}{v(im)}, {v(s0+r+e)}, {v(R.vT0+e)}")
                    A(f"v_fma_f32 {v(R.vT2+e)}, {'-' if sign < 0 else ''}{v(re)}, {v(s0+r+e)}, {v(R.vT2+e)}")
                A(f"v_cvt_pk_bf16_f32 {v(vOp + 8*t + r//2)}, {v(R.vT0)}, {v(R.vT1)}")
                A(f"v_cvt_pk_bf16_f32 {v(vOp + 16 + 8*t + r//2)}, {v(R.vT2)}, {v(R.vT3)}")
    A.label("F2_top")
    for im, so in ((0, sZr), (1, sZi)):
        A(f"s_add_u32 {s(R.sT0)}, {s(so)}, 65536")
        for ks in range(4):
            A(f"buffer_load_dwordx4 {op(ks, im)}, {v(vZa)}, {s(R.sWS,4)}, {s(so if ks < 2 else R.sT0)} offen offset:{32*(ks&1)} sc1")
    A(f"s_add_u32 {s(R.sT0)}, {s(sWo)}, 4096")
    for q in range(8):
        A(f"buffer_load_dwordx4 {v(vW+4*q,4)}, {v(vWa)}, {s(R.sWS,4)}, {s(sWo if q < 4 else R.sT0)} offen offset:{1024*(q&3)} sc1")
    A("s_waitcnt vmcnt(8)")
    for t in range(2):
        for ks in range(4):
            MF(acc(t, 0), op(ks, 0), a(aC64+16*t+4*ks, 4), ks == 0); MF(acc(t, 1), op(ks, 1), a(aC64+16*t+4*ks, 4), ks == 0)
            MF(acc(t, 0), op(ks, 1), a(aS64+16*t+4*ks, 4), False); MF(acc(t, 1), op(ks, 0), a(aN64+16*t+4*ks, 4), False)
    cmul_pack(lambda t: (vTw + 32*t, vTw + 32*t + 16), -1)
    for t in range(2):
        for u in range(2):
            MF(acc(t, 0), a(aC32+4*u, 4), op(t, 0, u), u == 0); MF(acc(t, 1), a(aC32+4*u, 4), op(t, 1, u), u == 0)
            MF(acc(t, 0), a(aS32+4*u, 4), op(t, 1, u), False); MF(acc(t, 1), a(aN32+4*u, 4), op(t, 0, u), False)
    A("s_waitcnt vmcnt(0)")
    vWr, vWi = 20, 22
    for t in range(2):
        for r in range(0, 16, 2):
            for e in range(2):
                re, im = acc(t, 0) + r + e, acc(t, 1) + r + e
                w = vW + 16*t + r + e
                A(f"v_lshlrev_b32 {v(vWr+e)}, 16, {v(w)}")
                A(f"v_and_b32 {v(vWi+e)}, {s(sMsk)}, {v(w)}")
                A(f"v_mul_f32 {v(R.vT0+e)}, {v(re)}, {v(vWr+e)}")
                A(f"v_mul_f32 {v(R.vT2+e)}, {v(im)}, {v(vWr+e)}")
                A(f"v_fma_f32 {v(R.vT0+e)}, -{v(im)}, {v(vWi+e)}, {v(R.vT0+e)}")
                A(f"v_fma_f32 {v(R.vT2+e)}, {v(re)}, {v(vWi+e)}, {v(R.vT2+e)}")
            A(f"v_cvt_pk_bf16_f32 {v(vOp + 8*t + r//2)}, {v(R.vT0)}, {v(R.vT1)}")
            A(f"v_cvt_pk_bf16_f32 {v(vOp + 16 + 8*t + r//2)}, {v(R.vT2)}, {v(R.vT3)}")
    for t in range(2):
        for u in range(2):
            MF(acc(t, 0), op(t, 0, u), a(aC32+4*u, 4), u == 0); MF(acc(t, 1), op(t, 1, u), a(aC32+4*u, 4), u == 0)
            MF(acc(t, 0), op(t, 1, u), a(aN32+4*u, 4), False); MF(acc(t, 1), op(t, 0, u), a(aS32+4*u, 4), False)
    cmul_pack(lambda t: (vTw + 64*t, vTw + 64*t + 16), +1)
    for t in range(2):
        for ks in range(4):
            MF(acc(t, 0), a(aC64+16*t+4*ks, 4), op(ks, 0), ks == 0); MF(acc(t, 1), a(aC64+16*t+4*ks, 4), op(ks, 1), ks == 0)
            MF(acc(t, 0), a(aN64+16*t+4*ks, 4), op(ks, 1), False); MF(acc(t, 1), a(aS64+16*t+4*ks, 4), op(ks, 0), False)
    for t in range(2):
        for r in range(16):
            A(f"v_mul_f32 {v(acc(t,0)+r)}, {s(sSc)}, {v(acc(t,0)+r)}")
            A(f"v_mul_f32 {v(acc(t,1)+r)}, {s(sSc)}, {v(acc(t,1)+r)}")
            A(f"v_cvt_pk_bf16_f32 {v(vW+16*t+r)}, {v(acc(t,0)+r)}, {v(acc(t,1)+r)}")
    for p in range(1, 5):
        A(f"""s_cmp_eq_u32 {s(sPass)}, {p}
        s_cbranch_scc1 F2_o{p}""")
    for p in range(5):
        if p: A.label(f"F2_o{p}")
        for k in range(32):
            if p < 4:
                A(f"v_accvgpr_write_b32 {a(aOut+4*k+p)}, {v(vW+k)}")
            else:
                A(f"v_accvgpr_read_b32 {v(R.vT0)}, {a(aOut+4*k)}")
                A(f"v_lshlrev_b32 {v(R.vT1)}, 16, {v(vW+k)}")
                A(f"v_bfi_b32 {v(R.vT0)}, {s(sMsk)}, {v(R.vT1)}, {v(R.vT0)}")
                A(f"v_accvgpr_write_b32 {a(aOut+4*k)}, {v(R.vT0)}")
        if p < 4: A("s_branch F2_nx")
    A.label("F2_nx")
    A(f"""s_add_u32 {s(sPass)}, {s(sPass)}, 1
    s_add_u32 {s(sZr)}, {s(sZr)}, 128
    s_add_u32 {s(sZi)}, {s(sZr)}, 64
    s_add_u32 {s(sWo)}, {s(sWo)}, 8192
    s_mov_b32 {s(sSc)}, {f32bits(2.0**-20)}
    s_cmp_eq_u32 {s(sPass)}, 4
    s_cselect_b32 {s(sZr)}, {WS_Y + 64}, {s(sZr)}
    s_cselect_b32 {s(sZi)}, {OOB}, {s(sZi)}
    s_cselect_b32 {s(sWo)}, {WS_WT + 512*8192}, {s(sWo)}
    s_cselect_b32 {s(sSc)}, {f32bits(2.0**-21)}, {s(sSc)}
    s_cmp_lt_u32 {s(sPass)}, {s(sNp)}
    s_cbranch_scc1 F2_top
    s_mul_i32 {s(R.sDst)}, {s(sT2)}, {ZCH}
    s_add_u32 {s(R.sDst)}, {s(R.sDst)}, {WS_Z}""")
    for t in range(2):
        for r in range(16):
            o = (32*t + 16*(r >> 3) + (r & 7)) * 512
            if r % 8 == 0: A(f"s_add_u32 {s(R.sT0)}, {s(R.sDst)}, {o}")
            A(f"buffer_store_dwordx4 {a(aOut+4*(16*t+r),4)}, {v(vSo)}, {s(R.sWS,4)}, {s(R.sT0)} offen offset:{(r&7)*512} sc1")
    A("s_waitcnt vmcnt(0)")
    setflag(sT2, FLAG_F + 512)
    if ts: tstamp(A, R, 4)
    colidx(R.vT2)
    A(f"""v_lshrrev_b32 {v(R.vT3)}, 4, {v(R.vL)}
    v_cvt_f32_u32 {v(R.vT3)}, {v(R.vT3)}
    s_mov_b32 {s(sT2)}, {f32bits(1/1024)}
    v_and_b32 {v(38)}, 1, {v(R.vT2)}""")
    for t in range(2):
        A(f"""v_add_u32 {v(R.vT0)}, {4*t}, {v(R.vT2)}
        v_cvt_f32_u32 {v(R.vT1)}, {v(R.vT0)}
        v_mul_f32 {v(R.vT1)}, {s(sT2)}, {v(R.vT1)}
        v_mov_b32 {v(vD1+t)}, 0x3e800000
        v_sub_f32 {v(vD2+t)}, {v(R.vT1)}, {v(vD1+t)}
        v_mul_f32 {v(vInc+t)}, 0x41800000, {v(R.vT1)}
        v_mul_f32 {v(R.vT0)}, 4.0, {v(R.vT1)}
        v_mul_f32 {v(vB+t)}, {v(R.vT0)}, {v(R.vT3)}""")
    gen_dft_weights(A, R, "F3", vB, vD1, vD2, vInc)
    A(f"""v_lshlrev_b32 {v(R.vT1)}, 31, {v(38)}
    v_or_b32 {v(R.vT1)}, 0x3f803f80, {v(R.vT1)}
    v_cmp_gt_u32 vcc, 16, {v(R.vL)}""")
    for t in range(2):
        A(f"""v_accvgpr_read_b32 {v(R.vT0)}, {a(aw(t,0))}
        v_cndmask_b32 {v(R.vT0)}, {v(R.vT0)}, {v(R.vT1)}, vcc
        v_accvgpr_write_b32 {a(aw(t,0))}, {v(R.vT0)}""")
    setup_reads(A, R)
    dma_rows(A, R, R.vT2, R.vT3)
    A(f"""
    v_mul_u32_u24 {v(R.vSrc)}, {ZCH}, {v(R.vT3)}
    v_lshl_add_u32 {v(R.vSrc)}, {v(R.vT2)}, 4, {v(R.vSrc)}
    v_and_b32 {v(R.vDst)}, 15, {v(R.vL)}
    v_and_b32 {v(R.vT0)}, 48, {v(R.vL)}
    v_lshl_add_u32 {v(R.vDst)}, {v(R.vDst)}, 12, {v(R.vT0)}
    v_add_u32 {v(R.vFlag)}, 0x10000, {v(R.vDst)}
    s_lshl_b32 {s(R.sDst)}, {s(sTg)}, 21
    s_lshl_b32 {s(R.sT0)}, {s(sBlk)}, 6
    s_add_u32 {s(R.sDst)}, {s(R.sDst)}, {s(R.sT0)}
    s_lshl_b32 {s(R.sSrc)}, {s(sTg)}, 13
    s_add_u32 {s(R.sSrc)}, {s(R.sSrc)}, {WS_Z}
    s_mov_b32 {s(R.sSrcStep)}, 512
    s_mov_b32 {s(R.sDstStep)}, {32*4096}
    v_lshlrev_b32 {v(R.vT2)}, 2, {v(R.vL)}
    v_add_u32 {v(R.vT2)}, {WS_FLAG + FLAG_F + 512}, {v(R.vT2)}
    v_add_u32 {v(R.vT3)}, 256, {v(R.vT2)}
    """)
    wait_flags(A, R, "F3_w0", R.vT2, 64, 1, sGive, sCnt)
    wait_flags(A, R, "F3_w1", R.vT3, 64, 1, sGive, sCnt)
    A("s_barrier")
    if ts: tstamp(A, R, 5)
    def dma3(half, b, lds):
        return [f"s_add_u32 m0, {s(R.sM0)}, {lds}", f"s_add_u32 {s(R.sT0)}, {s(R.sSrc)}, {(half*8 + b)*8*ZCH}",
                f"buffer_load_dwordx4 {v(R.vSrc)}, {s(R.sWS,4)}, {s(R.sT0)} offen sc1 lds"]
    def store3(u):
        return [f"buffer_store_dwordx4 {v(R.vPk+4*u,4)}, {v(R.vFlag if u else R.vDst)}, {s(R.sO,4)}, {s(R.sDst)} offen"]
    stream_loop(A, R, "F3", 16, False, dma3, store3, flag=False)
    A(f"s_branch {done}")
```

```python
MB = 1 << 20
WS_BYTES = 256 * MB
BLK = 131072 + 2048
WS_Q = 0
WS_K = 17 * MB
WS_VT = 34 * MB
QKV_STRIDE = 17 * MB
WS_O = 52 * MB
MBLK = 32768 + 512
WS_KM = 68 * MB
WS_VMT = 73 * MB
WS_HOP = 78 * MB
HOP_MEM = 0
HOP_SC = 65536
HOP_OB = HOP_SC + 32 * 5120
HOP_STEP = HOP_OB + 65536
HOP_BYTES = 4 * HOP_STEP
WS_PM = 80 * MB
PM_STEP = 262144
WS_FLAG = 96 * MB
FLAG_P = 0
FLAG_T = 65536
FLAG_F = 65536 + 4096
WS_Y = 100 * MB
WS_Z = 106 * MB
WS_WT = 112 * MB
WS_STAMP = 120 * MB
OOB = 0x40000000
KA_AX, KA_WR, KA_WI, KA_BX, KA_MEM0, KA_WQ, KA_WK, KA_WV, KA_WO, KA_SEG, KA_OUT, KA_DBG, KA_WS = [8 * i for i in range(13)]
NAME = "concat_heads__spectral_gfnet__memory_aug_recurrent_mem_tr__prompt"
```

```python
from asmlib import *
from layout import *
import struct, math

def f32bits(x): return struct.unpack("<I", struct.pack("<f", x))[0]

POLL_LIMIT = 200000

def delay(A, cyc):
    n = cyc // 64
    if n: A(f"s_sleep {n}")
    r = (cyc % 64) // 4
    if r: A(f"s_nop {r-1}")

def gen_recur(A, stamps=False, force_slow=False, d0=448, dd=192, dmem=128, dob=500, dsc=0, vpre=4, nrep=2, sidepos=1, roll=2, dob1=64, kvat=0, dkv=0, kmat=1, dkm=192, nreg=256, ts=False):
    sWS = 4
    sW = 8
    sX, sJ, sWv, sStep, sCur, sKx, sVt, sKm, sVm, sT0, sT1, sCnt, sC, sGive, sStO, sCol = range(12, 28)
    sPtr = 28
    sH, sEs, sNext, sArm, sPrev, sFast = 40, 41, 42, 43, 44, 45
    sPm = 84
    sKf, sNeed = 85, 94
    sMk = 86
    sSt = 48
    vL, vMemR, vScW, vScWm, vScR, vScRm, vObW, vObR, vPmW, vPmR, vMemW, vKx, vVt, vKm, vVm, vLds, vLdsW, vLdsV, vT0, vT1, vT2, vT3, vPmA = range(1, 24)
    vPmB = 244
    vFlg = 245
    vM = 24
    vAq, vAk, vAv = 40, 56, 72
    vX = 88
    vR = 96
    vXO = 128
    vKX = 132
    vD = 140
    vVA = 152
    vVTt = 168
    vPB = 176
    vS = 180
    vO = 188
    vOnes = 204
    vP = 208
    vN = 228
    vOneBf = 236
    vSum = 240
    def aw(mat, t, ks): return ((mat * 2 + t) * 8 + ks) * 4
    def stamp(k):
        if stamps: A(f"s_memtime {s(sSt + 2 * k, 2)}")
    def lgkm(n): A(f"s_waitcnt lgkmcnt({0 if stamps else n})")

    L_end = "recur_end"
    A(f"""
    s_and_b32 {s(sX)}, s2, 7
    s_lshr_b32 {s(sJ)}, s2, 3
    s_load_dwordx2 {s(sWS,2)}, s[0:1], {KA_WS}
    s_load_dwordx2 {s(sPtr,2)}, s[0:1], {KA_MEM0}
    s_load_dwordx2 {s(sPtr+2,2)}, s[0:1], {KA_WQ}
    s_load_dwordx2 {s(sPtr+4,2)}, s[0:1], {KA_WK}
    s_load_dwordx2 {s(sPtr+6,2)}, s[0:1], {KA_WV}
    s_load_dwordx2 {s(sPtr+8,2)}, s[0:1], {KA_WO}
    s_load_dwordx2 {s(sPtr+10,2)}, s[0:1], {KA_DBG}
    v_lshrrev_b32 {v(vT0)}, 6, v0
    v_and_b32 {v(vL)}, 63, v0
    v_readfirstlane_b32 {s(sWv)}, {v(vT0)}
    s_mov_b32 {s(sWS+2)}, {WS_BYTES}
    s_mov_b32 {s(sWS+3)}, 0x20000
    s_mov_b32 {s(sW+2)}, {8*MB}
    s_mov_b32 {s(sW+3)}, 0x20000
    s_mov_b32 {s(sGive)}, 0
    s_mov_b32 {s(sC)}, {f32bits(128 ** -0.5 * math.log2(math.e))}
    s_waitcnt lgkmcnt(0)
    """)
    vm_, vc_, vg_ = vR, vR + 1, vR + 2
    A(f"""
    v_and_b32 {v(vm_)}, 7, {v(vL)}
    v_bfe_u32 {v(vc_)}, {v(vL)}, 3, 1
    v_lshrrev_b32 {v(vg_)}, 4, {v(vL)}
    v_lshlrev_b32 {v(vT0)}, 4, {v(vL)}            ; l*16
    s_lshl_b32 {s(sT0)}, {s(sX)}, 14
    s_lshl_b32 {s(sT1)}, {s(sWv)}, 12
    s_add_u32 {s(sT0)}, {s(sT0)}, {s(sT1)}
    s_add_u32 {s(sT1)}, {s(sT0)}, {HOP_MEM}
    v_add_u32 {v(vMemR)}, {s(sT1)}, {v(vT0)}
    s_add_u32 {s(sT1)}, {s(sT0)}, {HOP_OB}
    v_add_u32 {v(vObR)}, {s(sT1)}, {v(vT0)}
    s_lshr_b32 {s(sT0)}, {s(sJ)}, 1
    s_lshl_b32 {s(sT0)}, {s(sT0)}, 10
    s_and_b32 {s(sT1)}, {s(sJ)}, 1
    s_lshl_b32 {s(sT1)}, {s(sT1)}, 7
    s_add_u32 {s(sT0)}, {s(sT0)}, {s(sT1)}
    s_lshl_b32 {s(sT1)}, {s(sX)}, 14
    s_add_u32 {s(sT0)}, {s(sT0)}, {s(sT1)}
    v_lshlrev_b32 {v(vT1)}, 8, {v(vg_)}
    v_lshl_add_u32 {v(vT1)}, {v(vm_)}, 4, {v(vT1)}
    v_lshl_add_u32 {v(vT1)}, {v(vc_)}, 3, {v(vT1)}
    s_add_u32 {s(sT1)}, {s(sT0)}, {HOP_OB}
    v_add_u32 {v(vObW)}, {s(sT1)}, {v(vT1)}
    s_add_u32 {s(sT1)}, {s(sT0)}, {HOP_MEM}
    v_add_u32 {v(vMemW)}, {s(sT1)}, {v(vT1)}
    s_lshl_b32 {s(sT0)}, {s(sJ)}, 12
    s_lshl_b32 {s(sT1)}, {s(sX)}, 10
    s_add_u32 {s(sT1)}, {s(sT0)}, {s(sT1)}
    v_add_u32 {v(vPmW)}, {s(sT1)}, {v(vT0)}
    v_xor_b32 {v(vPmR)}, 1024, {v(vPmW)}
    v_xor_b32 {v(vPmA)}, 2048, {v(vPmW)}
    v_xor_b32 {v(vPmB)}, 3072, {v(vPmW)}
    s_mov_b32 {s(sPm)}, {WS_PM}
    s_lshr_b32 {s(sH)}, {s(sJ)}, 2
    s_lshl_b32 {s(sT0)}, {s(sX)}, 3
    s_add_u32 {s(sH)}, {s(sH)}, {s(sT0)}
    s_and_b32 {s(sEs)}, {s(sJ)}, 3
    s_mul_i32 {s(sT0)}, {s(sH)}, 5120
    s_add_u32 {s(sT0)}, {s(sT0)}, {HOP_SC}
    v_add_u32 {v(vScR)}, {s(sT0)}, {v(vT0)}
    v_lshrrev_b32 {v(vT1)}, 3, {v(vL)}
    v_lshlrev_b32 {v(vT1)}, 2, {v(vT1)}
    v_lshl_add_u32 {v(vT1)}, {v(vm_)}, 5, {v(vT1)}
    s_add_u32 {s(sT1)}, {s(sT0)}, 4096
    v_add_u32 {v(vScRm)}, {s(sT1)}, {v(vT1)}
    s_lshl_b32 {s(sT1)}, {s(sEs)}, 10
    s_add_u32 {s(sT1)}, {s(sT1)}, {s(sT0)}
    v_add_u32 {v(vScW)}, {s(sT1)}, {v(vT0)}
    v_mov_b32 {v(vT2)}, {OOB}
    v_cmp_eq_u32 vcc, 0, {v(vc_)}
    v_cndmask_b32 {v(vScW)}, {v(vT2)}, {v(vScW)}, vcc
    s_lshl_b32 {s(sT1)}, {s(sEs)}, 8
    s_add_u32 {s(sT1)}, {s(sT1)}, {s(sT0)}
    s_add_u32 {s(sT1)}, {s(sT1)}, {4096 - 32}
    v_lshlrev_b32 {v(vT1)}, 4, {v(vg_)}
    v_lshl_add_u32 {v(vT1)}, {v(vm_)}, 5, {v(vT1)}
    v_add_u32 {v(vScWm)}, {s(sT1)}, {v(vT1)}
    v_cndmask_b32 {v(vScWm)}, {v(vT2)}, {v(vScWm)}, vcc
    v_cmp_le_u32 vcc, 2, {v(vg_)}
    v_cndmask_b32 {v(vScWm)}, {v(vT2)}, {v(vScWm)}, vcc
    s_lshl_b32 {s(sCol)}, {s(sH)}, 7
    s_lshl_b32 {s(sT0)}, {s(sEs)}, 5
    s_add_u32 {s(sCol)}, {s(sCol)}, {s(sT0)}
    v_bfe_u32 {v(vT1)}, {v(vL)}, 2, 2
    v_and_b32 {v(vT3)}, 3, {v(vL)}
    v_lshl_add_u32 {v(vT1)}, {v(vT1)}, 3, {v(vT3)}        ; perm(i) = 8*(i>>2) + (i&3)
    v_lshlrev_b32 {v(vKx)}, 6, {v(vT1)}
    v_lshl_add_u32 {v(vKx)}, {v(vg_)}, 4, {v(vKx)}
    s_and_b32 {s(sT0)}, {s(sWv)}, 1
    s_lshl_b32 {s(sT0)}, {s(sT0)}, 14
    s_lshl_b32 {s(sT1)}, {s(sCol)}, 2
    s_add_u32 {s(sT0)}, {s(sT0)}, {s(sT1)}
    s_add_u32 {s(sT0)}, {s(sT0)}, {WS_FLAG + FLAG_P + 16384}
    v_mov_b32 {v(vFlg)}, {s(sT0)}
    s_mov_b32 {s(sKf)}, 0
    s_mul_i32 {s(sT0)}, {s(sCol)}, {BLK // 32}
    v_add_u32 {v(vKx)}, {s(sT0)}, {v(vKx)}
    v_mov_b32 {v(vVt)}, {v(vKx)}
    v_lshlrev_b32 {v(vVm)}, 4, {v(vT1)}
    v_lshl_add_u32 {v(vVm)}, {v(vg_)}, 2, {v(vVm)}
    s_mul_i32 {s(sT0)}, {s(sCol)}, {MBLK // 32}
    v_add_u32 {v(vVm)}, {s(sT0)}, {v(vVm)}
    v_lshlrev_b32 {v(vKm)}, 6, {v(vm_)}
    v_lshl_add_u32 {v(vKm)}, {v(vg_)}, 4, {v(vKm)}
    v_add_u32 {v(vKm)}, {s(sT0)}, {v(vKm)}
    v_cmp_eq_u32 vcc, 1, {v(vc_)}
    v_cndmask_b32 {v(vKm)}, {v(vT2)}, {v(vKm)}, vcc
    v_mov_b32 {v(vLds)}, {v(vT0)}
    s_lshl_b32 {s(sT0)}, {s(sWv)}, 11
    v_add_u32 {v(vLdsW)}, {s(sT0)}, {v(vT0)}
    v_and_b32 {v(vLdsV)}, 15, {v(vL)}
    v_lshrrev_b32 {v(vT3)}, 1, {v(vg_)}
    v_lshl_add_u32 {v(vLdsV)}, {v(vT3)}, 4, {v(vLdsV)}
    v_lshlrev_b32 {v(vLdsV)}, 4, {v(vLdsV)}
    v_and_b32 {v(vT3)}, 1, {v(vg_)}
    v_lshl_add_u32 {v(vLdsV)}, {v(vT3)}, 3, {v(vLdsV)}
    s_mov_b32 {s(sCur)}, {WS_HOP}
    s_mov_b32 {s(sNext)}, {WS_HOP + HOP_STEP}
    s_mov_b32 {s(sArm)}, {WS_HOP + 2*HOP_STEP}
    s_mov_b32 {s(sPrev)}, {WS_HOP + 3*HOP_STEP}
    s_mov_b32 {s(sKx)}, {WS_K}
    s_mov_b32 {s(sVt)}, {WS_VT}
    s_mov_b32 {s(sKm)}, {WS_KM}
    s_mov_b32 {s(sVm)}, {WS_VMT}
    s_mov_b32 {s(sStep)}, 0
    """)
    for r in range(4): A(f"v_mov_b32 {v(vOnes+r)}, -1")
    for r in range(4): A(f"v_mov_b32 {v(vOneBf+r)}, 0x3f803f80")
    def arm_local(so, sc):
        A(f"""buffer_store_dwordx4 {v(vOnes,4)}, {v(vScW)}, {s(sWS,4)}, {s(so)} offen{sc}
        buffer_store_dwordx4 {v(vOnes,4)}, {v(vScW)}, {s(sWS,4)}, {s(so)} offen offset:128{sc}
        buffer_store_dwordx4 {v(vOnes,4)}, {v(vScWm)}, {s(sWS,4)}, {s(so)} offen{sc}
        buffer_store_dwordx2 {v(vOnes,2)}, {v(vObW)}, {s(sWS,4)}, {s(so)} offen{sc}
        buffer_store_dwordx2 {v(vOnes,2)}, {v(vMemW)}, {s(sWS,4)}, {s(so)} offen{sc}""")
    A(f"""s_mul_i32 {s(sT1)}, {s(sWv)}, {HOP_STEP}
    s_add_u32 {s(sT1)}, {s(sT1)}, {WS_HOP}""")
    arm_local(sT1, " sc1")
    A(f"""s_lshl_b32 {s(sT1)}, {s(sWv)}, 17
    s_add_u32 {s(sT1)}, {s(sT1)}, {WS_PM}""")
    for i in range(32):
        A(f"buffer_store_dwordx4 {v(vOnes,4)}, {v(vPmW)}, {s(sWS,4)}, {s(sT1)} offen sc1")
        A(f"s_add_u32 {s(sT1)}, {s(sT1)}, {4*131072}")
    A(f"""s_mul_i32 {s(sT1)}, {s(sCol)}, {MBLK // 32}
    s_lshl_b32 {s(sT0)}, {s(sWv)}, 13
    s_add_u32 {s(sT1)}, {s(sT1)}, {s(sT0)}""")
    for base in (WS_KM, WS_VMT):
        for hh in range(2):
            A(f"s_add_u32 {s(sT0)}, {s(sT1)}, {base + 4096*hh}")
            for i in range(4):
                A(f"buffer_store_dwordx4 {v(vOnes,4)}, {v(vLds)}, {s(sWS,4)}, {s(sT0)} offen offset:{1024*i} sc1")
    A("s_waitcnt vmcnt(0)")
    A("s_barrier")
    Lskip = A.newlabel()
    A(f"""
    s_cmp_lg_u32 {s(sWv)}, 0
    s_cbranch_scc1 {Lskip}
    s_getreg_b32 {s(sT0)}, hwreg(HW_REG_XCC_ID, 0, 3)
    s_lshl_b32 {s(sT0)}, {s(sT0)}, 3
    s_lshl_b64 {s(46,2)}, 1, {s(sT0)}
    v_mov_b32 {v(vX)}, {s(46)}
    v_mov_b32 {v(vX+1)}, {s(47)}
    s_lshl_b32 {s(sT0)}, {s(sX)}, 3
    v_mov_b32 {v(vT1)}, {s(sT0)}
    s_mov_b64 exec, 1
    global_atomic_add_x2 {v(vT1)}, {v(vX,2)}, {s(sPtr+10,2)} sc1
    s_mov_b64 exec, -1
    """)
    A.label(Lskip)
    A(f"""
    v_lshrrev_b32 {v(vT0)}, 2, {v(vL)}
    v_and_b32 {v(vT3)}, 3, {v(vL)}
    v_lshlrev_b32 {v(vT3)}, 4, {v(vT3)}
    v_lshl_add_u32 {v(vT1)}, {v(vT0)}, 13, {v(vT3)}
    v_lshl_add_u32 {v(vT2)}, {v(vT0)}, 11, {v(vT3)}
    v_bfe_u32 {v(vT0)}, {v(vL)}, 2, 2
    v_lshl_add_u32 {v(vT0)}, {v(vg_)}, 3, {v(vT0)}
    v_lshl_add_u32 {v(vT3)}, {v(vT0)}, 6, {v(vT3)}
    s_lshl_b32 {s(sT0)}, {s(sWv)}, 15
    v_add_u32 {v(vT3)}, {s(sT0)}, {v(vT3)}
    """)
    for rnd in range(2):
        for half in range(2):
            mat = rnd * 2 + half
            A(f"s_mov_b32 {s(sW)}, {s(sPtr+2+2*mat)}")
            A(f"s_mov_b32 {s(sW+1)}, {s(sPtr+3+2*mat)}")
            if mat < 3:
                A(f"""s_lshl_b32 {s(sT0)}, {s(sWv)}, 21
                s_lshl_b32 {s(sT1)}, {s(sCol)}, 1
                s_add_u32 {s(sT0)}, {s(sT0)}, {s(sT1)}""")
                stride = 16 * 8192; vo = vT1
            else:
                A(f"""s_lshl_b32 {s(sT0)}, {s(sX)}, 21
                s_lshl_b32 {s(sT1)}, {s(sWv)}, 19
                s_add_u32 {s(sT0)}, {s(sT0)}, {s(sT1)}
                s_lshl_b32 {s(sT1)}, {s(sJ)}, 6
                s_add_u32 {s(sT0)}, {s(sT0)}, {s(sT1)}""")
                stride = 16 * 2048; vo = vT2
            A(f"""s_lshl_b32 {s(sT1)}, {s(sWv)}, 15
            s_add_u32 {s(sT1)}, {s(sT1)}, {half*16384}""")
            for i in range(16):
                A(f"s_mov_b32 m0, {s(sT1)}")
                A(f"buffer_load_dwordx4 {v(vo)}, {s(sW,4)}, {s(sT0)} offen lds")
                A(f"s_add_u32 {s(sT0)}, {s(sT0)}, {stride}")
                A(f"s_add_u32 {s(sT1)}, {s(sT1)}, 1024")
        A("s_waitcnt vmcnt(0)")
        for half in range(2):
            mat = rnd * 2 + half
            for t in range(2):
                for ks in range(8):
                    for hh in range(2):
                        A(f"ds_read_b64_tr_b16 {a(aw(mat,t,ks)+2*hh,2)}, {v(vT3)} offset:{half*16384 + ks*2048 + hh*256 + t*8}")
                A("s_waitcnt lgkmcnt(0)")
    for t in range(2):
        for c in range(2):
            A(f"v_mov_b32 {v(vVA + (t*2+c)*4 + 3)}, 0")
    A(f"v_mov_b32 {v(vPB+3)}, 0")
    def load_kx(d=vKX):
        A(f"""buffer_load_dwordx4 {v(d,4)}, {v(vKx)}, {s(sWS,4)}, {s(sKx)} offen sc1
        buffer_load_dwordx4 {v(d+4,4)}, {v(vKx)}, {s(sWS,4)}, {s(sKx)} offen offset:256 sc1
        s_add_u32 {s(sKx)}, {s(sKx)}, 2048
        s_min_u32 {s(sKx)}, {s(sKx)}, {WS_K + 63*2048}""")
    def load_vt(nxt=False):
        if nxt:
            for t in range(2):
                A(f"buffer_load_dwordx4 {v(vN+4*t,4)}, {v(vVt)}, {s(sWS,4)}, {s(sVt)} offen offset:{t*256} sc1")
        else:
          for t in range(2):
            for c in range(2):
                A(f"buffer_load_dwordx2 {v(vVA+(t*2+c)*4,2)}, {v(vVt)}, {s(sWS,4)}, {s(sVt)} offen offset:{t*256 + c*8} sc1")
        A(f"s_add_u32 {s(sVt)}, {s(sVt)}, 2048")
        A(f"s_min_u32 {s(sVt)}, {s(sVt)}, {WS_VT + 63*2048}")
    def store_km():
        A(f"buffer_store_dwordx4 {v(vXO,4)}, {v(vKm)}, {s(sWS,4)}, {s(sKm)} offen sc1")
        A(f"s_add_u32 {s(sKm)}, {s(sKm)}, 512")
    def store_vm():
        for t in range(2):
            A(f"buffer_store_dword {v(vVTt+t)}, {v(vVm)}, {s(sWS,4)}, {s(sVm)} offen offset:{64*t} sc1")
        A(f"s_add_u32 {s(sVm)}, {s(sVm)}, 512")
    def flagwait():
        Lp = A.newlabel("fw"); Lo = A.newlabel("fo")
        A(f"s_mov_b32 {s(sCnt)}, {s(sGive)}")
        A.label(Lp)
        A(f"""s_cmp_ge_u32 {s(sKf)}, {s(sNeed)}
        s_cbranch_scc1 {Lo}
        buffer_load_dword {v(vT0)}, {v(vFlg)}, {s(sWS,4)}, 0 offen sc1
        s_add_u32 {s(sCnt)}, {s(sCnt)}, 1
        s_waitcnt vmcnt(0)
        v_readfirstlane_b32 {s(sKf)}, {v(vT0)}
        s_cmp_lt_u32 {s(sCnt)}, {POLL_LIMIT}
        s_cbranch_scc1 {Lp}
        s_mov_b32 {s(sGive)}, {POLL_LIMIT}""")
        A.label(Lo)
    A(f"""
    s_mov_b32 {s(sW)}, {s(sPtr)}
    s_mov_b32 {s(sW+1)}, {s(sPtr+1)}
    s_mov_b32 {s(sW+2)}, 16384
    v_lshlrev_b32 {v(vT1)}, 11, {v(vm_)}
    v_lshl_add_u32 {v(vT1)}, {v(vg_)}, 4, {v(vT1)}
    v_lshl_add_u32 {v(vT1)}, {v(vc_)}, 3, {v(vT1)}
    s_lshl_b32 {s(sT0)}, {s(sJ)}, 6
    buffer_load_dwordx2 {v(vX,2)}, {v(vT1)}, {s(sW,4)}, {s(sT0)} offen
    """)
    Lr = A.newlabel("rdv"); Lrok = A.newlabel("rdvok")
    A(f"""v_mov_b32 {v(vT1)}, 0
    s_mov_b32 {s(sCnt)}, 0""")
    A.label(Lr)
    A(f"""global_load_dwordx4 {v(vM,4)}, {v(vT1)}, {s(sPtr+10,2)} sc1
    global_load_dwordx4 {v(vM+4,4)}, {v(vT1)}, {s(sPtr+10,2)} offset:16 sc1
    global_load_dword {v(vM+8)}, {v(vT1)}, {s(sPtr+10,2)} offset:32 sc1
    s_waitcnt vmcnt(0)
    v_sad_u8 {v(vT0)}, {v(vM)}, 0, {v(vM+8)}""")
    for r in range(1, 8): A(f"v_sad_u8 {v(vT0)}, {v(vM+r)}, 0, {v(vT0)}")
    A(f"""v_readfirstlane_b32 {s(sT0)}, {v(vT0)}
    s_cmp_ge_u32 {s(sT0)}, {nreg}
    s_cbranch_scc1 {Lrok}
    s_sleep 4
    s_add_u32 {s(sCnt)}, {s(sCnt)}, 1
    s_cmp_lt_u32 {s(sCnt)}, {POLL_LIMIT}
    s_cbranch_scc1 {Lr}
    s_mov_b32 {s(sGive)}, {POLL_LIMIT}""")
    A.label(Lrok)
    for g in range(4): A(f"v_or_b32 {v(vM+2*g)}, {v(vM+2*g)}, {v(vM+2*g+1)}")
    for g in range(4): A(f"v_and_b32 {v(vM+2*g)}, 0x20202020, {v(vM+2*g)}")
    A(f"""v_min_u32 {v(vM)}, {v(vM)}, {v(vM+2)}
    v_min_u32 {v(vM+4)}, {v(vM+4)}, {v(vM+6)}
    v_min_u32 {v(vM)}, {v(vM)}, {v(vM+4)}
    v_readfirstlane_b32 {s(sFast)}, {v(vM)}
    v_min_u32 {v(vX)}, -2, {v(vX)}
    v_min_u32 {v(vX+1)}, -2, {v(vX+1)}
    buffer_store_dwordx2 {v(vX,2)}, {v(vMemW)}, {s(sWS,4)}, {s(sCur)} offen sc1
    """)
    if force_slow: A(f"s_mov_b32 {s(sFast)}, 0")
    if stamps:
        A(f"""s_lshl_b32 {s(sStO)}, s2, 2
        s_add_u32 {s(sStO)}, {s(sStO)}, {s(sWv)}
        s_lshl_b32 {s(sStO)}, {s(sStO)}, 13
        s_add_u32 {s(sStO)}, {s(sStO)}, {WS_STAMP}""")
    for r in range(32): A(f"v_mov_b32 {v(vAq+r)}, 0")
    for r in range(16): A(f"v_mov_b32 {v(vM+r)}, -1")
    Lkv = A.newlabel("kv"); Lkv1 = A.newlabel("kv")
    A(f"""s_cmp_ge_u32 {s(sWv)}, 2
    s_cbranch_scc1 {Lkv}
    s_mov_b32 {s(sNeed)}, 2""")
    flagwait()
    A(f"""s_cmp_eq_u32 {s(sWv)}, 1
    s_cbranch_scc1 {Lkv1}""")
    load_kx()
    A(f"s_branch {Lkv}")
    A.label(Lkv1)
    load_vt()
    A.label(Lkv)
    if ts: ts(1)
    A(f"s_mov_b32 {s(sCnt)}, {s(sGive)}")
    A("s_barrier")
    A(f"""s_cmp_eq_u32 {s(sFast)}, 0
    s_cbranch_scc1 recur_slow_disp""")
    for mode in ("fast", "slow"):
        if mode == "slow": A.label("recur_slow_disp")
        for w in range(1, 4):
            A(f"""s_cmp_eq_u32 {s(sWv)}, {w}
            s_cbranch_scc1 recur_{mode}_w{w}""")
        A(f"s_branch recur_{mode}_w0")

    def check(regs, tmp, dst="vcc"):
        r = list(regs)
        out = [f"v_max3_u32 {v(tmp)}, {v(r[0])}, {v(r[1])}, {v(r[2])}"]
        r = r[3:]
        while len(r) >= 2:
            out.append(f"v_max3_u32 {v(tmp)}, {v(tmp)}, {v(r[0])}, {v(r[1])}"); r = r[2:]
        if r: out.append(f"v_max_u32 {v(tmp)}, {v(tmp)}, {v(r[0])}")
        out.append(f"v_cmp_eq_u32 {dst}, -1, {v(tmp)}")
        return out
    tails = []
    def bound(Lgo):
        return [f"s_add_u32 {s(sCnt)}, {s(sCnt)}, 1",
                f"s_cmp_ge_u32 {s(sCnt)}, {POLL_LIMIT}",
                f"s_cselect_b32 {s(sGive)}, {POLL_LIMIT}, {s(sGive)}",
                f"s_cbranch_scc1 {Lgo}"]
    def mk(c): return s(sMk + 2 * c, 2)
    def rgather(groups, blk, zero, st1=None, st2=None, issue=True, cntreg=None, extra=0):
        n = len(groups); per = len(groups[0][1])
        if issue:
            A(f"s_mov_b32 {s(sCnt)}, {s(sGive)}")
            for g in groups:
                for x in g[1]: A(x)
        Lcont = A.newlabel("gc")
        def reload(cs):
            o = []
            for c in cs:
                o.append(f"s_mov_b64 exec, {mk(c)}"); o += groups[c][1]
            o.append("s_mov_b64 exec, -1")
            return o
        Lss = [A.newlabel("gs") for i in range(n)]
        def pre(i): return [f"s_waitcnt vmcnt({(n-1-i)*per + extra})"] + check(groups[i][0], vT0)
        for x in pre(0): A(x)
        for i in range(n):
            Ls = Lss[i]
            A(f"s_cbranch_vccnz {Ls}")
            if i == 0 and st1 is not None: stamp(st1)
            if i == n - 1 and st2 is not None: stamp(st2)
            b = blk(i, False); nx = pre(i + 1) if i < n - 1 else []
            if len(b) >= 4 and nx:
                b = b[:-3] + nx[:2] + b[-3:-2] + nx[2:3] + b[-2:-1] + nx[3:] + b[-1:]
            else:
                b = b + nx
            for x in b: A(x)
            t = [f"{Ls}:", f"s_mov_b64 {mk(i)}, vcc"] + reload([i])
            if i < n - 1:
                t.append(f"s_waitcnt vmcnt({per + extra})")
                for c in range(i + 1, n): t += check(groups[c][0], vT0, mk(c))
                t += reload(range(i + 1, n))
            for c in range(i + 1, n):
                b = blk(c, False)
                if not b: continue
                Lk = A.newlabel("gk")
                t += [f"s_cmp_lg_u64 {mk(c)}, 0", f"s_cbranch_scc1 {Lk}"] + b + (reload([x for x in range(i, n) if x != c]) if roll else []) + [f"{Lk}:"]
            for c in range(i, n):
                Ld = A.newlabel("gd"); Lc = A.newlabel("gl"); Lo = A.newlabel("go")
                if c > i: t += [f"s_cmp_eq_u64 {mk(c)}, 0", f"s_cbranch_scc1 {Ld}"]
                t += [f"{Lc}:"]
                if not roll: t += ["s_waitcnt vmcnt(0)"]
                t += check(groups[c][0], vT0) + [f"s_cbranch_vccz {Lo}", f"s_mov_b64 {mk(c)}, vcc"]
                if roll: t += [f"s_waitcnt vmcnt({min(roll*(n-c)*per, 63)})"]
                t += reload(range(c, n)) + bound(Lo) + [f"s_branch {Lc}", f"{Lo}:"]
                if stamps and st2 is not None: t += [f"s_memtime {s(sSt + 2 * st2, 2)}"]
                t += blk(c, False) + [f"{Ld}:"]
            t += [f"s_branch {Lcont}"]
            tails.append(t)
        A.label(Lcont)
        if stamps and cntreg is not None: A(f"s_mov_b32 {s(cntreg)}, {s(sCnt)}")
    def combine(dst, lo_own, lo_rot, hi_own, hi_rot):
        o = []
        for r in range(4):
            o.append(f"v_add_f32_dpp {v(dst+r)}, {v(lo_rot+r)}, {v(lo_own+r)} row_ror:8 row_mask:0xf bank_mask:0x3")
        for r in range(4):
            o.append(f"v_add_f32_dpp {v(dst+r)}, {v(hi_rot+r)}, {v(hi_own+r)} row_ror:8 row_mask:0xf bank_mask:0xc")
        return o
    def chunks(vaddr, so):
        return [(list(range(vM+4*i, vM+4*i+4)), [f"buffer_load_dwordx4 {v(vM+4*i,4)}, {v(vaddr)}, {s(sWS,4)}, {s(so)} offen offset:{i*1024} sc1"]) for i in range(4)]

    for mode in ("fast", "slow"):
      LSC = "" if mode == "fast" else " sc1"
      for w in range(4):
        top = f"recur_{mode}_w{w}"
        A(".p2align 6")
        A.label(top)
        stamp(0)
        delay(A, dmem if w != 3 else max(dmem - 80, 0))
        def mf_qk(i, first):
            o = []
            for t in range(2):
                for mat, acc in ((0, vAq), (1, vAk)):
                    for c in range(2):
                        d = v(acc + (t*2+c)*4, 4)
                        o.append(f"v_mfma_f32_16x16x32_bf16 {d}, {a(aw(mat,t,2*i+c),4)}, {v(vM+4*i,4)}, {0 if first else d}")
            return o
        rgather(chunks(vMemR, sCur), mf_qk, [], 1, 12, cntreg=80)
        vm_list = []
        for i in range(4):
            for c in range(2):
                for t in range(2):
                    d = v(vAv + (t*2+c)*4, 4)
                    vm_list.append(f"v_mfma_f32_16x16x32_bf16 {d}, {v(vM+4*i,4)}, {a(aw(2,t,2*i+c),4)}, {d if i else 0}")
        vq = list(vm_list)
        def vtake(n):
            for _ in range(min(n, len(vq))): A(vq.pop(0))
        for t in range(2):
            cb = combine(vX + 4*t, vAq + (t*2+0)*4, vAq + (t*2+1)*4, vAk + (t*2+1)*4, vAk + (t*2+0)*4)
            for k, x in enumerate(cb):
                A(x)
                if t == 1 and k % 4 == 3 and vpre > 2: vtake(1)
            if w != 0: A(f"ds_write_b128 {v(vLdsW)}, {v(vX+4*t,4)} offset:{1024*t}")
        vtake(2)
        A("s_waitcnt lgkmcnt(0)")
        A("s_barrier")
        stamp(2)
        if w == 1 and kvat == 0: load_vt(True)
        if w == 0:
            for ww in range(1, 4):
                for t in range(2):
                    A(f"ds_read_b128 {v(vR + (ww*2+t)*4, 4)}, {v(vLds)} offset:{ww*2048 + t*1024}")
            if kvat == 0: load_kx(vN)
            vtake(4)
            lgkm(4)
            for r in range(8): A(f"v_add_f32 {v(vR+r)}, {v(vX+r)}, {v(vR+8+r)}")
            lgkm(0)
            for r in range(8): A(f"v_add_f32 {v(vR+16+r)}, {v(vR+16+r)}, {v(vR+24+r)}")
            for r in range(8): A(f"v_add_f32 {v(vR+r)}, {v(vR+r)}, {v(vR+16+r)}")
            for r in range(4): A(f"v_cvt_pk_bf16_f32 {v(vXO+r)}, {v(vR+2*r)}, {v(vR+2*r+1)}")
            A(f"v_mfma_f32_16x16x32_bf16 {v(vD+4,4)}, {v(vKX,4)}, {v(vXO,4)}, 0")
            A(f"v_mfma_f32_16x16x32_bf16 {v(vD+8,4)}, {v(vKX+4,4)}, {v(vXO,4)}, 0")
            A(f"v_mfma_f32_16x16x32_bf16 {v(vD,4)}, {v(vXO,4)}, {v(vXO,4)}, 0")
            vtake(2)
            A(f"buffer_store_dwordx4 {v(vD+4,4)}, {v(vScW)}, {s(sWS,4)}, {s(sCur)} offen{LSC}")
            A(f"buffer_store_dwordx4 {v(vD+8,4)}, {v(vScW)}, {s(sWS,4)}, {s(sCur)} offen offset:128{LSC}")
            A(f"buffer_store_dwordx4 {v(vD,4)}, {v(vScWm)}, {s(sWS,4)}, {s(sCur)} offen{LSC}")
        stamp(3)
        vtake(16)
        for t in range(2):
            for r in range(4):
                A(f"v_mov_b32_dpp {v(vAv + t*8 + r)}, {v(vAv + t*8 + 4 + r)} quad_perm:[0,1,2,3] row_mask:0xc bank_mask:0xf")
            A(f"ds_write_b128 {v(vLdsW)}, {v(vAv+8*t,4)} offset:{8192+1024*t}")
        def zero(n):
            for r in range(n): A(f"v_mov_b32 {v(vAq+r)}, 0")
        if w != 0: zero(16)
        A("s_waitcnt lgkmcnt(0)")
        A("s_barrier")
        stamp(4)
        last = f"recur_{mode}_last{w}"
        if w == 0: zero(16)
        if w == 0:
            A(f"""s_cmp_eq_u32 {s(sStep)}, 63
            s_cbranch_scc1 {last}""")
            tails.append([f"{last}:", f"buffer_store_dwordx4 {v(vXO,4)}, {v(vKm)}, {s(sWS,4)}, {s(sKm)} offen sc1", f"s_branch {L_end}"])
            if kmat == 0:
                delay(A, 64); store_km()
        elif w == 3:
            A(f"""s_cmp_eq_u32 {s(sStep)}, 63
            s_cbranch_scc1 {L_end}""")
            delay(A, 128); arm_local(sArm, LSC)
        elif w == 2:
            for t in range(2):
                for ww in range(4):
                    A(f"ds_read_b64 {v(vR + (t*8 + ww*2)*2, 2)}, {v(vLdsV)} offset:{8192 + ww*2048 + t*1024}")
                    A(f"ds_read_b64 {v(vR + (t*8 + ww*2 + 1)*2, 2)}, {v(vLdsV)} offset:{8192 + ww*2048 + t*1024 + 512}")
                if t == 0: lgkm(7)
            for t in range(2):
                lgkm(8 if t == 0 else 0)
                b = vR + t*16
                for k in range(8): A(f"v_add_f32 {v(b+k)}, {v(b+k)}, {v(b+8+k)}")
                for k in range(4): A(f"v_add_f32 {v(b+k)}, {v(b+k)}, {v(b+4+k)}")
                for k in range(2): A(f"v_add_f32 {v(b+k)}, {v(b+k)}, {v(b+2+k)}")
                A(f"v_cvt_pk_bf16_f32 {v(vVTt+t)}, {v(b)}, {v(b+1)}")
                A(f"v_and_b32 {v(vD + 2*t)}, 0xffff, {v(vVTt+t)}")
                A(f"v_lshrrev_b32 {v(vD + 2*t + 1)}, 16, {v(vVTt+t)}")
            A(f"ds_write_b128 {v(vLds)}, {v(vD,4)} offset:24576")
            if kmat == 0: store_vm()
            A(f"""s_cmp_eq_u32 {s(sStep)}, 63
            s_cbranch_scc1 {L_end if kmat == 0 else last}
            s_waitcnt lgkmcnt(0)""")
            if kmat: tails.append([f"{last}:"] + [f"buffer_store_dword {v(vVTt+t)}, {v(vVm)}, {s(sWS,4)}, {s(sVm)} offen offset:{64*t} sc1" for t in range(2)] + [f"s_branch {L_end}"])
        else:
            grp = []
            for p in range(4):
                grp.append((list(range(vP+4*p, vP+4*p+4)) + [vP+16+p],
                            [f"buffer_load_dwordx4 {v(vP+4*p,4)}, {v(vScR)}, {s(sWS,4)}, {s(sCur)} offen offset:{p*1024} sc1",
                             f"buffer_load_dword {v(vP+16+p)}, {v(vScRm)}, {s(sWS,4)}, {s(sCur)} offen offset:{p*256} sc1"]))
            A(f"""s_cmp_eq_u32 {s(sStep)}, 63
            s_cbranch_scc1 {L_end}""")
            delay(A, dsc)
            A(f"s_mov_b32 {s(sCnt)}, {s(sGive)}")
            for g in grp:
                for x in g[1]: A(x)
            rgather(grp, lambda c, f: [], [], None, None, issue=False, cntreg=82)
            A("s_barrier")
            stamp(5)
            for k in range(4): A(f"ds_read_b32 {v(vVA + 4*k + 2)}, {v(vLds)} offset:{24576 + 4*k}")
            for r in range(4): A(f"v_add_f32 {v(vS+r)}, {v(vP+r)}, {v(vP+4+r)}")
            A(f"v_add_f32 {v(vS+4)}, {v(vP+16)}, {v(vP+17)}")
            for r in range(4): A(f"v_add_f32 {v(vR+r)}, {v(vP+8+r)}, {v(vP+12+r)}")
            A(f"v_add_f32 {v(vR+4)}, {v(vP+18)}, {v(vP+19)}")
            for r in range(5): A(f"v_add_f32 {v(vS+r)}, {v(vS+r)}, {v(vR+r)}")
            def xlane(op, x, tmp):
                A(f"{op}_dpp {v(x)}, {v(x)}, {v(x)} row_ror:8 row_mask:0xf bank_mask:0xf")
                for sw in ("v_permlane16_swap_b32", "v_permlane32_swap_b32"):
                    A(f"v_mov_b32 {v(tmp)}, {v(x)}")
                    A(f"{sw} {v(x)}, {v(tmp)}")
                    A(f"{op} {v(x)}, {v(x)}, {v(tmp)}")
            A(f"v_max3_f32 {v(vS+5)}, {v(vS)}, {v(vS+1)}, {v(vS+2)}")
            A(f"v_max3_f32 {v(vS+5)}, {v(vS+5)}, {v(vS+3)}, {v(vS+4)}")
            xlane("v_max_f32", vS+5, vS+6)
            A(f"v_mul_f32 {v(vS+5)}, {s(sC)}, {v(vS+5)}")
            for r in range(5): A(f"v_fma_f32 {v(vS+r)}, {v(vS+r)}, {s(sC)}, -{v(vS+5)}")
            for r in range(5): A(f"v_exp_f32 {v(vS+r)}, {v(vS+r)}")
            A(f"v_cvt_pk_bf16_f32 {v(vPB)}, {v(vS)}, {v(vS+1)}")
            A(f"v_cvt_pk_bf16_f32 {v(vPB+1)}, {v(vS+2)}, {v(vS+3)}")
            A(f"v_cvt_pk_bf16_f32 {v(vPB+2)}, {v(vS+4)}, {v(vPB+3)}")
            A("s_waitcnt lgkmcnt(0)")
            A(f"v_mfma_f32_16x16x32_bf16 {v(vSum,4)}, {v(vOneBf,4)}, {v(vPB,4)}, 0")
            for t in range(2):
                for c in range(2):
                    A(f"v_mfma_f32_16x16x32_bf16 {v(vO+(t*2+c)*4,4)}, {v(vVA+(t*2+c)*4,4)}, {v(vPB,4)}, 0")
            A(f"v_add_f32_dpp {v(vS+5)}, {v(vSum)}, {v(vSum)} row_ror:8 row_mask:0xf bank_mask:0xf")
            A(f"v_rcp_f32 {v(vS+5)}, {v(vS+5)}")
            for x in combine(vX, vO + 0, vO + 4, vO + 12, vO + 8): A(x)
            for r in range(4): A(f"v_mul_f32 {v(vX+r)}, {v(vX+r)}, {v(vS+5)}")
            A(f"v_cvt_pk_bf16_f32 {v(vX)}, {v(vX)}, {v(vX+1)}")
            A(f"v_cvt_pk_bf16_f32 {v(vX+1)}, {v(vX+2)}, {v(vX+3)}")
            A(f"buffer_store_dwordx2 {v(vX,2)}, {v(vObW)}, {s(sWS,4)}, {s(sCur)} offen{LSC}")
        stamp(6)
        if w != 1:
            A("s_barrier")
            delay(A, dob)
        else:
            delay(A, dob1)
        def mf_o(i, first):
            o = []
            for t in range(2):
                for c in range(2):
                    d = v(vAq + (t*2+c)*4, 4)
                    o.append(f"v_mfma_f32_16x16x32_bf16 {d}, {a(aw(3,t,2*i+c),4)}, {v(vM+4*i,4)}, {0 if first else d}")
            return o
        rgather(chunks(vObR, sCur), mf_o, [], 7, 13, cntreg=81)
        for x in combine(vX, vAq + 0, vAq + 4, vAq + 12, vAq + 8): A(x)
        if w != 3:
            A(f"ds_write_b128 {v(vLdsW)}, {v(vX,4)} offset:16384")
            A("s_waitcnt lgkmcnt(0)")
        A("s_barrier")
        stamp(8)
        if w == 1:
            if kvat == 0:
                for k in range(4):
                    for r in range(2): A(f"v_mov_b32 {v(vVA+4*k+r)}, {v(vN+2*k+r)}")
            else:
                delay(A, dkv); load_vt()
            zero(32)
            A(f"""s_add_u32 {s(sNeed)}, {s(sStep)}, 3
            s_min_u32 {s(sNeed)}, {s(sNeed)}, 64""")
            flagwait()
        elif w == 0:
            if kvat == 0:
                for r in range(8): A(f"v_mov_b32 {v(vKX+r)}, {v(vN+r)}")
            else:
                delay(A, dkv); load_kx()
            zero(32)
            if kmat:
                delay(A, max(dkm - 160, 0)); store_km()
            A(f"""s_add_u32 {s(sNeed)}, {s(sStep)}, 3
            s_min_u32 {s(sNeed)}, {s(sNeed)}, 64""")
            flagwait()
        elif w == 2:
            zero(32)
            if kmat:
                delay(A, max(dkm - 128, 0)); store_vm()
        else:
            for ww in range(3):
                A(f"ds_read_b128 {v(vR+4*ww,4)}, {v(vLds)} offset:{16384 + ww*2048}")
            lgkm(1)
            for r in range(4): A(f"v_add_f32 {v(vR+r)}, {v(vR+r)}, {v(vR+4+r)}")
            lgkm(0)
            for r in range(4): A(f"v_add_f32 {v(vR+8+r)}, {v(vR+8+r)}, {v(vX+r)}")
            for r in range(4): A(f"v_add_f32 {v(vX+r)}, {v(vR+r)}, {v(vR+8+r)}")
            A(f"buffer_store_dwordx4 {v(vX,4)}, {v(vPmW)}, {s(sWS,4)}, {s(sPm)} offen sc1")
            A(f"s_add_u32 {s(sT1)}, {s(sPm)}, 131072")
            if nrep == 2: A(f"buffer_store_dwordx4 {v(vX,4)}, {v(vPmW)}, {s(sWS,4)}, {s(sT1)} offen sc1")
            stamp(9)
            zero(32)
            delay(A, d0 - 128)
            def pml(base, so):
                return [f"buffer_load_dwordx4 {v(base+4*i,4)}, {v(va)}, {s(sWS,4)}, {s(so)} offen sc1" for i, va in enumerate((vPmR, vPmA, vPmB))]
            def fin(base):
                o = ["s_barrier"] + [f"v_add_f32 {v(vR+24+r)}, {v(base+4+r)}, {v(base+8+r)}" for r in range(4)]
                o += [f"v_add_f32 {v(vR+24+r)}, {v(vR+28+r)}, {v(vR+24+r)}" for r in range(4)]
                o += [f"v_cvt_pk_bf16_f32 {v(vS)}, {v(vR+24)}, {v(vR+25)}", f"v_cvt_pk_bf16_f32 {v(vS+1)}, {v(vR+26)}, {v(vR+27)}",
                      f"buffer_store_dwordx2 {v(vS,2)}, {v(vMemW)}, {s(sWS,4)}, {s(sNext)} offen{LSC}"]
                return o
            A(f"s_mov_b32 {s(sCnt)}, {s(sGive)}")
            for x in pml(vR, sPm): A(x)
            Lr = A.newlabel("pr"); Lgo = A.newlabel("pg"); Lfin = A.newlabel("pf"); Lb = A.newlabel("pb")
            if nrep == 2:
                delay(A, dd)
                for x in pml(vR + 12, sT1): A(x)
            A(f"s_waitcnt vmcnt({3 if nrep == 2 else 0})")
            for x in check(range(vR, vR + 12), vT0): A(x)
            for r in range(4): A(f"v_add_f32 {v(vR+28+r)}, {v(vX+r)}, {v(vR+r)}")
            A(f"s_cbranch_vccnz {Lr}")
            stamp(10)
            for x in fin(vR): A(x)
            A.label(Lfin)
            rb = vR + 12 if nrep == 2 else vR
            so = sT1 if nrep == 2 else sPm
            t = [f"{Lr}:"]
            if nrep == 1: t += pml(rb, so)
            t += [f"{Lb}:", "s_waitcnt vmcnt(0)"] + check(range(rb, rb + 12), vT0) + [f"v_add_f32 {v(vR+28+r)}, {v(vX+r)}, {v(rb+r)}" for r in range(4)]
            t += [f"s_add_u32 {s(sCnt)}, {s(sCnt)}, 1", f"s_cbranch_vccz {Lgo}"] + pml(rb, so) + bound(Lgo) + [f"s_branch {Lb}", f"{Lgo}:"]
            if stamps: t += [f"s_memtime {s(sSt + 20, 2)}"]
            t += fin(rb) + [f"s_branch {Lfin}"]
            tails.append(t)
            if stamps: A(f"s_mov_b32 {s(83)}, {s(sCnt)}")
            A(f"s_mov_b32 {s(sCnt)}, {s(sGive)}")
        stamp(11)
        A(f"""s_mov_b32 {s(sT0)}, {s(sCur)}
        s_mov_b32 {s(sCur)}, {s(sNext)}
        s_mov_b32 {s(sNext)}, {s(sArm)}
        s_mov_b32 {s(sArm)}, {s(sPrev)}
        s_mov_b32 {s(sPrev)}, {s(sT0)}
        s_add_u32 {s(sPm)}, {s(sPm)}, {PM_STEP}
        s_add_u32 {s(sStep)}, {s(sStep)}, 1""")
        def dump():
            A("s_waitcnt lgkmcnt(0)")
            for k in range(14):
                A(f"v_writelane_b32 {v(vT1)}, {s(sSt+2*k)}, {k}")
            for k in range(4):
                A(f"v_writelane_b32 {v(vT1)}, {s(80+k)}, {16+k}")
            A(f"""v_lshlrev_b32 {v(vT2)}, 2, {v(vL)}
            v_mov_b32 {v(vT3)}, {OOB}
            v_cmp_gt_u32 vcc, 20, {v(vL)}
            v_cndmask_b32 {v(vT2)}, {v(vT3)}, {v(vT2)}, vcc
            buffer_store_dword {v(vT1)}, {v(vT2)}, {s(sWS,4)}, {s(sStO)} offen
            s_add_u32 {s(sStO)}, {s(sStO)}, 128""")
        if stamps: dump()
        if w != 3: A("s_barrier")
        A(f"s_branch {top}")
        for t in tails:
            for x in t: A(x)
        tails.clear()
    A.label(L_end)
    if ts: ts(2)
    A("s_endpgm")
```

```python
from asmlib import *
from layout import *

class SR:
    sWS = 4
    sX = 8
    sO = 12
    sWv, sT0, sT1, sM0, sSrc, sDst, sIt, sFlagV, sSrcStep, sDstStep, sDstStep2 = range(16, 27)
    vL, vSrc, vDst, vFlag, vT0, vT1, vT2, vT3, vFv = range(1, 10)
    vRd = 10
    vFr = 20
    vAcc = 52
    vPk = 84

def pi_lane(A, dst, src, t0, t1):
    A(f"""v_and_b32 {v(dst)}, 19, {v(src)}
    v_bfe_u32 {v(t0)}, {v(src)}, 2, 1
    v_bfe_u32 {v(t1)}, {v(src)}, 3, 1
    v_lshl_add_u32 {v(dst)}, {v(t0)}, 3, {v(dst)}
    v_lshl_add_u32 {v(dst)}, {v(t1)}, 2, {v(dst)}""")

def perm16(A, dst, src, t0, with_t):
    A(f"""v_bfe_u32 {v(t0)}, {v(src)}, 2, 2
    v_and_b32 {v(dst)}, 3, {v(src)}
    v_lshl_add_u32 {v(dst)}, {v(t0)}, 3, {v(dst)}""")
    if with_t:
        A(f"""v_bfe_u32 {v(t0)}, {v(src)}, 4, 1
        v_lshl_add_u32 {v(dst)}, {v(t0)}, 2, {v(dst)}""")

def aw(t, ks): return (ks * 2 + t) * 4

def load_weights_tr(A, R, sW, sOff, rowbytes):
    sh = rowbytes.bit_length() - 1
    A(f"""
    v_lshrrev_b32 {v(R.vT0)}, 2, {v(R.vL)}
    v_and_b32 {v(R.vT1)}, 3, {v(R.vL)}
    v_lshlrev_b32 {v(R.vT2)}, 4, {v(R.vT1)}
    v_lshl_add_u32 {v(R.vT2)}, {v(R.vT0)}, {sh}, {v(R.vT2)}
    v_lshlrev_b32 {v(R.vT3)}, 4, {v(R.vT1)}
    v_bfe_u32 {v(R.vT0)}, {v(R.vL)}, 2, 2
    v_lshrrev_b32 {v(R.vT1)}, 4, {v(R.vL)}
    v_lshl_add_u32 {v(R.vT0)}, {v(R.vT1)}, 3, {v(R.vT0)}
    v_lshl_add_u32 {v(R.vT3)}, {v(R.vT0)}, 6, {v(R.vT3)}
    s_lshl_b32 {s(R.sT1)}, {s(R.sWv)}, 15
    v_add_u32 {v(R.vT3)}, {s(R.sT1)}, {v(R.vT3)}
    """)
    for rnd in range(2):
        for i in range(32):
            A(f"s_add_u32 m0, {s(R.sT1)}, {i*1024}")
            A(f"buffer_load_dwordx4 {v(R.vT2)}, {s(sW,4)}, {s(sOff)} offen lds")
            A(f"s_add_u32 {s(sOff)}, {s(sOff)}, {16*rowbytes}")
        for q in range(4):
            A(f"s_waitcnt vmcnt({24 - 8*q})")
            for ks in range(4*q, 4*q + 4):
                for tt in range(2):
                    for hh in range(2):
                        A(f"ds_read_b64_tr_b16 {a(aw(tt, rnd*16+ks) + 2*hh, 2)}, {v(R.vT3)} offset:{ks*2048 + hh*256 + tt*8}")
                if ks % 2 == 1: A("s_waitcnt lgkmcnt(7)")
        A("s_waitcnt lgkmcnt(0)")

def setup_reads(A, R):
    A(f"""
    v_and_b32 {v(R.vT0)}, 15, {v(R.vL)}
    v_bfe_u32 {v(R.vT1)}, {v(R.vL)}, 1, 3
    v_lshrrev_b32 {v(R.vT2)}, 4, {v(R.vL)}
    v_xor_b32 {v(R.vT1)}, {v(R.vT1)}, {v(R.vT2)}
    v_lshlrev_b32 {v(R.vT1)}, 4, {v(R.vT1)}
    v_lshl_add_u32 {v(R.vRd)}, {v(R.vT0)}, 7, {v(R.vT1)}
    s_lshl_b32 {s(R.sM0)}, {s(R.sWv)}, 10
    v_xor_b32 {v(R.vRd+1)}, 64, {v(R.vRd)}
    """)
    for kk in range(2): A(f"v_add_u32 {v(R.vRd+2+kk)}, 0x10000, {v(R.vRd+kk)}")

def dma_rows(A, R, vrow, vchunk):
    A(f"""
    v_lshrrev_b32 {v(vrow)}, 3, {v(R.vL)}
    s_lshl_b32 {s(R.sT0)}, {s(R.sWv)}, 3
    v_add_u32 {v(vrow)}, {s(R.sT0)}, {v(vrow)}
    v_bfe_u32 {v(vchunk)}, {v(vrow)}, 1, 3
    v_xor_b32 {v(vchunk)}, {v(vchunk)}, {v(R.vL)}
    v_and_b32 {v(vchunk)}, 7, {v(vchunk)}
    """)

def stream_loop(A, R, name, nseg, vtype, dma, store, flag=True, scale=None, loader=False, ttoff=2048):
    def dm(H, b):
        return dma(H & 1, b, (H & 3) * 32768 + b * 4096)
    def rd(H, i):
        sl = H & 3; b = i >> 2; kk = (i >> 1) & 1; tt = i & 1
        return f"ds_read_b128 {v(R.vFr + 4*(i & 7), 4)}, {v(R.vRd + kk + 2*(sl >> 1))} offset:{(sl & 1)*32768 + b*4096 + tt*ttoff}"
    adv = [f"s_add_u32 {s(R.sSrc)}, {s(R.sSrc)}, {s(R.sSrcStep)}"]
    top = f"{name}_top"; ent = f"{name}_ent"
    nst = 2
    if loader: flag = False; nst = 0
    def epi(acc):
        o = []
        for r in range(8):
            if scale is not None:
                o.append([f"v_mul_f32 {v(acc+2*r)}, {scale}, {v(acc+2*r)}", f"v_mul_f32 {v(acc+2*r+1)}, {scale}, {v(acc+2*r+1)}",
                          f"v_cvt_pk_bf16_f32 {v(R.vPk+r)}, {v(acc+2*r)}, {v(acc+2*r+1)}"])
            else:
                o.append([f"v_cvt_pk_bf16_f32 {v(R.vPk+r)}, {v(acc+2*r)}, {v(acc+2*r+1)}"])
        return o
    def flagst():
        return [f"v_mov_b32 {v(R.vFv)}, {s(R.sFlagV)}", f"s_add_u32 {s(R.sFlagV)}, {s(R.sFlagV)}, 1",
                f"buffer_store_dword {v(R.vFv)}, {v(R.vFlag)}, {s(R.sWS,4)}, 0 offen sc1"]
    A(f"""s_mov_b32 {s(R.sDstStep2)}, {s(R.sDstStep)}
    s_sub_u32 {s(R.sDstStep)}, {s(R.sDst)}, {OOB}
    s_mov_b32 {s(R.sDst)}, {OOB}
    s_mov_b32 {s(R.sFlagV)}, 0
    s_mov_b32 {s(R.sIt)}, 0""")
    for H in range(3):
        for b in range(8 if H < 2 else 3):
            for x in dm(H, b): A(x)
        if H == 1:
            for x in adv: A(x)
    if flag:
        for x in flagst(): A(x)
        A(f"s_mov_b32 {s(R.sFlagV)}, 0")
    A(f"s_waitcnt vmcnt({12 if flag else 11})")
    A("s_barrier")
    if not loader:
        for i in range(7): A(rd(0, i))
    A(".p2align 6")
    A.label(top)
    for H in range(4):
        acc = R.vAcc + 16 * (H >> 1); pacc = R.vAcc + 16 * (1 - (H >> 1))
        fill = {i: [] for i in range(32)}
        for k, b in enumerate(range(3, 8)): fill[1 + 2*k] += dm(H + 2, b)
        if H & 1: fill[10] += adv
        for k, b in enumerate(range(3)): fill[26 + 2*k] += dm(H + 3, b)
        if loader: pass
        elif not (H & 1):
            e = epi(pacc)
            for r in range(8): fill[10 + r] += e[r]
            fill[15] += store(0); fill[19] += store(1)
            fill[20] += [f"s_add_u32 {s(R.sDst)}, {s(R.sDst)}, {s(R.sDstStep)}", f"s_mov_b32 {s(R.sDstStep)}, {s(R.sDstStep2)}"]
        elif flag:
            fill[27] += flagst()
        inflight = 8 + (nst + (1 if flag else 0) if not (H & 1) else 0)
        for i in range(32):
            if loader:
                if i == 25:
                    A(f"s_waitcnt vmcnt({inflight})")
                    A("s_barrier")
                for x in fill[i]: A(x)
                continue
            A(f"s_waitcnt lgkmcnt(6)")
            x = v(R.vFr + 4 * (i & 7), 4); tt = i & 1; ks = (H & 1) * 16 + (i >> 1)
            for t in range(2):
                w = a(aw(t, ks), 4)
                d = v(acc + (t*8 + tt*4 if vtype else tt*8 + t*4), 4)
                A(f"v_mfma_f32_16x16x32_bf16 {d}, {x if vtype else w}, {w if vtype else x}, {0 if ks == 0 else d}")
                if t == 0:
                    if i == 25:
                        A(f"s_waitcnt vmcnt({inflight})")
                        A("s_barrier")
                    A(rd(H, i + 7) if i + 7 < 32 else rd(H + 1, i + 7 - 32))
                    if fill[i] and fill[i][0].startswith("s_add_u32 m0"): A(fill[i].pop(0))
            for x in fill[i]: A(x)
    A(f"""s_add_u32 {s(R.sIt)}, {s(R.sIt)}, 2
    s_cmp_lt_u32 {s(R.sIt)}, {nseg}
    s_cbranch_scc1 {top}""")
    if loader:
        A("s_waitcnt vmcnt(0)")
        return
    for e in epi(R.vAcc + 16):
        for x in e: A(x)
    for x in store(0) + store(1): A(x)
    A("s_waitcnt vmcnt(0) lgkmcnt(0)")
    if flag:
        for x in flagst(): A(x)

def gen_P(A, sMat, sHead, done, ts=False, rdv=None):
    R = SR
    sP = 28
    A(f"""
    s_load_dwordx2 {s(R.sO,2)}, s[0:1], {KA_WQ}
    s_load_dwordx2 {s(sP,2)}, s[0:1], {KA_WK}
    s_load_dwordx2 {s(sP+2,2)}, s[0:1], {KA_WV}
    s_load_dwordx2 {s(R.sX,2)}, s[0:1], {KA_BX}
    s_mov_b32 {s(R.sX+2)}, {4*MB}
    s_mov_b32 {s(R.sX+3)}, 0x20000
    s_mov_b32 {s(R.sO+2)}, {8*MB}
    s_mov_b32 {s(R.sO+3)}, 0x20000
    s_waitcnt lgkmcnt(0)
    s_cmp_eq_u32 {s(sMat)}, 1
    s_cselect_b64 {s(R.sO,2)}, {s(sP,2)}, {s(R.sO,2)}
    s_cmp_eq_u32 {s(sMat)}, 2
    s_cselect_b64 {s(R.sO,2)}, {s(sP+2,2)}, {s(R.sO,2)}
    s_lshl_b32 {s(sP)}, {s(sHead)}, 2
    s_add_u32 {s(sP)}, {s(sP)}, {s(R.sWv)}          ; blk
    s_lshl_b32 {s(R.sSrc)}, {s(sP)}, 6
    """)
    load_weights_tr(A, R, R.sO, R.sSrc, 8192)
    if rdv: rdv()
    if ts: tstamp(A, R, 1)
    setup_reads(A, R)
    dma_rows(A, R, R.vT2, R.vT3)
    perm16(A, R.vSrc, R.vT2, R.vT0, True)
    perm16(A, R.vDst, R.vL, R.vT0, False)
    A(f"""
    v_lshlrev_b32 {v(R.vSrc)}, 11, {v(R.vSrc)}
    v_lshl_add_u32 {v(R.vSrc)}, {v(R.vT3)}, 4, {v(R.vSrc)}
    v_and_b32 {v(R.vT0)}, 48, {v(R.vL)}
    v_lshl_add_u32 {v(R.vDst)}, {v(R.vDst)}, 6, {v(R.vT0)}
    s_mul_i32 {s(R.sDst)}, {s(sP)}, {BLK}
    s_mul_i32 {s(R.sT1)}, {s(sMat)}, {QKV_STRIDE}
    s_add_u32 {s(R.sDst)}, {s(R.sDst)}, {s(R.sT1)}
    s_lshl_b32 {s(R.sT1)}, {s(sMat)}, 7
    s_add_u32 {s(R.sT0)}, {s(sP)}, {s(R.sT1)}
    s_lshl_b32 {s(R.sT0)}, {s(R.sT0)}, 7
    s_add_u32 {s(R.sT0)}, {s(R.sT0)}, {WS_FLAG + FLAG_P}
    v_mov_b32 {v(R.vFlag)}, {s(R.sT0)}
    v_mov_b32 {v(R.vT0)}, {OOB}
    v_cmp_eq_u32 vcc, 0, {v(R.vL)}
    v_cndmask_b32 {v(R.vFlag)}, {v(R.vT0)}, {v(R.vFlag)}, vcc
    s_mov_b32 {s(R.sSrc)}, 0
    s_mov_b32 {s(R.sSrcStep)}, 65536
    s_mov_b32 {s(R.sDstStep)}, 2048
    s_barrier
    s_cmp_eq_u32 {s(sMat)}, 2
    s_cbranch_scc1 P_v
    """)
    def dma(half, b, lds):
        off = half * 1024 + b * 128
        return [f"s_add_u32 m0, {s(R.sM0)}, {lds - off}", f"buffer_load_dwordx4 {v(R.vSrc)}, {s(R.sX,4)}, {s(R.sSrc)} offen offset:{off} lds"]
    def store(u):
        return [f"buffer_store_dwordx4 {v(R.vPk+4*u,4)}, {v(R.vDst)}, {s(R.sWS,4)}, {s(R.sDst)} offen offset:{256*u} sc1"]
    stream_loop(A, R, "P_qk", 64, False, dma, store)
    A(f"s_branch {done}")
    A.label("P_v")
    stream_loop(A, R, "P_v", 64, True, dma, store)
    A(f"s_branch {done}")

def common_entry(A, R, nwg, end):
    A(f"""
    s_cmp_ge_u32 s2, {nwg}
    s_cbranch_scc1 {end}
    s_load_dwordx2 {s(R.sWS,2)}, s[0:1], {KA_WS}
    v_lshrrev_b32 {v(R.vT0)}, 6, v0
    v_and_b32 {v(R.vL)}, 63, v0
    v_readfirstlane_b32 {s(R.sWv)}, {v(R.vT0)}
    s_mov_b32 {s(R.sWS+2)}, {WS_BYTES}
    s_mov_b32 {s(R.sWS+3)}, 0x20000
    s_waitcnt lgkmcnt(0)
    """)

def tstamp(A, R, k, sT=74, vt=252):
    A(f"""s_memrealtime {s(sT,2)}
    s_memtime {s(sT+2,2)}
    s_lshl_b32 {s(sT+4)}, s2, 2
    s_add_u32 {s(sT+4)}, {s(sT+4)}, {s(R.sWv)}
    s_lshl_b32 {s(sT+4)}, {s(sT+4)}, 6
    s_add_u32 {s(sT+4)}, {s(sT+4)}, {WS_STAMP + 12*MB + 8*k}
    s_waitcnt lgkmcnt(0)
    v_mov_b32 {v(vt+2)}, {s(sT)}
    v_mov_b32 {v(vt+3)}, {s(sT+2)}
    v_mov_b32 {v(vt)}, 0
    buffer_store_dwordx2 {v(vt+2,2)}, {v(vt)}, {s(R.sWS,4)}, {s(sT+4)} offen
    s_waitcnt vmcnt(0)""")
```

```python
import sys
from build import *
from stream import *
from attn import *
from fft import *
from recur4 import gen_recur

def gen(ts=False, **kw):
    A = Asm(); R = SR
    sG, sI, sGive, sD = 90, 91, 92, 94
    A("""s_cmp_ge_u32 s2, 256
    s_cbranch_scc1 W_end
    s_bitcmp1_b32 s2, 2
    s_cbranch_scc0 R_entry""")
    common_entry(A, R, 256, "W_end")
    if ts: tstamp(A, R, 0)
    A(f"""s_load_dwordx2 {s(sD,2)}, s[0:1], {KA_DBG}
    s_lshr_b32 {s(sG)}, s2, 6
    s_bfe_u32 {s(sI)}, s2, 0x30003
    s_lshl_b32 {s(sI)}, {s(sI)}, 2
    s_and_b32 {s(R.sT0)}, s2, 3
    s_add_u32 {s(sI)}, {s(sI)}, {s(R.sT0)}
    s_mov_b32 {s(sGive)}, 0
    s_lshl_b32 {s(R.sT0)}, {s(sI)}, 2
    s_add_u32 {s(R.sT0)}, {s(R.sT0)}, {s(R.sWv)}            ; 4 idx + w
    s_lshl_b32 {s(R.sT1)}, {s(sG)}, 7
    s_add_u32 {s(R.sT1)}, {s(R.sT1)}, {s(R.sT0)}
    s_lshl_b32 {s(R.sT1)}, {s(R.sT1)}, 7
    s_add_u32 {s(R.sT1)}, {s(R.sT1)}, {WS_FLAG + FLAG_P}
    s_lshl_b32 {s(R.sSrc)}, {s(R.sWv)}, 5
    s_add_u32 {s(R.sSrc)}, {s(R.sSrc)}, {s(sI)}
    s_lshl_b32 {s(R.sSrc)}, {s(R.sSrc)}, 2
    s_add_u32 {s(R.sSrc)}, {s(R.sSrc)}, {WS_FLAG + FLAG_T}
    s_cmp_eq_u32 {s(sG)}, 3
    s_cselect_b32 {s(R.sT1)}, {s(R.sSrc)}, {s(R.sT1)}
    s_cselect_b64 exec, 7, 1
    v_mov_b32 {v(R.vT0)}, {s(R.sT1)}
    s_and_b32 {s(R.sT1)}, {s(R.sT0)}, 31
    s_lshl_b32 {s(R.sT1)}, {s(R.sT1)}, 2
    s_lshr_b32 {s(R.sSrc)}, {s(sI)}, 3
    s_add_u32 {s(R.sT1)}, {s(R.sT1)}, {s(R.sSrc)}
    s_lshl_b32 {s(R.sT1)}, {s(R.sT1)}, 2
    s_add_u32 {s(R.sT1)}, {s(R.sT1)}, {WS_FLAG + FLAG_F}
    v_writelane_b32 {v(R.vT0)}, {s(R.sT1)}, 1
    s_lshl_b32 {s(R.sT1)}, {s(R.sT0)}, 2
    s_add_u32 {s(R.sT1)}, {s(R.sT1)}, {WS_FLAG + FLAG_F + 512}
    v_writelane_b32 {v(R.vT0)}, {s(R.sT1)}, 2
    v_mov_b32 {v(R.vT1)}, 0
    buffer_store_dword {v(R.vT1)}, {v(R.vT0)}, {s(R.sWS,4)}, 0 offen sc1
    s_mov_b64 exec, -1
    s_waitcnt vmcnt(0) lgkmcnt(0)
    s_barrier
    s_cmp_lg_u32 {s(R.sWv)}, 0
    s_cbranch_scc1 W_reg
    v_mov_b32 {v(R.vT0)}, 32
    v_mov_b32 {v(R.vT1)}, 1
    s_mov_b64 exec, 1
    global_atomic_add {v(R.vT0)}, {v(R.vT1)}, {s(sD,2)} sc1
    s_mov_b64 exec, -1""")
    A.label("W_reg")
    def rdv(name):
        vb = 20
        A(f"""v_mov_b32 {v(R.vT1)}, 0
        s_mov_b32 {s(R.sT1)}, 0""")
        A.label(name)
        A(f"""global_load_dwordx4 {v(vb,4)}, {v(R.vT1)}, {s(sD,2)} sc1
        global_load_dwordx4 {v(vb+4,4)}, {v(R.vT1)}, {s(sD,2)} offset:16 sc1
        global_load_dword {v(R.vT0)}, {v(R.vT1)}, {s(sD,2)} offset:32 sc1
        s_waitcnt vmcnt(0)""")
        for r in range(8): A(f"v_sad_u8 {v(R.vT0)}, {v(vb+r)}, 0, {v(R.vT0)}")
        A(f"""v_readfirstlane_b32 {s(R.sT0)}, {v(R.vT0)}
        s_cmp_ge_u32 {s(R.sT0)}, 256
        s_cbranch_scc1 {name}_ok
        s_sleep 8
        s_add_u32 {s(R.sT1)}, {s(R.sT1)}, 1
        s_cmp_lt_u32 {s(R.sT1)}, {SPIN}
        s_cbranch_scc1 {name}
        s_mov_b32 {s(sGive)}, {SPIN}""")
        A.label(name + "_ok")
    A(f"""s_cmp_eq_u32 {s(sG)}, 3
    s_cbranch_scc1 W_F""")
    gen_P(A, sG, sI, "W_U", ts=ts)
    A.label("W_U")
    if ts: tstamp(A, R, 2)
    rdv("U_rdv")
    gen_U(A, sG, sI, "W_fin", sGive, ts=ts)
    A.label("W_F")
    gen_F(A, sI, "W_T", sGive, rdv=lambda: rdv("F_rdv"), ts=ts)
    A.label("W_T")
    if ts: tstamp(A, R, 6)
    gen_T(A, sI, "W_fin", sGive)
    A.label("W_fin")
    if ts: tstamp(A, R, 7)
    A.label("W_end")
    A("s_endpgm")
    A.label("R_entry")
    class RR: sWS = 4; sWv = 14
    gen_recur(A, ts=(lambda k: tstamp(A, RR, k, vt=248)) if ts else None, **kw)
    return A

if __name__ == "__main__":
    kw = {}
    for x in sys.argv[2:]:
        k, val = x.split("="); kw[k] = int(val)
    A = gen(**kw)
    name = NAME + "_kernel"
    txt = assemble_file([(name, 256, 256, 131072)], [kernel_text(name, A)])
    open(sys.argv[1], "w").write(txt)
```

```python
MB = 1 << 20
WS_BYTES = 256 * MB
BLK = 131072 + 2048
WS_Q = 0
WS_K = 17 * MB
WS_VT = 34 * MB
QKV_STRIDE = 17 * MB
QL = [1]
WS_O = 52 * MB
WS_O2 = 192 * MB
MBLK = 32768 + 512
WS_KM = 68 * MB
WS_VMT = 73 * MB
WS_HOP = 78 * MB
HOP_MEM = 0
HOP_SC = 65536
HOP_OB = HOP_SC + 32 * 5120
HOP_STEP = HOP_OB + 65536
HOP_BYTES = 4 * HOP_STEP
WS_PM = 144 * MB
PM_STEP = 524288
PM_REP = 262144
WS_FLAG = 96 * MB
FLAG_P = 0
FLAG_T = 65536
FLAG_F = 65536 + 16384
FLAG_F2 = FLAG_F + 16384
WS_Y = 100 * MB
WS_Z = 106 * MB
WS_WT = 112 * MB
WS_STAMP = 120 * MB
WS_CAL = 228 * MB
LDS_BYTES = 163840
OOB = 0x40000000
KA_AX, KA_WR, KA_WI, KA_BX, KA_MEM0, KA_WQ, KA_WK, KA_WV, KA_WO, KA_SEG, KA_OUT, KA_DBG, KA_WS = [8 * i for i in range(13)]
NAME = "concat_heads__spectral_gfnet__memory_aug_recurrent_mem_tr__prompt"
```

```python
from asmlib import *
from layout import *
SPIN = 1 << 20
sOrig, sPass, sDbg = 97, 98, 100

def entry(A, end, xmap=1):
    A(f"""s_cmp_ge_u32 s2, 256
    s_cbranch_scc1 {end}
    s_load_dwordx2 {s(sDbg,2)}, s[0:1], {KA_DBG}
    s_mov_b32 {s(sOrig)}, s2
    s_mov_b32 {s(sPass)}, 0
    s_getreg_b32 s3, hwreg(HW_REG_XCC_ID, 0, 3)""")
    if xmap == 2: A("s_and_b32 s3, s3, 6")
    A.label("role_start")
    A(f"""s_andn2_b32 s2, {s(sOrig)}, 7
    s_or_b32 s2, s2, s3""")

def register(A, sWv, sT0, sT1, vA, vB):
    L = A.newlabel("reg")
    A(f"""s_cmp_lg_u32 {s(sWv)}, 0
    s_cbranch_scc1 {L}
    s_and_b32 {s(sT0)}, s2, 3
    s_lshl_b32 {s(sT0)}, {s(sT0)}, 3
    s_lshl_b32 {s(sT1)}, {s(sPass)}, 2
    s_add_u32 {s(sT0)}, {s(sT0)}, {s(sT1)}
    s_lshl_b32 {s(sT0)}, 1, {s(sT0)}
    s_andn2_b32 {s(sT1)}, s2, 3
    v_mov_b32 {v(vA)}, {s(sT1)}
    v_mov_b32 {v(vB)}, {s(sT0)}
    s_mov_b64 exec, 1
    global_atomic_add {v(vA)}, {v(vB)}, {s(sDbg,2)} sc1
    s_mov_b64 exec, -1""")
    A.label(L)

def rendezvous(A, vL, sT0, sT1, vA, vB, vC, sGive, give, sPar=None):
    L = A.newlabel("rdv"); Lok = A.newlabel("rdvok"); Lw = A.newlabel("rdvw")
    A(f"""v_lshlrev_b32 {v(vA)}, 2, {v(vL)}
    s_mov_b32 {s(sT1)}, 0""")
    A.label(L)
    A(f"""global_load_dword {v(vB)}, {v(vA)}, {s(sDbg,2)} sc1
    s_lshl_b32 {s(sT0)}, {s(sPass)}, 2
    s_waitcnt vmcnt(0)
    v_lshrrev_b32 {v(vC)}, {s(sT0)}, {v(vB)}
    s_cmp_eq_u32 {s(sPass)}, 0
    s_cselect_b32 {s(sT0)}, 0x0f0f0f0f, {s(sT0)}
    s_cselect_b32 {s(sT0)}, {s(sT0)}, 0x01010101
    v_and_b32 {v(vC)}, {s(sT0)}, {v(vC)}
    v_cmp_ne_u32 vcc, 0x01010101, {v(vC)}
    s_cbranch_vccz {Lok}
    v_sad_u8 {v(vC)}, {v(vC)}, 0, 0
    s_nop 1
    v_add_u32_dpp {v(vC)}, {v(vC)}, {v(vC)} quad_perm:[1,0,3,2] row_mask:0xf bank_mask:0xf
    v_cmp_ne_u32 vcc, 8, {v(vC)}
    s_cbranch_vccnz {Lw}
    s_mov_b32 {s(sPass)}, 1
    s_and_b32 s3, {s(sOrig)}, 7
    s_barrier
    s_branch role_start""")
    A.label(Lw)
    A(f"""s_sleep 4
    s_add_u32 {s(sT1)}, {s(sT1)}, 1
    s_cmp_lt_u32 {s(sT1)}, {SPIN >> 2}
    s_cbranch_scc1 {L}
    s_mov_b32 {s(sGive)}, {give}""")
    A.label(Lok)
    if sPar is not None:
        A(f"""v_and_b32 {v(vC)}, 0x40404040, {v(vB)}
        v_bcnt_u32_b32 {v(vC)}, {v(vC)}, 0
        s_mov_b32 {s(sPar)}, 0""")
        for k in range(1, 5):
            A(f"""v_cmp_le_u32 vcc, {k}, {v(vC)}
            s_bcnt1_i32_b64 {s(sT0)}, vcc
            s_add_u32 {s(sPar)}, {s(sPar)}, {s(sT0)}""")
        A(f"""s_cmp_gt_u32 {s(sPar)}, 16
        s_cselect_b32 {s(sPar)}, 8192, 0""")

def vote(A, R, sIdx):
    L = A.newlabel("vote")
    sA, sB, sC = R.sSrc, R.sDst, R.sIt
    A(f"""s_or_b32 {s(R.sT0)}, {s(R.sWv)}, {s(sPass)}
    s_cmp_lg_u32 {s(R.sT0)}, 0
    s_cbranch_scc1 {L}
    s_lshl_b32 {s(R.sT0)}, {s(sIdx)}, 14
    s_add_u32 {s(R.sT0)}, {s(R.sT0)}, {WS_CAL}
    v_lshlrev_b32 {v(R.vT0)}, 2, {v(R.vL)}
    v_add_u32 {v(R.vT0)}, {s(R.sT0)}, {v(R.vT0)}
    v_add_u32 {v(R.vT1)}, 8192, {v(R.vT0)}
    s_mov_b32 {s(sA)}, -1
    s_mov_b32 {s(sB)}, -1
    s_mov_b64 exec, 1""")
    for it in range(4):
        for va, sm in ((R.vT0, sA), (R.vT1, sB)):
            Lp = A.newlabel("vp")
            A(f"""buffer_store_dword {v(R.vL)}, {v(va)}, {s(R.sWS,4)}, 0 offen sc1
            s_mov_b32 {s(sC)}, 0""")
            A.label(Lp)
            A(f"""s_add_u32 {s(sC)}, {s(sC)}, 1
            s_getreg_b32 {s(R.sT1)}, hwreg(HW_REG_IB_STS, 0, 4)
            s_cmp_lt_u32 {s(sC)}, 2048
            s_cselect_b32 {s(R.sT1)}, {s(R.sT1)}, 0
            s_cmp_lg_u32 {s(R.sT1)}, 0
            s_cbranch_scc1 {Lp}
            s_min_u32 {s(sm)}, {s(sm)}, {s(sC)}""")
    A(f"""s_and_b32 {s(R.sT0)}, {s(sOrig)}, 3
    s_lshl_b32 {s(R.sT0)}, {s(R.sT0)}, 3
    s_lshl_b32 {s(R.sT0)}, 0x40, {s(R.sT0)}
    s_cmp_lt_u32 {s(sA)}, {s(sB)}
    s_cselect_b32 {s(R.sT0)}, {s(R.sT0)}, 0
    s_andn2_b32 {s(R.sT1)}, {s(sOrig)}, 3
    v_mov_b32 {v(R.vT0)}, {s(R.sT1)}
    v_mov_b32 {v(R.vT1)}, {s(R.sT0)}
    global_atomic_add {v(R.vT0)}, {v(R.vT1)}, {s(sDbg,2)} sc1
    s_mov_b64 exec, -1
    s_waitcnt vmcnt(0)""")
    A.label(L)
```

```python
from asmlib import *
from layout import *
from proto import *
import struct, math

def f32bits(x): return struct.unpack("<I", struct.pack("<f", x))[0]

POLL_LIMIT = 200000

def delay(A, cyc):
    n = cyc // 4
    while n > 0:
        k = min(n, 16); A(f"s_nop {k-1}"); n -= k

def gen_recur(A, stamps=False, force_slow=False, d0=256, dd=128, dmem=64, dob=64, dsc=64, nrep=1, kvat=0, kmat=1, dkm=64, ts=False, par=-1, dz=192, noside=0, pace=48, vin=1):
    MT = "s_memrealtime" if stamps == 2 else "s_memtime"
    sWS = 4
    sW = 8
    sX, sJ, sWv, sStep, sCur, sKx, sVt, sKm, sVm, sT0, sT1, sCnt, sC, sGive, sStO, sCol = range(12, 28)
    sPtr = 28
    sH, sEs, sNext, sArm, sPrev, sFast = 40, 41, 42, 43, 44, 45
    sPm = 84
    sKf, sNeed = 85, 94
    sPmL, sPar = 95, 46
    sMk = 86
    sSt = 48
    vL, vMemR, vScW, vScWm, vScR, vScRm, vObW, vObR, vPmW, vPmR, vMemW, vKx, vVt, vKm, vVm, vLds, vLdsW, vLdsV, vT0, vT1, vT2, vT3, vPmA = range(1, 24)
    vPmB = 244
    vFlg = 245
    vArm = 246
    vM = 24
    vAc = 40
    vPk = 72
    vSel = 84
    vX = 88
    vR = 96
    vXO = 128
    vKX = 132
    vD = 140
    vVA = 152
    vVM = 168
    vIdx = 172
    vPB = 176
    vS = 180
    vO = 188
    vOnes = 204
    vP = 208
    vN = 228
    vOneBf = 236
    vSum = 240
    def aw(mat, t, u): return ((mat * 2 + t) * 4 + u) * 8
    def acc(mat, t): return vAc + (4 * (2 * t + mat) if mat < 2 else 8 * mat + 4 * t)
    def stamp(k):
        if stamps: A(f"{MT} {s(sSt + 2 * k, 2)}")
    def lgkm(n): A(f"s_waitcnt lgkmcnt({0 if stamps else n})")

    L_end = "recur_end"
    inloop = [False]
    A(f"""
    s_mov_b32 {s(sX)}, s3
    s_lshr_b32 {s(sJ)}, s2, 3
    s_load_dwordx2 {s(sWS,2)}, s[0:1], {KA_WS}
    s_load_dwordx2 {s(sPtr,2)}, s[0:1], {KA_MEM0}
    s_load_dwordx2 {s(sPtr+2,2)}, s[0:1], {KA_WQ}
    s_load_dwordx2 {s(sPtr+4,2)}, s[0:1], {KA_WK}
    s_load_dwordx2 {s(sPtr+6,2)}, s[0:1], {KA_WV}
    s_load_dwordx2 {s(sPtr+8,2)}, s[0:1], {KA_WO}
    v_lshrrev_b32 {v(vT0)}, 6, v0
    v_and_b32 {v(vL)}, 63, v0
    v_readfirstlane_b32 {s(sWv)}, {v(vT0)}
    s_mov_b32 {s(sWS+2)}, {WS_BYTES}
    s_mov_b32 {s(sWS+3)}, 0x20000
    s_mov_b32 {s(sW+2)}, {8*MB}
    s_mov_b32 {s(sW+3)}, 0x20000
    s_mov_b32 {s(sGive)}, 0
    s_mov_b32 {s(sC)}, {f32bits(128 ** -0.5 * math.log2(math.e))}
    s_waitcnt lgkmcnt(0)
    """)
    if ts: ts(0)
    vm_, vc_, vg_ = vR, vR + 1, vR + 2
    A(f"""
    v_and_b32 {v(vm_)}, 7, {v(vL)}
    v_bfe_u32 {v(vc_)}, {v(vL)}, 3, 1
    v_lshrrev_b32 {v(vg_)}, 4, {v(vL)}
    v_lshlrev_b32 {v(vT0)}, 4, {v(vL)}            ; l*16
    s_lshl_b32 {s(sT0)}, {s(sX)}, 14
    s_lshl_b32 {s(sT1)}, {s(sWv)}, 12
    s_add_u32 {s(sT0)}, {s(sT0)}, {s(sT1)}
    s_add_u32 {s(sT1)}, {s(sT0)}, {HOP_MEM}
    v_add_u32 {v(vMemR)}, {s(sT1)}, {v(vT0)}
    s_add_u32 {s(sT1)}, {s(sT0)}, {HOP_OB}
    v_add_u32 {v(vObR)}, {s(sT1)}, {v(vT0)}
    s_lshr_b32 {s(sT0)}, {s(sJ)}, 1
    s_lshl_b32 {s(sT0)}, {s(sT0)}, 10
    s_and_b32 {s(sT1)}, {s(sJ)}, 1
    s_lshl_b32 {s(sT1)}, {s(sT1)}, 7
    s_add_u32 {s(sT0)}, {s(sT0)}, {s(sT1)}
    s_lshl_b32 {s(sT1)}, {s(sX)}, 14
    s_add_u32 {s(sT0)}, {s(sT0)}, {s(sT1)}
    v_lshlrev_b32 {v(vT1)}, 8, {v(vg_)}
    v_lshl_add_u32 {v(vT1)}, {v(vm_)}, 4, {v(vT1)}
    v_lshl_add_u32 {v(vT1)}, {v(vc_)}, 3, {v(vT1)}
    s_add_u32 {s(sT1)}, {s(sT0)}, {HOP_OB}
    v_add_u32 {v(vObW)}, {s(sT1)}, {v(vT1)}
    s_add_u32 {s(sT1)}, {s(sT0)}, {HOP_MEM}
    v_add_u32 {v(vMemW)}, {s(sT1)}, {v(vT1)}
    s_lshr_b32 {s(sT0)}, {s(sJ)}, 1
    s_lshl_b32 {s(sT0)}, {s(sT0)}, 14
    s_and_b32 {s(sT1)}, {s(sJ)}, 1
    s_lshl_b32 {s(sT1)}, {s(sT1)}, 12
    s_add_u32 {s(sT0)}, {s(sT0)}, {s(sT1)}
    s_lshl_b32 {s(sT1)}, {s(sX)}, 10
    s_add_u32 {s(sT1)}, {s(sT0)}, {s(sT1)}
    v_add_u32 {v(vPmW)}, {s(sT1)}, {v(vT0)}
    v_xor_b32 {v(vPmR)}, 1024, {v(vPmW)}
    v_xor_b32 {v(vPmA)}, 2048, {v(vPmW)}
    v_xor_b32 {v(vPmB)}, 3072, {v(vPmW)}
    s_mov_b32 {s(sPmL)}, {WS_PM}
    s_lshr_b32 {s(sH)}, {s(sJ)}, 2
    s_lshl_b32 {s(sT0)}, {s(sX)}, 3
    s_add_u32 {s(sH)}, {s(sH)}, {s(sT0)}
    s_and_b32 {s(sEs)}, {s(sJ)}, 3
    s_mul_i32 {s(sT0)}, {s(sH)}, 5120
    s_add_u32 {s(sT0)}, {s(sT0)}, {HOP_SC}
    v_add_u32 {v(vScR)}, {s(sT0)}, {v(vT0)}
    v_lshrrev_b32 {v(vT1)}, 3, {v(vL)}
    v_lshlrev_b32 {v(vT1)}, 2, {v(vT1)}
    v_lshl_add_u32 {v(vT1)}, {v(vm_)}, 5, {v(vT1)}
    s_add_u32 {s(sT1)}, {s(sT0)}, 4096
    v_add_u32 {v(vScRm)}, {s(sT1)}, {v(vT1)}
    s_lshl_b32 {s(sT1)}, {s(sEs)}, 10
    s_add_u32 {s(sT1)}, {s(sT1)}, {s(sT0)}
    v_add_u32 {v(vScW)}, {s(sT1)}, {v(vT0)}
    v_mov_b32 {v(vT2)}, {OOB}
    v_cmp_eq_u32 vcc, 0, {v(vc_)}
    v_cndmask_b32 {v(vScW)}, {v(vT2)}, {v(vScW)}, vcc
    s_lshl_b32 {s(sT1)}, {s(sEs)}, 8
    s_add_u32 {s(sT1)}, {s(sT1)}, {s(sT0)}
    s_add_u32 {s(sT1)}, {s(sT1)}, {4096 - 32}
    v_lshlrev_b32 {v(vT1)}, 4, {v(vg_)}
    v_lshl_add_u32 {v(vT1)}, {v(vm_)}, 5, {v(vT1)}
    v_add_u32 {v(vScWm)}, {s(sT1)}, {v(vT1)}
    v_cndmask_b32 {v(vScWm)}, {v(vT2)}, {v(vScWm)}, vcc
    v_cmp_le_u32 vcc, 2, {v(vg_)}
    v_cndmask_b32 {v(vScWm)}, {v(vT2)}, {v(vScWm)}, vcc
    s_lshl_b32 {s(sCol)}, {s(sH)}, 7
    s_lshl_b32 {s(sT0)}, {s(sEs)}, 5
    s_add_u32 {s(sCol)}, {s(sCol)}, {s(sT0)}
    v_bfe_u32 {v(vT1)}, {v(vL)}, 2, 2
    v_and_b32 {v(vT3)}, 3, {v(vL)}
    v_lshl_add_u32 {v(vT1)}, {v(vT1)}, 3, {v(vT3)}        ; perm(i) = 8*(i>>2) + (i&3)
    v_lshlrev_b32 {v(vKx)}, 6, {v(vT1)}
    v_lshl_add_u32 {v(vKx)}, {v(vg_)}, 4, {v(vKx)}
    s_and_b32 {s(sT0)}, {s(sWv)}, 1
    s_lshl_b32 {s(sT0)}, {s(sT0)}, 14
    s_lshl_b32 {s(sT1)}, {s(sCol)}, 2
    s_add_u32 {s(sT0)}, {s(sT0)}, {s(sT1)}
    s_add_u32 {s(sT0)}, {s(sT0)}, {WS_FLAG + FLAG_P + 16384}
    v_mov_b32 {v(vFlg)}, {s(sT0)}
    s_mov_b32 {s(sKf)}, 0
    s_mul_i32 {s(sT0)}, {s(sCol)}, {BLK // 32}
    v_add_u32 {v(vKx)}, {s(sT0)}, {v(vKx)}
    v_mov_b32 {v(vVt)}, {v(vKx)}
    v_lshlrev_b32 {v(vVm)}, 4, {v(vT1)}
    v_lshl_add_u32 {v(vVm)}, {v(vg_)}, 5, {v(vVm)}
    s_mul_i32 {s(sT0)}, {s(sCol)}, {MBLK // 32}
    v_add_u32 {v(vVm)}, {s(sT0)}, {v(vVm)}
    v_and_b32 {v(vT3)}, 1, {v(vg_)}
    v_cmp_eq_u32 vcc, 0, {v(vT3)}
    v_cndmask_b32 {v(vVm)}, {v(vT2)}, {v(vVm)}, vcc
    v_lshlrev_b32 {v(vKm)}, 6, {v(vm_)}
    v_lshl_add_u32 {v(vKm)}, {v(vg_)}, 4, {v(vKm)}
    v_add_u32 {v(vKm)}, {s(sT0)}, {v(vKm)}
    v_cmp_eq_u32 vcc, 1, {v(vc_)}
    v_cndmask_b32 {v(vKm)}, {v(vT2)}, {v(vKm)}, vcc
    v_mov_b32 {v(vLds)}, {v(vT0)}
    s_lshl_b32 {s(sT0)}, {s(sWv)}, 11
    v_add_u32 {v(vLdsW)}, {s(sT0)}, {v(vT0)}
    v_and_b32 {v(vT1)}, 15, {v(vL)}
    v_bfe_u32 {v(vT3)}, {v(vL)}, 2, 2
    v_and_b32 {v(vLdsV)}, 1, {v(vL)}
    v_lshl_add_u32 {v(vLdsV)}, {v(vT3)}, 1, {v(vLdsV)}
    v_bfe_u32 {v(vT3)}, {v(vL)}, 1, 1
    v_lshl_add_u32 {v(vLdsV)}, {v(vT3)}, 3, {v(vLdsV)}
    s_cmp_eq_u32 {s(sWv)}, 1
    s_cselect_b64 vcc, -1, 0
    v_cndmask_b32 {v(vT1)}, {v(vT1)}, {v(vLdsV)}, vcc
    v_and_b32 {v(vT3)}, 1, {v(vg_)}
    v_lshlrev_b32 {v(vT3)}, 2, {v(vT3)}
    v_sub_u32 {v(vT1)}, {v(vT1)}, {v(vT3)}
    v_mov_b32 {v(vT3)}, 0x3f80
    v_mov_b32 {v(vLdsV)}, 0x3f800000
    v_mov_b32 {v(vIdx)}, 0x4444
    v_mov_b32 {v(vSel)}, 0xeeee
    v_cmp_eq_u32 vcc, 1, {v(vc_)}
    v_cndmask_b32 {v(vIdx)}, {v(vIdx)}, {v(vSel)}, vcc
    """)
    for r, d in enumerate((0, 2, 8, 10)):
        A(f"""v_cmp_eq_u32 vcc, {d}, {v(vT1)}
        v_cndmask_b32 {v(vSel+r)}, 0, {v(vT3)}, vcc
        v_cmp_eq_u32 vcc, {d+1}, {v(vT1)}
        v_cndmask_b32 {v(vSel+r)}, {v(vSel+r)}, {v(vLdsV)}, vcc""")
    A(f"""
    s_mov_b32 {s(sCur)}, {WS_HOP}
    s_mov_b32 {s(sNext)}, {WS_HOP + HOP_STEP}
    s_mov_b32 {s(sArm)}, {WS_HOP + 2*HOP_STEP}
    s_mov_b32 {s(sPrev)}, {WS_HOP + 3*HOP_STEP}
    s_mov_b32 {s(sKx)}, {WS_K}
    s_mov_b32 {s(sVt)}, {WS_VT}
    s_mov_b32 {s(sKm)}, {WS_KM}
    s_mov_b32 {s(sVm)}, {WS_VMT}
    s_mov_b32 {s(sStep)}, 0
    """)
    for r in range(4): A(f"v_mov_b32 {v(vOnes+r)}, -1")
    for r in range(4): A(f"v_mov_b32 {v(vOneBf+r)}, 0x3f803f80")
    def arm_local(so, sc):
        A(f"""buffer_store_dwordx4 {v(vOnes,4)}, {v(vScW)}, {s(sWS,4)}, {s(so)} offen{sc}
        buffer_store_dwordx4 {v(vOnes,4)}, {v(vScW)}, {s(sWS,4)}, {s(so)} offen offset:128{sc}
        buffer_store_dwordx4 {v(vOnes,4)}, {v(vScWm)}, {s(sWS,4)}, {s(so)} offen{sc}
        buffer_store_dwordx2 {v(vOnes,2)}, {v(vObW)}, {s(sWS,4)}, {s(so)} offen{sc}
        buffer_store_dwordx2 {v(vOnes,2)}, {v(vMemW)}, {s(sWS,4)}, {s(so)} offen{sc}""")
    A(f"""s_mul_i32 {s(sT1)}, {s(sWv)}, {HOP_STEP}
    s_add_u32 {s(sT1)}, {s(sT1)}, {WS_HOP}""")
    arm_local(sT1, " sc1")
    A(f"""s_lshl_b32 {s(sT1)}, {s(sWv)}, 18
    s_add_u32 {s(sT1)}, {s(sT1)}, {WS_PM}
    buffer_store_dwordx4 {v(vOnes,4)}, {v(vPmW)}, {s(sWS,4)}, {s(sT1)} offen sc1
    s_add_u32 {s(sT1)}, {s(sT1)}, 8192
    buffer_store_dwordx4 {v(vOnes,4)}, {v(vPmW)}, {s(sWS,4)}, {s(sT1)} offen sc1""")
    A(f"""s_mul_i32 {s(sT1)}, {s(sCol)}, {MBLK // 32}
    v_add_u32 {v(vArm)}, {s(sT1)}, {v(vLds)}
    s_lshl_b32 {s(sT0)}, {s(sWv)}, 10
    s_add_u32 {s(sT1)}, {s(sT0)}, {WS_KM}
    buffer_store_dwordx4 {v(vOnes,4)}, {v(vArm)}, {s(sWS,4)}, {s(sT1)} offen sc1
    s_add_u32 {s(sT1)}, {s(sT0)}, {WS_VMT}
    buffer_store_dwordx4 {v(vOnes,4)}, {v(vArm)}, {s(sWS,4)}, {s(sT1)} offen sc1
    v_add_u32 {v(vT1)}, {WS_VMT - WS_KM - 512}, {v(vArm)}
    v_cmp_gt_u32 vcc, 32, {v(vL)}
    v_cndmask_b32 {v(vArm)}, {v(vT1)}, {v(vArm)}, vcc""")
    A("s_waitcnt vmcnt(0)")
    A("s_barrier")
    register(A, sWv, sT0, sT1, vT1, vT2)
    A(f"""
    v_lshrrev_b32 {v(vT0)}, 2, {v(vL)}
    v_and_b32 {v(vT3)}, 3, {v(vL)}
    v_lshlrev_b32 {v(vT3)}, 4, {v(vT3)}
    v_lshl_add_u32 {v(vT1)}, {v(vT0)}, 13, {v(vT3)}
    v_lshl_add_u32 {v(vT2)}, {v(vT0)}, 11, {v(vT3)}
    v_bfe_u32 {v(vT0)}, {v(vL)}, 2, 1
    v_lshl_add_u32 {v(vT0)}, {v(vg_)}, 2, {v(vT0)}
    v_lshl_add_u32 {v(vT0)}, {v(vc_)}, 5, {v(vT0)}
    v_lshl_add_u32 {v(vT3)}, {v(vT0)}, 6, {v(vT3)}
    s_lshl_b32 {s(sT0)}, {s(sWv)}, 15
    v_add_u32 {v(vT3)}, {s(sT0)}, {v(vT3)}
    """)
    for rnd in range(2):
        for half in range(2):
            mat = rnd * 2 + half
            A(f"s_mov_b32 {s(sW)}, {s(sPtr+2+2*mat)}")
            A(f"s_mov_b32 {s(sW+1)}, {s(sPtr+3+2*mat)}")
            if mat < 3:
                A(f"""s_lshl_b32 {s(sT0)}, {s(sWv)}, 21
                s_lshl_b32 {s(sT1)}, {s(sCol)}, 1
                s_add_u32 {s(sT0)}, {s(sT0)}, {s(sT1)}""")
                stride = 16 * 8192; vo = vT1
            else:
                A(f"""s_lshl_b32 {s(sT0)}, {s(sX)}, 21
                s_lshl_b32 {s(sT1)}, {s(sWv)}, 19
                s_add_u32 {s(sT0)}, {s(sT0)}, {s(sT1)}
                s_lshl_b32 {s(sT1)}, {s(sJ)}, 6
                s_add_u32 {s(sT0)}, {s(sT0)}, {s(sT1)}""")
                stride = 16 * 2048; vo = vT2
            A(f"""s_lshl_b32 {s(sT1)}, {s(sWv)}, 15
            s_add_u32 {s(sT1)}, {s(sT1)}, {half*16384}""")
            for i in range(16):
                A(f"s_mov_b32 m0, {s(sT1)}")
                A(f"buffer_load_dwordx4 {v(vo)}, {s(sW,4)}, {s(sT0)} offen lds")
                A(f"s_add_u32 {s(sT0)}, {s(sT0)}, {stride}")
                A(f"s_add_u32 {s(sT1)}, {s(sT1)}, 1024")
        A("s_waitcnt vmcnt(0)")
        for half in range(2):
            mat = rnd * 2 + half
            for t in range(2):
                for u in range(4):
                    for aa in range(4):
                        A(f"ds_read_b64_tr_b16 {a(aw(mat,t,u)+2*aa,2)}, {v(vT3)} offset:{half*16384 + (64*u + 16*(aa>>1) + 2*(aa&1))*64 + t*8}")
                A("s_waitcnt lgkmcnt(0)")
    for t in range(2):
        for c in range(2):
            A(f"v_mov_b32 {v(vVA + (t*2+c)*4 + 3)}, 0")
    A(f"v_mov_b32 {v(vPB+3)}, 0")
    def load_kx(d=vKX):
        if noside & 1 and inloop[0]: return
        A(f"""buffer_load_dwordx4 {v(d,4)}, {v(vKx)}, {s(sWS,4)}, {s(sKx)} offen sc1
        buffer_load_dwordx4 {v(d+4,4)}, {v(vKx)}, {s(sWS,4)}, {s(sKx)} offen offset:256 sc1
        s_add_u32 {s(sKx)}, {s(sKx)}, 2048
        s_min_u32 {s(sKx)}, {s(sKx)}, {WS_K + 63*2048}""")
    def load_vt(nxt=False):
        if noside & 1 and inloop[0]: return
        if nxt:
            for t in range(2):
                A(f"buffer_load_dwordx4 {v(vN+4*t,4)}, {v(vVt)}, {s(sWS,4)}, {s(sVt)} offen offset:{t*256} sc1")
        else:
          for t in range(2):
            for c in range(2):
                A(f"buffer_load_dwordx2 {v(vVA+(t*2+c)*4,2)}, {v(vVt)}, {s(sWS,4)}, {s(sVt)} offen offset:{t*256 + c*8} sc1")
        A(f"s_add_u32 {s(sVt)}, {s(sVt)}, 2048")
        A(f"s_min_u32 {s(sVt)}, {s(sVt)}, {WS_VT + 63*2048}")
    def store_km():
        if noside & 2: return
        A(f"buffer_store_dwordx4 {v(vXO,4)}, {v(vKm)}, {s(sWS,4)}, {s(sKm)} offen sc1")
        A(f"s_add_u32 {s(sKm)}, {s(sKm)}, 512")
    def store_vm():
        if noside & 2: return
        A(f"buffer_store_dwordx4 {v(vVM,4)}, {v(vVm)}, {s(sWS,4)}, {s(sVm)} offen sc1")
        A(f"s_add_u32 {s(sVm)}, {s(sVm)}, 512")
    def flagwait():
        Lp = A.newlabel("fw"); Lo = A.newlabel("fo")
        A(f"s_mov_b32 {s(sCnt)}, {s(sGive)}")
        A.label(Lp)
        A(f"""s_cmp_ge_u32 {s(sKf)}, {s(sNeed)}
        s_cbranch_scc1 {Lo}
        buffer_load_dword {v(vT0)}, {v(vFlg)}, {s(sWS,4)}, 0 offen sc1
        s_add_u32 {s(sCnt)}, {s(sCnt)}, 1
        s_waitcnt vmcnt(0)
        v_readfirstlane_b32 {s(sKf)}, {v(vT0)}
        s_cmp_lt_u32 {s(sCnt)}, {POLL_LIMIT}
        s_cbranch_scc1 {Lp}
        s_mov_b32 {s(sGive)}, {POLL_LIMIT}""")
        A.label(Lo)
    A(f"""
    s_mov_b32 {s(sW)}, {s(sPtr)}
    s_mov_b32 {s(sW+1)}, {s(sPtr+1)}
    s_mov_b32 {s(sW+2)}, 16384
    v_lshlrev_b32 {v(vT1)}, 11, {v(vm_)}
    v_lshl_add_u32 {v(vT1)}, {v(vg_)}, 4, {v(vT1)}
    v_lshl_add_u32 {v(vT1)}, {v(vc_)}, 3, {v(vT1)}
    s_lshl_b32 {s(sT0)}, {s(sJ)}, 6
    buffer_load_dwordx2 {v(vX,2)}, {v(vT1)}, {s(sW,4)}, {s(sT0)} offen
    """)
    rendezvous(A, vL, sT0, sT1, vT1, vT2, vT3, sGive, POLL_LIMIT, sPar)
    if par >= 0: A(f"s_mov_b32 {s(sPar)}, {par * 8192}")
    A(f"""s_add_u32 {s(sPm)}, {s(sPmL)}, {s(sPar)}
    s_xor_b32 {s(sFast)}, {s(sPass)}, 1
    v_min_u32 {v(vX)}, -2, {v(vX)}
    v_min_u32 {v(vX+1)}, -2, {v(vX+1)}
    buffer_store_dwordx2 {v(vX,2)}, {v(vMemW)}, {s(sWS,4)}, {s(sCur)} offen sc1
    """)
    if force_slow: A(f"s_mov_b32 {s(sFast)}, 0")
    if stamps:
        A(f"""s_lshl_b32 {s(sStO)}, s2, 2
        s_add_u32 {s(sStO)}, {s(sStO)}, {s(sWv)}
        s_lshl_b32 {s(sStO)}, {s(sStO)}, 13
        s_add_u32 {s(sStO)}, {s(sStO)}, {WS_STAMP}""")
    for r in range(32): A(f"v_mov_b32 {v(vAc+r)}, 0")
    Lkv = A.newlabel("kv"); Lkv1 = A.newlabel("kv")
    A(f"""s_cmp_ge_u32 {s(sWv)}, 2
    s_cbranch_scc1 {Lkv}
    s_mov_b32 {s(sNeed)}, 2""")
    flagwait()
    A(f"""s_cmp_eq_u32 {s(sWv)}, 1
    s_cbranch_scc1 {Lkv1}""")
    load_kx()
    A(f"s_branch {Lkv}")
    A.label(Lkv1)
    load_vt()
    A.label(Lkv)
    if ts: ts(1)
    A(f"s_mov_b32 {s(sCnt)}, {s(sGive)}")
    A("s_barrier")
    A(f"""s_cmp_eq_u32 {s(sFast)}, 0
    s_cbranch_scc1 recur_slow_disp""")
    for mode in ("fast", "slow"):
        if mode == "slow": A.label("recur_slow_disp")
        for w in range(1, 4):
            A(f"""s_cmp_eq_u32 {s(sWv)}, {w}
            s_cbranch_scc1 recur_{mode}_w{w}""")
        A(f"s_branch recur_{mode}_w0")

    def check(regs, tmp, dst="vcc"):
        r = list(regs)
        out = [f"v_max3_u32 {v(tmp)}, {v(r[0])}, {v(r[1])}, {v(r[2])}"]
        r = r[3:]
        while len(r) >= 2:
            out.append(f"v_max3_u32 {v(tmp)}, {v(tmp)}, {v(r[0])}, {v(r[1])}"); r = r[2:]
        if r: out.append(f"v_max_u32 {v(tmp)}, {v(tmp)}, {v(r[0])}")
        out.append(f"v_cmp_eq_u32 {dst}, -1, {v(tmp)}")
        return out
    tails = []
    inloop[0] = True
    def giveup(Lretry, Lgo):
        return [f"s_add_u32 {s(sCnt)}, {s(sCnt)}, 1", f"s_cmp_lt_u32 {s(sCnt)}, {POLL_LIMIT}", f"s_cbranch_scc1 {Lretry}",
                f"s_mov_b32 {s(sGive)}, {POLL_LIMIT}", f"s_branch {Lgo}"]
    def rgather(vaddr, so, blk, simple, st1=None, st2=None, cntreg=None):
        n = 4
        ld = [f"buffer_load_dwordx4 {v(vM+4*i,4)}, {v(vaddr)}, {s(sWS,4)}, {s(so)} offen offset:{i*1024} sc1" for i in range(n)]
        A(f"s_mov_b32 {s(sCnt)}, {s(sGive)}")
        stem = A.newlabel("g")
        if simple:
            A.label(stem)
            for x in ld: A(x)
            A("s_waitcnt vmcnt(0)")
            for x in check(range(vM, vM + 16), vT0): A(x)
            A(f"s_cbranch_vccz {stem}k")
            for x in giveup(stem, stem + "k")[:-1]: A(x)
            A.label(stem + "k")
            for i in range(n):
                for x in blk(i, i == n - 1): A(x)
            return
        for i, x in enumerate(ld):
            A(x)
            if i < n - 1: delay(A, pace)
        Lcont = A.newlabel("gc")
        def nxt(S, c):
            for k in range(1, n + 1):
                if (S >> ((c + k) % n)) & 1: return (c + k) % n
        def pre(S, c): return [f"s_waitcnt vmcnt({bin(S).count('1') - 1})"] + check(range(vM+4*c, vM+4*c+4), vT0)
        full = (1 << n) - 1
        for x in pre(full, 0): A(x)
        for i in range(n):
            S = full - ((1 << i) - 1)
            A(f"s_cbranch_vccnz {stem}F{S}_{i}")
            if i == 0 and st1 is not None: stamp(st1)
            if i == n - 1 and st2 is not None: stamp(st2)
            b = blk(i, i == n - 1); nx = pre(S - (1 << i), i + 1) if i < n - 1 else []
            if len(b) >= 4 and nx:
                b = b[:-2] + nx[:3] + b[-2:-1] + nx[3:] + b[-1:]
            else:
                b = b + nx
            for x in b: A(x)
        t = []
        done = set()
        order = sorted(((S, c) for S in range(1, full + 1) for c in range(n) if (S >> c) & 1), key=lambda x: -bin(x[0]).count("1"))
        for st0 in order:
            cur = st0
            while cur is not None and cur not in done:
                done.add(cur); S, c = cur
                t += [f"{stem}L{S}_{c}:"] + pre(S, c) + [f"s_cbranch_vccnz {stem}F{S}_{c}"]
                S2 = S - (1 << c)
                if S2 == 0 and stamps and st2 is not None: t += [f"{MT} {s(sSt + 2 * st2, 2)}"]
                t += blk(c, S2 == 0)
                if S2 == 0:
                    t += [f"s_branch {Lcont}"]; cur = None
                else:
                    cur = (S2, nxt(S2, c))
                    if cur in done: t += [f"s_branch {stem}L{cur[0]}_{cur[1]}"]
        for S, c in order:
            t += [f"{stem}F{S}_{c}:", "s_mov_b64 exec, vcc", ld[c], "s_mov_b64 exec, -1"] + giveup(f"{stem}L{S}_{nxt(S, c)}", Lcont)
        tails.append(t)
        A.label(Lcont)
        if stamps and cntreg is not None: A(f"s_mov_b32 {s(cntreg)}, {s(sCnt)}")
    def combine(dst, lo_own, lo_rot, hi_own, hi_rot):
        o = []
        for r in range(4):
            o.append(f"v_add_f32_dpp {v(dst+r)}, {v(lo_rot+r)}, {v(lo_own+r)} row_ror:8 row_mask:0xf bank_mask:0x3")
        for r in range(4):
            o.append(f"v_add_f32_dpp {v(dst+r)}, {v(hi_rot+r)}, {v(hi_own+r)} row_ror:8 row_mask:0xf bank_mask:0xc")
        return o
    def smf(mat, t, u): return f"v_smfmac_f32_16x16x64_bf16 {v(acc(mat,t),4)}, {v(vM+4*u,4)}, {a(aw(mat,t,u),8)}, {v(vIdx)}"
    def pack(dst, src, n=4): return [f"v_cvt_pk_bf16_f32 {v(dst+r)}, {v(src+2*r)}, {v(src+2*r+1)}" for r in range(n)]
    def mf(d, x, y, c): return f"v_mfma_f32_16x16x32_bf16 {v(d,4)}, {v(x,4)}, {v(y,4)}, {v(d,4) if c else 0}"
    def pka(d, x, y): return f"v_pk_add_f32 {v(d,2)}, {v(x,2)}, {v(y,2)}"
    def zero():
        for r in range(32): A(f"v_mov_b32 {v(vAc+r)}, 0")
    def arm_far():
        if not noside & 8: A(f"""s_add_u32 {s(sT0)}, {s(sPmL)}, {2*PM_STEP}
        s_lshr_b32 {s(sT1)}, {s(sT0)}, 8
        s_and_b32 {s(sT1)}, {s(sT1)}, 8192
        s_xor_b32 {s(sT1)}, {s(sT1)}, {s(sPar)}
        s_add_u32 {s(sT0)}, {s(sT0)}, {s(sT1)}
        buffer_store_dwordx4 {v(vOnes,4)}, {v(vPmW)}, {s(sWS,4)}, {s(sT0)} offen sc1
        s_add_u32 {s(sT0)}, {s(sT0)}, {PM_REP}""")
        if nrep == 2 and not noside & 8: A(f"buffer_store_dwordx4 {v(vOnes,4)}, {v(vPmW)}, {s(sWS,4)}, {s(sT0)} offen sc1")
        if not noside & 4: A(f"""s_lshl_b32 {s(sT0)}, {s(sStep)}, 9
        s_add_u32 {s(sT0)}, {s(sT0)}, {WS_KM + 8*512}
        s_cmp_ge_u32 {s(sStep)}, 56
        s_cselect_b32 {s(sT0)}, {OOB}, {s(sT0)}
        buffer_store_dwordx4 {v(vOnes,4)}, {v(vArm)}, {s(sWS,4)}, {s(sT0)} offen sc1""")

    for mode in ("fast", "slow"):
      LSC = "" if mode == "fast" else " sc1"
      simple = mode == "slow"
      for w in range(4):
        top = f"recur_{mode}_w{w}"
        last = f"recur_{mode}_last{w}"
        def dump():
            A("s_waitcnt lgkmcnt(0)")
            for k in range(14):
                A(f"v_writelane_b32 {v(vT1)}, {s(sSt+2*k)}, {k}")
            for k in range(4):
                A(f"v_writelane_b32 {v(vT1)}, {s(80+k)}, {16+k}")
            A(f"""v_lshlrev_b32 {v(vT2)}, 2, {v(vL)}
            v_mov_b32 {v(vT3)}, {OOB}
            v_cmp_gt_u32 vcc, 20, {v(vL)}
            v_cndmask_b32 {v(vT2)}, {v(vT3)}, {v(vT2)}, vcc
            buffer_store_dword {v(vT1)}, {v(vT2)}, {s(sWS,4)}, {s(sStO)} offen
            s_add_u32 {s(sStO)}, {s(sStO)}, 128""")
        A(".p2align 6")
        A.label(top)
        stamp(0)
        delay(A, dmem)
        def blk_mem(u, lastc):
            o = [smf(0,0,u), smf(1,0,u), smf(0,1,u), smf(1,1,u)]
            if not vin: return o
            if not lastc: return o + [smf(2,0,u), smf(2,1,u)]
            for t in range(2):
                o += pack(vPk + 4*t, vAc + 8*t)
                o.append(f"ds_write_b128 {v(vLdsW)}, {v(vPk+4*t,4)} offset:{1024*t}" if w else smf(2,t,u))
            o += [smf(2,0,u), smf(2,1,u)] if w else [mf(vX, vPk, vSel, 0), mf(vX+4, vPk+4, vSel, 0)]
            return o
        rgather(vMemR, sCur, blk_mem, simple, 1, 12, cntreg=80)
        vq = []
        if not vin:
            vq = [smf(2,t,u) for u in range(4) for t in range(2)]
            for t in range(2):
                for x in pack(vPk + 4*t, vAc + 8*t): A(x)
                A(f"ds_write_b128 {v(vLdsW)}, {v(vPk+4*t,4)} offset:{1024*t}" if w else vq.pop(0))
            if w == 0:
                A(mf(vX, vPk, vSel, 0)); A(mf(vX+4, vPk+4, vSel, 0))
            for k in range(3 if w else 2): A(vq.pop(0))
        if w: A("s_waitcnt lgkmcnt(0)")
        A("s_barrier")
        stamp(2)
        if w == 0:
            for ww in range(1, 4):
                for t in range(2):
                    A(f"ds_read_b128 {v(vR + (ww*2+t)*4, 4)}, {v(vLds)} offset:{ww*2048 + t*1024}")
        if kvat == 0:
            if w == 0: load_kx(vN)
            if w == 1: load_vt(True)
        def vpack():
            for x in pack(vPk + 8, acc(2, 0)): A(x)
            A(f"ds_write_b128 {v(vLdsW)}, {v(vPk+8,4)} offset:8192")
        for x in vq: A(x)
        if vin or w: vpack()
        if w == 0:
            for k in range(6):
                lgkm((6 if vin else 5) - k)
                A(mf(vX + 4*(k & 1), vR + 8 + 4*k, vSel, 1))
            if not vin: vpack()
            for x in pack(vXO, vX): A(x)
            A(mf(vD + 4, vKX, vXO, 0)); A(mf(vD + 8, vKX + 4, vXO, 0)); A(mf(vD, vXO, vXO, 0))
            A(f"buffer_store_dwordx4 {v(vD+4,4)}, {v(vScW)}, {s(sWS,4)}, {s(sCur)} offen{LSC}")
            A(f"buffer_store_dwordx4 {v(vD+8,4)}, {v(vScW)}, {s(sWS,4)}, {s(sCur)} offen offset:128{LSC}")
            A(f"buffer_store_dwordx4 {v(vD,4)}, {v(vScWm)}, {s(sWS,4)}, {s(sCur)} offen{LSC}")
        if w == 3: arm_local(sArm, LSC)
        if w == 2 and kmat == 0: arm_far()
        stamp(3)
        A(f"s_cmp_eq_u32 {s(sStep)}, 63")
        A("s_waitcnt lgkmcnt(0)")
        A("s_barrier")
        stamp(4)
        def vsum(d):
            for ww in range(4):
                if ww != w: A(f"ds_read_b128 {v(vR + 4*ww, 4)}, {v(vLds)} offset:{8192 + ww*2048}")
            A(mf(d, vSel, vPk + 8, 0))
            k = 2
            for ww in range(4):
                if ww != w:
                    lgkm(k); k -= 1
                    A(mf(d, vSel, vR + 4*ww, 1))
        if w == 0:
            A(f"s_cbranch_scc1 {last}")
            tails.append([f"{last}:", f"buffer_store_dwordx4 {v(vXO,4)}, {v(vKm)}, {s(sWS,4)}, {s(sKm)} offen sc1", f"s_branch {L_end}"])
            delay(A, dkm)
            if kvat == 1: load_kx()
            if kmat <= 1: store_km()
        elif w == 3:
            A(f"s_cbranch_scc1 {L_end}")
            if stamps: dump()
        elif w == 2:
            vsum(vD)
            for x in pack(vVM, vD, 2): A(x)
            for r in range(2):
                A(f"v_mov_b32 {v(vVM+2+r)}, {v(vVM+r)}")
            for r in range(2):
                A(f"v_permlane16_swap_b32 {v(vVM+r)}, {v(vVM+2+r)}")
            A(f"s_cbranch_scc1 {last}")
            tails.append([f"{last}:", f"buffer_store_dwordx4 {v(vVM,4)}, {v(vVm)}, {s(sWS,4)}, {s(sVm)} offen sc1", f"s_branch {L_end}"])
            delay(A, max(dkm - 192, 0))
            if kmat <= 1: store_vm()
            if kmat == 1: arm_far()
        else:
            A(f"s_cbranch_scc1 {L_end}")
            scl = []
            for p in range(4): scl.append(f"buffer_load_dwordx4 {v(vP+4*p,4)}, {v(vScR)}, {s(sWS,4)}, {s(sCur)} offen offset:{p*1024} sc1")
            for p in range(4): scl.append(f"buffer_load_dword {v(vP+16+p)}, {v(vScRm)}, {s(sWS,4)}, {s(sCur)} offen offset:{p*256} sc1")
            delay(A, dsc)
            for x in scl: A(x)
            if kvat == 1: load_vt(True)
            ex = 2 if kvat == 1 and not noside & 1 else 0
            A(f"s_mov_b32 {s(sCnt)}, {s(sGive)}")
            stamp(9)
            vsum(vD)
            for k in range(4): A(f"v_cvt_pk_bf16_f32 {v(vVA + 4*k + 2)}, {v(vD+k)}, {v(vPB+3)}")
            Lsum = A.newlabel("ss"); Lbad = A.newlabel("sb"); Lgo = A.newlabel("sg")
            stamp(10)
            A(f"s_waitcnt vmcnt({6 + ex})")
            A.label(Lsum)
            A(pka(vS, vP, vP + 4)); A(pka(vS + 2, vP + 2, vP + 6))
            A(f"s_waitcnt vmcnt({4 + ex})")
            A(pka(vR, vP + 8, vP + 12)); A(pka(vR + 2, vP + 10, vP + 14))
            A(pka(vS, vS, vR)); A(pka(vS + 2, vS + 2, vR + 2))
            A(f"s_waitcnt vmcnt({ex})")
            stamp(11)
            A(pka(vR + 4, vP + 16, vP + 18))
            A(f"""v_cmp_u_f32 {s(sMk,2)}, {v(vS)}, {v(vS+1)}
            v_add_f32 {v(vS+4)}, {v(vR+4)}, {v(vR+5)}
            v_cmp_u_f32 {s(sMk+2,2)}, {v(vS+2)}, {v(vS+3)}
            v_max3_f32 {v(vS+5)}, {v(vS)}, {v(vS+1)}, {v(vS+2)}
            v_cmp_u_f32 vcc, {v(vS+4)}, {v(vS+4)}
            v_max3_f32 {v(vS+5)}, {v(vS+5)}, {v(vS+3)}, {v(vS+4)}
            s_or_b64 {s(sMk,2)}, {s(sMk,2)}, {s(sMk+2,2)}
            s_or_b64 vcc, vcc, {s(sMk,2)}
            v_max_f32_dpp {v(vS+5)}, {v(vS+5)}, {v(vS+5)} row_ror:8 row_mask:0xf bank_mask:0xf
            s_cbranch_scc1 {Lbad}""")
            A.label(Lgo)
            tails.append([f"{Lbad}:"] + check(range(vP, vP + 20), vT0) + [f"s_cbranch_vccz {Lgo}"] + scl + ["s_waitcnt vmcnt(0)"] + giveup(Lsum, Lgo))
            stamp(5)
            if stamps: A(f"s_mov_b32 {s(82)}, {s(sCnt)}")
            for sw in ("v_permlane16_swap_b32", "v_permlane32_swap_b32"):
                A(f"v_mov_b32 {v(vS+6)}, {v(vS+5)}")
                A(f"{sw} {v(vS+5)}, {v(vS+6)}")
                A(f"v_max_f32 {v(vS+5)}, {v(vS+5)}, {v(vS+6)}")
            A(f"v_mul_f32 {v(vS+5)}, {s(sC)}, {v(vS+5)}")
            for r in range(5): A(f"v_fma_f32 {v(vS+r)}, {v(vS+r)}, {s(sC)}, -{v(vS+5)}")
            for r in range(5): A(f"v_exp_f32 {v(vS+r)}, {v(vS+r)}")
            A(f"v_cvt_pk_bf16_f32 {v(vPB)}, {v(vS)}, {v(vS+1)}")
            A(f"v_cvt_pk_bf16_f32 {v(vPB+1)}, {v(vS+2)}, {v(vS+3)}")
            A(f"v_cvt_pk_bf16_f32 {v(vPB+2)}, {v(vS+4)}, {v(vPB+3)}")
            A(mf(vSum, vOneBf, vPB, 0))
            for k in range(4): A(mf(vO + 4*k, vVA + 4*k, vPB, 0))
            A(f"v_add_f32_dpp {v(vS+5)}, {v(vSum)}, {v(vSum)} row_ror:8 row_mask:0xf bank_mask:0xf")
            A(f"v_rcp_f32 {v(vS+5)}, {v(vS+5)}")
            for x in combine(vX, vO + 0, vO + 4, vO + 12, vO + 8): A(x)
            for r in range(4): A(f"v_mul_f32 {v(vX+r)}, {v(vX+r)}, {v(vS+5)}")
            for x in pack(vX, vX, 2): A(x)
            A(f"buffer_store_dwordx2 {v(vX,2)}, {v(vObW)}, {s(sWS,4)}, {s(sCur)} offen{LSC}")
        stamp(6)
        A("s_barrier")
        delay(A, dob)
        def blk_o(u, lastc):
            o = [smf(3,0,u), smf(3,1,u)]
            if lastc:
                o += pack(vPk + 8, acc(3, 0))
                o.append(f"ds_write_b128 {v(vLdsW)}, {v(vPk+8,4)} offset:9216" if w != 3 else mf(vX, vPk + 8, vSel, 0))
            return o
        rgather(vObR, sCur, blk_o, simple, 7, 13, cntreg=81)
        if w != 3: A("s_waitcnt lgkmcnt(0)")
        A("s_barrier")
        stamp(8)
        if w != 3:
            if kmat == 2:
                if w == 0: store_km()
                if w == 2: store_vm(); arm_far()
            delay(A, dz)
            if w == 1:
                for k in range(4):
                    for r in range(2): A(f"v_mov_b32 {v(vVA+4*k+r)}, {v(vN+2*k+r)}")
            if w == 0 and kvat == 0:
                for r in range(8): A(f"v_mov_b32 {v(vKX+r)}, {v(vN+r)}")
            zero()
            if w < 2:
                A(f"""s_add_u32 {s(sNeed)}, {s(sStep)}, 3
                s_min_u32 {s(sNeed)}, {s(sNeed)}, 64""")
                flagwait()
        else:
            for ww in range(3):
                A(f"ds_read_b128 {v(vR+4*ww,4)}, {v(vLds)} offset:{9216 + ww*2048}")
            for ww in range(3):
                lgkm(2 - ww)
                A(mf(vX, vR + 4*ww, vSel, 1))
            A(f"buffer_store_dwordx4 {v(vX,4)}, {v(vPmW)}, {s(sWS,4)}, {s(sPm)} offen sc1")
            A(f"s_add_u32 {s(sT1)}, {s(sPm)}, {PM_REP}")
            if nrep == 2: A(f"buffer_store_dwordx4 {v(vX,4)}, {v(vPmW)}, {s(sWS,4)}, {s(sT1)} offen sc1")
            stamp(9)
            def pml(base, so):
                return [f"buffer_load_dwordx4 {v(base+4*i,4)}, {v(va)}, {s(sWS,4)}, {s(so)} offen sc1" for i, va in enumerate((vPmR, vPmA, vPmB))]
            def fin(base, Lbad, ex):
                return [f"s_waitcnt vmcnt({2+ex})", pka(vR+24, vX, base), pka(vR+26, vX+2, base+2), f"s_waitcnt vmcnt({ex})",
                        pka(vR+28, base+4, base+8), pka(vR+30, base+6, base+10), pka(vR+24, vR+24, vR+28), pka(vR+26, vR+26, vR+30),
                        f"v_cmp_u_f32 vcc, {v(vR+24)}, {v(vR+25)}", f"v_cmp_u_f32 {s(sMk,2)}, {v(vR+26)}, {v(vR+27)}"] + pack(vS, vR+24, 2) + \
                       [f"s_or_b64 vcc, vcc, {s(sMk,2)}", f"s_cbranch_scc1 {Lbad}"]
            delay(A, d0)
            A(f"s_mov_b32 {s(sCnt)}, {s(sGive)}")
            for x in pml(vR, sPm): A(x)
            Lr = A.newlabel("pr"); Lgo = A.newlabel("pg"); Lb = A.newlabel("pb"); Lr2 = A.newlabel("pq")
            if nrep == 2:
                delay(A, dd)
                for x in pml(vR + 12, sT1): A(x)
            zero()
            if nrep == 1: A.label(Lb)
            for x in fin(vR, Lr, 3 if nrep == 2 else 0): A(x)
            A.label(Lgo)
            stamp(10)
            A(f"buffer_store_dwordx2 {v(vS,2)}, {v(vMemW)}, {s(sWS,4)}, {s(sNext)} offen{LSC}")
            if nrep == 1:
                t = [f"{Lr}:"] + check(range(vR, vR + 12), vT0) + [f"s_cbranch_vccz {Lgo}"] + pml(vR, sPm) + giveup(Lb, Lgo)
            else:
                t = [f"{Lr}:"] + fin(vR + 12, Lr2, 0) + [f"s_branch {Lgo}", f"{Lr2}:"] + check(range(vR + 12, vR + 24), vT0) + [f"s_cbranch_vccz {Lgo}"] + pml(vR + 12, sT1) + giveup(Lr, Lgo)
            tails.append(t)
            if stamps: A(f"s_mov_b32 {s(83)}, {s(sCnt)}")
            stamp(11)
            A("s_barrier")
        adv = f"""s_mov_b32 {s(sT0)}, {s(sCur)}
        s_mov_b32 {s(sCur)}, {s(sNext)}
        s_mov_b32 {s(sNext)}, {s(sArm)}
        s_mov_b32 {s(sArm)}, {s(sPrev)}
        s_mov_b32 {s(sPrev)}, {s(sT0)}
        s_add_u32 {s(sPmL)}, {s(sPmL)}, {PM_STEP}
        s_lshr_b32 {s(sPm)}, {s(sPmL)}, 8
        s_and_b32 {s(sPm)}, {s(sPm)}, 8192
        s_xor_b32 {s(sPm)}, {s(sPm)}, {s(sPar)}
        s_add_u32 {s(sPm)}, {s(sPm)}, {s(sPmL)}
        s_add_u32 {s(sStep)}, {s(sStep)}, 1"""
        A(adv)
        if stamps and w != 3: dump()
        if w != 3: A("s_barrier")
        A(f"s_branch {top}")
        for t in tails:
            for x in t: A(x)
        tails.clear()
    A.label(L_end)
    if ts: ts(2)
    A("s_endpgm")
```

```python
import sys
from build import *
from stream import *
from attn import *
from fft import *
from recur5 import gen_recur
from proto import *

def gen(ts=False, notu=0, **kw):
    A = Asm(); R = SR
    sG, sI, sGive = 90, 91, 92
    entry(A, "W_end", kw.pop("xmap", 1))
    A("""s_bitcmp1_b32 s3, 2
    s_cbranch_scc0 R_entry""")
    common_entry(A, R, 256, "W_end")
    if ts: tstamp(A, R, 0)
    A(f"""s_lshr_b32 {s(sG)}, s2, 6
    s_bfe_u32 {s(sI)}, s2, 0x30003
    s_lshl_b32 {s(sI)}, {s(sI)}, 2
    s_and_b32 {s(R.sT0)}, s3, 3
    s_add_u32 {s(sI)}, {s(sI)}, {s(R.sT0)}
    s_mov_b32 {s(sGive)}, 0
    s_lshl_b32 {s(R.sT0)}, {s(sI)}, 2
    s_add_u32 {s(R.sT0)}, {s(R.sT0)}, {s(R.sWv)}            ; 4 idx + w
    s_lshl_b32 {s(R.sT1)}, {s(sG)}, 7
    s_add_u32 {s(R.sT1)}, {s(R.sT1)}, {s(R.sT0)}
    s_lshl_b32 {s(R.sT1)}, {s(R.sT1)}, 7
    s_add_u32 {s(R.sT1)}, {s(R.sT1)}, {WS_FLAG + FLAG_P}
    s_lshl_b32 {s(R.sSrc)}, {s(R.sWv)}, 5
    s_add_u32 {s(R.sSrc)}, {s(R.sSrc)}, {s(sI)}
    s_lshl_b32 {s(R.sSrc)}, {s(R.sSrc)}, 2
    s_add_u32 {s(R.sSrc)}, {s(R.sSrc)}, {WS_FLAG + FLAG_T}
    s_cmp_eq_u32 {s(sG)}, 3
    s_cselect_b32 {s(R.sT1)}, {s(R.sSrc)}, {s(R.sT1)}
    s_cselect_b64 exec, 7, 1
    v_mov_b32 {v(R.vT0)}, {s(R.sT1)}
    s_and_b32 {s(R.sT1)}, {s(R.sT0)}, 31
    s_lshl_b32 {s(R.sT1)}, {s(R.sT1)}, 2
    s_lshr_b32 {s(R.sSrc)}, {s(sI)}, 3
    s_add_u32 {s(R.sT1)}, {s(R.sT1)}, {s(R.sSrc)}
    s_lshl_b32 {s(R.sT1)}, {s(R.sT1)}, 2
    s_add_u32 {s(R.sT1)}, {s(R.sT1)}, {WS_FLAG + FLAG_F}
    v_writelane_b32 {v(R.vT0)}, {s(R.sT1)}, 1
    s_lshl_b32 {s(R.sT1)}, {s(R.sT0)}, 2
    s_add_u32 {s(R.sT1)}, {s(R.sT1)}, {WS_FLAG + FLAG_F + 512}
    v_writelane_b32 {v(R.vT0)}, {s(R.sT1)}, 2
    v_mov_b32 {v(R.vT1)}, 0
    buffer_store_dword {v(R.vT1)}, {v(R.vT0)}, {s(R.sWS,4)}, 0 offen sc1
    s_mov_b64 exec, -1
    s_waitcnt vmcnt(0) lgkmcnt(0)
    s_barrier
    s_cmp_lg_u32 {s(sG)}, 3
    s_cbranch_scc1 W_novote""")
    vote(A, R, sI)
    A("s_barrier")
    A.label("W_novote")
    register(A, R.sWv, R.sT0, R.sT1, R.vT0, R.vT1)
    def rdv(): rendezvous(A, R.vL, R.sT0, R.sT1, R.vT0, R.vT1, R.vT2, sGive, SPIN)
    A(f"""s_cmp_eq_u32 {s(sG)}, 3
    s_cbranch_scc1 W_F""")
    gen_P(A, sG, sI, "W_U", ts=ts, rdv=rdv)
    A.label("W_U")
    if ts: tstamp(A, R, 2)
    if notu: A("s_branch W_fin")
    gen_U(A, sG, sI, "W_fin", sGive, ts=ts)
    A.label("W_F")
    gen_F(A, sI, "W_T", sGive, rdv=rdv, ts=ts)
    A.label("W_T")
    if ts: tstamp(A, R, 6)
    if notu: A("s_branch W_fin")
    gen_T(A, sI, "W_fin", sGive)
    A.label("W_fin")
    if ts: tstamp(A, R, 7)
    A.label("W_end")
    A("s_endpgm")
    A.label("R_entry")
    class RR: sWS = 4; sWv = 14
    gen_recur(A, ts=(lambda k: tstamp(A, RR, k, vt=248)) if ts else None, **kw)
    return A

if __name__ == "__main__":
    kw = {}
    for x in sys.argv[2:]:
        k, val = x.split("="); kw[k] = int(val)
    A = gen(**kw)
    name = NAME + "_kernel"
    txt = assemble_file([(name, 256, 256, 131072)], [kernel_text(name, A)])
    open(sys.argv[1], "w").write(txt)
```

```python
from asmlib import *
from layout import *
from stream import *
import struct, math
def f32bits(x): return struct.unpack("<I", struct.pack("<f", x))[0]
SPIN = 1 << 20
LD = ""

def gen_T(A, sHead, done, sGive):
    R = SR
    sSeg, sC, sCnt, sQ, sKm, sOo, sNx, sHave = 28, 29, 30, 31, 32, 33, 34, 35
    sMask = 36
    sQn, sKn = 68, 69
    vQa, vKa, vKma, vVma, vOa, vFa, vFl, vTf, vMx, vSm = range(10, 20)
    aQ = lambda b: 96*b
    aK = lambda b: 96*b + 32
    aV = lambda b: 96*b + 64
    vKM = lambda b: 20 + 48*b
    vVM = lambda b: 52 + 48*b
    vS, vSM, vP = 116, 132, 148
    vO = 160
    vPk = 224
    pi_lane(A, R.vT2, R.vL, R.vT0, R.vT1)
    A(f"""
    v_lshrrev_b32 {v(R.vT0)}, 5, {v(R.vL)}            ; h2
    v_and_b32 {v(R.vT1)}, 31, {v(R.vL)}               ; q / row
    v_lshlrev_b32 {v(R.vT3)}, 4, {v(R.vT0)}
    v_lshl_add_u32 {v(vQa)}, {v(R.vT1)}, 6, {v(R.vT3)}
    v_lshl_add_u32 {v(vKa)}, {v(R.vT2)}, 6, {v(R.vT3)}
    v_mov_b32 {v(vTf)}, {OOB}
    v_cmp_gt_u32 vcc, 8, {v(R.vT1)}
    v_cndmask_b32 {v(vKma)}, {v(vTf)}, {v(vQa)}, vcc
    v_lshlrev_b32 {v(vVma)}, 3, {v(R.vT0)}
    v_lshl_add_u32 {v(vVma)}, {v(R.vT2)}, 4, {v(vVma)}
    ; O address: (q>>4)*128K + h2*256 + (q&15)*16
    v_and_b32 {v(vOa)}, 15, {v(R.vL)}
    v_lshlrev_b32 {v(vOa)}, 4, {v(vOa)}
    v_lshl_add_u32 {v(vOa)}, {v(R.vT0)}, 8, {v(vOa)}
    v_bfe_u32 {v(R.vT3)}, {v(R.vL)}, 4, 1
    v_lshl_add_u32 {v(vOa)}, {v(R.vT3)}, 17, {v(vOa)}
    v_lshrrev_b32 {v(vFa)}, 2, {v(R.vL)}
    v_and_b32 {v(R.vT3)}, 3, {v(R.vL)}
    v_lshl_add_u32 {v(vFa)}, {v(vFa)}, 7, {v(R.vT3)}
    s_lshl_b32 {s(R.sT0)}, {s(sHead)}, 2
    v_add_u32 {v(vFa)}, {s(R.sT0)}, {v(vFa)}
    v_lshlrev_b32 {v(vFa)}, 7, {v(vFa)}
    v_add_u32 {v(vFa)}, {WS_FLAG + FLAG_P}, {v(vFa)}
    v_cmp_gt_u32 vcc, 16, {v(R.vL)}
    v_cndmask_b32 {v(vFa)}, {v(vTf)}, {v(vFa)}, vcc
    v_mov_b32 {v(vFl)}, 0
    s_add_u32 {s(R.sT1)}, {s(R.sWv)}, {s(R.sT0)}
    s_lshl_b32 {s(R.sT1)}, {s(R.sT1)}, 7
    s_add_u32 {s(R.sT1)}, {s(R.sT1)}, {WS_FLAG + FLAG_T}
    v_lshl_add_u32 {v(R.vFlag)}, {v(R.vL)}, 2, {s(R.sT1)}
    v_cmp_gt_u32 vcc, 32, {v(R.vL)}
    v_cndmask_b32 {v(R.vFlag)}, {v(vTf)}, {v(R.vFlag)}, vcc
    v_lshlrev_b32 {v(R.vT0)}, 3, {v(R.vT0)}
    v_sub_u32 {v(R.vT1)}, {v(R.vT1)}, {v(R.vT0)}      ; q - 8*h2 (signed)
    s_mov_b32 {s(sC)}, {f32bits(128 ** -0.5 * math.log2(math.e))}
    s_mov_b32 {s(sSeg)}, {s(R.sWv)}
    s_mul_i32 {s(sQ)}, {s(R.sT0)}, {BLK}
    s_lshl_b32 {s(R.sT1)}, {s(sSeg)}, 11
    s_add_u32 {s(sQ)}, {s(sQ)}, {s(R.sT1)}
    s_mul_i32 {s(sKm)}, {s(R.sT0)}, {MBLK}
    s_lshl_b32 {s(R.sT1)}, {s(sSeg)}, 9
    s_add_u32 {s(sKm)}, {s(sKm)}, {s(R.sT1)}
    s_add_u32 {s(sKm)}, {s(sKm)}, {WS_KM}
    s_lshl_b32 {s(sOo)}, {s(sSeg)}, 18
    s_lshl_b32 {s(R.sT1)}, {s(sHead)}, 12
    s_add_u32 {s(sOo)}, {s(sOo)}, {s(R.sT1)}
    s_add_u32 {s(sOo)}, {s(sOo)}, {WS_O}
    v_mov_b32 {v(vTf)}, 0xff800000
    s_mov_b32 {s(sHave)}, 0
    v_mov_b32 {v(R.vFv)}, 0
    """)
    for r in range(16): A(f"v_cmp_le_i32 {s(sMask+2*r,2)}, {16*(r>>3) + (r&7)}, {v(R.vT1)}")
    for b in range(2):
        for es in range(4):
            A(f"v_mov_b32 {v(vVM(b)+4*es+2)}, 0"); A(f"v_mov_b32 {v(vVM(b)+4*es+3)}, 0")
    A(f"v_mov_b32 {v(vP+10)}, 0"); A(f"v_mov_b32 {v(vP+11)}, 0")
    ldfl = f"buffer_load_dword {v(vFl)}, {v(vFa)}, {s(R.sWS,4)}, 0 offen sc1"
    stfl = f"buffer_store_dword {v(R.vFv)}, {v(R.vFlag)}, {s(R.sWS,4)}, 0 offen sc1"
    def spin(name, sNeed, mask, ok, slp):
        return [f"s_mov_b32 {s(sCnt)}, {s(sGive)}", f"{name}:",
                f"v_cmp_ge_u32 vcc, {s(sNeed)}, {v(vFl)}", f"s_and_b32 {s(R.sT0)}, vcc_lo, {mask}", f"s_cbranch_scc0 {ok}",
                f"s_cmp_ge_u32 {s(sCnt)}, {SPIN}", f"s_cselect_b32 {s(sGive)}, {SPIN}, {s(sGive)}", f"s_cbranch_scc1 {ok}",
                f"s_add_u32 {s(sCnt)}, {s(sCnt)}, 1", ldfl, f"s_sleep {slp}", "s_waitcnt vmcnt(0)", f"s_branch {name}"]
    def ldq(b, so):
        o = []
        for mat, reg, va in ((0, aQ(b), vQa), (1, aK(b), vKa), (2, aV(b), vKa)):
            for es in range(4):
                o.append([f"s_add_u32 {s(R.sT0)}, {s(so)}, {mat*QKV_STRIDE + es*BLK}"] +
                         [f"buffer_load_dwordx4 {a(reg+(es*2+u)*4,4)}, {v(va)}, {s(R.sWS,4)}, {s(R.sT0)} offen offset:{32*u}{LD}" for u in range(2)])
        return o
    def ldm(b, so):
        o = []
        for es in range(4):
            o.append([f"s_add_u32 {s(R.sT0)}, {s(so)}, {es*MBLK}", f"s_add_u32 {s(R.sT1)}, {s(so)}, {es*MBLK + WS_VMT - WS_KM}"] +
                     [f"buffer_load_dwordx4 {v(vKM(b)+(es*2+u)*4,4)}, {v(vKma)}, {s(R.sWS,4)}, {s(R.sT0)} offen offset:{32*u}{LD}" for u in range(2)] +
                     [f"buffer_load_dwordx2 {v(vVM(b)+4*es,2)}, {v(vVma)}, {s(R.sWS,4)}, {s(R.sT1)} offen{LD}"])
        return o
    def x32(op, x):
        A(f"""v_mov_b32 {v(R.vT0)}, {v(x)}
        v_permlane32_swap_b32 {v(x)}, {v(R.vT0)}
        {op} {v(x)}, {v(x)}, {v(R.vT0)}""")
    for x in spin("T_p", sSeg, 0xfff, "T_pk", 8): A(x)
    A.label("T_pk")
    for g in ldq(0, sQ):
        for x in g: A(x)
    tails = []
    for b in range(2):
        A.label(f"T_top{b}")
        A(f"""s_cmp_eq_u32 {s(sHave)}, 0
        s_cbranch_scc1 T_slow{b}""")
        A.label(f"T_go{b}")
        A(f"""s_add_u32 {s(sNx)}, {s(sSeg)}, 4
        s_min_u32 {s(sQn)}, {s(sNx)}, 63
        s_waitcnt vmcnt(8)
        v_cmp_ge_u32 vcc, {s(sQn)}, {v(vFl)}
        s_and_b32 {s(R.sT0)}, vcc_lo, 0xfff
        s_cbranch_scc1 T_pw{b}""")
        A.label(f"T_pok{b}")
        A(f"""s_add_u32 {s(sQ)}, {s(sQ)}, {4*2048}
        s_add_u32 {s(sKm)}, {s(sKm)}, {4*512}
        s_and_b32 {s(R.sT0)}, vcc_lo, 0xf000
        s_cselect_b32 {s(sHave)}, 0, 1
        s_cselect_b32 {s(sKn)}, {OOB}, {s(sKm)}
        s_cmp_lt_u32 {s(sNx)}, 64
        s_cselect_b32 {s(sQn)}, {s(sQ)}, {OOB}
        s_cselect_b32 {s(sKn)}, {s(sKn)}, {OOB}
        {ldfl}""")
        tails.append([f"T_slow{b}:", "s_waitcnt vmcnt(0)", stfl] + spin(f"T_s{b}", sSeg, 0xf000, f"T_sk{b}", 2) + [f"T_sk{b}:"] +
                     [x for g in ldm(b, sKm) for x in g] + ["s_waitcnt vmcnt(0)", f"s_branch T_go{b}"])
        tails.append([f"T_pw{b}:"] + spin(f"T_q{b}", sQn, 0xfff, f"T_pok{b}", 8))
        nx = ldq(1 - b, sQn) + ldm(1 - b, sKn)
        for k in range(8):
            A(f"v_mfma_f32_32x32x16_bf16 {v(vS,16)}, {a(aK(b)+4*k,4)}, {a(aQ(b)+4*k,4)}, {v(vS,16) if k else 0}")
            for x in nx.pop(0): A(x)
        for k in range(8):
            A(f"v_mfma_f32_32x32x16_bf16 {v(vSM,16)}, {v(vKM(b)+4*k,4)}, {a(aQ(b)+4*k,4)}, {v(vSM,16) if k else 0}")
            for x in nx.pop(0): A(x)
        for r in range(16): A(f"v_cndmask_b32 {v(vS+r)}, {v(vTf)}, {v(vS+r)}, {s(sMask+2*r,2)}")
        A(f"v_max3_f32 {v(vMx)}, {v(vS)}, {v(vS+1)}, {v(vS+2)}")
        for r in range(3, 19, 2): A(f"v_max3_f32 {v(vMx)}, {v(vMx)}, {v(vS+r)}, {v(vS+r+1)}")
        A(f"v_max_f32 {v(vMx)}, {v(vMx)}, {v(vS+19)}")
        x32("v_max_f32", vMx)
        A(f"v_mul_f32 {v(vMx)}, {s(sC)}, {v(vMx)}")
        for r in range(20): A(f"v_fma_f32 {v(vS+r)}, {v(vS+r)}, {s(sC)}, -{v(vMx)}")
        for r in range(20): A(f"v_exp_f32 {v(vS+r)}, {v(vS+r)}")
        A("s_waitcnt vmcnt(37)")
        A(stfl)
        A(f"v_add_f32 {v(vSm)}, {v(vS)}, {v(vS+1)}")
        A(f"v_add_f32 {v(R.vT1)}, {v(vS+2)}, {v(vS+3)}")
        for r in range(4, 20, 2):
            A(f"v_add_f32 {v(vSm)}, {v(vSm)}, {v(vS+r)}")
            A(f"v_add_f32 {v(R.vT1)}, {v(R.vT1)}, {v(vS+r+1)}")
        A(f"v_add_f32 {v(vSm)}, {v(vSm)}, {v(R.vT1)}")
        x32("v_add_f32", vSm)
        A(f"v_rcp_f32 {v(vSm)}, {v(vSm)}")
        for r in range(20): A(f"v_mul_f32 {v(vS+r)}, {v(vS+r)}, {v(vSm)}")
        for r in range(10): A(f"v_cvt_pk_bf16_f32 {v(vP+r)}, {v(vS+2*r)}, {v(vS+2*r+1)}")
        def epi(e):
            for r in range(8): A(f"v_cvt_pk_bf16_f32 {v(vPk+8*e+r)}, {v(vO+16*e+2*r)}, {v(vO+16*e+2*r+1)}")
            for u in range(2): A(f"buffer_store_dwordx4 {v(vPk+8*e+4*u,4)}, {v(vOa)}, {s(R.sWS,4)}, {s(sOo)} offen offset:{1024*e + 512*u} sc1")
        for es in range(4):
            d = v(vO + 16*es, 16)
            A(f"v_mfma_f32_32x32x16_bf16 {d}, {a(aV(b)+8*es,4)}, {v(vP,4)}, 0")
            A(f"v_mfma_f32_32x32x16_bf16 {d}, {a(aV(b)+8*es+4,4)}, {v(vP+4,4)}, {d}")
            A(f"v_mfma_f32_32x32x16_bf16 {d}, {v(vVM(b)+4*es,4)}, {v(vP+8,4)}, {d}")
            if es >= 1: epi(es - 1)
        A(f"v_add_u32 {v(R.vFv)}, 1, {v(R.vFv)}")
        epi(3)
        A(f"""s_mov_b32 {s(sSeg)}, {s(sNx)}
        s_add_u32 {s(sOo)}, {s(sOo)}, {4 << 18}""")
    A(f"""s_cmp_lt_u32 {s(sSeg)}, 64
    s_cbranch_scc1 T_top0
    s_waitcnt vmcnt(0)
    {stfl}
    s_branch {done}""")
    for t in tails:
        for x in t: A(x)

def gen_U(A, sGrp, sCol, done, sGive, ngrp=3, ts=False, uw=0, usl=2):
    R = SR
    sN, sCnt, sLd, sOut, sPar, sNx = 28, 29, 30, 31, 32, 33
    vLa, vFa, vFl, vOa, vLw, vLr = range(10, 16)
    vAcc = 16
    vRed = 24
    vF = 64
    A(f"""
    s_load_dwordx2 {s(R.sX,2)}, s[0:1], {KA_WO}
    s_load_dwordx2 {s(R.sO,2)}, s[0:1], {KA_OUT}
    s_mov_b32 {s(R.sX+2)}, {8*MB}
    s_mov_b32 {s(R.sX+3)}, 0x20000
    s_mov_b32 {s(R.sO+2)}, {8*MB}
    s_mov_b32 {s(R.sO+3)}, 0x20000
    s_lshl_b32 {s(R.sSrc)}, {s(R.sWv)}, 21
    s_lshl_b32 {s(R.sT0)}, {s(sCol)}, 6
    s_add_u32 {s(R.sSrc)}, {s(R.sSrc)}, {s(R.sT0)}
    s_waitcnt lgkmcnt(0)
    s_barrier
    """)
    load_weights_tr(A, R, R.sX, R.sSrc, 2048)
    if ts: tstamp(A, R, 3)
    A(f"""
    v_lshlrev_b32 {v(vLr)}, 4, {v(R.vL)}
    s_lshl_b32 {s(R.sT0)}, {s(R.sWv)}, 15
    v_add_u32 {v(vLa)}, {s(R.sT0)}, {v(vLr)}
    s_lshl_b32 {s(R.sT0)}, {s(R.sWv)}, 11
    v_add_u32 {v(vLw)}, {s(R.sT0)}, {v(vLr)}
    v_bfe_u32 {v(vFa)}, {v(R.vL)}, 3, 2
    v_and_b32 {v(R.vT0)}, 7, {v(R.vL)}
    v_lshlrev_b32 {v(R.vT0)}, 9, {v(R.vT0)}
    v_lshl_add_u32 {v(vFa)}, {v(vFa)}, 7, {v(R.vT0)}
    s_lshl_b32 {s(R.sT0)}, {s(R.sWv)}, 12
    s_add_u32 {s(R.sT0)}, {s(R.sT0)}, {WS_FLAG + FLAG_T}
    v_add_u32 {v(vFa)}, {s(R.sT0)}, {v(vFa)}
    v_mov_b32 {v(vFl)}, 0
    v_and_b32 {v(vOa)}, 15, {v(R.vL)}
    v_and_b32 {v(R.vT0)}, 48, {v(R.vL)}
    v_lshl_add_u32 {v(vOa)}, {v(vOa)}, 12, {v(R.vT0)}
    s_lshl_b32 {s(R.sT0)}, {s(sCol)}, 6
    s_add_u32 {s(R.sT0)}, {s(R.sT0)}, 2048
    v_add_u32 {v(vOa)}, {s(R.sT0)}, {v(vOa)}
    s_mov_b32 {s(sN)}, {s(sGrp)}
    s_mov_b32 {s(sPar)}, 0
    s_barrier
    """)
    def ready(sItem):
        return [f"s_lshr_b32 {s(R.sT0)}, {s(sItem)}, 3",
                f"v_cmp_ge_u32 vcc, {s(R.sT0)}, {v(vFl)}",
                f"s_lshl_b32 {s(R.sT1)}, {s(sItem)}, 2",
                f"s_and_b32 {s(R.sT1)}, {s(R.sT1)}, 24",
                f"s_lshr_b32 {s(R.sT0)}, vcc_lo, {s(R.sT1)}",
                f"s_and_b32 {s(R.sT0)}, {s(R.sT0)}, 0xff"]
    def ld(ks):
        o = []
        if ks % 4 == 0 and ks: o.append(f"s_add_u32 {s(sLd)}, {s(sLd)}, 4096")
        o.append(f"buffer_load_dwordx4 {v(vF+4*ks,4)}, {v(vLa)}, {s(R.sWS,4)}, {s(sLd)} offen offset:{(ks%4)*1024}{LD}")
        return o
    def setld(sItem):
        return [f"s_lshl_b32 {s(sLd)}, {s(sItem)}, 17", f"s_add_u32 {s(sLd)}, {s(sLd)}, {WS_O}"]
    if uw:
        A(f"""U_uw:
        s_sleep 100
        s_mov_b64 exec, 0xffffffff
        buffer_load_dword {v(vFl)}, {v(vFa)}, {s(R.sWS,4)}, 0 offen sc1
        s_waitcnt vmcnt(0)
        v_cmp_gt_u32 vcc, 16, {v(vFl)}
        s_mov_b64 exec, -1
        s_add_u32 {s(sPar)}, {s(sPar)}, 1
        s_cmp_gt_u32 {s(sPar)}, 1000
        s_cbranch_scc1 U_uw2
        s_cbranch_vccnz U_uw
        U_uw2:
        s_mov_b32 {s(sPar)}, 0""")
    A.label("U_wait")
    A(f"s_mov_b32 {s(sCnt)}, {s(sGive)}")
    A.label("U_fl")
    for x in ready(sN): A(x)
    A(f"""s_cbranch_scc0 U_go
    s_cmp_ge_u32 {s(sCnt)}, {SPIN}
    s_cselect_b32 {s(sGive)}, {SPIN}, {s(sGive)}
    s_cbranch_scc1 U_go
    s_lshl_b32 {s(R.sT0)}, {s(R.sT0)}, {s(R.sT1)}
    s_cmp_eq_u32 {s(sCnt)}, 0
    s_cselect_b32 exec_lo, -1, {s(R.sT0)}
    s_mov_b32 exec_hi, 0
    s_add_u32 {s(sCnt)}, {s(sCnt)}, 1
    buffer_load_dword {v(vFl)}, {v(vFa)}, {s(R.sWS,4)}, 0 offen sc1
    s_mov_b64 exec, -1
    s_sleep {usl}
    s_waitcnt vmcnt(0)
    s_branch U_fl""")
    A.label("U_go")
    for x in setld(sN): A(x)
    for ks in range(32):
        for x in ld(ks): A(x)
    A.label("U_item")
    A(f"s_add_u32 {s(sNx)}, {s(sN)}, {ngrp}")
    for x in ready(sNx): A(x)
    A("s_cbranch_scc1 U_b")
    def mm(ks):
        for t in range(2):
            d = v(vAcc + 4*t, 4)
            A(f"v_mfma_f32_16x16x32_bf16 {d}, {a(aw(t, ks),4)}, {v(vF+4*ks,4)}, {d if ks else 0}")
    def fin(nxt):
        L = A.newlabel("Uf")
        A(f"""s_lshl_b32 {s(sOut)}, {s(sN)}, 16
        v_add_u32 {v(R.vT0)}, {s(sPar)}, {v(vLw)}
        v_add_u32 {v(R.vT1)}, {s(sPar)}, {v(vLr)}
        s_xor_b32 {s(sPar)}, {s(sPar)}, 8192
        s_mov_b32 {s(sN)}, {s(sNx)}
        ds_write_b128 {v(R.vT0)}, {v(vAcc,4)}
        ds_write_b128 {v(R.vT0)}, {v(vAcc+4,4)} offset:1024
        s_waitcnt lgkmcnt(0)
        s_barrier
        s_cmp_lg_u32 {s(R.sWv)}, 0
        s_cbranch_scc1 {L}""")
        for k in range(6): A(f"ds_read_b128 {v(vRed+4*k,4)}, {v(R.vT1)} offset:{2048 + 1024*k}")
        A("s_waitcnt lgkmcnt(4)")
        for r in range(8): A(f"v_add_f32 {v(vRed+r)}, {v(vAcc+r)}, {v(vRed+r)}")
        A("s_waitcnt lgkmcnt(0)")
        for r in range(8): A(f"v_add_f32 {v(vRed+8+r)}, {v(vRed+8+r)}, {v(vRed+16+r)}")
        for r in range(8): A(f"v_add_f32 {v(vRed+r)}, {v(vRed+r)}, {v(vRed+8+r)}")
        for r in range(4): A(f"v_cvt_pk_bf16_f32 {v(vRed+24+r)}, {v(vRed+2*r)}, {v(vRed+2*r+1)}")
        A(f"buffer_store_dwordx4 {v(vRed+24,4)}, {v(vOa)}, {s(R.sO,4)}, {s(sOut)} offen")
        A.label(L)
        A(f"""s_cmp_lt_u32 {s(sN)}, 128
        s_cbranch_scc1 {nxt}
        s_branch {done}""")
    for x in setld(sNx): A(x)
    for ks in range(32):
        A(f"s_waitcnt vmcnt({31 if ks == 0 else 30})")
        mm(ks)
        if ks:
            for x in ld(ks - 1): A(x)
    A("s_nop 7")
    for x in ld(31): A(x)
    fin("U_item")
    A.label("U_b")
    for ks in range(32):
        A(f"s_waitcnt vmcnt({31 - ks})")
        mm(ks)
    fin("U_wait")

def gen_U64(A, sG, sI, done, sGive, ts=False, usl=2):
    R = SR
    NG = 6
    sN, sCnt, sLd, sOut, sPar, sNx, sPend, sCol, sOutN = range(28, 37)
    vLa, vFa, vFl, vOa, vLw, vLr = range(10, 16)
    vTr = R.vT3
    vAcc, vSt, vRed, vF, vW = 16, 32, 48, 64, 128
    RED = 131072
    A(f"""
    s_load_dwordx2 {s(R.sX,2)}, s[0:1], {KA_WO}
    s_load_dwordx2 {s(R.sO,2)}, s[0:1], {KA_OUT}
    s_mov_b32 {s(R.sX+2)}, {8*MB}
    s_mov_b32 {s(R.sX+3)}, 0x20000
    s_mov_b32 {s(R.sO+2)}, {8*MB}
    s_mov_b32 {s(R.sO+3)}, 0x20000
    s_lshr_b32 {s(sCol)}, {s(sI)}, 2
    s_lshl_b32 {s(sCol)}, {s(sCol)}, 1
    s_and_b32 {s(R.sT0)}, {s(sI)}, 1
    s_add_u32 {s(sCol)}, {s(sCol)}, {s(R.sT0)}
    s_bfe_u32 {s(sN)}, {s(sI)}, 0x10001
    s_lshl_b32 {s(R.sT0)}, {s(sG)}, 1
    s_add_u32 {s(sN)}, {s(sN)}, {s(R.sT0)}
    s_lshl_b32 {s(R.sSrc)}, {s(R.sWv)}, 21
    s_lshl_b32 {s(R.sT0)}, {s(sCol)}, 7
    s_add_u32 {s(R.sSrc)}, {s(R.sSrc)}, {s(R.sT0)}
    v_lshrrev_b32 {v(R.vT0)}, 2, {v(R.vL)}
    v_and_b32 {v(R.vT1)}, 3, {v(R.vL)}
    v_lshlrev_b32 {v(R.vT2)}, 4, {v(R.vT1)}
    v_lshl_add_u32 {v(R.vT2)}, {v(R.vT0)}, 11, {v(R.vT2)}
    v_lshlrev_b32 {v(vTr)}, 3, {v(R.vT1)}
    v_bfe_u32 {v(R.vT0)}, {v(R.vL)}, 2, 2
    v_lshrrev_b32 {v(R.vT1)}, 4, {v(R.vL)}
    v_lshl_add_u32 {v(R.vT0)}, {v(R.vT1)}, 3, {v(R.vT0)}
    v_lshl_add_u32 {v(vTr)}, {v(R.vT0)}, 6, {v(vTr)}
    s_lshl_b32 {s(R.sM0)}, {s(R.sWv)}, 15
    v_add_u32 {v(vTr)}, {s(R.sM0)}, {v(vTr)}
    s_waitcnt lgkmcnt(0)
    s_barrier
    """)
    units = [(0, ks) for ks in range(32)] + [(1, ks) for ks in range(0, 32, 2)] + [(1, ks) for ks in range(1, 32, 2)]
    def dma(j):
        h, ks = units[j]
        for q in range(2):
            A(f"s_add_u32 m0, {s(R.sM0)}, {(j & 15)*2048 + q*1024}")
            A(f"s_add_u32 {s(R.sT0)}, {s(R.sSrc)}, {(ks*32 + q*16)*2048 + h*64}")
            A(f"buffer_load_dwordx4 {v(R.vT2)}, {s(R.sX,4)}, {s(R.sT0)} offen lds")
    def trd(dst, slot):
        return [f"ds_read_b64_tr_b16 {dst(4*tt + 2*hh)}, {v(vTr)} offset:{slot*2048 + hh*256 + tt*32}" for tt in range(2) for hh in range(2)]
    for j in range(16): dma(j)
    for j in range(48):
        h, ks = units[j]
        A(f"s_waitcnt vmcnt({30 if j == 0 else 28})")
        for x in trd((lambda o: a(ks*8 + o, 2)) if h == 0 else (lambda o: v(vW + ks*4 + o, 2)), j & 15): A(x)
        if j:
            A("s_waitcnt lgkmcnt(4)")
            dma(j + 15)
    A("s_waitcnt lgkmcnt(0)")
    dma(63)
    A(f"""
    v_lshlrev_b32 {v(vLr)}, 4, {v(R.vL)}
    v_add_u32 {v(vLa)}, {s(R.sM0)}, {v(vLr)}
    s_lshl_b32 {s(R.sT0)}, {s(R.sWv)}, 10
    s_add_u32 {s(R.sT0)}, {s(R.sT0)}, {RED}
    v_add_u32 {v(vLw)}, {s(R.sT0)}, {v(vLr)}
    s_lshl_b32 {s(R.sT0)}, {s(R.sWv)}, 12
    s_add_u32 {s(R.sT1)}, {s(R.sT0)}, {RED + 0x4000}
    v_add_u32 {v(vLr)}, {s(R.sT1)}, {v(vLr)}
    v_bfe_u32 {v(vFa)}, {v(R.vL)}, 3, 2
    v_and_b32 {v(R.vT0)}, 7, {v(R.vL)}
    v_lshlrev_b32 {v(R.vT0)}, 9, {v(R.vT0)}
    v_lshl_add_u32 {v(vFa)}, {v(vFa)}, 7, {v(R.vT0)}
    s_add_u32 {s(R.sT0)}, {s(R.sT0)}, {WS_FLAG + FLAG_T}
    v_add_u32 {v(vFa)}, {s(R.sT0)}, {v(vFa)}
    v_mov_b32 {v(vFl)}, 0
    v_and_b32 {v(vOa)}, 15, {v(R.vL)}
    v_lshrrev_b32 {v(R.vT0)}, 4, {v(R.vL)}
    v_lshlrev_b32 {v(R.vT0)}, 3, {v(R.vT0)}
    v_lshl_add_u32 {v(vOa)}, {v(vOa)}, 12, {v(R.vT0)}
    s_lshl_b32 {s(R.sT0)}, {s(sCol)}, 7
    s_lshl_b32 {s(R.sT1)}, {s(R.sWv)}, 5
    s_add_u32 {s(R.sT0)}, {s(R.sT0)}, {s(R.sT1)}
    s_add_u32 {s(R.sT0)}, {s(R.sT0)}, 2048
    v_add_u32 {v(vOa)}, {s(R.sT0)}, {v(vOa)}
    s_waitcnt vmcnt(0)
    """)
    if ts: tstamp(A, R, 3, vt=48)
    def ready(sItem):
        return [f"s_lshr_b32 {s(R.sT0)}, {s(sItem)}, 3",
                f"v_cmp_ge_u32 vcc, {s(R.sT0)}, {v(vFl)}",
                f"s_lshl_b32 {s(R.sT1)}, {s(sItem)}, 2",
                f"s_and_b32 {s(R.sT1)}, {s(R.sT1)}, 24",
                f"s_lshr_b32 {s(R.sT0)}, vcc_lo, {s(R.sT1)}",
                f"s_and_b32 {s(R.sT0)}, {s(R.sT0)}, 0xff"]
    ldfl = f"buffer_load_dword {v(vFl)}, {v(vFa)}, {s(R.sWS,4)}, 0 offen sc1"
    def ld(ks):
        o = []
        if ks % 4 == 0 and ks: o.append(f"s_add_u32 {s(sLd)}, {s(sLd)}, 4096")
        o.append(f"buffer_load_dwordx4 {v(vF+4*(ks&15),4)}, {v(vLa)}, {s(R.sWS,4)}, {s(sLd)} offen offset:{(ks%4)*1024}{LD}")
        return o
    def setld(sItem):
        return [f"s_lshl_b32 {s(sLd)}, {s(sItem)}, 17", f"s_add_u32 {s(sLd)}, {s(sLd)}, {WS_O}"]
    rrd = [f"ds_read_b128 {v(vRed+4*k,4)}, {v(vLr)} offset:{1024*k}" for k in range(4)]
    radd = [f"v_add_f32 {v(vRed+r)}, {v(vRed+r)}, {v(vRed+4+r)}" for r in range(4)] + [f"v_add_f32 {v(vRed+8+r)}, {v(vRed+8+r)}, {v(vRed+12+r)}" for r in range(4)] + \
           [f"v_add_f32 {v(vRed+r)}, {v(vRed+r)}, {v(vRed+8+r)}" for r in range(4)] + [f"v_cvt_pk_bf16_f32 {v(vRed+4+r)}, {v(vRed+2*r)}, {v(vRed+2*r+1)}" for r in range(2)]
    ost = f"buffer_store_dwordx2 {v(vRed+4,2)}, {v(vOa)}, {s(R.sO,4)}, {s(sOut)} offen"
    flip = [f"v_xor_b32 {v(vLr)}, 0x4000, {v(vLr)}"]
    A.label("U_wait")
    A(f"s_mov_b32 {s(sCnt)}, {s(sGive)}")
    A.label("U_fl")
    for x in ready(sN): A(x)
    A(f"""s_cbranch_scc0 U_go
    s_cmp_ge_u32 {s(sCnt)}, {SPIN}
    s_cselect_b32 {s(sGive)}, {SPIN}, {s(sGive)}
    s_cbranch_scc1 U_go
    s_lshl_b32 {s(R.sT0)}, {s(R.sT0)}, {s(R.sT1)}
    s_cmp_eq_u32 {s(sCnt)}, 0
    s_cselect_b32 exec_lo, -1, {s(R.sT0)}
    s_mov_b32 exec_hi, 0
    s_add_u32 {s(sCnt)}, {s(sCnt)}, 1
    {ldfl}
    s_mov_b64 exec, -1
    s_sleep {usl}
    s_waitcnt vmcnt(0)
    s_branch U_fl""")
    A.label("U_go")
    for x in setld(sN): A(x)
    for ks in range(15):
        for x in ld(ks): A(x)
    A(f"""s_mov_b32 {s(sPend)}, 0
    s_mov_b32 {s(sOut)}, {OOB}""")
    for x in trd(lambda o: v(vSt + o, 2), 0): A(x)
    for k in range(4): A(rrd[k])
    A(".p2align 6")
    A.label("U_item")
    vq = [("L", k) for k in range(15)]; lq = [("W", 1)] * 4 + [("P", 0)] * 4
    def vwait(tag):
        n = len(vq) - 1 - vq.index(tag); del vq[:len(vq) - n]
        return f"s_waitcnt vmcnt({n})"
    def lwait(tag):
        n = lq[::-1].index(tag); del lq[:len(lq) - n]
        return f"s_waitcnt lgkmcnt({n})"
    for ks in range(32):
        fill = [[], [], [], []]
        A(vwait(("L", ks)))
        fill[0] += ld((ks + 15) & 31); tagv = [("L", ks + 15)]
        if ks & 1:
            pre2 = lwait(("W", ks))
        else:
            pre2 = None
        tagl = []
        if ks == 0:
            fill[1] += [f"s_add_u32 {s(sNx)}, {s(sN)}, {NG}"] + ready(sNx)[:4]
            fill[2] += ready(sNx)[4:] + [f"s_lshl_b32 exec_lo, {s(R.sT0)}, {s(R.sT1)}", "s_mov_b32 exec_hi, 0", ldfl, "s_mov_b64 exec, -1"]; tagv.append(("F", 0))
        if ks == 2:
            fill[1] += [lwait(("P", 0)), f"s_cmp_eq_u32 {s(sPend)}, 0", "s_cbranch_scc1 U_nb", "s_barrier", "U_nb:"]
            fill[2] += rrd[:2]; fill[3] += rrd[2:]; tagl += [("R", 0)] * 4
        if ks == 4:
            fill[0] += [lwait(("R", 0))]
        if 4 <= ks < 8:
            q = radd[4*(ks-4):4*(ks-4)+4]
            for i, x in enumerate(q): fill[1 + i//2].append(x)
        if ks == 8:
            fill[1] += [ost] + flip; tagv.append(("S", 0))
        if ks == 16:
            fill[1] += ready(sNx)[:4]
            fill[2] += setld(sNx) + ready(sNx)[4:] + [f"s_cselect_b32 {s(sPend)}, 0, 1", f"s_cselect_b32 {s(sLd)}, {OOB}, {s(sLd)}"]
        if ks & 1 == 0:
            pass
        else:
            k2 = (ks + 2) & 31
            t_ = trd(lambda o: v(vSt + 8*((k2 >> 1) & 1) + o, 2), k2 >> 1)
            fill[0] += t_[:2]; fill[1] += t_[2:]; tagl += [("W", ks + 2)] * 4
        b = v(vF + 4*(ks & 15), 4)
        for t in range(4):
            d = v(vAcc + 4*t, 4)
            w = a(ks*8 + 4*t, 4) if t < 2 else (v(vSt + 8*((ks >> 1) & 1) + 4*(t-2), 4) if ks & 1 else v(vW + ks*4 + 4*(t-2), 4))
            if t == 0 and pre2: A(pre2)
            A(f"v_mfma_f32_16x16x32_bf16 {d}, {w}, {b}, {d if ks else 0}")
            for x in fill[t]: A(x)
        vq += tagv; lq += tagl
    assert [k for _, k in vq] == list(range(32, 47)), vq
    A(f"""s_lshl_b32 {s(sOut)}, {s(sN)}, 16
    s_mov_b32 {s(sN)}, {s(sNx)}
    s_cmp_eq_u32 {s(sPend)}, 1""")
    for t in range(4): A(f"ds_write_b128 {v(vLw)}, {v(vAcc+4*t,4)} offset:{4096*t}")
    A(f"""v_xor_b32 {v(vLw)}, 0x4000, {v(vLw)}
    s_cbranch_scc1 U_item
    s_waitcnt lgkmcnt(0)
    s_barrier""")
    for x in rrd: A(x)
    A("s_waitcnt lgkmcnt(0)")
    for x in radd: A(x)
    A(f"""{ost}
    s_cmp_lt_u32 {s(sN)}, 128
    s_cbranch_scc1 U_wait
    s_branch {done}""")
```

```python
from asmlib import *
from layout import *
from stream import *
import struct, math
def f32bits(x): return struct.unpack("<I", struct.pack("<f", x))[0]
SPIN = 1 << 20
ZCH = 32768 + 256

def gen_dft_weights(A, R, name, vB, vD1, vD2, vInc):
    vP = 40; vC = 48; vK = 56
    A(f"""v_lshlrev_b32 {v(R.vT3)}, 4, {v(R.vL)}
    s_lshl_b32 {s(R.sT1)}, {s(R.sWv)}, 15
    v_add_u32 {v(R.vT3)}, {s(R.sT1)}, {v(R.vT3)}""")
    for rnd in range(2):
        L = f"{name}_g{rnd}"
        A(f"""v_mov_b32 {v(R.vT2)}, {v(R.vT3)}
        s_mov_b32 {s(R.sIt)}, 0""")
        A.label(L)
        for t in range(2):
            A(f"v_fract_f32 {v(vP)}, {v(vB+t)}")
            for j in range(1, 8): A(f"v_add_f32 {v(vP+j)}, {v(vP+j-1)}, {v((vD1 if j & 1 else vD2)+t)}")
            A(f"v_add_f32 {v(vB+t)}, {v(vP)}, {v(vInc+t)}")
            for j in range(8): A(f"v_cos_f32 {v(vC+j)}, {v(vP+j)}")
            for j in range(4): A(f"v_cvt_pk_bf16_f32 {v(vK+4*t+j)}, {v(vC+2*j)}, {v(vC+2*j+1)}")
            A(f"ds_write_b128 {v(R.vT2)}, {v(vK+4*t,4)} offset:{1024*t}")
        A(f"""v_add_u32 {v(R.vT2)}, 2048, {v(R.vT2)}
        s_add_u32 {s(R.sIt)}, {s(R.sIt)}, 1
        s_cmp_lt_u32 {s(R.sIt)}, 16
        s_waitcnt lgkmcnt(0)
        s_cbranch_scc1 {L}""")
        for k in range(32):
            A(f"ds_read_b128 {a(rnd*128 + 4*k, 4)}, {v(R.vT3)} offset:{1024*k}")
            if k % 8 == 7: A("s_waitcnt lgkmcnt(7)")
        A("s_waitcnt lgkmcnt(0)")

def wait_flags(A, R, name, vFa, nl, thr, sGive, sCnt):
    m = (1 << nl) - 1
    A(f"s_mov_b32 {s(sCnt)}, {s(sGive)}")
    A.label(name)
    A(f"""buffer_load_dword {v(R.vT0)}, {v(vFa)}, {s(R.sWS,4)}, 0 offen sc1
    s_waitcnt vmcnt(0)
    v_cmp_gt_u32 vcc, {thr}, {v(R.vT0)}""")
    if nl == 64: A("s_cmp_lg_u64 vcc, 0")
    else: A(f"s_and_b32 {s(R.sT0)}, vcc_lo, {m}")
    A(f"""s_cbranch_scc0 {name}_ok
    s_cmp_ge_u32 {s(sCnt)}, {SPIN}
    s_cselect_b32 {s(sGive)}, {SPIN}, {s(sGive)}
    s_cbranch_scc1 {name}_ok
    s_add_u32 {s(sCnt)}, {s(sCnt)}, 1
    s_sleep 8
    s_branch {name}""")
    A.label(name + "_ok")

def gen_F(A, sCu, done, sGive, rdv=None, ts=False):
    R = SR
    sTg, sBlk, sCnt, sT2 = 28, 29, 30, 31
    vB, vD1, vD2, vInc = 30, 32, 34, 36
    sWr, sWi = R.sX, R.sO
    vPi, vH, vAd, vSh, vWa = 10, 11, 12, 13, 14
    vIn, vOut = 20, 100
    pi_lane(A, vPi, R.vL, R.vT0, R.vT1)
    A(f"""
    s_load_dwordx2 {s(sWr,2)}, s[0:1], {KA_WR}
    s_load_dwordx2 {s(sWi,2)}, s[0:1], {KA_WI}
    s_mov_b32 {s(sWr+2)}, {2048*1026}
    s_mov_b32 {s(sWr+3)}, 0x20000
    s_mov_b32 {s(sWi+2)}, {2048*1026}
    s_mov_b32 {s(sWi+3)}, 0x20000
    v_lshrrev_b32 {v(vH)}, 5, {v(R.vL)}
    v_lshl_add_u32 {v(vAd)}, {v(vH)}, 9, {v(vPi)}             ; pi + 512 h
    v_mul_u32_u24 {v(vAd)}, 1026, {v(vAd)}
    v_and_b32 {v(vSh)}, 1, {v(R.vL)}
    v_lshlrev_b32 {v(vSh)}, 4, {v(vSh)}
    v_lshlrev_b32 {v(vWa)}, 4, {v(R.vL)}
    s_lshr_b32 {s(R.sT0)}, {s(R.sWv)}, 1
    s_and_b32 {s(R.sT1)}, {s(R.sWv)}, 1
    s_lshl_b32 {s(R.sT0)}, {s(R.sT0)}, 5
    s_lshl_b32 {s(R.sT1)}, {s(R.sT1)}, 10
    s_add_u32 {s(R.sT0)}, {s(R.sT0)}, {s(R.sT1)}
    s_mul_i32 {s(R.sSrc)}, {s(R.sT0)}, 1026
    s_lshl_b32 {s(R.sT0)}, {s(sCu)}, 5
    s_add_u32 {s(R.sSrc)}, {s(R.sSrc)}, {s(R.sT0)}
    s_lshl_b32 {s(R.sDst)}, {s(sCu)}, 17
    s_lshl_b32 {s(R.sT0)}, {s(R.sWv)}, 11
    s_add_u32 {s(R.sDst)}, {s(R.sDst)}, {s(R.sT0)}
    s_add_u32 {s(R.sDst)}, {s(R.sDst)}, {WS_WT}
    v_and_b32 {v(R.vT2)}, -4, {v(vAd)}
    s_mov_b32 {s(sTg)}, 0x05040100
    s_mov_b32 {s(sBlk)}, 0x07060302
    s_waitcnt lgkmcnt(0)
    """)
    for q in range(2):
        for jj in range(4):
            for m, srd in enumerate((sWr, sWi)):
                b = vIn + jj*20 + m*10
                A(f"buffer_load_dwordx4 {v(b,4)}, {v(R.vT2)}, {s(srd,4)}, {s(R.sSrc)} offen")
                A(f"buffer_load_dwordx4 {v(b+4,4)}, {v(R.vT2)}, {s(srd,4)}, {s(R.sSrc)} offen offset:16")
                A(f"buffer_load_dword {v(b+8)}, {v(R.vT2)}, {s(srd,4)}, {s(R.sSrc)} offen offset:32")
            A(f"s_add_u32 {s(R.sSrc)}, {s(R.sSrc)}, {64*1026}")
        A("s_waitcnt vmcnt(0)")
        for jj in range(4):
            for m in range(2):
                b = vIn + jj*20 + m*10
                for k in range(8): A(f"v_alignbit_b32 {v(b+k)}, {v(b+k+1)}, {v(b+k)}, {v(vSh)}")
            b = vIn + jj*20
            for k in range(8):
                A(f"v_perm_b32 {v(vOut + (2*k)*4 + jj)}, {v(b+10+k)}, {v(b+k)}, {s(sTg)}")
                A(f"v_perm_b32 {v(vOut + (2*k+1)*4 + jj)}, {v(b+10+k)}, {v(b+k)}, {s(sBlk)}")
        for cc in range(16):
            A(f"s_add_u32 {s(R.sT0)}, {s(R.sDst)}, {cc*8192 + q*1024}")
            A(f"buffer_store_dwordx4 {v(vOut+4*cc,4)}, {v(vWa)}, {s(R.sWS,4)}, {s(R.sT0)} offen")
    A(f"""s_cmp_lg_u32 {s(sCu)}, 0
    s_cbranch_scc1 F_no512
    s_sub_u32 {s(R.sSrc)}, {s(R.sSrc)}, {8*64*1026 - 1024}""")
    for j in range(8):
        A(f"buffer_load_ushort {v(vIn+j)}, {v(vAd)}, {s(sWr,4)}, {s(R.sSrc)} offen")
        A(f"buffer_load_ushort {v(vIn+8+j)}, {v(vAd)}, {s(sWi,4)}, {s(R.sSrc)} offen")
        A(f"s_add_u32 {s(R.sSrc)}, {s(R.sSrc)}, {64*1026}")
    A("s_waitcnt vmcnt(0)")
    for j in range(8): A(f"v_lshl_or_b32 {v(vIn+j)}, {v(vIn+8+j)}, 16, {v(vIn+j)}")
    A(f"""s_add_u32 {s(R.sT0)}, {s(R.sDst)}, {512*8192}
    buffer_store_dwordx4 {v(vIn,4)}, {v(vWa)}, {s(R.sWS,4)}, {s(R.sT0)} offen
    buffer_store_dwordx4 {v(vIn+4,4)}, {v(vWa)}, {s(R.sWS,4)}, {s(R.sT0)} offen offset:1024""")
    A.label("F_no512")
    A(f"""
    s_load_dwordx2 {s(R.sX,2)}, s[0:1], {KA_AX}
    s_load_dwordx2 {s(R.sO,2)}, s[0:1], {KA_OUT}
    s_mov_b32 {s(R.sX+2)}, {4*MB}
    s_mov_b32 {s(R.sO+2)}, {8*MB}
    s_lshr_b32 {s(sTg)}, {s(sCu)}, 3
    s_and_b32 {s(sBlk)}, {s(sCu)}, 7
    s_lshl_b32 {s(sBlk)}, {s(sBlk)}, 2
    s_add_u32 {s(sBlk)}, {s(sBlk)}, {s(R.sWv)}
    s_waitcnt vmcnt(0) lgkmcnt(0)
    """)
    def colidx(dst):
        perm16(A, dst, R.vL, R.vT0, False)
        A(f"""s_lshl_b32 {s(R.sT0)}, {s(sBlk)}, 5
        v_add_u32 {v(dst)}, {s(R.sT0)}, {v(dst)}""")
    colidx(R.vT2)
    A(f"""v_lshrrev_b32 {v(R.vT3)}, 4, {v(R.vL)}
    v_cvt_f32_u32 {v(R.vT3)}, {v(R.vT3)}
    s_mov_b32 {s(sT2)}, {f32bits(1/1024)}""")
    for t in range(2):
        A(f"""v_add_u32 {v(R.vT0)}, {4*t}, {v(R.vT2)}
        v_lshrrev_b32 {v(R.vT1)}, 1, {v(R.vT0)}
        v_and_b32 {v(vB+t)}, 1, {v(R.vT0)}
        v_cmp_eq_u32 vcc, 1, {v(R.vT0)}
        v_mov_b32 {v(R.vT0)}, 512
        v_cndmask_b32 {v(R.vT1)}, {v(R.vT1)}, {v(R.vT0)}, vcc
        v_cndmask_b32 {v(vB+t)}, {v(vB+t)}, 0, vcc
        v_cvt_f32_u32 {v(R.vT1)}, {v(R.vT1)}
        v_cvt_f32_u32 {v(vB+t)}, {v(vB+t)}
        v_mul_f32 {v(vD1+t)}, {s(sT2)}, {v(R.vT1)}
        v_mul_f32 {v(vB+t)}, 0x3e800000, {v(vB+t)}
        v_mov_b32 {v(vD2+t)}, {v(vD1+t)}
        v_mul_f32 {v(vInc+t)}, 0x42000000, {v(vD1+t)}
        v_mul_f32 {v(R.vT0)}, 0x41000000, {v(vD1+t)}
        v_fma_f32 {v(vB+t)}, {v(R.vT0)}, {v(R.vT3)}, {v(vB+t)}""")
    gen_dft_weights(A, R, "F1", vB, vD1, vD2, vInc)
    if rdv: rdv()
    if ts: tstamp(A, R, 1)
    setup_reads(A, R)
    dma_rows(A, R, R.vT2, R.vT3)
    perm16(A, R.vSrc, R.vT2, R.vT0, True)
    perm16(A, R.vDst, R.vL, R.vT0, False)
    A(f"""
    v_lshlrev_b32 {v(R.vSrc)}, 16, {v(R.vSrc)}
    v_lshl_add_u32 {v(R.vSrc)}, {v(R.vT3)}, 4, {v(R.vSrc)}
    v_and_b32 {v(R.vT0)}, 48, {v(R.vL)}
    v_lshl_add_u32 {v(R.vDst)}, {v(R.vDst)}, 6, {v(R.vT0)}
    s_mul_i32 {s(R.sDst)}, {s(sBlk)}, {BLK}
    s_lshl_b32 {s(R.sT0)}, {s(sTg)}, 15
    s_add_u32 {s(R.sDst)}, {s(R.sDst)}, {s(R.sT0)}
    s_add_u32 {s(R.sDst)}, {s(R.sDst)}, {WS_Y}
    s_and_b32 {s(R.sSrc)}, {s(sTg)}, 1
    s_lshl_b32 {s(R.sSrc)}, {s(R.sSrc)}, 15
    s_lshr_b32 {s(R.sT0)}, {s(sTg)}, 1
    s_lshl_b32 {s(R.sT0)}, {s(R.sT0)}, 21
    s_add_u32 {s(R.sSrc)}, {s(R.sSrc)}, {s(R.sT0)}
    s_mov_b32 {s(R.sSrcStep)}, 2048
    s_mov_b32 {s(R.sDstStep)}, 2048
    s_barrier
    """)
    def dma1(half, b, lds):
        off = half * 1024 + b * 128
        return [f"s_add_u32 m0, {s(R.sM0)}, {lds - off}", f"buffer_load_dwordx4 {v(R.vSrc)}, {s(R.sX,4)}, {s(R.sSrc)} offen offset:{off} lds"]
    def store1(u):
        return [f"buffer_store_dwordx4 {v(R.vPk+4*u,4)}, {v(R.vDst)}, {s(R.sWS,4)}, {s(R.sDst)} offen offset:{256*u} sc1"]
    stream_loop(A, R, "F1", 16, True, dma1, store1, flag=False)
    A("s_barrier")
    def setflag(sIdx, base):
        A(f"""s_lshl_b32 {s(R.sT0)}, {s(sIdx)}, 7
        s_add_u32 {s(R.sT0)}, {s(R.sT0)}, {WS_FLAG + base}
        v_lshl_add_u32 {v(R.vT0)}, {v(R.vL)}, 2, {s(R.sT0)}
        v_mov_b32 {v(R.vT1)}, 1
        s_mov_b64 exec, 0xffffffff
        buffer_store_dword {v(R.vT1)}, {v(R.vT0)}, {s(R.sWS,4)}, 0 offen sc1
        s_mov_b64 exec, -1""")
    A(f"""s_lshl_b32 {s(sT2)}, {s(sBlk)}, 2
    s_add_u32 {s(sT2)}, {s(sT2)}, {s(sTg)}""")
    setflag(sT2, FLAG_F)
    if ts: tstamp(A, R, 2)
    aC64, aS64, aN64, aC32, aS32, aN32, aOut = 0, 32, 64, 96, 104, 112, 120
    vTw = 160
    vAc, vOp, vW = 32, 96, 128
    vZa, vPf, vHf, vSo = 15, 16, 17, 18
    pi_lane(A, vPi, R.vL, R.vT0, R.vT1)
    A(f"""v_lshrrev_b32 {v(vH)}, 5, {v(R.vL)}
    v_cvt_f32_u32 {v(vPf)}, {v(vPi)}
    v_lshlrev_b32 {v(vHf)}, 3, {v(vH)}
    v_cvt_f32_u32 {v(vHf)}, {v(vHf)}
    v_lshlrev_b32 {v(vWa)}, 4, {v(R.vL)}""")
    def consts(dC, dS, dN, add, N, nks):
        A(f"""v_add_f32 {v(R.vT0)}, {f32bits(float(add))}, {v(vPf)}
        v_mul_f32 {v(R.vT0)}, {f32bits(1.0/N)}, {v(R.vT0)}
        v_mul_f32 {v(R.vT1)}, {v(R.vT0)}, {v(vHf)}
        v_mul_f32 {v(R.vT2)}, 0x41800000, {v(R.vT0)}""")
        for ks in range(nks):
            A(f"v_fract_f32 {v(vAc)}, {v(R.vT1)}")
            for j in range(1, 8): A(f"v_add_f32 {v(vAc+j)}, {v(vAc+j-1)}, {v(R.vT0)}")
            A(f"v_add_f32 {v(R.vT1)}, {v(vAc)}, {v(R.vT2)}")
            for j in range(8):
                A(f"v_cos_f32 {v(vAc+8+j)}, {v(vAc+j)}"); A(f"v_sin_f32 {v(vAc+16+j)}, {v(vAc+j)}")
            for j in range(4):
                A(f"v_cvt_pk_bf16_f32 {v(vAc+24)}, {v(vAc+8+2*j)}, {v(vAc+9+2*j)}")
                A(f"v_cvt_pk_bf16_f32 {v(vAc+25)}, {v(vAc+16+2*j)}, {v(vAc+17+2*j)}")
                A(f"v_accvgpr_write_b32 {a(dC+4*ks+j)}, {v(vAc+24)}")
                A(f"v_xor_b32 {v(vAc+26)}, 0x80008000, {v(vAc+25)}")
                A(f"v_accvgpr_write_b32 {a(dS+4*ks+j)}, {v(vAc+25)}")
                A(f"v_accvgpr_write_b32 {a(dN+4*ks+j)}, {v(vAc+26)}")
    for t in range(2): consts(aC64 + 16*t, aS64 + 16*t, aN64 + 16*t, 32*t, 64, 4)
    consts(aC32, aS32, aN32, 0, 32, 2)
    for k, (pa, ra) in enumerate(((0, 0), (32, 0), (0, 32))):
        A(f"""v_add_f32 {v(R.vT0)}, {f32bits(float(pa))}, {v(vPf)}
        v_mul_f32 {v(R.vT0)}, {f32bits(1.0/2048)}, {v(R.vT0)}""")
        for r in range(16):
            A(f"""v_add_f32 {v(R.vT1)}, {f32bits(float(16*(r>>3) + (r&7) + ra))}, {v(vHf)}
            v_mul_f32 {v(R.vT1)}, {v(R.vT1)}, {v(R.vT0)}
            v_cos_f32 {v(vTw+32*k+r)}, {v(R.vT1)}
            v_sin_f32 {v(vTw+32*k+16+r)}, {v(R.vT1)}""")
    sZr, sZi, sWo, sSc, sPass, sNp, sMsk = 32, 33, 34, 35, 36, 37, 38
    A(f"""
    v_lshlrev_b32 {v(vZa)}, 4, {v(vH)}
    v_lshl_add_u32 {v(vZa)}, {v(vPi)}, 11, {v(vZa)}
    v_lshlrev_b32 {v(vSo)}, 12, {v(vH)}
    v_lshl_add_u32 {v(vSo)}, {v(vPi)}, 4, {v(vSo)}
    s_mul_i32 {s(sZr)}, {s(sCu)}, {BLK}
    s_lshl_b32 {s(R.sT0)}, {s(R.sWv)}, 9
    s_add_u32 {s(sZr)}, {s(sZr)}, {s(R.sT0)}
    s_add_u32 {s(sZr)}, {s(sZr)}, {WS_Y}
    s_add_u32 {s(sZi)}, {s(sZr)}, 64
    s_lshl_b32 {s(sT2)}, {s(sCu)}, 2
    s_add_u32 {s(sT2)}, {s(sT2)}, {s(R.sWv)}          ; chunk index
    s_lshl_b32 {s(sWo)}, {s(sT2)}, 15
    s_add_u32 {s(sWo)}, {s(sWo)}, {WS_WT}
    s_mov_b32 {s(sMsk)}, 0xffff0000
    s_mov_b32 {s(sPass)}, 0
    s_cmp_eq_u32 {s(sT2)}, 0
    s_cselect_b32 {s(sNp)}, 5, 4
    s_cselect_b32 {s(sZi)}, {OOB}, {s(sZi)}
    s_cselect_b32 {s(sSc)}, {f32bits(2.0**-21)}, {f32bits(2.0**-20)}
    v_and_b32 {v(R.vT2)}, 3, {v(R.vL)}
    v_lshlrev_b32 {v(R.vT2)}, 7, {v(R.vT2)}
    s_lshl_b32 {s(R.sT0)}, {s(sCu)}, 9
    s_add_u32 {s(R.sT0)}, {s(R.sT0)}, {WS_FLAG + FLAG_F}
    v_add_u32 {v(R.vT2)}, {s(R.sT0)}, {v(R.vT2)}
    """.replace(f"s_cselect_b32 {s(sSc)}, {f32bits(2.0**-21)}, {f32bits(2.0**-20)}", f"s_mov_b32 {s(sSc)}, {f32bits(2.0**-20)}\n s_cselect_b32 {s(sSc)}, {f32bits(2.0**-21)}, {s(sSc)}"))
    wait_flags(A, R, "F2_w", R.vT2, 4, 1, sGive, sCnt)
    if ts: tstamp(A, R, 3, vt=24)
    def op(t_or_ks, im, u=None):
        ks = t_or_ks if u is None else 2*t_or_ks + u
        return v(vOp + 16*im + 4*ks, 4)
    def acc(t, im): return vAc + 32*t + 16*im
    def MF(d, x, y, first):
        A(f"v_mfma_f32_32x32x16_bf16 {v(d,16)}, {x}, {y}, {0 if first else v(d,16)}")
    def cmul_pack(tw, sign):
        for t in range(2):
            c0, s0 = tw(t)
            for r in range(0, 16, 2):
                for e in range(2):
                    re, im = acc(t, 0) + r + e, acc(t, 1) + r + e
                    A(f"v_mul_f32 {v(R.vT0+e)}, {v(re)}, {v(c0+r+e)}")
                    A(f"v_mul_f32 {v(R.vT2+e)}, {v(im)}, {v(c0+r+e)}")
                    A(f"v_fma_f32 {v(R.vT0+e)}, {'-' if sign > 0 else ''}{v(im)}, {v(s0+r+e)}, {v(R.vT0+e)}")
                    A(f"v_fma_f32 {v(R.vT2+e)}, {'-' if sign < 0 else ''}{v(re)}, {v(s0+r+e)}, {v(R.vT2+e)}")
                A(f"v_cvt_pk_bf16_f32 {v(vOp + 8*t + r//2)}, {v(R.vT0)}, {v(R.vT1)}")
                A(f"v_cvt_pk_bf16_f32 {v(vOp + 16 + 8*t + r//2)}, {v(R.vT2)}, {v(R.vT3)}")
    A.label("F2_top")
    for im, so in ((0, sZr), (1, sZi)):
        A(f"s_add_u32 {s(R.sT0)}, {s(so)}, 65536")
        for ks in range(4):
            A(f"buffer_load_dwordx4 {op(ks, im)}, {v(vZa)}, {s(R.sWS,4)}, {s(so if ks < 2 else R.sT0)} offen offset:{32*(ks&1)}")
    A(f"s_add_u32 {s(R.sT0)}, {s(sWo)}, 4096")
    for q in range(8):
        A(f"buffer_load_dwordx4 {v(vW+4*q,4)}, {v(vWa)}, {s(R.sWS,4)}, {s(sWo if q < 4 else R.sT0)} offen offset:{1024*(q&3)}")
    A("s_waitcnt vmcnt(8)")
    for t in range(2):
        for ks in range(4):
            MF(acc(t, 0), op(ks, 0), a(aC64+16*t+4*ks, 4), ks == 0); MF(acc(t, 1), op(ks, 1), a(aC64+16*t+4*ks, 4), ks == 0)
            MF(acc(t, 0), op(ks, 1), a(aS64+16*t+4*ks, 4), False); MF(acc(t, 1), op(ks, 0), a(aN64+16*t+4*ks, 4), False)
    cmul_pack(lambda t: (vTw + 32*t, vTw + 32*t + 16), -1)
    for t in range(2):
        for u in range(2):
            MF(acc(t, 0), a(aC32+4*u, 4), op(t, 0, u), u == 0); MF(acc(t, 1), a(aC32+4*u, 4), op(t, 1, u), u == 0)
            MF(acc(t, 0), a(aS32+4*u, 4), op(t, 1, u), False); MF(acc(t, 1), a(aN32+4*u, 4), op(t, 0, u), False)
    A("s_waitcnt vmcnt(0)")
    vWr, vWi = 20, 22
    for t in range(2):
        for r in range(0, 16, 2):
            for e in range(2):
                re, im = acc(t, 0) + r + e, acc(t, 1) + r + e
                w = vW + 16*t + r + e
                A(f"v_lshlrev_b32 {v(vWr+e)}, 16, {v(w)}")
                A(f"v_and_b32 {v(vWi+e)}, {s(sMsk)}, {v(w)}")
                A(f"v_mul_f32 {v(R.vT0+e)}, {v(re)}, {v(vWr+e)}")
                A(f"v_mul_f32 {v(R.vT2+e)}, {v(im)}, {v(vWr+e)}")
                A(f"v_fma_f32 {v(R.vT0+e)}, -{v(im)}, {v(vWi+e)}, {v(R.vT0+e)}")
                A(f"v_fma_f32 {v(R.vT2+e)}, {v(re)}, {v(vWi+e)}, {v(R.vT2+e)}")
            A(f"v_cvt_pk_bf16_f32 {v(vOp + 8*t + r//2)}, {v(R.vT0)}, {v(R.vT1)}")
            A(f"v_cvt_pk_bf16_f32 {v(vOp + 16 + 8*t + r//2)}, {v(R.vT2)}, {v(R.vT3)}")
    for t in range(2):
        for u in range(2):
            MF(acc(t, 0), op(t, 0, u), a(aC32+4*u, 4), u == 0); MF(acc(t, 1), op(t, 1, u), a(aC32+4*u, 4), u == 0)
            MF(acc(t, 0), op(t, 1, u), a(aN32+4*u, 4), False); MF(acc(t, 1), op(t, 0, u), a(aS32+4*u, 4), False)
    cmul_pack(lambda t: (vTw + 64*t, vTw + 64*t + 16), +1)
    for t in range(2):
        for ks in range(4):
            MF(acc(t, 0), a(aC64+16*t+4*ks, 4), op(ks, 0), ks == 0); MF(acc(t, 1), a(aC64+16*t+4*ks, 4), op(ks, 1), ks == 0)
            MF(acc(t, 0), a(aN64+16*t+4*ks, 4), op(ks, 1), False); MF(acc(t, 1), a(aS64+16*t+4*ks, 4), op(ks, 0), False)
    for t in range(2):
        for r in range(16):
            A(f"v_mul_f32 {v(acc(t,0)+r)}, {s(sSc)}, {v(acc(t,0)+r)}")
            A(f"v_mul_f32 {v(acc(t,1)+r)}, {s(sSc)}, {v(acc(t,1)+r)}")
            A(f"v_cvt_pk_bf16_f32 {v(vW+16*t+r)}, {v(acc(t,0)+r)}, {v(acc(t,1)+r)}")
    for p in range(1, 5):
        A(f"""s_cmp_eq_u32 {s(sPass)}, {p}
        s_cbranch_scc1 F2_o{p}""")
    for p in range(5):
        if p: A.label(f"F2_o{p}")
        for k in range(32):
            if p < 4:
                A(f"v_accvgpr_write_b32 {a(aOut+4*k+p)}, {v(vW+k)}")
            else:
                A(f"v_accvgpr_read_b32 {v(R.vT0)}, {a(aOut+4*k)}")
                A(f"v_lshlrev_b32 {v(R.vT1)}, 16, {v(vW+k)}")
                A(f"v_bfi_b32 {v(R.vT0)}, {s(sMsk)}, {v(R.vT1)}, {v(R.vT0)}")
                A(f"v_accvgpr_write_b32 {a(aOut+4*k)}, {v(R.vT0)}")
        if p < 4: A("s_branch F2_nx")
    A.label("F2_nx")
    A(f"""s_add_u32 {s(sPass)}, {s(sPass)}, 1
    s_add_u32 {s(sZr)}, {s(sZr)}, 128
    s_add_u32 {s(sZi)}, {s(sZr)}, 64
    s_add_u32 {s(sWo)}, {s(sWo)}, 8192
    s_mov_b32 {s(sSc)}, {f32bits(2.0**-20)}
    s_cmp_eq_u32 {s(sPass)}, 4
    s_cselect_b32 {s(sZr)}, {WS_Y + 64}, {s(sZr)}
    s_cselect_b32 {s(sZi)}, {OOB}, {s(sZi)}
    s_cselect_b32 {s(sWo)}, {WS_WT + 512*8192}, {s(sWo)}
    s_cselect_b32 {s(sSc)}, {f32bits(2.0**-21)}, {s(sSc)}
    s_cmp_lt_u32 {s(sPass)}, {s(sNp)}
    s_cbranch_scc1 F2_top
    s_mul_i32 {s(R.sDst)}, {s(sT2)}, {ZCH}
    s_add_u32 {s(R.sDst)}, {s(R.sDst)}, {WS_Z}""")
    for t in range(2):
        for r in range(16):
            o = (32*t + 16*(r >> 3) + (r & 7)) * 512
            if r % 8 == 0: A(f"s_add_u32 {s(R.sT0)}, {s(R.sDst)}, {o}")
            A(f"buffer_store_dwordx4 {a(aOut+4*(16*t+r),4)}, {v(vSo)}, {s(R.sWS,4)}, {s(R.sT0)} offen offset:{(r&7)*512} sc1")
    A("s_waitcnt vmcnt(0)")
    setflag(sT2, FLAG_F2)
    if ts: tstamp(A, R, 4)
    colidx(R.vT2)
    A(f"""v_lshrrev_b32 {v(R.vT3)}, 4, {v(R.vL)}
    v_cvt_f32_u32 {v(R.vT3)}, {v(R.vT3)}
    s_mov_b32 {s(sT2)}, {f32bits(1/1024)}
    v_and_b32 {v(38)}, 1, {v(R.vT2)}""")
    for t in range(2):
        A(f"""v_add_u32 {v(R.vT0)}, {4*t}, {v(R.vT2)}
        v_cvt_f32_u32 {v(R.vT1)}, {v(R.vT0)}
        v_mul_f32 {v(R.vT1)}, {s(sT2)}, {v(R.vT1)}
        v_mov_b32 {v(vD1+t)}, 0x3e800000
        v_sub_f32 {v(vD2+t)}, {v(R.vT1)}, {v(vD1+t)}
        v_mul_f32 {v(vInc+t)}, 0x41800000, {v(R.vT1)}
        v_mul_f32 {v(R.vT0)}, 4.0, {v(R.vT1)}
        v_mul_f32 {v(vB+t)}, {v(R.vT0)}, {v(R.vT3)}""")
    gen_dft_weights(A, R, "F3", vB, vD1, vD2, vInc)
    A(f"""v_lshlrev_b32 {v(R.vT1)}, 31, {v(38)}
    v_or_b32 {v(R.vT1)}, 0x3f803f80, {v(R.vT1)}
    v_cmp_gt_u32 vcc, 16, {v(R.vL)}""")
    for t in range(2):
        A(f"""v_accvgpr_read_b32 {v(R.vT0)}, {a(aw(t,0))}
        v_cndmask_b32 {v(R.vT0)}, {v(R.vT0)}, {v(R.vT1)}, vcc
        v_accvgpr_write_b32 {a(aw(t,0))}, {v(R.vT0)}""")
    A(f"""
    v_and_b32 {v(R.vT0)}, 15, {v(R.vL)}
    v_lshrrev_b32 {v(R.vT1)}, 4, {v(R.vL)}
    v_lshlrev_b32 {v(R.vT0)}, 4, {v(R.vT0)}
    v_lshl_add_u32 {v(R.vRd)}, {v(R.vT1)}, 9, {v(R.vT0)}
    v_add_u32 {v(R.vRd+1)}, 2048, {v(R.vRd)}
    v_add_u32 {v(R.vRd+2)}, 0x10000, {v(R.vRd)}
    v_add_u32 {v(R.vRd+3)}, 0x10000, {v(R.vRd+1)}
    s_lshl_b32 {s(R.sM0)}, {s(R.sWv)}, 10
    s_lshl_b32 {s(R.sT0)}, {s(R.sWv)}, 1
    v_lshrrev_b32 {v(R.vT3)}, 5, {v(R.vL)}
    v_add_u32 {v(R.vT3)}, {s(R.sT0)}, {v(R.vT3)}
    v_and_b32 {v(R.vT2)}, 31, {v(R.vL)}
    v_mul_u32_u24 {v(R.vSrc)}, {ZCH}, {v(R.vT3)}
    v_lshl_add_u32 {v(R.vSrc)}, {v(R.vT2)}, 4, {v(R.vSrc)}
    v_and_b32 {v(R.vDst)}, 15, {v(R.vL)}
    v_and_b32 {v(R.vT0)}, 48, {v(R.vL)}
    v_lshl_add_u32 {v(R.vDst)}, {v(R.vDst)}, 12, {v(R.vT0)}
    v_add_u32 {v(R.vFlag)}, 0x10000, {v(R.vDst)}
    s_lshl_b32 {s(R.sDst)}, {s(sTg)}, 21
    s_lshl_b32 {s(R.sT0)}, {s(sBlk)}, 6
    s_add_u32 {s(R.sDst)}, {s(R.sDst)}, {s(R.sT0)}
    s_lshl_b32 {s(R.sSrc)}, {s(sTg)}, 13
    s_add_u32 {s(R.sSrc)}, {s(R.sSrc)}, {WS_Z}
    s_mov_b32 {s(R.sSrcStep)}, 512
    s_mov_b32 {s(R.sDstStep)}, {32*4096}
    v_and_b32 {v(R.vT2)}, 31, {v(R.vL)}
    v_lshlrev_b32 {v(R.vT2)}, 7, {v(R.vT2)}
    s_lshl_b32 {s(R.sT0)}, {s(R.sWv)}, 12
    s_add_u32 {s(R.sT0)}, {s(R.sT0)}, {WS_FLAG + FLAG_F2}
    v_add_u32 {v(R.vT2)}, {s(R.sT0)}, {v(R.vT2)}
    """)
    wait_flags(A, R, "F3_w0", R.vT2, 64, 1, sGive, sCnt)
    A("s_barrier")
    if ts: tstamp(A, R, 5)
    def dma3(half, b, lds):
        return [f"s_add_u32 m0, {s(R.sM0)}, {lds}", f"s_add_u32 {s(R.sT0)}, {s(R.sSrc)}, {(half*8 + b)*8*ZCH}",
                f"buffer_load_dwordx4 {v(R.vSrc)}, {s(R.sWS,4)}, {s(R.sT0)} offen lds"]
    def store3(u):
        return [f"buffer_store_dwordx4 {v(R.vPk+4*u,4)}, {v(R.vFlag if u else R.vDst)}, {s(R.sO,4)}, {s(R.sDst)} offen"]
    stream_loop(A, R, "F3", 16, False, dma3, store3, flag=False, ttoff=256)
    A(f"s_branch {done}")
```

```python
from asmlib import *
from layout import *
from proto import *
import struct, math

def f32bits(x): return struct.unpack("<I", struct.pack("<f", x))[0]

POLL_LIMIT = 200000

def delay(A, cyc):
    n = cyc // 4
    while n > 0:
        k = min(n, 16); A(f"s_nop {k-1}"); n -= k

def gen_recur(A, stamps=False, force_slow=False, d0=512, dd=128, dmem=64, dob=64, dsc=160, nrep=1, dfar=256, ts=False, par=-1, dz=192, noside=0, pace=48, sc2=1, early=1, pmnb=1):
    MT = "s_memrealtime" if stamps == 2 else "s_memtime"
    sWS = 4
    sW = 8
    sX, sJ, sWv, sStep, sCur, sKx, sVt, sKm, sVm, sT0, sT1, sCnt, sC, sGive, sStO, sCol = range(12, 28)
    sPtr = 28
    sH, sEs, sNext, sArm, sPrev, sFast = 40, 41, 42, 43, 44, 45
    sPm = 84
    sKf, sNeed = 85, 94
    sPmL, sPar = 95, 46
    sMk = 86
    sSt = 48
    vL, vMemR, vScW, vScWm, vScR, vScRm, vObW, vObR, vPmW, vPmR, vMemW, vKx, vVt, vKm, vVm, vLds, vLdsW, vLdsV, vT0, vT1, vT2, vT3, vPmA = range(1, 24)
    vPmB = 244
    vFlg = 245
    vArm = 246
    vFv = 247
    vM = 24
    vAc = 40
    vPk = 72
    vSel = 84
    vX = 88
    vR = 96
    vXO = 128
    vKX = 132
    vD = 140
    vVA = 152
    vVM = 168
    vIdx = 172
    vPB = 176
    vS = 180
    vO = 188
    vOnes = 204
    vP = 208
    vN = 228
    vOneBf = 236
    vSum = 240
    def aw(mat, t, u): return ((mat * 2 + t) * 4 + u) * 8
    def acc(mat, t): return vAc + (4 * (2 * t + mat) if mat < 2 else 8 * mat + 4 * t)
    def stamp(k):
        if stamps: A(f"{MT} {s(sSt + 2 * k, 2)}")
    def lgkm(n): A(f"s_waitcnt lgkmcnt({0 if stamps else n})")

    L_end = "recur_end"
    inloop = [False]
    A(f"""
    s_mov_b32 {s(sX)}, s3
    s_lshr_b32 {s(sJ)}, s2, 3
    s_load_dwordx2 {s(sWS,2)}, s[0:1], {KA_WS}
    s_load_dwordx2 {s(sPtr,2)}, s[0:1], {KA_MEM0}
    s_load_dwordx2 {s(sPtr+2,2)}, s[0:1], {KA_WQ}
    s_load_dwordx2 {s(sPtr+4,2)}, s[0:1], {KA_WK}
    s_load_dwordx2 {s(sPtr+6,2)}, s[0:1], {KA_WV}
    s_load_dwordx2 {s(sPtr+8,2)}, s[0:1], {KA_WO}
    v_lshrrev_b32 {v(vT0)}, 6, v0
    v_and_b32 {v(vL)}, 63, v0
    v_readfirstlane_b32 {s(sWv)}, {v(vT0)}
    s_mov_b32 {s(sWS+2)}, {WS_BYTES}
    s_mov_b32 {s(sWS+3)}, 0x20000
    s_mov_b32 {s(sW+2)}, {8*MB}
    s_mov_b32 {s(sW+3)}, 0x20000
    s_mov_b32 {s(sGive)}, 0
    s_mov_b32 {s(sC)}, {f32bits(128 ** -0.5 * math.log2(math.e))}
    s_waitcnt lgkmcnt(0)
    """)
    if ts: ts(0)
    vm_, vc_, vg_ = vR, vR + 1, vR + 2
    A(f"""
    v_and_b32 {v(vm_)}, 7, {v(vL)}
    v_bfe_u32 {v(vc_)}, {v(vL)}, 3, 1
    v_lshrrev_b32 {v(vg_)}, 4, {v(vL)}
    v_lshlrev_b32 {v(vT0)}, 4, {v(vL)}            ; l*16
    s_lshl_b32 {s(sT0)}, {s(sX)}, 14
    s_lshl_b32 {s(sT1)}, {s(sWv)}, 12
    s_add_u32 {s(sT0)}, {s(sT0)}, {s(sT1)}
    s_add_u32 {s(sT1)}, {s(sT0)}, {HOP_MEM}
    v_add_u32 {v(vMemR)}, {s(sT1)}, {v(vT0)}
    s_add_u32 {s(sT1)}, {s(sT0)}, {HOP_OB}
    v_add_u32 {v(vObR)}, {s(sT1)}, {v(vT0)}
    s_lshr_b32 {s(sT0)}, {s(sJ)}, 1
    s_lshl_b32 {s(sT0)}, {s(sT0)}, 10
    s_and_b32 {s(sT1)}, {s(sJ)}, 1
    s_lshl_b32 {s(sT1)}, {s(sT1)}, 7
    s_add_u32 {s(sT0)}, {s(sT0)}, {s(sT1)}
    s_lshl_b32 {s(sT1)}, {s(sX)}, 14
    s_add_u32 {s(sT0)}, {s(sT0)}, {s(sT1)}
    v_lshlrev_b32 {v(vT1)}, 8, {v(vg_)}
    v_lshl_add_u32 {v(vT1)}, {v(vm_)}, 4, {v(vT1)}
    v_lshl_add_u32 {v(vT1)}, {v(vc_)}, 3, {v(vT1)}
    s_add_u32 {s(sT1)}, {s(sT0)}, {HOP_OB}
    v_add_u32 {v(vObW)}, {s(sT1)}, {v(vT1)}
    s_add_u32 {s(sT1)}, {s(sT0)}, {HOP_MEM}
    v_add_u32 {v(vMemW)}, {s(sT1)}, {v(vT1)}
    s_lshr_b32 {s(sT0)}, {s(sJ)}, 1
    s_lshl_b32 {s(sT0)}, {s(sT0)}, 14
    s_and_b32 {s(sT1)}, {s(sJ)}, 1
    s_lshl_b32 {s(sT1)}, {s(sT1)}, 12
    s_add_u32 {s(sT0)}, {s(sT0)}, {s(sT1)}
    s_lshl_b32 {s(sT1)}, {s(sX)}, 10
    s_add_u32 {s(sT1)}, {s(sT0)}, {s(sT1)}
    v_add_u32 {v(vPmW)}, {s(sT1)}, {v(vT0)}
    v_xor_b32 {v(vPmR)}, 1024, {v(vPmW)}
    v_xor_b32 {v(vPmA)}, 2048, {v(vPmW)}
    v_xor_b32 {v(vPmB)}, 3072, {v(vPmW)}
    s_mov_b32 {s(sPmL)}, {WS_PM}
    s_lshr_b32 {s(sH)}, {s(sJ)}, 2
    s_lshl_b32 {s(sT0)}, {s(sX)}, 3
    s_add_u32 {s(sH)}, {s(sH)}, {s(sT0)}
    s_and_b32 {s(sEs)}, {s(sJ)}, 3
    s_mul_i32 {s(sT0)}, {s(sH)}, 5120
    s_add_u32 {s(sT0)}, {s(sT0)}, {HOP_SC}
    v_add_u32 {v(vScR)}, {s(sT0)}, {v(vT0)}
    v_lshlrev_b32 {v(vT1)}, 2, {v(vL)}
    s_add_u32 {s(sT1)}, {s(sT0)}, 4096
    v_add_u32 {v(vScRm)}, {s(sT1)}, {v(vT1)}
    s_lshl_b32 {s(sT1)}, {s(sEs)}, 10
    s_add_u32 {s(sT1)}, {s(sT1)}, {s(sT0)}
    v_add_u32 {v(vScW)}, {s(sT1)}, {v(vT0)}
    v_mov_b32 {v(vT2)}, {OOB}
    v_cmp_eq_u32 vcc, 0, {v(vc_)}
    v_cndmask_b32 {v(vScW)}, {v(vT2)}, {v(vScW)}, vcc
    s_lshl_b32 {s(sT1)}, {s(sEs)}, 8
    s_add_u32 {s(sT1)}, {s(sT1)}, {s(sT0)}
    s_add_u32 {s(sT1)}, {s(sT1)}, 4096
    v_lshlrev_b32 {v(vT1)}, 4, {v(vg_)}
    v_lshl_add_u32 {v(vT1)}, {v(vm_)}, 5, {v(vT1)}
    v_add_u32 {v(vScWm)}, {s(sT1)}, {v(vT1)}
    v_cndmask_b32 {v(vScWm)}, {v(vScWm)}, {v(vT2)}, vcc
    v_cmp_gt_u32 vcc, 2, {v(vg_)}
    v_cndmask_b32 {v(vScWm)}, {v(vT2)}, {v(vScWm)}, vcc
    s_lshl_b32 {s(sCol)}, {s(sH)}, 7
    s_lshl_b32 {s(sT0)}, {s(sEs)}, 5
    s_add_u32 {s(sCol)}, {s(sCol)}, {s(sT0)}
    v_bfe_u32 {v(vT1)}, {v(vL)}, 2, 2
    v_and_b32 {v(vT3)}, 3, {v(vL)}
    v_lshl_add_u32 {v(vT1)}, {v(vT1)}, 3, {v(vT3)}        ; perm(i) = 8*(i>>2) + (i&3)
    v_lshlrev_b32 {v(vKx)}, 6, {v(vT1)}
    v_lshl_add_u32 {v(vKx)}, {v(vg_)}, 4, {v(vKx)}
    s_and_b32 {s(sT0)}, {s(sWv)}, 1
    s_lshl_b32 {s(sT0)}, {s(sT0)}, 14
    s_lshl_b32 {s(sT1)}, {s(sCol)}, 2
    s_add_u32 {s(sT0)}, {s(sT0)}, {s(sT1)}
    s_add_u32 {s(sT0)}, {s(sT0)}, {WS_FLAG + FLAG_P + 16384}
    v_mov_b32 {v(vFlg)}, {s(sT0)}
    s_mov_b32 {s(sKf)}, 0
    s_mul_i32 {s(sT0)}, {s(sCol)}, {BLK // 32}
    v_add_u32 {v(vKx)}, {s(sT0)}, {v(vKx)}
    v_mov_b32 {v(vVt)}, {v(vKx)}
    v_lshlrev_b32 {v(vVm)}, 4, {v(vT1)}
    v_lshl_add_u32 {v(vVm)}, {v(vg_)}, 5, {v(vVm)}
    s_mul_i32 {s(sT0)}, {s(sCol)}, {MBLK // 32}
    v_add_u32 {v(vVm)}, {s(sT0)}, {v(vVm)}
    v_and_b32 {v(vT3)}, 1, {v(vg_)}
    v_cmp_eq_u32 vcc, 0, {v(vT3)}
    v_cndmask_b32 {v(vVm)}, {v(vT2)}, {v(vVm)}, vcc
    v_lshlrev_b32 {v(vKm)}, 6, {v(vm_)}
    v_lshl_add_u32 {v(vKm)}, {v(vg_)}, 4, {v(vKm)}
    v_add_u32 {v(vKm)}, {s(sT0)}, {v(vKm)}
    v_cmp_eq_u32 vcc, 1, {v(vc_)}
    v_cndmask_b32 {v(vKm)}, {v(vT2)}, {v(vKm)}, vcc
    v_mov_b32 {v(vLds)}, {v(vT0)}
    s_lshl_b32 {s(sT0)}, {s(sWv)}, 11
    v_add_u32 {v(vLdsW)}, {s(sT0)}, {v(vT0)}
    v_and_b32 {v(vT1)}, 15, {v(vL)}
    v_bfe_u32 {v(vT3)}, {v(vL)}, 2, 2
    v_and_b32 {v(vLdsV)}, 1, {v(vL)}
    v_lshl_add_u32 {v(vLdsV)}, {v(vT3)}, 1, {v(vLdsV)}
    v_bfe_u32 {v(vT3)}, {v(vL)}, 1, 1
    v_lshl_add_u32 {v(vLdsV)}, {v(vT3)}, 3, {v(vLdsV)}
    s_cmp_eq_u32 {s(sWv)}, 1
    s_cselect_b64 vcc, -1, 0
    v_cndmask_b32 {v(vT1)}, {v(vT1)}, {v(vLdsV)}, vcc
    v_and_b32 {v(vT3)}, 1, {v(vg_)}
    v_lshlrev_b32 {v(vT3)}, 2, {v(vT3)}
    v_sub_u32 {v(vT1)}, {v(vT1)}, {v(vT3)}
    v_mov_b32 {v(vT3)}, 0x3f80
    v_mov_b32 {v(vLdsV)}, 0x3f800000
    v_mov_b32 {v(vIdx)}, 0x4444
    v_mov_b32 {v(vSel)}, 0xeeee
    v_cmp_eq_u32 vcc, 1, {v(vc_)}
    v_cndmask_b32 {v(vIdx)}, {v(vIdx)}, {v(vSel)}, vcc
    """)
    for r, d in enumerate((0, 2, 8, 10)):
        A(f"""v_cmp_eq_u32 vcc, {d}, {v(vT1)}
        v_cndmask_b32 {v(vSel+r)}, 0, {v(vT3)}, vcc
        v_cmp_eq_u32 vcc, {d+1}, {v(vT1)}
        v_cndmask_b32 {v(vSel+r)}, {v(vSel+r)}, {v(vLdsV)}, vcc""")
    A(f"""
    s_mov_b32 {s(sCur)}, {WS_HOP}
    s_mov_b32 {s(sNext)}, {WS_HOP + HOP_STEP}
    s_mov_b32 {s(sArm)}, {WS_HOP + 2*HOP_STEP}
    s_mov_b32 {s(sPrev)}, {WS_HOP + 3*HOP_STEP}
    s_mov_b32 {s(sKx)}, {WS_K}
    s_mov_b32 {s(sVt)}, {WS_VT}
    s_mov_b32 {s(sKm)}, {WS_KM}
    s_mov_b32 {s(sVm)}, {WS_VMT}
    s_mov_b32 {s(sStep)}, 0
    """)
    for r in range(4): A(f"v_mov_b32 {v(vOnes+r)}, -1")
    for r in range(4): A(f"v_mov_b32 {v(vOneBf+r)}, 0x3f803f80")
    def arm_local(so, sc):
        A(f"""buffer_store_dwordx4 {v(vOnes,4)}, {v(vScW)}, {s(sWS,4)}, {s(so)} offen{sc}
        buffer_store_dwordx4 {v(vOnes,4)}, {v(vScW)}, {s(sWS,4)}, {s(so)} offen offset:128{sc}
        buffer_store_dwordx4 {v(vOnes,4)}, {v(vScWm)}, {s(sWS,4)}, {s(so)} offen{sc}
        buffer_store_dwordx2 {v(vOnes,2)}, {v(vObW)}, {s(sWS,4)}, {s(so)} offen{sc}
        buffer_store_dwordx2 {v(vOnes,2)}, {v(vMemW)}, {s(sWS,4)}, {s(so)} offen{sc}""")
    A(f"""s_mul_i32 {s(sT1)}, {s(sWv)}, {HOP_STEP}
    s_add_u32 {s(sT1)}, {s(sT1)}, {WS_HOP}""")
    arm_local(sT1, " sc1")
    A(f"""s_lshl_b32 {s(sT1)}, {s(sWv)}, 18
    s_add_u32 {s(sT1)}, {s(sT1)}, {WS_PM}
    buffer_store_dwordx4 {v(vOnes,4)}, {v(vPmW)}, {s(sWS,4)}, {s(sT1)} offen sc1
    s_add_u32 {s(sT1)}, {s(sT1)}, 8192
    buffer_store_dwordx4 {v(vOnes,4)}, {v(vPmW)}, {s(sWS,4)}, {s(sT1)} offen sc1""")
    A(f"""s_lshl_b32 {s(sT1)}, {s(sCol)}, 2
    s_add_u32 {s(sT1)}, {s(sT1)}, {WS_FLAG + FLAG_P + 49152}
    v_lshlrev_b32 {v(vArm)}, 2, {v(vL)}
    v_add_u32 {v(vArm)}, {s(sT1)}, {v(vArm)}
    v_cmp_gt_u32 vcc, 32, {v(vL)}
    v_cndmask_b32 {v(vArm)}, {v(vT2)}, {v(vArm)}, vcc
    v_mov_b32 {v(vFv)}, 0
    buffer_store_dword {v(vFv)}, {v(vArm)}, {s(sWS,4)}, 0 offen sc1""")
    A("s_waitcnt vmcnt(0)")
    A("s_barrier")
    register(A, sWv, sT0, sT1, vT1, vT2)
    A(f"""
    v_lshrrev_b32 {v(vT0)}, 2, {v(vL)}
    v_and_b32 {v(vT3)}, 3, {v(vL)}
    v_lshlrev_b32 {v(vT3)}, 4, {v(vT3)}
    v_lshl_add_u32 {v(vT1)}, {v(vT0)}, 13, {v(vT3)}
    v_lshl_add_u32 {v(vT2)}, {v(vT0)}, 11, {v(vT3)}
    v_bfe_u32 {v(vT0)}, {v(vL)}, 2, 1
    v_lshl_add_u32 {v(vT0)}, {v(vg_)}, 2, {v(vT0)}
    v_lshl_add_u32 {v(vT0)}, {v(vc_)}, 5, {v(vT0)}
    v_lshl_add_u32 {v(vT3)}, {v(vT0)}, 6, {v(vT3)}
    s_lshl_b32 {s(sT0)}, {s(sWv)}, 15
    v_add_u32 {v(vT3)}, {s(sT0)}, {v(vT3)}
    """)
    for rnd in range(2):
        for half in range(2):
            mat = rnd * 2 + half
            A(f"s_mov_b32 {s(sW)}, {s(sPtr+2+2*mat)}")
            A(f"s_mov_b32 {s(sW+1)}, {s(sPtr+3+2*mat)}")
            if mat < 3:
                A(f"""s_lshl_b32 {s(sT0)}, {s(sWv)}, 21
                s_lshl_b32 {s(sT1)}, {s(sCol)}, 1
                s_add_u32 {s(sT0)}, {s(sT0)}, {s(sT1)}""")
                stride = 16 * 8192; vo = vT1
            else:
                A(f"""s_lshl_b32 {s(sT0)}, {s(sX)}, 21
                s_lshl_b32 {s(sT1)}, {s(sWv)}, 19
                s_add_u32 {s(sT0)}, {s(sT0)}, {s(sT1)}
                s_lshl_b32 {s(sT1)}, {s(sJ)}, 6
                s_add_u32 {s(sT0)}, {s(sT0)}, {s(sT1)}""")
                stride = 16 * 2048; vo = vT2
            A(f"""s_lshl_b32 {s(sT1)}, {s(sWv)}, 15
            s_add_u32 {s(sT1)}, {s(sT1)}, {half*16384}""")
            for i in range(16):
                A(f"s_mov_b32 m0, {s(sT1)}")
                A(f"buffer_load_dwordx4 {v(vo)}, {s(sW,4)}, {s(sT0)} offen lds")
                A(f"s_add_u32 {s(sT0)}, {s(sT0)}, {stride}")
                A(f"s_add_u32 {s(sT1)}, {s(sT1)}, 1024")
        A("s_waitcnt vmcnt(0)")
        for half in range(2):
            mat = rnd * 2 + half
            for t in range(2):
                for u in range(4):
                    for aa in range(4):
                        A(f"ds_read_b64_tr_b16 {a(aw(mat,t,u)+2*aa,2)}, {v(vT3)} offset:{half*16384 + (64*u + 16*(aa>>1) + 2*(aa&1))*64 + t*8}")
                A("s_waitcnt lgkmcnt(0)")
    for t in range(2):
        for c in range(2):
            A(f"v_mov_b32 {v(vVA + (t*2+c)*4 + 3)}, 0")
    A(f"v_mov_b32 {v(vPB+3)}, 0")
    def load_kx(d=vKX):
        if noside & 1 and inloop[0]: return
        A(f"""buffer_load_dwordx4 {v(d,4)}, {v(vKx)}, {s(sWS,4)}, {s(sKx)} offen sc1
        buffer_load_dwordx4 {v(d+4,4)}, {v(vKx)}, {s(sWS,4)}, {s(sKx)} offen offset:256 sc1
        s_add_u32 {s(sKx)}, {s(sKx)}, 2048
        s_min_u32 {s(sKx)}, {s(sKx)}, {WS_K + 63*2048}""")
    def load_vt():
        if noside & 1 and inloop[0]: return
        for t in range(2):
            A(f"buffer_load_dwordx4 {v(vN+4*t,4)}, {v(vVt)}, {s(sWS,4)}, {s(sVt)} offen offset:{t*256} sc1")
        A(f"s_add_u32 {s(sVt)}, {s(sVt)}, 2048")
        A(f"s_min_u32 {s(sVt)}, {s(sVt)}, {WS_VT + 63*2048}")
    def store_km():
        if noside & 2: return
        A(f"buffer_store_dwordx4 {v(vXO,4)}, {v(vKm)}, {s(sWS,4)}, {s(sKm)} offen sc1")
        A(f"s_add_u32 {s(sKm)}, {s(sKm)}, 512")
    def store_vm():
        if noside & 2: return
        A(f"buffer_store_dwordx4 {v(vVM,4)}, {v(vVm)}, {s(sWS,4)}, {s(sVm)} offen sc1")
        A(f"s_add_u32 {s(sVm)}, {s(sVm)}, 512")
    def flagwait():
        Lp = A.newlabel("fw"); Lo = A.newlabel("fo")
        A(f"s_mov_b32 {s(sCnt)}, {s(sGive)}")
        A.label(Lp)
        A(f"""s_cmp_ge_u32 {s(sKf)}, {s(sNeed)}
        s_cbranch_scc1 {Lo}
        buffer_load_dword {v(vFv)}, {v(vFlg)}, {s(sWS,4)}, 0 offen sc1
        s_add_u32 {s(sCnt)}, {s(sCnt)}, 1
        s_waitcnt vmcnt(0)
        v_readfirstlane_b32 {s(sKf)}, {v(vFv)}
        s_cmp_lt_u32 {s(sCnt)}, {POLL_LIMIT}
        s_cbranch_scc1 {Lp}
        s_mov_b32 {s(sGive)}, {POLL_LIMIT}""")
        A.label(Lo)
    A(f"""
    s_mov_b32 {s(sW)}, {s(sPtr)}
    s_mov_b32 {s(sW+1)}, {s(sPtr+1)}
    s_mov_b32 {s(sW+2)}, 16384
    v_lshlrev_b32 {v(vT1)}, 11, {v(vm_)}
    v_lshl_add_u32 {v(vT1)}, {v(vg_)}, 4, {v(vT1)}
    v_lshl_add_u32 {v(vT1)}, {v(vc_)}, 3, {v(vT1)}
    s_lshl_b32 {s(sT0)}, {s(sJ)}, 6
    buffer_load_dwordx2 {v(vX,2)}, {v(vT1)}, {s(sW,4)}, {s(sT0)} offen
    """)
    rendezvous(A, vL, sT0, sT1, vT1, vT2, vT3, sGive, POLL_LIMIT, sPar)
    if par >= 0: A(f"s_mov_b32 {s(sPar)}, {par * 8192}")
    A(f"""s_add_u32 {s(sPm)}, {s(sPmL)}, {s(sPar)}
    s_xor_b32 {s(sFast)}, {s(sPass)}, 1
    v_min_u32 {v(vX)}, -2, {v(vX)}
    v_min_u32 {v(vX+1)}, -2, {v(vX+1)}
    buffer_store_dwordx2 {v(vX,2)}, {v(vMemW)}, {s(sWS,4)}, {s(sCur)} offen sc1
    """)
    if force_slow: A(f"s_mov_b32 {s(sFast)}, 0")
    if stamps:
        A(f"""s_lshl_b32 {s(sStO)}, s2, 2
        s_add_u32 {s(sStO)}, {s(sStO)}, {s(sWv)}
        s_lshl_b32 {s(sStO)}, {s(sStO)}, 13
        s_add_u32 {s(sStO)}, {s(sStO)}, {WS_STAMP}""")
    for r in range(32): A(f"v_mov_b32 {v(vAc+r)}, 0")
    Lkv = A.newlabel("kv"); Lkv1 = A.newlabel("kv")
    A(f"""s_cmp_ge_u32 {s(sWv)}, 2
    s_cbranch_scc1 {Lkv}
    s_mov_b32 {s(sNeed)}, 1""")
    flagwait()
    A(f"""s_cmp_eq_u32 {s(sWv)}, 1
    s_cbranch_scc1 {Lkv1}""")
    load_kx()
    A(f"s_branch {Lkv}")
    A.label(Lkv1)
    load_vt()
    A.label(Lkv)
    if ts: ts(1)
    A(f"s_mov_b32 {s(sCnt)}, {s(sGive)}")
    A("s_barrier")
    A(f"""s_cmp_eq_u32 {s(sFast)}, 0
    s_cbranch_scc1 recur_slow_disp""")
    for mode in ("fast", "slow"):
        if mode == "slow": A.label("recur_slow_disp")
        for w in range(1, 4):
            A(f"""s_cmp_eq_u32 {s(sWv)}, {w}
            s_cbranch_scc1 recur_{mode}_w{w}""")
        A(f"s_branch recur_{mode}_w0")

    def check(regs, tmp, dst="vcc"):
        r = list(regs)
        out = [f"v_max3_u32 {v(tmp)}, {v(r[0])}, {v(r[1])}, {v(r[2])}"]
        r = r[3:]
        while len(r) >= 2:
            out.append(f"v_max3_u32 {v(tmp)}, {v(tmp)}, {v(r[0])}, {v(r[1])}"); r = r[2:]
        if r: out.append(f"v_max_u32 {v(tmp)}, {v(tmp)}, {v(r[0])}")
        out.append(f"v_cmp_eq_u32 {dst}, -1, {v(tmp)}")
        return out
    tails = []
    inloop[0] = True
    def giveup(Lretry, Lgo):
        return [f"s_add_u32 {s(sCnt)}, {s(sCnt)}, 1", f"s_cmp_lt_u32 {s(sCnt)}, {POLL_LIMIT}", f"s_cbranch_scc1 {Lretry}",
                f"s_mov_b32 {s(sGive)}, {POLL_LIMIT}", f"s_branch {Lgo}"]
    def rgather(vaddr, so, blk, simple, st1=None, st2=None, cntreg=None):
        n = 4
        ld = [f"buffer_load_dwordx4 {v(vM+4*i,4)}, {v(vaddr)}, {s(sWS,4)}, {s(so)} offen offset:{i*1024} sc1" for i in range(n)]
        A(f"s_mov_b32 {s(sCnt)}, {s(sGive)}")
        stem = A.newlabel("g")
        if simple:
            A.label(stem)
            for x in ld: A(x)
            A("s_waitcnt vmcnt(0)")
            for x in check(range(vM, vM + 16), vT0): A(x)
            A(f"s_cbranch_vccz {stem}k")
            for x in giveup(stem, stem + "k")[:-1]: A(x)
            A.label(stem + "k")
            for i in range(n):
                for x in blk(i, i == n - 1): A(x)
            return
        for i, x in enumerate(ld):
            A(x)
            if i < n - 1: delay(A, pace)
        Lcont = A.newlabel("gc")
        def nxt(S, c):
            for k in range(1, n + 1):
                if (S >> ((c + k) % n)) & 1: return (c + k) % n
        def pre(S, c): return [f"s_waitcnt vmcnt({bin(S).count('1') - 1})"] + check(range(vM+4*c, vM+4*c+4), vT0)
        full = (1 << n) - 1
        for x in pre(full, 0): A(x)
        for i in range(n):
            S = full - ((1 << i) - 1)
            A(f"s_cbranch_vccnz {stem}F{S}_{i}")
            if i == 0 and st1 is not None: stamp(st1)
            if i == n - 1 and st2 is not None: stamp(st2)
            b = blk(i, i == n - 1); nx = pre(S - (1 << i), i + 1) if i < n - 1 else []
            if len(b) >= 4 and nx:
                b = b[:1] + nx[:3] + b[1:2] + nx[3:] + b[2:] if early else b[:-2] + nx[:3] + b[-2:-1] + nx[3:] + b[-1:]
            else:
                b = b + nx
            for x in b: A(x)
        t = []
        done = set()
        order = sorted(((S, c) for S in range(1, full + 1) for c in range(n) if (S >> c) & 1), key=lambda x: -bin(x[0]).count("1"))
        for st0 in order:
            cur = st0
            while cur is not None and cur not in done:
                done.add(cur); S, c = cur
                t += [f"{stem}L{S}_{c}:"] + pre(S, c) + [f"s_cbranch_vccnz {stem}F{S}_{c}"]
                S2 = S - (1 << c)
                if S2 == 0 and stamps and st2 is not None: t += [f"{MT} {s(sSt + 2 * st2, 2)}"]
                t += blk(c, S2 == 0)
                if S2 == 0:
                    t += [f"s_branch {Lcont}"]; cur = None
                else:
                    cur = (S2, nxt(S2, c))
                    if cur in done: t += [f"s_branch {stem}L{cur[0]}_{cur[1]}"]
        for S, c in order:
            t += [f"{stem}F{S}_{c}:", "s_mov_b64 exec, vcc", ld[c], "s_mov_b64 exec, -1"] + giveup(f"{stem}L{S}_{nxt(S, c)}", Lcont)
        tails.append(t)
        A.label(Lcont)
        if stamps and cntreg is not None: A(f"s_mov_b32 {s(cntreg)}, {s(sCnt)}")
    def combine(dst, lo_own, lo_rot, hi_own, hi_rot):
        o = []
        for r in range(4):
            o.append(f"v_add_f32_dpp {v(dst+r)}, {v(lo_rot+r)}, {v(lo_own+r)} row_ror:8 row_mask:0xf bank_mask:0x3")
        for r in range(4):
            o.append(f"v_add_f32_dpp {v(dst+r)}, {v(hi_rot+r)}, {v(hi_own+r)} row_ror:8 row_mask:0xf bank_mask:0xc")
        return o
    def smf(mat, t, u): return f"v_smfmac_f32_16x16x64_bf16 {v(acc(mat,t),4)}, {v(vM+4*u,4)}, {a(aw(mat,t,u),8)}, {v(vIdx)}"
    def pack(dst, src, n=4): return [f"v_cvt_pk_bf16_f32 {v(dst+r)}, {v(src+2*r)}, {v(src+2*r+1)}" for r in range(n)]
    def mf(d, x, y, c): return f"v_mfma_f32_16x16x32_bf16 {v(d,4)}, {v(x,4)}, {v(y,4)}, {v(d,4) if c else 0}"
    def pka(d, x, y): return f"v_pk_add_f32 {v(d,2)}, {v(x,2)}, {v(y,2)}"
    def zero():
        for r in range(32): A(f"v_mov_b32 {v(vAc+r)}, 0")
    def arm_far():
        if not noside & 8: A(f"""s_add_u32 {s(sT0)}, {s(sPmL)}, {2*PM_STEP}
        s_lshr_b32 {s(sT1)}, {s(sT0)}, 8
        s_and_b32 {s(sT1)}, {s(sT1)}, 8192
        s_xor_b32 {s(sT1)}, {s(sT1)}, {s(sPar)}
        s_add_u32 {s(sT0)}, {s(sT0)}, {s(sT1)}
        buffer_store_dwordx4 {v(vOnes,4)}, {v(vPmW)}, {s(sWS,4)}, {s(sT0)} offen sc1
        s_add_u32 {s(sT0)}, {s(sT0)}, {PM_REP}""")
        if nrep == 2 and not noside & 8: A(f"buffer_store_dwordx4 {v(vOnes,4)}, {v(vPmW)}, {s(sWS,4)}, {s(sT0)} offen sc1")
        if not noside & 4: A(f"buffer_store_dword {v(vFv)}, {v(vArm)}, {s(sWS,4)}, 0 offen sc1")

    for mode in ("fast", "slow"):
      LSC = "" if mode == "fast" else " sc1"
      simple = mode == "slow"
      for w in range(4):
        top = f"recur_{mode}_w{w}"
        last = f"recur_{mode}_last{w}"
        def dump():
            A("s_waitcnt lgkmcnt(0)")
            for k in range(14):
                A(f"v_writelane_b32 {v(vT1)}, {s(sSt+2*k)}, {k}")
            for k in range(4):
                A(f"v_writelane_b32 {v(vT1)}, {s(80+k)}, {16+k}")
            A(f"""v_lshlrev_b32 {v(vT2)}, 2, {v(vL)}
            v_mov_b32 {v(vT3)}, {OOB}
            v_cmp_gt_u32 vcc, 20, {v(vL)}
            v_cndmask_b32 {v(vT2)}, {v(vT3)}, {v(vT2)}, vcc
            buffer_store_dword {v(vT1)}, {v(vT2)}, {s(sWS,4)}, {s(sStO)} offen
            s_add_u32 {s(sStO)}, {s(sStO)}, 128""")
        A(".p2align 6")
        A.label(top)
        stamp(0)
        delay(A, dmem)
        def blk_mem(u, lastc):
            return [smf(0,0,u), smf(1,0,u), smf(0,1,u), smf(1,1,u)]
        rgather(vMemR, sCur, blk_mem, simple, 1, 12, cntreg=80)
        vq = [smf(2,t,u) for u in range(4) for t in range(2)]
        for t in range(2):
            for x in pack(vPk + 4*t, vAc + 8*t): A(x)
            A(f"ds_write_b128 {v(vLdsW)}, {v(vPk+4*t,4)} offset:{1024*t}" if w else vq.pop(0))
        if w == 0:
            A(mf(vX, vPk, vSel, 0)); A(mf(vX+4, vPk+4, vSel, 0))
        for k in range(3 if w else 2): A(vq.pop(0))
        if w: A("s_waitcnt lgkmcnt(0)")
        A("s_barrier")
        stamp(2)
        if w == 0:
            for ww in range(1, 4):
                for t in range(2):
                    A(f"ds_read_b128 {v(vR + (ww*2+t)*4, 4)}, {v(vLds)} offset:{ww*2048 + t*1024}")
        def vpack():
            for x in pack(vPk + 8, acc(2, 0)): A(x)
            A(f"ds_write_b128 {v(vLdsW)}, {v(vPk+8,4)} offset:8192")
        for x in vq: A(x)
        if w: vpack()
        if w == 1:
            for k in range(4):
                for r in range(2): A(f"v_mov_b32 {v(vVA+4*k+r)}, {v(vN+2*k+r)}")
        if w == 0:
            for k in range(6):
                lgkm(5 - k)
                A(mf(vX + 4*(k & 1), vR + 8 + 4*k, vSel, 1))
            vpack()
            for x in pack(vXO, vX): A(x)
            A(mf(vD + 4, vKX, vXO, 0)); A(mf(vD + 8, vKX + 4, vXO, 0)); A(mf(vD, vXO, vXO, 0))
            A(f"buffer_store_dwordx4 {v(vD+4,4)}, {v(vScW)}, {s(sWS,4)}, {s(sCur)} offen{LSC}")
            A(f"buffer_store_dwordx4 {v(vD+8,4)}, {v(vScW)}, {s(sWS,4)}, {s(sCur)} offen offset:128{LSC}")
            A(f"buffer_store_dwordx4 {v(vD,4)}, {v(vScWm)}, {s(sWS,4)}, {s(sCur)} offen{LSC}")
        if w == 3: arm_local(sArm, LSC)
        stamp(3)
        A(f"s_cmp_eq_u32 {s(sStep)}, 63")
        A("s_waitcnt lgkmcnt(0)")
        A("s_barrier")
        stamp(4)
        def vsum(d):
            for ww in range(4):
                if ww != w: A(f"ds_read_b128 {v(vR + 4*ww, 4)}, {v(vLds)} offset:{8192 + ww*2048}")
            A(mf(d, vSel, vPk + 8, 0))
            k = 2
            for ww in range(4):
                if ww != w:
                    lgkm(k); k -= 1
                    A(mf(d, vSel, vR + 4*ww, 1))
        fin_ = ["s_waitcnt vmcnt(0)", f"s_branch {L_end}"]
        if w == 0:
            A(f"s_cbranch_scc1 {last}")
            tails.append([f"{last}:", f"buffer_store_dwordx4 {v(vXO,4)}, {v(vKm)}, {s(sWS,4)}, {s(sKm)} offen sc1"] + fin_)
        elif w == 3:
            A(f"s_cbranch_scc1 {L_end}")
            if stamps: dump()
        elif w == 2:
            vsum(vD)
            for x in pack(vVM, vD, 2): A(x)
            for r in range(2):
                A(f"v_mov_b32 {v(vVM+2+r)}, {v(vVM+r)}")
            for r in range(2):
                A(f"v_permlane16_swap_b32 {v(vVM+r)}, {v(vVM+2+r)}")
            A(f"v_mov_b32 {v(vFv)}, {s(sStep)}")
            A(f"s_cbranch_scc1 {last}")
            tails.append([f"{last}:", f"buffer_store_dwordx4 {v(vVM,4)}, {v(vVm)}, {s(sWS,4)}, {s(sVm)} offen sc1"] + fin_)
        else:
            A(f"s_cbranch_scc1 {L_end}")
            def scl(b):
                return [f"buffer_load_dwordx4 {v(b+4*p,4)}, {v(vScR)}, {s(sWS,4)}, {s(sCur)} offen offset:{p*1024} sc1" for p in range(4)] + \
                       [f"buffer_load_dword {v(b+16+p)}, {v(vScRm)}, {s(sWS,4)}, {s(sCur)} offen offset:{p*256} sc1" for p in range(4)]
            def ssum(b, ex, st=False):
                return [f"s_waitcnt vmcnt({6 + ex})", pka(vS, b, b + 4), pka(vS + 2, b + 2, b + 6), f"s_waitcnt vmcnt({4 + ex})",
                        pka(vO, b + 8, b + 12), pka(vO + 2, b + 10, b + 14), pka(vS, vS, vO), pka(vS + 2, vS + 2, vO + 2),
                        pka(vO, vS, vS + 2), f"v_max3_f32 {v(vS+5)}, {v(vS)}, {v(vS+1)}, {v(vS+2)}",
                        f"s_waitcnt vmcnt({ex})"] + ([f"{MT} {s(sSt + 22, 2)}"] if st and stamps else []) + [pka(vO + 4, b + 16, b + 18),
                        f"v_add_f32 {v(vO)}, {v(vO)}, {v(vO+1)}",
                        f"v_add_f32 {v(vS+4)}, {v(vO+4)}, {v(vO+5)}",
                        f"v_max3_f32 {v(vS+5)}, {v(vS+5)}, {v(vS+3)}, {v(vS+4)}",
                        f"v_cmp_u_f32 vcc, {v(vO)}, {v(vS+4)}",
                        f"v_max_f32_dpp {v(vS+5)}, {v(vS+5)}, {v(vS+5)} row_ror:8 row_mask:0xf bank_mask:0xf",
                        f"v_mov_b32 {v(vS+6)}, {v(vS+5)}",
                        f"v_permlane16_swap_b32 {v(vS+5)}, {v(vS+6)}",
                        f"v_max_f32 {v(vS+5)}, {v(vS+5)}, {v(vS+6)}",
                        f"v_mov_b32 {v(vS+6)}, {v(vS+5)}"]
            vP2 = vR + 12
            delay(A, dsc)
            for x in scl(vP): A(x)
            A(f"s_mov_b32 {s(sCnt)}, {s(sGive)}")
            stamp(9)
            vsum(vD)
            if sc2:
                delay(A, sc2 - 1)
                for x in scl(vM): A(x)
            for k in range(4): A(f"v_cvt_pk_bf16_f32 {v(vVA + 4*k + 2)}, {v(vD+k)}, {v(vPB+3)}")
            Lsum = A.newlabel("ss"); Lbad = A.newlabel("sb"); Lgo = A.newlabel("sg")
            stamp(10)
            for x in ssum(vP, 8 if sc2 else 0, True): A(x)
            A(f"s_cbranch_vccnz {Lsum if sc2 else Lbad}")
            A.label(Lgo)
            vB = vM if sc2 else vP
            tails.append([f"{Lbad}:"] + check(range(vB, vB + 20), vT0) + [f"s_cbranch_vccz {Lgo}"] + scl(vB) + giveup(Lsum, Lgo) +
                         [f"{Lsum}:"] + ([f"s_add_u32 {s(sCnt)}, {s(sCnt)}, 1"] if stamps and sc2 else []) + ssum(vB, 0) + [f"s_cbranch_vccnz {Lbad}", f"s_branch {Lgo}"])
            stamp(5)
            if stamps: A(f"s_mov_b32 {s(82)}, {s(sCnt)}")
            A(f"v_permlane32_swap_b32 {v(vS+5)}, {v(vS+6)}")
            A(f"v_max_f32 {v(vS+5)}, {v(vS+5)}, {v(vS+6)}")
            A(f"v_mul_f32 {v(vS+5)}, {s(sC)}, {v(vS+5)}")
            for r in range(5): A(f"v_fma_f32 {v(vS+r)}, {v(vS+r)}, {s(sC)}, -{v(vS+5)}")
            for r in range(5): A(f"v_exp_f32 {v(vS+r)}, {v(vS+r)}")
            A(f"v_cvt_pk_bf16_f32 {v(vPB)}, {v(vS)}, {v(vS+1)}")
            A(f"v_cvt_pk_bf16_f32 {v(vPB+1)}, {v(vS+2)}, {v(vS+3)}")
            A(f"v_cvt_pk_bf16_f32 {v(vPB+2)}, {v(vS+4)}, {v(vPB+3)}")
            A(mf(vSum, vOneBf, vPB, 0))
            for k in range(4): A(mf(vO + 4*k, vVA + 4*k, vPB, 0))
            A(f"v_add_f32_dpp {v(vS+5)}, {v(vSum)}, {v(vSum)} row_ror:8 row_mask:0xf bank_mask:0xf")
            A(f"v_rcp_f32 {v(vS+5)}, {v(vS+5)}")
            for x in combine(vX, vO + 0, vO + 4, vO + 12, vO + 8): A(x)
            for r in range(4): A(f"v_mul_f32 {v(vX+r)}, {v(vX+r)}, {v(vS+5)}")
            for x in pack(vX, vX, 2): A(x)
            A(f"buffer_store_dwordx2 {v(vX,2)}, {v(vObW)}, {s(sWS,4)}, {s(sCur)} offen{LSC}")
        if w < 2:
            A(f"""v_readfirstlane_b32 {s(sKf)}, {v(vFv)}
            s_add_u32 {s(sNeed)}, {s(sStep)}, 2""")
        stamp(6)
        A("s_barrier")
        delay(A, dob)
        def blk_o(u, lastc):
            o = [smf(3,0,u), smf(3,1,u)]
            if lastc:
                o += pack(vPk + 8, acc(3, 0))
                o.append(f"ds_write_b128 {v(vLdsW)}, {v(vPk+8,4)} offset:9216" if w != 3 else mf(vX, vPk + 8, vSel, 0))
            return o
        rgather(vObR, sCur, blk_o, simple, 7, 13, cntreg=81)
        if w != 3: A("s_waitcnt lgkmcnt(0)")
        A("s_barrier")
        stamp(8)
        if w != 3:
            delay(A, dfar)
            if w == 0: store_km()
            if w == 2: store_vm(); arm_far()
            if w < 2:
                flagwait()
                if w == 0: load_kx()
                else: load_vt()
                if not noside & 1: A(f"buffer_load_dword {v(vFv)}, {v(vFlg)}, {s(sWS,4)}, 0 offen sc1")
            delay(A, max(dz - dfar, 0))
            zero()
        else:
            for ww in range(3):
                A(f"ds_read_b128 {v(vR+4*ww,4)}, {v(vLds)} offset:{9216 + ww*2048}")
            for ww in range(3):
                lgkm(2 - ww)
                A(mf(vX, vR + 4*ww, vSel, 1))
            A(f"buffer_store_dwordx4 {v(vX,4)}, {v(vPmW)}, {s(sWS,4)}, {s(sPm)} offen sc1")
            A(f"s_add_u32 {s(sT1)}, {s(sPm)}, {PM_REP}")
            if nrep == 2: A(f"buffer_store_dwordx4 {v(vX,4)}, {v(vPmW)}, {s(sWS,4)}, {s(sT1)} offen sc1")
            stamp(9)
            def pml(base, so):
                return [f"buffer_load_dwordx4 {v(base+4*i,4)}, {v(va)}, {s(sWS,4)}, {s(so)} offen sc1" for i, va in enumerate((vPmR, vPmA, vPmB))]
            mst = f"buffer_store_dwordx2 {v(vS,2)}, {v(vMemW)}, {s(sWS,4)}, {s(sNext)} offen{LSC}"
            def fin(base, Lbad, ex):
                pk = pack(vS, vR+24, 2)
                return [f"s_waitcnt vmcnt({2+ex})", pka(vR+24, vX, base), pka(vR+26, vX+2, base+2), f"s_waitcnt vmcnt({1+ex})",
                        pka(vR+24, vR+24, base+4), pka(vR+26, vR+26, base+6), f"s_waitcnt vmcnt({ex})",
                        pka(vR+24, vR+24, base+8), pka(vR+26, vR+26, base+10), pk[0], pka(vR+28, vR+24, vR+26), pk[1],
                        f"v_cmpx_o_f32 vcc, {v(vR+28)}, {v(vR+29)}", mst, "s_cmp_eq_u64 vcc, -1", "s_mov_b64 exec, -1", f"s_cbranch_scc0 {Lbad}"]
            delay(A, d0)
            A(f"s_mov_b32 {s(sCnt)}, {s(sGive)}")
            for x in pml(vR, sPm): A(x)
            Lr = A.newlabel("pr"); Lgo = A.newlabel("pg"); Lb = A.newlabel("pb"); Lr2 = A.newlabel("pq"); Lf = A.newlabel("pf")
            if nrep == 2:
                delay(A, dd)
                for x in pml(vR + 12, sT1): A(x)
            zero()
            if nrep == 1: A.label(Lb)
            for x in fin(vR, Lr, 3 if nrep == 2 else 0): A(x)
            A.label(Lgo)
            stamp(10)
            if nrep == 1:
                t = [f"{Lr}:"] + check(range(vR, vR + 12), vT0) + [f"s_cbranch_vccz {Lf}"] + pml(vR, sPm) + giveup(Lb, Lf)[:-1]
            else:
                t = [f"{Lr}:"] + fin(vR + 12, Lr2, 1) + [f"s_branch {Lgo}", f"{Lb}:"] + fin(vR + 12, Lr2, 0) + [f"s_branch {Lgo}", f"{Lr2}:"] + \
                    check(range(vR + 12, vR + 24), vT0) + [f"s_cbranch_vccz {Lf}"] + pml(vR + 12, sT1) + giveup(Lb, Lf)[:-1]
            t += [f"{Lf}:", mst, f"s_branch {Lgo}"]
            tails.append(t)
            if stamps: A(f"s_mov_b32 {s(83)}, {s(sCnt)}")
            stamp(11)
            A("s_barrier")
        adv = f"""s_mov_b32 {s(sT0)}, {s(sCur)}
        s_mov_b32 {s(sCur)}, {s(sNext)}
        s_mov_b32 {s(sNext)}, {s(sArm)}
        s_mov_b32 {s(sArm)}, {s(sPrev)}
        s_mov_b32 {s(sPrev)}, {s(sT0)}
        s_add_u32 {s(sPmL)}, {s(sPmL)}, {PM_STEP}
        s_lshr_b32 {s(sPm)}, {s(sPmL)}, 8
        s_and_b32 {s(sPm)}, {s(sPm)}, 8192
        s_xor_b32 {s(sPm)}, {s(sPm)}, {s(sPar)}
        s_add_u32 {s(sPm)}, {s(sPm)}, {s(sPmL)}
        s_add_u32 {s(sStep)}, {s(sStep)}, 1"""
        A(adv)
        if stamps and w != 3: dump()
        if w != 3: A("s_barrier")
        A(f"s_branch {top}")
        for t in tails:
            for x in t: A(x)
        tails.clear()
    A.label(L_end)
    A(f"""s_barrier
    v_mov_b32 {v(vFv)}, 64
    buffer_store_dword {v(vFv)}, {v(vArm)}, {s(sWS,4)}, 0 offen sc1""")
    if ts: ts(2)
    A("s_endpgm")
```

```python
import sys
from build import *
from stream import *
from attn import *
from fft import *
from recur6 import gen_recur
from proto import *

def gen(ts=False, notu=0, **kw):
    A = Asm(); R = SR
    sG, sI, sGive = 90, 91, 92
    entry(A, "W_end", kw.pop("xmap", 1))
    A("""s_bitcmp1_b32 s3, 2
    s_cbranch_scc0 R_entry""")
    common_entry(A, R, 256, "W_end")
    if ts: tstamp(A, R, 0)
    A(f"""s_lshr_b32 {s(sG)}, s2, 6
    s_bfe_u32 {s(sI)}, s2, 0x30003
    s_lshl_b32 {s(sI)}, {s(sI)}, 2
    s_and_b32 {s(R.sT0)}, s3, 3
    s_add_u32 {s(sI)}, {s(sI)}, {s(R.sT0)}
    s_mov_b32 {s(sGive)}, 0
    s_lshl_b32 {s(R.sT0)}, {s(sI)}, 2
    s_add_u32 {s(R.sT0)}, {s(R.sT0)}, {s(R.sWv)}            ; 4 idx + w
    s_lshl_b32 {s(R.sT1)}, {s(sG)}, 7
    s_add_u32 {s(R.sT1)}, {s(R.sT1)}, {s(R.sT0)}
    s_lshl_b32 {s(R.sT1)}, {s(R.sT1)}, 7
    s_add_u32 {s(R.sT1)}, {s(R.sT1)}, {WS_FLAG + FLAG_P}
    s_lshl_b32 {s(R.sSrc)}, {s(R.sT0)}, 7
    s_add_u32 {s(R.sSrc)}, {s(R.sSrc)}, {WS_FLAG + FLAG_T}
    s_cmp_eq_u32 {s(sG)}, 3
    s_cselect_b32 {s(R.sT1)}, {s(R.sSrc)}, {s(R.sT1)}
    s_cselect_b64 exec, 7, 1
    v_mov_b32 {v(R.vT0)}, {s(R.sT1)}
    s_and_b32 {s(R.sT1)}, {s(R.sT0)}, 31
    s_lshl_b32 {s(R.sT1)}, {s(R.sT1)}, 2
    s_lshr_b32 {s(R.sSrc)}, {s(sI)}, 3
    s_add_u32 {s(R.sT1)}, {s(R.sT1)}, {s(R.sSrc)}
    s_lshl_b32 {s(R.sT1)}, {s(R.sT1)}, 7
    s_add_u32 {s(R.sT1)}, {s(R.sT1)}, {WS_FLAG + FLAG_F}
    v_writelane_b32 {v(R.vT0)}, {s(R.sT1)}, 1
    s_lshl_b32 {s(R.sT1)}, {s(R.sT0)}, 7
    s_add_u32 {s(R.sT1)}, {s(R.sT1)}, {WS_FLAG + FLAG_F2}
    v_writelane_b32 {v(R.vT0)}, {s(R.sT1)}, 2
    v_mov_b32 {v(R.vT1)}, 0
    buffer_store_dword {v(R.vT1)}, {v(R.vT0)}, {s(R.sWS,4)}, 0 offen sc1
    s_mov_b64 exec, -1
    s_waitcnt vmcnt(0) lgkmcnt(0)
    s_barrier
    s_cmp_lg_u32 {s(sG)}, 3
    s_cbranch_scc1 W_novote""")
    vote(A, R, sI)
    A("s_barrier")
    A.label("W_novote")
    register(A, R.sWv, R.sT0, R.sT1, R.vT0, R.vT1)
    def rdv(): rendezvous(A, R.vL, R.sT0, R.sT1, R.vT0, R.vT1, R.vT2, sGive, SPIN)
    A(f"""s_cmp_eq_u32 {s(sG)}, 3
    s_cbranch_scc1 W_F""")
    gen_P(A, sG, sI, "W_U", ts=ts, rdv=rdv)
    A.label("W_U")
    if ts: tstamp(A, R, 2)
    if notu & 1: A("s_branch W_fin")
    gen_U64(A, sG, sI, "W_fin", sGive, ts=ts, usl=kw.pop("usl", 2))
    A.label("W_F")
    gen_F(A, sI, "W_T", sGive, rdv=rdv, ts=ts)
    A.label("W_T")
    if ts: tstamp(A, R, 6)
    if notu & 2: A("s_branch W_fin")
    gen_T(A, sI, "W_fin", sGive)
    A.label("W_fin")
    if ts: tstamp(A, R, 7)
    A.label("W_end")
    A("s_endpgm")
    A.label("R_entry")
    class RR: sWS = 4; sWv = 14
    gen_recur(A, ts=(lambda k: tstamp(A, RR, k, vt=248)) if ts else None, **kw)
    return A

if __name__ == "__main__":
    kw = {}
    for x in sys.argv[2:]:
        k, val = x.split("="); kw[k] = int(val)
    A = gen(**kw)
    name = NAME + "_kernel"
    txt = assemble_file([(name, 256, 256, LDS_BYTES)], [kernel_text(name, A)])
    open(sys.argv[1], "w").write(txt)
```

```python
import sys
from build import *
from stream import *
from attn import *
from fft import *
from recur6 import gen_recur
from proto import *

def gen(ts=False, notu=0, **kw):
    A = Asm(); R = SR
    sG, sI, sGive = 90, 91, 92
    entry(A, "W_end", kw.pop("xmap", 1))
    A("""s_bitcmp1_b32 s3, 2
    s_cbranch_scc0 R_entry""")
    common_entry(A, R, 256, "W_end")
    if ts: tstamp(A, R, 0)
    A(f"""s_lshr_b32 {s(sG)}, s2, 6
    s_bfe_u32 {s(sI)}, s2, 0x30003
    s_lshl_b32 {s(sI)}, {s(sI)}, 2
    s_and_b32 {s(R.sT0)}, s3, 3
    s_add_u32 {s(sI)}, {s(sI)}, {s(R.sT0)}
    s_mov_b32 {s(sGive)}, 0
    s_lshl_b32 {s(R.sT0)}, {s(sI)}, 2
    s_add_u32 {s(R.sT0)}, {s(R.sT0)}, {s(R.sWv)}            ; 4 idx + w
    s_lshl_b32 {s(R.sT1)}, {s(sG)}, 7
    s_add_u32 {s(R.sT1)}, {s(R.sT1)}, {s(R.sT0)}
    s_lshl_b32 {s(R.sT1)}, {s(R.sT1)}, 7
    s_add_u32 {s(R.sT1)}, {s(R.sT1)}, {WS_FLAG + FLAG_P}
    s_lshl_b32 {s(R.sSrc)}, {s(R.sT0)}, 7
    s_add_u32 {s(R.sSrc)}, {s(R.sSrc)}, {WS_FLAG + FLAG_T}
    s_cmp_eq_u32 {s(sG)}, 3
    s_cselect_b32 {s(R.sT1)}, {s(R.sSrc)}, {s(R.sT1)}
    s_cselect_b64 exec, 7, 1
    v_mov_b32 {v(R.vT0)}, {s(R.sT1)}
    s_and_b32 {s(R.sT1)}, {s(R.sT0)}, 31
    s_lshl_b32 {s(R.sT1)}, {s(R.sT1)}, 2
    s_lshr_b32 {s(R.sSrc)}, {s(sI)}, 3
    s_add_u32 {s(R.sT1)}, {s(R.sT1)}, {s(R.sSrc)}
    s_lshl_b32 {s(R.sT1)}, {s(R.sT1)}, 7
    s_add_u32 {s(R.sT1)}, {s(R.sT1)}, {WS_FLAG + FLAG_F}
    v_writelane_b32 {v(R.vT0)}, {s(R.sT1)}, 1
    s_lshl_b32 {s(R.sT1)}, {s(R.sT0)}, 7
    s_add_u32 {s(R.sT1)}, {s(R.sT1)}, {WS_FLAG + FLAG_F2}
    v_writelane_b32 {v(R.vT0)}, {s(R.sT1)}, 2
    v_mov_b32 {v(R.vT1)}, 0
    buffer_store_dword {v(R.vT1)}, {v(R.vT0)}, {s(R.sWS,4)}, 0 offen sc1
    s_mov_b64 exec, -1
    s_waitcnt vmcnt(0) lgkmcnt(0)
    s_barrier
    s_cmp_lg_u32 {s(sG)}, 3
    s_cbranch_scc1 W_novote""")
    vote(A, R, sI)
    A("s_barrier")
    A.label("W_novote")
    register(A, R.sWv, R.sT0, R.sT1, R.vT0, R.vT1)
    if kw.pop("pf", 1):
        A(f"""s_load_dwordx2 {s(R.sX,2)}, s[0:1], {KA_BX}
        s_load_dwordx2 {s(R.sO,2)}, s[0:1], {KA_AX}
        s_mov_b32 {s(R.sX+2)}, {4*MB}
        s_mov_b32 {s(R.sX+3)}, 0x20000
        s_mov_b32 {s(R.sO+2)}, {4*MB}
        s_mov_b32 {s(R.sO+3)}, 0x20000
        s_lshl_b32 {s(R.sT0)}, {s(sG)}, 5
        s_add_u32 {s(R.sT0)}, {s(R.sT0)}, {s(sI)}
        s_lshl_b32 {s(R.sT0)}, {s(R.sT0)}, 15
        v_lshlrev_b32 {v(R.vT0)}, 7, v0
        s_waitcnt lgkmcnt(0)
        buffer_load_dword v254, {v(R.vT0)}, {s(R.sX,4)}, {s(R.sT0)} offen
        buffer_load_dword v255, {v(R.vT0)}, {s(R.sO,4)}, {s(R.sT0)} offen""")
    def rdv(): rendezvous(A, R.vL, R.sT0, R.sT1, R.vT0, R.vT1, R.vT2, sGive, SPIN)
    A(f"""s_cmp_eq_u32 {s(sG)}, 3
    s_cbranch_scc1 W_F""")
    gen_P(A, sG, sI, "W_U", ts=ts, rdv=rdv)
    A.label("W_U")
    if ts: tstamp(A, R, 2)
    if notu & 1: A("s_branch W_fin")
    gen_U64(A, sG, sI, "W_fin", sGive, ts=ts, usl=kw.pop("usl", 2))
    A.label("W_F")
    gen_F(A, sI, "W_T", sGive, rdv=rdv, ts=ts)
    A.label("W_T")
    if ts: tstamp(A, R, 6)
    if notu & 2: A("s_branch W_fin")
    gen_T(A, sI, "W_fin", sGive)
    A.label("W_fin")
    if ts: tstamp(A, R, 7)
    A.label("W_end")
    A("s_endpgm")
    A.label("R_entry")
    class RR: sWS = 4; sWv = 14
    gen_recur(A, ts=(lambda k: tstamp(A, RR, k, vt=248)) if ts else None, **kw)
    return A

if __name__ == "__main__":
    kw = {}
    for x in sys.argv[2:]:
        k, val = x.split("="); kw[k] = int(val)
    A = gen(**kw)
    name = NAME + "_kernel"
    txt = assemble_file([(name, 256, 256, LDS_BYTES)], [kernel_text(name, A)])
    open(sys.argv[1], "w").write(txt)
```

```python
import sys
from build import *
from stream import *
from attn import *
from fft import *
from recur6 import gen_recur
from proto import *

def dbgdump(A, sWS, sWv, sel, base, mask):
    L = A.newlabel("dd")
    A(f"""s_cmp_lg_u32 s2, {sel}
    s_cbranch_scc1 {L}
    s_cmp_lg_u32 {s(sWv)}, 0
    s_cbranch_scc1 {L}
    s_mov_b64 exec, {mask}
    v_lshlrev_b32 v10, 3, v0
    v_add_u32 v10, {WS_STAMP + 12*MB + sel*256}, v10
    buffer_load_dword v11, v10, {s(sWS,4)}, 0 offen sc1
    v_mbcnt_lo_u32_b32 v12, {mask}, 0
    v_add_lshl_u32 v12, v12, {base}, 2
    s_waitcnt vmcnt(0)
    global_store_dword v12, v11, {s(sDbg,2)} sc1
    s_waitcnt vmcnt(0)""".replace(f"v_mbcnt_lo_u32_b32 v12, {mask}, 0", f"v_mbcnt_lo_u32_b32 v12, exec_lo, 0"))
    A.label(L)

def gen(ts=False, notu=0, **kw):
    A = Asm(); R = SR
    sG, sI, sGive = 90, 91, 92
    entry(A, "W_end", kw.pop("xmap", 1))
    A("""s_bitcmp1_b32 s3, 2
    s_cbranch_scc0 R_entry""")
    common_entry(A, R, 256, "W_end")
    if ts: tstamp(A, R, 0)
    A(f"""s_lshr_b32 {s(sG)}, s2, 6
    s_bfe_u32 {s(sI)}, s2, 0x30003
    s_lshl_b32 {s(sI)}, {s(sI)}, 2
    s_and_b32 {s(R.sT0)}, s3, 3
    s_add_u32 {s(sI)}, {s(sI)}, {s(R.sT0)}
    s_mov_b32 {s(sGive)}, 0
    s_lshl_b32 {s(R.sT0)}, {s(sI)}, 2
    s_add_u32 {s(R.sT0)}, {s(R.sT0)}, {s(R.sWv)}            ; 4 idx + w
    s_lshl_b32 {s(R.sT1)}, {s(sG)}, 7
    s_add_u32 {s(R.sT1)}, {s(R.sT1)}, {s(R.sT0)}
    s_lshl_b32 {s(R.sT1)}, {s(R.sT1)}, 7
    s_add_u32 {s(R.sT1)}, {s(R.sT1)}, {WS_FLAG + FLAG_P}
    s_lshl_b32 {s(R.sSrc)}, {s(R.sT0)}, 7
    s_add_u32 {s(R.sSrc)}, {s(R.sSrc)}, {WS_FLAG + FLAG_T}
    s_cmp_eq_u32 {s(sG)}, 3
    s_cselect_b32 {s(R.sT1)}, {s(R.sSrc)}, {s(R.sT1)}
    s_cselect_b64 exec, 7, 1
    v_mov_b32 {v(R.vT0)}, {s(R.sT1)}
    s_and_b32 {s(R.sT1)}, {s(R.sT0)}, 31
    s_lshl_b32 {s(R.sT1)}, {s(R.sT1)}, 2
    s_lshr_b32 {s(R.sSrc)}, {s(sI)}, 3
    s_add_u32 {s(R.sT1)}, {s(R.sT1)}, {s(R.sSrc)}
    s_lshl_b32 {s(R.sT1)}, {s(R.sT1)}, 7
    s_add_u32 {s(R.sT1)}, {s(R.sT1)}, {WS_FLAG + FLAG_F}
    v_writelane_b32 {v(R.vT0)}, {s(R.sT1)}, 1
    s_lshl_b32 {s(R.sT1)}, {s(R.sT0)}, 7
    s_add_u32 {s(R.sT1)}, {s(R.sT1)}, {WS_FLAG + FLAG_F2}
    v_writelane_b32 {v(R.vT0)}, {s(R.sT1)}, 2
    v_mov_b32 {v(R.vT1)}, 0
    buffer_store_dword {v(R.vT1)}, {v(R.vT0)}, {s(R.sWS,4)}, 0 offen sc1
    s_mov_b64 exec, -1
    s_waitcnt vmcnt(0) lgkmcnt(0)
    s_barrier
    s_cmp_lg_u32 {s(sG)}, 3
    s_cbranch_scc1 W_novote""")
    vote(A, R, sI)
    A("s_barrier")
    A.label("W_novote")
    register(A, R.sWv, R.sT0, R.sT1, R.vT0, R.vT1)
    if kw.pop("pf", 1):
        A(f"""s_load_dwordx2 {s(R.sX,2)}, s[0:1], {KA_BX}
        s_load_dwordx2 {s(R.sO,2)}, s[0:1], {KA_AX}
        s_mov_b32 {s(R.sX+2)}, {4*MB}
        s_mov_b32 {s(R.sX+3)}, 0x20000
        s_mov_b32 {s(R.sO+2)}, {4*MB}
        s_mov_b32 {s(R.sO+3)}, 0x20000
        s_lshl_b32 {s(R.sT0)}, {s(sG)}, 5
        s_add_u32 {s(R.sT0)}, {s(R.sT0)}, {s(sI)}
        s_lshl_b32 {s(R.sT0)}, {s(R.sT0)}, 15
        v_lshlrev_b32 {v(R.vT0)}, 7, v0
        s_waitcnt lgkmcnt(0)
        buffer_load_dword v254, {v(R.vT0)}, {s(R.sX,4)}, {s(R.sT0)} offen
        buffer_load_dword v255, {v(R.vT0)}, {s(R.sO,4)}, {s(R.sT0)} offen""")
    def rdv(): rendezvous(A, R.vL, R.sT0, R.sT1, R.vT0, R.vT1, R.vT2, sGive, SPIN)
    A(f"""s_cmp_eq_u32 {s(sG)}, 3
    s_cbranch_scc1 W_F""")
    gen_P(A, sG, sI, "W_U", ts=ts, rdv=rdv)
    A.label("W_U")
    if ts: tstamp(A, R, 2)
    if notu & 1: A("s_branch W_fin")
    gen_U64(A, sG, sI, "W_fin", sGive, ts=ts, usl=kw.pop("usl", 2))
    A.label("W_F")
    gen_F(A, sI, "W_T", sGive, rdv=rdv, ts=ts)
    A.label("W_T")
    if ts: tstamp(A, R, 6)
    if notu & 2: A("s_branch W_fin")
    gen_T(A, sI, "W_fin", sGive)
    A.label("W_fin")
    if ts: tstamp(A, R, 7)
    if ts == 2:
        dbgdump(A, R.sWS, R.sWv, 64 + 12, 3, 0x8f); dbgdump(A, R.sWS, R.sWv, 192 + 12, 8, 0xff)
    A.label("W_end")
    A("s_endpgm")
    A.label("R_entry")
    class RR: sWS = 4; sWv = 14
    def rts(k):
        tstamp(A, RR, k, vt=248)
        if ts == 2 and k == 2: dbgdump(A, RR.sWS, RR.sWv, 8, 0, 7)
    gen_recur(A, ts=rts if ts else None, **kw)
    return A

if __name__ == "__main__":
    kw = {}
    for x in sys.argv[2:]:
        k, val = x.split("="); kw[k] = int(val)
    A = gen(**kw)
    name = NAME + "_kernel"
    txt = assemble_file([(name, 256, 256, LDS_BYTES)], [kernel_text(name, A)])
    open(sys.argv[1], "w").write(txt)
```

```python
from asmlib import *
from layout import *
from stream import *
import struct, math
def f32bits(x): return struct.unpack("<I", struct.pack("<f", x))[0]
SPIN = 1 << 20
LD = ""

def gen_T(A, sHead, done, sGive):
    R = SR
    sSeg, sC, sCnt, sQ, sKm, sOo, sNx, sHave = 28, 29, 30, 31, 32, 33, 34, 35
    sMask = 36
    sQn, sKn = 68, 69
    vQa, vKa, vKma, vVma, vOa, vFa, vFl, vTf, vMx, vSm = range(10, 20)
    aQ = lambda b: 96*b
    aK = lambda b: 96*b + 32
    aV = lambda b: 96*b + 64
    vKM = lambda b: 20 + 48*b
    vVM = lambda b: 52 + 48*b
    vS, vSM, vP = 116, 132, 148
    vO = 160
    vPk = 224
    pi_lane(A, R.vT2, R.vL, R.vT0, R.vT1)
    A(f"""
    v_lshrrev_b32 {v(R.vT0)}, 5, {v(R.vL)}            ; h2
    v_and_b32 {v(R.vT1)}, 31, {v(R.vL)}               ; q / row
    v_lshlrev_b32 {v(R.vT3)}, 4, {v(R.vT0)}
    v_lshl_add_u32 {v(vQa)}, {v(R.vT1)}, 6, {v(R.vT3)}
    v_lshl_add_u32 {v(vKa)}, {v(R.vT2)}, 6, {v(R.vT3)}
    v_mov_b32 {v(vTf)}, {OOB}
    v_cmp_gt_u32 vcc, 8, {v(R.vT1)}
    v_cndmask_b32 {v(vKma)}, {v(vTf)}, {v(vQa)}, vcc
    v_lshlrev_b32 {v(vVma)}, 3, {v(R.vT0)}
    v_lshl_add_u32 {v(vVma)}, {v(R.vT2)}, 4, {v(vVma)}
    ; O address: (q>>4)*128K + h2*256 + (q&15)*16
    v_and_b32 {v(vOa)}, 15, {v(R.vL)}
    v_lshlrev_b32 {v(vOa)}, 4, {v(vOa)}
    v_lshl_add_u32 {v(vOa)}, {v(R.vT0)}, 8, {v(vOa)}
    v_bfe_u32 {v(R.vT3)}, {v(R.vL)}, 4, 1
    v_lshl_add_u32 {v(vOa)}, {v(R.vT3)}, 17, {v(vOa)}
    v_lshrrev_b32 {v(vFa)}, 2, {v(R.vL)}
    v_and_b32 {v(R.vT3)}, 3, {v(R.vL)}
    v_lshl_add_u32 {v(vFa)}, {v(vFa)}, 7, {v(R.vT3)}
    s_lshl_b32 {s(R.sT0)}, {s(sHead)}, 2
    v_add_u32 {v(vFa)}, {s(R.sT0)}, {v(vFa)}
    v_lshlrev_b32 {v(vFa)}, 7, {v(vFa)}
    v_add_u32 {v(vFa)}, {WS_FLAG + FLAG_P}, {v(vFa)}
    v_cmp_gt_u32 vcc, 16, {v(R.vL)}
    v_cndmask_b32 {v(vFa)}, {v(vTf)}, {v(vFa)}, vcc
    v_mov_b32 {v(vFl)}, 0
    s_add_u32 {s(R.sT1)}, {s(R.sWv)}, {s(R.sT0)}
    s_lshl_b32 {s(R.sT1)}, {s(R.sT1)}, 7
    s_add_u32 {s(R.sT1)}, {s(R.sT1)}, {WS_FLAG + FLAG_T}
    v_lshl_add_u32 {v(R.vFlag)}, {v(R.vL)}, 2, {s(R.sT1)}
    v_cmp_gt_u32 vcc, 32, {v(R.vL)}
    v_cndmask_b32 {v(R.vFlag)}, {v(vTf)}, {v(R.vFlag)}, vcc
    v_lshlrev_b32 {v(R.vT0)}, 3, {v(R.vT0)}
    v_sub_u32 {v(R.vT1)}, {v(R.vT1)}, {v(R.vT0)}      ; q - 8*h2 (signed)
    s_mov_b32 {s(sC)}, {f32bits(128 ** -0.5 * math.log2(math.e))}
    s_mov_b32 {s(sSeg)}, {s(R.sWv)}
    s_mul_i32 {s(sQ)}, {s(R.sT0)}, {BLK}
    s_lshl_b32 {s(R.sT1)}, {s(sSeg)}, 11
    s_add_u32 {s(sQ)}, {s(sQ)}, {s(R.sT1)}
    s_mul_i32 {s(sKm)}, {s(R.sT0)}, {MBLK}
    s_lshl_b32 {s(R.sT1)}, {s(sSeg)}, 9
    s_add_u32 {s(sKm)}, {s(sKm)}, {s(R.sT1)}
    s_add_u32 {s(sKm)}, {s(sKm)}, {WS_KM}
    s_lshl_b32 {s(sOo)}, {s(sSeg)}, 18
    s_lshl_b32 {s(R.sT1)}, {s(sHead)}, 12
    s_add_u32 {s(sOo)}, {s(sOo)}, {s(R.sT1)}
    s_add_u32 {s(sOo)}, {s(sOo)}, {WS_O}
    v_mov_b32 {v(vTf)}, 0xff800000
    s_mov_b32 {s(sHave)}, 0
    v_mov_b32 {v(R.vFv)}, 0
    """)
    for r in range(16): A(f"v_cmp_le_i32 {s(sMask+2*r,2)}, {16*(r>>3) + (r&7)}, {v(R.vT1)}")
    for b in range(2):
        for es in range(4):
            A(f"v_mov_b32 {v(vVM(b)+4*es+2)}, 0"); A(f"v_mov_b32 {v(vVM(b)+4*es+3)}, 0")
    A(f"v_mov_b32 {v(vP+10)}, 0"); A(f"v_mov_b32 {v(vP+11)}, 0")
    ldfl = f"buffer_load_dword {v(vFl)}, {v(vFa)}, {s(R.sWS,4)}, 0 offen sc1"
    stfl = f"buffer_store_dword {v(R.vFv)}, {v(R.vFlag)}, {s(R.sWS,4)}, 0 offen sc1"
    def spin(name, sNeed, mask, ok, slp):
        return [f"s_mov_b32 {s(sCnt)}, {s(sGive)}", f"{name}:",
                f"v_cmp_ge_u32 vcc, {s(sNeed)}, {v(vFl)}", f"s_and_b32 {s(R.sT0)}, vcc_lo, {mask}", f"s_cbranch_scc0 {ok}",
                f"s_cmp_ge_u32 {s(sCnt)}, {SPIN}", f"s_cselect_b32 {s(sGive)}, {SPIN}, {s(sGive)}", f"s_cbranch_scc1 {ok}",
                f"s_add_u32 {s(sCnt)}, {s(sCnt)}, 1", ldfl, f"s_sleep {slp}", "s_waitcnt vmcnt(0)", f"s_branch {name}"]
    def ldq(b, so):
        o = []
        for mat, reg, va in ((0, aQ(b), vQa), (1, aK(b), vKa), (2, aV(b), vKa)):
            for es in range(4):
                o.append([f"s_add_u32 {s(R.sT0)}, {s(so)}, {mat*QKV_STRIDE + es*BLK}"] +
                         [f"buffer_load_dwordx4 {a(reg+(es*2+u)*4,4)}, {v(va)}, {s(R.sWS,4)}, {s(R.sT0)} offen offset:{32*u}{LD}" for u in range(2)])
        return o
    def ldm(b, so):
        o = []
        for es in range(4):
            o.append([f"s_add_u32 {s(R.sT0)}, {s(so)}, {es*MBLK}", f"s_add_u32 {s(R.sT1)}, {s(so)}, {es*MBLK + WS_VMT - WS_KM}"] +
                     [f"buffer_load_dwordx4 {v(vKM(b)+(es*2+u)*4,4)}, {v(vKma)}, {s(R.sWS,4)}, {s(R.sT0)} offen offset:{32*u}{LD}" for u in range(2)] +
                     [f"buffer_load_dwordx2 {v(vVM(b)+4*es,2)}, {v(vVma)}, {s(R.sWS,4)}, {s(R.sT1)} offen{LD}"])
        return o
    def x32(op, x):
        A(f"""v_mov_b32 {v(R.vT0)}, {v(x)}
        v_permlane32_swap_b32 {v(x)}, {v(R.vT0)}
        {op} {v(x)}, {v(x)}, {v(R.vT0)}""")
    for x in spin("T_p", sSeg, 0xfff, "T_pk", 8): A(x)
    A.label("T_pk")
    for g in ldq(0, sQ):
        for x in g: A(x)
    tails = []
    for b in range(2):
        A.label(f"T_top{b}")
        A(f"""s_cmp_eq_u32 {s(sHave)}, 0
        s_cbranch_scc1 T_slow{b}""")
        A.label(f"T_go{b}")
        A(f"""s_add_u32 {s(sNx)}, {s(sSeg)}, 4
        s_min_u32 {s(sQn)}, {s(sNx)}, 63
        s_waitcnt vmcnt(8)
        v_cmp_ge_u32 vcc, {s(sQn)}, {v(vFl)}
        s_and_b32 {s(R.sT0)}, vcc_lo, 0xfff
        s_cbranch_scc1 T_pw{b}""")
        A.label(f"T_pok{b}")
        A(f"""s_add_u32 {s(sQ)}, {s(sQ)}, {4*2048}
        s_add_u32 {s(sKm)}, {s(sKm)}, {4*512}
        s_and_b32 {s(R.sT0)}, vcc_lo, 0xf000
        s_cselect_b32 {s(sHave)}, 0, 1
        s_cselect_b32 {s(sKn)}, {OOB}, {s(sKm)}
        s_cmp_lt_u32 {s(sNx)}, 64
        s_cselect_b32 {s(sQn)}, {s(sQ)}, {OOB}
        s_cselect_b32 {s(sKn)}, {s(sKn)}, {OOB}
        {ldfl}""")
        tails.append([f"T_slow{b}:", "s_waitcnt vmcnt(0)", stfl] + spin(f"T_s{b}", sSeg, 0xf000, f"T_sk{b}", 2) + [f"T_sk{b}:"] +
                     [x for g in ldm(b, sKm) for x in g] + ["s_waitcnt vmcnt(0)", f"s_branch T_go{b}"])
        tails.append([f"T_pw{b}:"] + spin(f"T_q{b}", sQn, 0xfff, f"T_pok{b}", 8))
        nx = ldq(1 - b, sQn) + ldm(1 - b, sKn)
        for k in range(8):
            A(f"v_mfma_f32_32x32x16_bf16 {v(vS,16)}, {a(aK(b)+4*k,4)}, {a(aQ(b)+4*k,4)}, {v(vS,16) if k else 0}")
            for x in nx.pop(0): A(x)
        for k in range(8):
            A(f"v_mfma_f32_32x32x16_bf16 {v(vSM,16)}, {v(vKM(b)+4*k,4)}, {a(aQ(b)+4*k,4)}, {v(vSM,16) if k else 0}")
            for x in nx.pop(0): A(x)
        for r in range(16): A(f"v_cndmask_b32 {v(vS+r)}, {v(vTf)}, {v(vS+r)}, {s(sMask+2*r,2)}")
        A(f"v_max3_f32 {v(vMx)}, {v(vS)}, {v(vS+1)}, {v(vS+2)}")
        for r in range(3, 19, 2): A(f"v_max3_f32 {v(vMx)}, {v(vMx)}, {v(vS+r)}, {v(vS+r+1)}")
        A(f"v_max_f32 {v(vMx)}, {v(vMx)}, {v(vS+19)}")
        x32("v_max_f32", vMx)
        A(f"v_mul_f32 {v(vMx)}, {s(sC)}, {v(vMx)}")
        for r in range(20): A(f"v_fma_f32 {v(vS+r)}, {v(vS+r)}, {s(sC)}, -{v(vMx)}")
        for r in range(20): A(f"v_exp_f32 {v(vS+r)}, {v(vS+r)}")
        A("s_waitcnt vmcnt(37)")
        A(stfl)
        A(f"v_add_f32 {v(vSm)}, {v(vS)}, {v(vS+1)}")
        A(f"v_add_f32 {v(R.vT1)}, {v(vS+2)}, {v(vS+3)}")
        for r in range(4, 20, 2):
            A(f"v_add_f32 {v(vSm)}, {v(vSm)}, {v(vS+r)}")
            A(f"v_add_f32 {v(R.vT1)}, {v(R.vT1)}, {v(vS+r+1)}")
        A(f"v_add_f32 {v(vSm)}, {v(vSm)}, {v(R.vT1)}")
        x32("v_add_f32", vSm)
        A(f"v_rcp_f32 {v(vSm)}, {v(vSm)}")
        for r in range(20): A(f"v_mul_f32 {v(vS+r)}, {v(vS+r)}, {v(vSm)}")
        for r in range(10): A(f"v_cvt_pk_bf16_f32 {v(vP+r)}, {v(vS+2*r)}, {v(vS+2*r+1)}")
        def epi(e):
            for r in range(8): A(f"v_cvt_pk_bf16_f32 {v(vPk+8*e+r)}, {v(vO+16*e+2*r)}, {v(vO+16*e+2*r+1)}")
            for u in range(2): A(f"buffer_store_dwordx4 {v(vPk+8*e+4*u,4)}, {v(vOa)}, {s(R.sWS,4)}, {s(sOo)} offen offset:{1024*e + 512*u} sc1")
        for es in range(4):
            d = v(vO + 16*es, 16)
            A(f"v_mfma_f32_32x32x16_bf16 {d}, {a(aV(b)+8*es,4)}, {v(vP,4)}, 0")
            A(f"v_mfma_f32_32x32x16_bf16 {d}, {a(aV(b)+8*es+4,4)}, {v(vP+4,4)}, {d}")
            A(f"v_mfma_f32_32x32x16_bf16 {d}, {v(vVM(b)+4*es,4)}, {v(vP+8,4)}, {d}")
            if es >= 1: epi(es - 1)
        A(f"v_add_u32 {v(R.vFv)}, 1, {v(R.vFv)}")
        epi(3)
        A(f"""s_mov_b32 {s(sSeg)}, {s(sNx)}
        s_add_u32 {s(sOo)}, {s(sOo)}, {4 << 18}""")
    A(f"""s_cmp_lt_u32 {s(sSeg)}, 64
    s_cbranch_scc1 T_top0
    s_waitcnt vmcnt(0)
    {stfl}
    s_branch {done}""")
    for t in tails:
        for x in t: A(x)

def gen_U(A, sGrp, sCol, done, sGive, ngrp=3, ts=False, uw=0, usl=2):
    R = SR
    sN, sCnt, sLd, sOut, sPar, sNx = 28, 29, 30, 31, 32, 33
    vLa, vFa, vFl, vOa, vLw, vLr = range(10, 16)
    vAcc = 16
    vRed = 24
    vF = 64
    A(f"""
    s_load_dwordx2 {s(R.sX,2)}, s[0:1], {KA_WO}
    s_load_dwordx2 {s(R.sO,2)}, s[0:1], {KA_OUT}
    s_mov_b32 {s(R.sX+2)}, {8*MB}
    s_mov_b32 {s(R.sX+3)}, 0x20000
    s_mov_b32 {s(R.sO+2)}, {8*MB}
    s_mov_b32 {s(R.sO+3)}, 0x20000
    s_lshl_b32 {s(R.sSrc)}, {s(R.sWv)}, 21
    s_lshl_b32 {s(R.sT0)}, {s(sCol)}, 6
    s_add_u32 {s(R.sSrc)}, {s(R.sSrc)}, {s(R.sT0)}
    s_waitcnt lgkmcnt(0)
    s_barrier
    """)
    load_weights_tr(A, R, R.sX, R.sSrc, 2048)
    if ts: tstamp(A, R, 3)
    A(f"""
    v_lshlrev_b32 {v(vLr)}, 4, {v(R.vL)}
    s_lshl_b32 {s(R.sT0)}, {s(R.sWv)}, 15
    v_add_u32 {v(vLa)}, {s(R.sT0)}, {v(vLr)}
    s_lshl_b32 {s(R.sT0)}, {s(R.sWv)}, 11
    v_add_u32 {v(vLw)}, {s(R.sT0)}, {v(vLr)}
    v_bfe_u32 {v(vFa)}, {v(R.vL)}, 3, 2
    v_and_b32 {v(R.vT0)}, 7, {v(R.vL)}
    v_lshlrev_b32 {v(R.vT0)}, 9, {v(R.vT0)}
    v_lshl_add_u32 {v(vFa)}, {v(vFa)}, 7, {v(R.vT0)}
    s_lshl_b32 {s(R.sT0)}, {s(R.sWv)}, 12
    s_add_u32 {s(R.sT0)}, {s(R.sT0)}, {WS_FLAG + FLAG_T}
    v_add_u32 {v(vFa)}, {s(R.sT0)}, {v(vFa)}
    v_mov_b32 {v(vFl)}, 0
    v_and_b32 {v(vOa)}, 15, {v(R.vL)}
    v_and_b32 {v(R.vT0)}, 48, {v(R.vL)}
    v_lshl_add_u32 {v(vOa)}, {v(vOa)}, 12, {v(R.vT0)}
    s_lshl_b32 {s(R.sT0)}, {s(sCol)}, 6
    s_add_u32 {s(R.sT0)}, {s(R.sT0)}, 2048
    v_add_u32 {v(vOa)}, {s(R.sT0)}, {v(vOa)}
    s_mov_b32 {s(sN)}, {s(sGrp)}
    s_mov_b32 {s(sPar)}, 0
    s_barrier
    """)
    def ready(sItem):
        return [f"s_lshr_b32 {s(R.sT0)}, {s(sItem)}, 3",
                f"v_cmp_ge_u32 vcc, {s(R.sT0)}, {v(vFl)}",
                f"s_lshl_b32 {s(R.sT1)}, {s(sItem)}, 2",
                f"s_and_b32 {s(R.sT1)}, {s(R.sT1)}, 24",
                f"s_lshr_b32 {s(R.sT0)}, vcc_lo, {s(R.sT1)}",
                f"s_and_b32 {s(R.sT0)}, {s(R.sT0)}, 0xff"]
    def ld(ks):
        o = []
        if ks % 4 == 0 and ks: o.append(f"s_add_u32 {s(sLd)}, {s(sLd)}, 4096")
        o.append(f"buffer_load_dwordx4 {v(vF+4*ks,4)}, {v(vLa)}, {s(R.sWS,4)}, {s(sLd)} offen offset:{(ks%4)*1024}{LD}")
        return o
    def setld(sItem):
        return [f"s_lshl_b32 {s(sLd)}, {s(sItem)}, 17", f"s_add_u32 {s(sLd)}, {s(sLd)}, {WS_O}"]
    if uw:
        A(f"""U_uw:
        s_sleep 100
        s_mov_b64 exec, 0xffffffff
        buffer_load_dword {v(vFl)}, {v(vFa)}, {s(R.sWS,4)}, 0 offen sc1
        s_waitcnt vmcnt(0)
        v_cmp_gt_u32 vcc, 16, {v(vFl)}
        s_mov_b64 exec, -1
        s_add_u32 {s(sPar)}, {s(sPar)}, 1
        s_cmp_gt_u32 {s(sPar)}, 1000
        s_cbranch_scc1 U_uw2
        s_cbranch_vccnz U_uw
        U_uw2:
        s_mov_b32 {s(sPar)}, 0""")
    A.label("U_wait")
    A(f"s_mov_b32 {s(sCnt)}, {s(sGive)}")
    A.label("U_fl")
    for x in ready(sN): A(x)
    A(f"""s_cbranch_scc0 U_go
    s_cmp_ge_u32 {s(sCnt)}, {SPIN}
    s_cselect_b32 {s(sGive)}, {SPIN}, {s(sGive)}
    s_cbranch_scc1 U_go
    s_lshl_b32 {s(R.sT0)}, {s(R.sT0)}, {s(R.sT1)}
    s_cmp_eq_u32 {s(sCnt)}, 0
    s_cselect_b32 exec_lo, -1, {s(R.sT0)}
    s_mov_b32 exec_hi, 0
    s_add_u32 {s(sCnt)}, {s(sCnt)}, 1
    buffer_load_dword {v(vFl)}, {v(vFa)}, {s(R.sWS,4)}, 0 offen sc1
    s_mov_b64 exec, -1
    s_sleep {usl}
    s_waitcnt vmcnt(0)
    s_branch U_fl""")
    A.label("U_go")
    for x in setld(sN): A(x)
    for ks in range(32):
        for x in ld(ks): A(x)
    A.label("U_item")
    A(f"s_add_u32 {s(sNx)}, {s(sN)}, {ngrp}")
    for x in ready(sNx): A(x)
    A("s_cbranch_scc1 U_b")
    def mm(ks):
        for t in range(2):
            d = v(vAcc + 4*t, 4)
            A(f"v_mfma_f32_16x16x32_bf16 {d}, {a(aw(t, ks),4)}, {v(vF+4*ks,4)}, {d if ks else 0}")
    def fin(nxt):
        L = A.newlabel("Uf")
        A(f"""s_lshl_b32 {s(sOut)}, {s(sN)}, 16
        v_add_u32 {v(R.vT0)}, {s(sPar)}, {v(vLw)}
        v_add_u32 {v(R.vT1)}, {s(sPar)}, {v(vLr)}
        s_xor_b32 {s(sPar)}, {s(sPar)}, 8192
        s_mov_b32 {s(sN)}, {s(sNx)}
        ds_write_b128 {v(R.vT0)}, {v(vAcc,4)}
        ds_write_b128 {v(R.vT0)}, {v(vAcc+4,4)} offset:1024
        s_waitcnt lgkmcnt(0)
        s_barrier
        s_cmp_lg_u32 {s(R.sWv)}, 0
        s_cbranch_scc1 {L}""")
        for k in range(6): A(f"ds_read_b128 {v(vRed+4*k,4)}, {v(R.vT1)} offset:{2048 + 1024*k}")
        A("s_waitcnt lgkmcnt(4)")
        for r in range(8): A(f"v_add_f32 {v(vRed+r)}, {v(vAcc+r)}, {v(vRed+r)}")
        A("s_waitcnt lgkmcnt(0)")
        for r in range(8): A(f"v_add_f32 {v(vRed+8+r)}, {v(vRed+8+r)}, {v(vRed+16+r)}")
        for r in range(8): A(f"v_add_f32 {v(vRed+r)}, {v(vRed+r)}, {v(vRed+8+r)}")
        for r in range(4): A(f"v_cvt_pk_bf16_f32 {v(vRed+24+r)}, {v(vRed+2*r)}, {v(vRed+2*r+1)}")
        A(f"buffer_store_dwordx4 {v(vRed+24,4)}, {v(vOa)}, {s(R.sO,4)}, {s(sOut)} offen")
        A.label(L)
        A(f"""s_cmp_lt_u32 {s(sN)}, 128
        s_cbranch_scc1 {nxt}
        s_branch {done}""")
    for x in setld(sNx): A(x)
    for ks in range(32):
        A(f"s_waitcnt vmcnt({31 if ks == 0 else 30})")
        mm(ks)
        if ks:
            for x in ld(ks - 1): A(x)
    A("s_nop 7")
    for x in ld(31): A(x)
    fin("U_item")
    A.label("U_b")
    for ks in range(32):
        A(f"s_waitcnt vmcnt({31 - ks})")
        mm(ks)
    fin("U_wait")

def gen_U64(A, sG, sI, done, sGive, ts=False, usl=2, touch=1):
    R = SR
    NG = 6
    sN, sCnt, sLd, sOut, sPar, sNx, sPend, sCol, sOutN = range(28, 37)
    vLa, vFa, vFl, vOa, vLw, vLr = range(10, 16)
    vTr = R.vT3
    vAcc, vSt, vRed, vF, vW = 16, 32, 48, 64, 128
    RED = 131072
    A(f"""
    s_load_dwordx2 {s(R.sX,2)}, s[0:1], {KA_WO}
    s_load_dwordx2 {s(R.sO,2)}, s[0:1], {KA_OUT}
    s_mov_b32 {s(R.sX+2)}, {8*MB}
    s_mov_b32 {s(R.sX+3)}, 0x20000
    s_mov_b32 {s(R.sO+2)}, {8*MB}
    s_mov_b32 {s(R.sO+3)}, 0x20000
    s_and_b32 {s(sCol)}, {s(sI)}, 15
    s_lshr_b32 {s(sN)}, {s(sI)}, 4
    s_lshl_b32 {s(R.sT0)}, {s(sG)}, 1
    s_add_u32 {s(sN)}, {s(sN)}, {s(R.sT0)}
    s_lshl_b32 {s(R.sSrc)}, {s(R.sWv)}, 21
    s_lshl_b32 {s(R.sT0)}, {s(sCol)}, 7
    s_add_u32 {s(R.sSrc)}, {s(R.sSrc)}, {s(R.sT0)}
    v_lshrrev_b32 {v(R.vT0)}, 2, {v(R.vL)}
    v_and_b32 {v(R.vT1)}, 3, {v(R.vL)}
    v_lshlrev_b32 {v(R.vT2)}, 4, {v(R.vT1)}
    v_lshl_add_u32 {v(R.vT2)}, {v(R.vT0)}, 11, {v(R.vT2)}
    v_lshlrev_b32 {v(vTr)}, 3, {v(R.vT1)}
    v_bfe_u32 {v(R.vT0)}, {v(R.vL)}, 2, 2
    v_lshrrev_b32 {v(R.vT1)}, 4, {v(R.vL)}
    v_lshl_add_u32 {v(R.vT0)}, {v(R.vT1)}, 3, {v(R.vT0)}
    v_lshl_add_u32 {v(vTr)}, {v(R.vT0)}, 6, {v(vTr)}
    s_lshl_b32 {s(R.sM0)}, {s(R.sWv)}, 15
    v_add_u32 {v(vTr)}, {s(R.sM0)}, {v(vTr)}
    s_waitcnt lgkmcnt(0)
    s_barrier
    """)
    units = [(0, ks) for ks in range(32)] + [(1, ks) for ks in range(0, 32, 2)] + [(1, ks) for ks in range(1, 32, 2)]
    def dma(j):
        h, ks = units[j]
        for q in range(2):
            A(f"s_add_u32 m0, {s(R.sM0)}, {(j & 15)*2048 + q*1024}")
            A(f"s_add_u32 {s(R.sT0)}, {s(R.sSrc)}, {(ks*32 + q*16)*2048 + h*64}")
            A(f"buffer_load_dwordx4 {v(R.vT2)}, {s(R.sX,4)}, {s(R.sT0)} offen lds")
    def trd(dst, slot):
        return [f"ds_read_b64_tr_b16 {dst(4*tt + 2*hh)}, {v(vTr)} offset:{slot*2048 + hh*256 + tt*32}" for tt in range(2) for hh in range(2)]
    if touch:
        A(f"""s_sub_u32 {s(R.sT0)}, {s(sG)}, 1
        s_and_b32 {s(R.sT0)}, {s(R.sT0)}, 3
        s_lshl_b32 {s(R.sT0)}, {s(R.sT0)}, 3
        s_and_b32 {s(R.sT1)}, {s(sI)}, 7
        s_add_u32 {s(R.sT0)}, {s(R.sT0)}, {s(R.sT1)}
        s_lshl_b32 {s(R.sT0)}, {s(R.sT0)}, 8
        v_add_lshl_u32 {v(R.vT0)}, v0, {s(R.sT0)}, 11
        s_and_b32 {s(R.sT0)}, {s(sI)}, 8
        s_lshl_b32 {s(R.sT0)}, {s(R.sT0)}, 7
        buffer_load_dword {v(vRed)}, {v(R.vT0)}, {s(R.sX,4)}, {s(R.sT0)} offen offset:384""")
    for j in range(16): dma(j)
    for j in range(48):
        h, ks = units[j]
        A(f"s_waitcnt vmcnt({30 if j == 0 else 28})")
        for x in trd((lambda o: a(ks*8 + o, 2)) if h == 0 else (lambda o: v(vW + ks*4 + o, 2)), j & 15): A(x)
        if j:
            A("s_waitcnt lgkmcnt(4)")
            dma(j + 15)
    A("s_waitcnt lgkmcnt(0)")
    dma(63)
    A(f"""
    v_lshlrev_b32 {v(vLr)}, 4, {v(R.vL)}
    v_add_u32 {v(vLa)}, {s(R.sM0)}, {v(vLr)}
    s_lshl_b32 {s(R.sT0)}, {s(R.sWv)}, 10
    s_add_u32 {s(R.sT0)}, {s(R.sT0)}, {RED}
    v_add_u32 {v(vLw)}, {s(R.sT0)}, {v(vLr)}
    s_lshl_b32 {s(R.sT0)}, {s(R.sWv)}, 12
    s_add_u32 {s(R.sT1)}, {s(R.sT0)}, {RED + 0x4000}
    v_add_u32 {v(vLr)}, {s(R.sT1)}, {v(vLr)}
    v_bfe_u32 {v(vFa)}, {v(R.vL)}, 3, 2
    v_and_b32 {v(R.vT0)}, 7, {v(R.vL)}
    v_lshlrev_b32 {v(R.vT0)}, 9, {v(R.vT0)}
    v_lshl_add_u32 {v(vFa)}, {v(vFa)}, 7, {v(R.vT0)}
    s_add_u32 {s(R.sT0)}, {s(R.sT0)}, {WS_FLAG + FLAG_T}
    v_add_u32 {v(vFa)}, {s(R.sT0)}, {v(vFa)}
    v_mov_b32 {v(vFl)}, 0
    v_and_b32 {v(vOa)}, 15, {v(R.vL)}
    v_lshrrev_b32 {v(R.vT0)}, 4, {v(R.vL)}
    v_lshlrev_b32 {v(R.vT0)}, 3, {v(R.vT0)}
    v_lshl_add_u32 {v(vOa)}, {v(vOa)}, 12, {v(R.vT0)}
    s_lshl_b32 {s(R.sT0)}, {s(sCol)}, 7
    s_lshl_b32 {s(R.sT1)}, {s(R.sWv)}, 5
    s_add_u32 {s(R.sT0)}, {s(R.sT0)}, {s(R.sT1)}
    s_add_u32 {s(R.sT0)}, {s(R.sT0)}, 2048
    v_add_u32 {v(vOa)}, {s(R.sT0)}, {v(vOa)}
    s_waitcnt vmcnt(0)
    """)
    if ts: tstamp(A, R, 3, vt=48)
    def ready(sItem):
        return [f"s_lshr_b32 {s(R.sT0)}, {s(sItem)}, 3",
                f"v_cmp_ge_u32 vcc, {s(R.sT0)}, {v(vFl)}",
                f"s_lshl_b32 {s(R.sT1)}, {s(sItem)}, 2",
                f"s_and_b32 {s(R.sT1)}, {s(R.sT1)}, 24",
                f"s_lshr_b32 {s(R.sT0)}, vcc_lo, {s(R.sT1)}",
                f"s_and_b32 {s(R.sT0)}, {s(R.sT0)}, 0xff"]
    ldfl = f"buffer_load_dword {v(vFl)}, {v(vFa)}, {s(R.sWS,4)}, 0 offen sc1"
    def ld(ks):
        o = []
        if ks % 4 == 0 and ks: o.append(f"s_add_u32 {s(sLd)}, {s(sLd)}, 4096")
        o.append(f"buffer_load_dwordx4 {v(vF+4*(ks&15),4)}, {v(vLa)}, {s(R.sWS,4)}, {s(sLd)} offen offset:{(ks%4)*1024}{LD}")
        return o
    def setld(sItem):
        return [f"s_lshl_b32 {s(sLd)}, {s(sItem)}, 17", f"s_add_u32 {s(sLd)}, {s(sLd)}, {WS_O}"]
    rrd = [f"ds_read_b128 {v(vRed+4*k,4)}, {v(vLr)} offset:{1024*k}" for k in range(4)]
    radd = [f"v_add_f32 {v(vRed+r)}, {v(vRed+r)}, {v(vRed+4+r)}" for r in range(4)] + [f"v_add_f32 {v(vRed+8+r)}, {v(vRed+8+r)}, {v(vRed+12+r)}" for r in range(4)] + \
           [f"v_add_f32 {v(vRed+r)}, {v(vRed+r)}, {v(vRed+8+r)}" for r in range(4)] + [f"v_cvt_pk_bf16_f32 {v(vRed+4+r)}, {v(vRed+2*r)}, {v(vRed+2*r+1)}" for r in range(2)]
    ost = f"buffer_store_dwordx2 {v(vRed+4,2)}, {v(vOa)}, {s(R.sO,4)}, {s(sOut)} offen"
    flip = [f"v_xor_b32 {v(vLr)}, 0x4000, {v(vLr)}"]
    A.label("U_wait")
    A(f"s_mov_b32 {s(sCnt)}, {s(sGive)}")
    A.label("U_fl")
    for x in ready(sN): A(x)
    A(f"""s_cbranch_scc0 U_go
    s_cmp_ge_u32 {s(sCnt)}, {SPIN}
    s_cselect_b32 {s(sGive)}, {SPIN}, {s(sGive)}
    s_cbranch_scc1 U_go
    s_lshl_b32 {s(R.sT0)}, {s(R.sT0)}, {s(R.sT1)}
    s_cmp_eq_u32 {s(sCnt)}, 0
    s_cselect_b32 exec_lo, -1, {s(R.sT0)}
    s_mov_b32 exec_hi, 0
    s_add_u32 {s(sCnt)}, {s(sCnt)}, 1
    {ldfl}
    s_mov_b64 exec, -1
    s_sleep {usl}
    s_waitcnt vmcnt(0)
    s_branch U_fl""")
    A.label("U_go")
    for x in setld(sN): A(x)
    for ks in range(15):
        for x in ld(ks): A(x)
    A(f"""s_mov_b32 {s(sPend)}, 0
    s_mov_b32 {s(sOut)}, {OOB}""")
    for x in trd(lambda o: v(vSt + o, 2), 0): A(x)
    for k in range(4): A(rrd[k])
    A(".p2align 6")
    A.label("U_item")
    vq = [("L", k) for k in range(15)]; lq = [("W", 1)] * 4 + [("P", 0)] * 4
    def vwait(tag):
        n = len(vq) - 1 - vq.index(tag); del vq[:len(vq) - n]
        return f"s_waitcnt vmcnt({n})"
    def lwait(tag):
        n = lq[::-1].index(tag); del lq[:len(lq) - n]
        return f"s_waitcnt lgkmcnt({n})"
    for ks in range(32):
        fill = [[], [], [], []]
        A(vwait(("L", ks)))
        fill[0] += ld((ks + 15) & 31); tagv = [("L", ks + 15)]
        if ks & 1:
            pre2 = lwait(("W", ks))
        else:
            pre2 = None
        tagl = []
        if ks == 0:
            fill[1] += [f"s_add_u32 {s(sNx)}, {s(sN)}, {NG}"] + ready(sNx)[:4]
            fill[2] += ready(sNx)[4:] + [f"s_lshl_b32 exec_lo, {s(R.sT0)}, {s(R.sT1)}", "s_mov_b32 exec_hi, 0", ldfl, "s_mov_b64 exec, -1"]; tagv.append(("F", 0))
        if ks == 2:
            fill[1] += [lwait(("P", 0)), f"s_cmp_eq_u32 {s(sPend)}, 0", "s_cbranch_scc1 U_nb", "s_barrier", "U_nb:"]
            fill[2] += rrd[:2]; fill[3] += rrd[2:]; tagl += [("R", 0)] * 4
        if ks == 4:
            fill[0] += [lwait(("R", 0))]
        if 4 <= ks < 8:
            q = radd[4*(ks-4):4*(ks-4)+4]
            for i, x in enumerate(q): fill[1 + i//2].append(x)
        if ks == 8:
            fill[1] += [ost] + flip; tagv.append(("S", 0))
        if ks == 16:
            fill[1] += ready(sNx)[:4]
            fill[2] += setld(sNx) + ready(sNx)[4:] + [f"s_cselect_b32 {s(sPend)}, 0, 1", f"s_cselect_b32 {s(sLd)}, {OOB}, {s(sLd)}"]
        if ks & 1 == 0:
            pass
        else:
            k2 = (ks + 2) & 31
            t_ = trd(lambda o: v(vSt + 8*((k2 >> 1) & 1) + o, 2), k2 >> 1)
            fill[0] += t_[:2]; fill[1] += t_[2:]; tagl += [("W", ks + 2)] * 4
        b = v(vF + 4*(ks & 15), 4)
        for t in range(4):
            d = v(vAcc + 4*t, 4)
            w = a(ks*8 + 4*t, 4) if t < 2 else (v(vSt + 8*((ks >> 1) & 1) + 4*(t-2), 4) if ks & 1 else v(vW + ks*4 + 4*(t-2), 4))
            if t == 0 and pre2: A(pre2)
            A(f"v_mfma_f32_16x16x32_bf16 {d}, {w}, {b}, {d if ks else 0}")
            for x in fill[t]: A(x)
        vq += tagv; lq += tagl
    assert [k for _, k in vq] == list(range(32, 47)), vq
    A(f"""s_lshl_b32 {s(sOut)}, {s(sN)}, 16
    s_mov_b32 {s(sN)}, {s(sNx)}
    s_cmp_eq_u32 {s(sPend)}, 1""")
    for t in range(4): A(f"ds_write_b128 {v(vLw)}, {v(vAcc+4*t,4)} offset:{4096*t}")
    A(f"""v_xor_b32 {v(vLw)}, 0x4000, {v(vLw)}
    s_cbranch_scc1 U_item
    s_waitcnt lgkmcnt(0)
    s_barrier""")
    for x in rrd: A(x)
    A("s_waitcnt lgkmcnt(0)")
    for x in radd: A(x)
    A(f"""{ost}
    s_cmp_lt_u32 {s(sN)}, 128
    s_cbranch_scc1 U_wait
    s_branch {done}""")
```

```python
from asmlib import *
from layout import *
from stream import *
import struct, math
def f32bits(x): return struct.unpack("<I", struct.pack("<f", x))[0]
SPIN = 1 << 20
ZCH = 32768 + 256

def gen_dft_weights(A, R, vB, vD1, vD2, vInc, nks, derive):
    vP = 48; vC = 56; vK = 64; vX = 68
    for ks in range(nks):
        for t in range(2):
            A(f"v_fract_f32 {v(vP)}, {v(vB+t)}")
            for j in range(1, 8):
                A(f"v_add_f32 {v(vP+j)}, {v(vP+j-1)}, {v((vD1 if j & 1 else vD2)+t)}")
                A(f"v_cos_f32 {v(vC+j-1)}, {v(vP+j-1)}")
            A(f"v_cos_f32 {v(vC+7)}, {v(vP+7)}")
            A(f"v_add_f32 {v(vB+t)}, {v(vP)}, {v(vInc+t)}")
            for j in range(4): A(f"v_cvt_pk_bf16_f32 {v(vK+j)}, {v(vC+2*j)}, {v(vC+2*j+1)}")
            for j in range(4): A(f"v_accvgpr_write_b32 {a(aw(t, ks)+j)}, {v(vK+j)}")
            for q in range(1, 32 // nks):
                for j in range(4):
                    for x in derive(t, q, vX + j, vK + j): A(x)
                for j in range(4): A(f"v_accvgpr_write_b32 {a(aw(t, ks + q*nks)+j)}, {v(vX+j)}")

def wait_flags(A, R, name, vFa, nl, thr, sGive, sCnt):
    m = (1 << nl) - 1
    A(f"s_mov_b32 {s(sCnt)}, {s(sGive)}")
    A.label(name)
    A(f"""buffer_load_dword {v(R.vT0)}, {v(vFa)}, {s(R.sWS,4)}, 0 offen sc1
    s_waitcnt vmcnt(0)
    v_cmp_gt_u32 vcc, {thr}, {v(R.vT0)}""")
    if nl == 64: A("s_cmp_lg_u64 vcc, 0")
    else: A(f"s_and_b32 {s(R.sT0)}, vcc_lo, {m}")
    A(f"""s_cbranch_scc0 {name}_ok
    s_cmp_ge_u32 {s(sCnt)}, {SPIN}
    s_cselect_b32 {s(sGive)}, {SPIN}, {s(sGive)}
    s_cbranch_scc1 {name}_ok
    s_add_u32 {s(sCnt)}, {s(sCnt)}, 1
    s_sleep 8
    s_branch {name}""")
    A.label(name + "_ok")

def gen_F(A, sCu, done, sGive, rdv=None, ts=False):
    R = SR
    sTg, sBlk, sCnt, sT2 = 28, 29, 30, 31
    vB, vD1, vD2, vInc = 30, 32, 34, 36
    vM = 40
    sPa, sPb, sAx, sBx = 32, 33, 40, 44
    A(f"""
    s_load_dwordx2 {s(sAx,2)}, s[0:1], {KA_AX}
    s_load_dwordx2 {s(sBx,2)}, s[0:1], {KA_BX}
    s_mov_b32 {s(sAx+2)}, {4*MB}
    s_mov_b32 {s(sAx+3)}, 0x20000
    s_mov_b32 {s(sBx+2)}, {4*MB}
    s_mov_b32 {s(sBx+3)}, 0x20000
    s_lshr_b32 {s(sTg)}, {s(sCu)}, 3
    s_and_b32 {s(sBlk)}, {s(sCu)}, 7
    s_lshl_b32 {s(sBlk)}, {s(sBlk)}, 2
    s_add_u32 {s(sBlk)}, {s(sBlk)}, {s(R.sWv)}
    """)
    def colidx(dst):
        perm16(A, dst, R.vL, R.vT0, False)
        A(f"""s_lshl_b32 {s(R.sT0)}, {s(sBlk)}, 5
        v_add_u32 {v(dst)}, {s(R.sT0)}, {v(dst)}""")
    colidx(R.vT2)
    A(f"""v_lshrrev_b32 {v(R.vT3)}, 4, {v(R.vL)}
    v_cvt_f32_u32 {v(R.vT3)}, {v(R.vT3)}
    s_mov_b32 {s(sT2)}, {f32bits(1/1024)}""")
    for t in range(2):
        A(f"""v_add_u32 {v(R.vT0)}, {4*t}, {v(R.vT2)}
        v_lshrrev_b32 {v(R.vT1)}, 1, {v(R.vT0)}
        v_and_b32 {v(vB+t)}, 1, {v(R.vT0)}
        v_cmp_eq_u32 vcc, 1, {v(R.vT0)}
        v_mov_b32 {v(R.vT0)}, 512
        v_cndmask_b32 {v(R.vT1)}, {v(R.vT1)}, {v(R.vT0)}, vcc
        v_cndmask_b32 {v(vB+t)}, {v(vB+t)}, 0, vcc
        v_add_u32 {v(R.vT0)}, {v(R.vT1)}, {v(vB+t)}
        v_bfe_i32 {v(vM+t)}, {v(R.vT0)}, 1, 1
        v_add_u32 {v(R.vT0)}, {v(R.vT1)}, {v(R.vT0)}
        v_bfe_i32 {v(vM+2+t)}, {v(R.vT0)}, 1, 1
        v_add_u32 {v(R.vT0)}, {v(R.vT1)}, {v(R.vT0)}
        v_bfe_i32 {v(vM+4+t)}, {v(R.vT0)}, 1, 1
        v_and_b32 {v(vM+t)}, 0x80008000, {v(vM+t)}
        v_and_b32 {v(vM+2+t)}, 0x80008000, {v(vM+2+t)}
        v_and_b32 {v(vM+4+t)}, 0x80008000, {v(vM+4+t)}
        v_cvt_f32_u32 {v(R.vT1)}, {v(R.vT1)}
        v_cvt_f32_u32 {v(vB+t)}, {v(vB+t)}
        v_mul_f32 {v(vD1+t)}, {s(sT2)}, {v(R.vT1)}
        v_mul_f32 {v(vB+t)}, 0x3e800000, {v(vB+t)}
        v_mov_b32 {v(vD2+t)}, {v(vD1+t)}
        v_mul_f32 {v(vInc+t)}, 0x42000000, {v(vD1+t)}
        v_mul_f32 {v(R.vT0)}, 0x41000000, {v(vD1+t)}
        v_fma_f32 {v(vB+t)}, {v(R.vT0)}, {v(R.vT3)}, {v(vB+t)}""")
    def der1(t, q, dst, src):
        return [f"v_xor_b32_dpp {v(dst)}, {v(src)}, {v(vM+2*q-2+t)} quad_perm:[0,1,3,2] row_mask:0xf bank_mask:0xf" if q & 1 else f"v_xor_b32 {v(dst)}, {v(src)}, {v(vM+2*q-2+t)}"]
    gen_dft_weights(A, R, vB, vD1, vD2, vInc, 8, der1)
    A(f"""s_and_b32 {s(R.sT0)}, {s(sTg)}, 1
    s_lshl_b32 {s(R.sT0)}, {s(R.sT0)}, 15
    s_lshr_b32 {s(R.sT1)}, {s(sTg)}, 1
    s_lshl_b32 {s(R.sT1)}, {s(R.sT1)}, 21
    s_add_u32 {s(R.sT0)}, {s(R.sT0)}, {s(R.sT1)}
    s_lshl_b32 {s(R.sT1)}, {s(sBlk)}, 16
    s_add_u32 {s(R.sT0)}, {s(R.sT0)}, {s(R.sT1)}
    v_lshlrev_b32 {v(15)}, 7, {v(R.vL)}
    s_waitcnt lgkmcnt(0)""")
    for k in range(4):
        A(f"buffer_load_dword {v(248+k)}, {v(15)}, {s(sAx,4)}, {s(R.sT0)} offen")
        A(f"s_add_u32 {s(R.sT0)}, {s(R.sT0)}, 8192")
    sTx = 34
    A(f"""s_lshl_b32 {s(sTx)}, {s(sCu)}, 2
    s_add_u32 {s(sTx)}, {s(sTx)}, {s(R.sWv)}
    s_lshl_b32 {s(sTx)}, {s(sTx)}, 13
    s_sub_u32 {s(sTx)}, {s(sTx)}, {256*1024}
    v_mov_b32 {v(247)}, {v(15)}""")
    xt = [f"buffer_load_dword {v(248)}, {v(247)}, {s(sBx,4)}, {s(sTx)} offen", f"s_add_u32 {s(sTx)}, {s(sTx)}, {MB}"]
    A(f"""
    s_load_dwordx2 {s(R.sX,2)}, s[0:1], {KA_AX}
    s_mov_b32 {s(R.sX+2)}, {4*MB}
    s_mov_b32 {s(R.sX+3)}, 0x20000
    s_waitcnt lgkmcnt(0)
    """)
    if ts: tstamp(A, R, 1)
    setup_reads(A, R)
    dma_rows(A, R, R.vT2, R.vT3)
    perm16(A, R.vSrc, R.vT2, R.vT0, True)
    perm16(A, R.vDst, R.vL, R.vT0, False)
    A(f"""
    v_lshlrev_b32 {v(R.vSrc)}, 16, {v(R.vSrc)}
    v_lshl_add_u32 {v(R.vSrc)}, {v(R.vT3)}, 4, {v(R.vSrc)}
    v_and_b32 {v(R.vT0)}, 48, {v(R.vL)}
    v_lshl_add_u32 {v(R.vDst)}, {v(R.vDst)}, 6, {v(R.vT0)}
    s_mul_i32 {s(R.sDst)}, {s(sBlk)}, {BLK}
    s_lshl_b32 {s(R.sT0)}, {s(sTg)}, 15
    s_add_u32 {s(R.sDst)}, {s(R.sDst)}, {s(R.sT0)}
    s_add_u32 {s(R.sDst)}, {s(R.sDst)}, {WS_Y}
    s_and_b32 {s(R.sSrc)}, {s(sTg)}, 1
    s_lshl_b32 {s(R.sSrc)}, {s(R.sSrc)}, 15
    s_lshr_b32 {s(R.sT0)}, {s(sTg)}, 1
    s_lshl_b32 {s(R.sT0)}, {s(R.sT0)}, 21
    s_add_u32 {s(R.sSrc)}, {s(R.sSrc)}, {s(R.sT0)}
    s_mov_b32 {s(R.sSrcStep)}, 2048
    s_mov_b32 {s(R.sDstStep)}, 2048
    s_barrier
    """)
    def dma1(half, b, lds):
        off = half * 1024 + b * 128
        return [f"s_add_u32 m0, {s(R.sM0)}, {lds - off}", f"buffer_load_dwordx4 {v(R.vSrc)}, {s(R.sX,4)}, {s(R.sSrc)} offen offset:{off} lds"]
    def store1(u):
        return [f"buffer_store_dwordx4 {v(R.vPk+4*u,4)}, {v(R.vDst)}, {s(R.sWS,4)}, {s(R.sDst)} offen offset:{256*u} sc1"]
    stream_loop(A, R, "F1", 16, True, dma1, store1, flag=False, extra=xt)
    if rdv: rdv()
    A("s_barrier")
    def setflag(sIdx, base):
        A(f"""s_lshl_b32 {s(R.sT0)}, {s(sIdx)}, 7
        s_add_u32 {s(R.sT0)}, {s(R.sT0)}, {WS_FLAG + base}
        v_lshl_add_u32 {v(R.vT0)}, {v(R.vL)}, 2, {s(R.sT0)}
        v_mov_b32 {v(R.vT1)}, 1
        s_mov_b64 exec, 0xffffffff
        buffer_store_dword {v(R.vT1)}, {v(R.vT0)}, {s(R.sWS,4)}, 0 offen sc1
        s_mov_b64 exec, -1""")
    A(f"""s_lshl_b32 {s(sT2)}, {s(sBlk)}, 2
    s_add_u32 {s(sT2)}, {s(sT2)}, {s(sTg)}""")
    setflag(sT2, FLAG_F)
    if ts: tstamp(A, R, 2)
    sWr, sWi = R.sX, R.sO
    vPi, vH, vAd, vSh, vWa = 10, 11, 12, 13, 14
    vIn, vOut, v512 = 20, 100, 164
    pi_lane(A, vPi, R.vL, R.vT0, R.vT1)
    A(f"""
    s_load_dwordx2 {s(sWr,2)}, s[0:1], {KA_WR}
    s_load_dwordx2 {s(sWi,2)}, s[0:1], {KA_WI}
    s_mov_b32 {s(sWr+2)}, {2048*1026}
    s_mov_b32 {s(sWr+3)}, 0x20000
    s_mov_b32 {s(sWi+2)}, {2048*1026}
    s_mov_b32 {s(sWi+3)}, 0x20000
    v_lshrrev_b32 {v(vH)}, 5, {v(R.vL)}
    v_lshl_add_u32 {v(vAd)}, {v(vH)}, 9, {v(vPi)}             ; pi + 512 h
    v_mul_u32_u24 {v(vAd)}, 1026, {v(vAd)}
    v_and_b32 {v(vSh)}, 1, {v(R.vL)}
    v_lshlrev_b32 {v(vSh)}, 4, {v(vSh)}
    v_lshlrev_b32 {v(vWa)}, 4, {v(R.vL)}
    s_lshr_b32 {s(R.sT0)}, {s(R.sWv)}, 1
    s_and_b32 {s(R.sT1)}, {s(R.sWv)}, 1
    s_lshl_b32 {s(R.sT0)}, {s(R.sT0)}, 5
    s_lshl_b32 {s(R.sT1)}, {s(R.sT1)}, 10
    s_add_u32 {s(R.sT0)}, {s(R.sT0)}, {s(R.sT1)}
    s_mul_i32 {s(R.sSrc)}, {s(R.sT0)}, 1026
    s_lshl_b32 {s(R.sT0)}, {s(sCu)}, 5
    s_add_u32 {s(R.sSrc)}, {s(R.sSrc)}, {s(R.sT0)}
    s_lshl_b32 {s(R.sDst)}, {s(sCu)}, 17
    s_lshl_b32 {s(R.sT0)}, {s(R.sWv)}, 11
    s_add_u32 {s(R.sDst)}, {s(R.sDst)}, {s(R.sT0)}
    s_add_u32 {s(R.sDst)}, {s(R.sDst)}, {WS_WT}
    v_and_b32 {v(R.vT2)}, -4, {v(vAd)}
    s_mov_b32 {s(sPa)}, 0x05040100
    s_mov_b32 {s(sPb)}, 0x07060302
    s_waitcnt lgkmcnt(0)
    """)
    for q in range(2):
        for jj in range(4):
            for m, srd in enumerate((sWr, sWi)):
                b = vIn + jj*20 + m*10
                A(f"buffer_load_dwordx4 {v(b,4)}, {v(R.vT2)}, {s(srd,4)}, {s(R.sSrc)} offen")
                A(f"buffer_load_dwordx4 {v(b+4,4)}, {v(R.vT2)}, {s(srd,4)}, {s(R.sSrc)} offen offset:16")
                A(f"buffer_load_dword {v(b+8)}, {v(R.vT2)}, {s(srd,4)}, {s(R.sSrc)} offen offset:32")
            A(f"s_add_u32 {s(R.sSrc)}, {s(R.sSrc)}, {64*1026}")
        if q == 1:
            A(f"""s_cmp_lg_u32 {s(sCu)}, 0
            s_cbranch_scc1 F_nl512
            s_sub_u32 {s(R.sSrc)}, {s(R.sSrc)}, {8*64*1026 - 1024}""")
            for j in range(8):
                A(f"buffer_load_ushort {v(v512+j)}, {v(vAd)}, {s(sWr,4)}, {s(R.sSrc)} offen")
                A(f"buffer_load_ushort {v(v512+8+j)}, {v(vAd)}, {s(sWi,4)}, {s(R.sSrc)} offen")
                A(f"s_add_u32 {s(R.sSrc)}, {s(R.sSrc)}, {64*1026}")
            A.label("F_nl512")
        A("s_waitcnt vmcnt(0)")
        for jj in range(4):
            for m in range(2):
                b = vIn + jj*20 + m*10
                for k in range(8): A(f"v_alignbit_b32 {v(b+k)}, {v(b+k+1)}, {v(b+k)}, {v(vSh)}")
            b = vIn + jj*20
            for k in range(8):
                A(f"v_perm_b32 {v(vOut + (2*k)*4 + jj)}, {v(b+10+k)}, {v(b+k)}, {s(sPa)}")
                A(f"v_perm_b32 {v(vOut + (2*k+1)*4 + jj)}, {v(b+10+k)}, {v(b+k)}, {s(sPb)}")
        for cc in range(16):
            A(f"s_add_u32 {s(R.sT0)}, {s(R.sDst)}, {cc*8192 + q*1024}")
            A(f"buffer_store_dwordx4 {v(vOut+4*cc,4)}, {v(vWa)}, {s(R.sWS,4)}, {s(R.sT0)} offen")
    A(f"""s_cmp_lg_u32 {s(sCu)}, 0
    s_cbranch_scc1 F_no512""")
    for j in range(8): A(f"v_lshl_or_b32 {v(v512+j)}, {v(v512+8+j)}, 16, {v(v512+j)}")
    A(f"""s_add_u32 {s(R.sT0)}, {s(R.sDst)}, {512*8192}
    buffer_store_dwordx4 {v(v512,4)}, {v(vWa)}, {s(R.sWS,4)}, {s(R.sT0)} offen
    buffer_store_dwordx4 {v(v512+4,4)}, {v(vWa)}, {s(R.sWS,4)}, {s(R.sT0)} offen offset:1024""")
    A.label("F_no512")
    A(f"""s_load_dwordx2 {s(R.sO,2)}, s[0:1], {KA_OUT}
    s_mov_b32 {s(R.sO+2)}, {8*MB}""")
    aC64, aS64, aN64, aC32, aS32, aN32, aOut = 0, 32, 64, 96, 104, 112, 120
    vTw = 160
    vAc, vOp, vW = 32, 96, 128
    vZa, vPf, vHf, vSo = 15, 16, 17, 18
    pi_lane(A, vPi, R.vL, R.vT0, R.vT1)
    A(f"""v_lshrrev_b32 {v(vH)}, 5, {v(R.vL)}
    v_cvt_f32_u32 {v(vPf)}, {v(vPi)}
    v_lshlrev_b32 {v(vHf)}, 3, {v(vH)}
    v_cvt_f32_u32 {v(vHf)}, {v(vHf)}
    v_lshlrev_b32 {v(vWa)}, 4, {v(R.vL)}""")
    def consts(dC, dS, dN, add, N, nks):
        A(f"""v_add_f32 {v(R.vT0)}, {f32bits(float(add))}, {v(vPf)}
        v_mul_f32 {v(R.vT0)}, {f32bits(1.0/N)}, {v(R.vT0)}
        v_mul_f32 {v(R.vT1)}, {v(R.vT0)}, {v(vHf)}
        v_mul_f32 {v(R.vT2)}, 0x41800000, {v(R.vT0)}""")
        for ks in range(nks):
            A(f"v_fract_f32 {v(vAc)}, {v(R.vT1)}")
            for j in range(1, 8): A(f"v_add_f32 {v(vAc+j)}, {v(vAc+j-1)}, {v(R.vT0)}")
            A(f"v_add_f32 {v(R.vT1)}, {v(vAc)}, {v(R.vT2)}")
            for j in range(8):
                A(f"v_cos_f32 {v(vAc+8+j)}, {v(vAc+j)}"); A(f"v_sin_f32 {v(vAc+16+j)}, {v(vAc+j)}")
            for j in range(4):
                A(f"v_cvt_pk_bf16_f32 {v(vAc+24)}, {v(vAc+8+2*j)}, {v(vAc+9+2*j)}")
                A(f"v_cvt_pk_bf16_f32 {v(vAc+25)}, {v(vAc+16+2*j)}, {v(vAc+17+2*j)}")
                A(f"v_accvgpr_write_b32 {a(dC+4*ks+j)}, {v(vAc+24)}")
                A(f"v_xor_b32 {v(vAc+26)}, 0x80008000, {v(vAc+25)}")
                A(f"v_accvgpr_write_b32 {a(dS+4*ks+j)}, {v(vAc+25)}")
                A(f"v_accvgpr_write_b32 {a(dN+4*ks+j)}, {v(vAc+26)}")
    for t in range(2): consts(aC64 + 16*t, aS64 + 16*t, aN64 + 16*t, 32*t, 64, 4)
    consts(aC32, aS32, aN32, 0, 32, 2)
    for k, (pa, ra) in enumerate(((0, 0), (32, 0), (0, 32))):
        A(f"""v_add_f32 {v(R.vT0)}, {f32bits(float(pa))}, {v(vPf)}
        v_mul_f32 {v(R.vT0)}, {f32bits(1.0/2048)}, {v(R.vT0)}""")
        for r in range(16):
            A(f"""v_add_f32 {v(R.vT1)}, {f32bits(float(16*(r>>3) + (r&7) + ra))}, {v(vHf)}
            v_mul_f32 {v(R.vT1)}, {v(R.vT1)}, {v(R.vT0)}
            v_cos_f32 {v(vTw+32*k+r)}, {v(R.vT1)}
            v_sin_f32 {v(vTw+32*k+16+r)}, {v(R.vT1)}""")
    sZr, sZi, sWo, sSc, sPass, sNp, sMsk = 32, 33, 34, 35, 36, 37, 38
    A(f"""
    v_lshlrev_b32 {v(vZa)}, 4, {v(vH)}
    v_lshl_add_u32 {v(vZa)}, {v(vPi)}, 11, {v(vZa)}
    v_lshlrev_b32 {v(vSo)}, 12, {v(vH)}
    v_lshl_add_u32 {v(vSo)}, {v(vPi)}, 4, {v(vSo)}
    s_mul_i32 {s(sZr)}, {s(sCu)}, {BLK}
    s_lshl_b32 {s(R.sT0)}, {s(R.sWv)}, 9
    s_add_u32 {s(sZr)}, {s(sZr)}, {s(R.sT0)}
    s_add_u32 {s(sZr)}, {s(sZr)}, {WS_Y}
    s_add_u32 {s(sZi)}, {s(sZr)}, 64
    s_lshl_b32 {s(sT2)}, {s(sCu)}, 2
    s_add_u32 {s(sT2)}, {s(sT2)}, {s(R.sWv)}          ; chunk index
    s_lshl_b32 {s(sWo)}, {s(sT2)}, 15
    s_add_u32 {s(sWo)}, {s(sWo)}, {WS_WT}
    s_mov_b32 {s(sMsk)}, 0xffff0000
    s_mov_b32 {s(sPass)}, 0
    s_cmp_eq_u32 {s(sT2)}, 0
    s_cselect_b32 {s(sNp)}, 5, 4
    s_cselect_b32 {s(sZi)}, {OOB}, {s(sZi)}
    s_cselect_b32 {s(sSc)}, {f32bits(2.0**-21)}, {f32bits(2.0**-20)}
    v_and_b32 {v(R.vT2)}, 3, {v(R.vL)}
    v_lshlrev_b32 {v(R.vT2)}, 7, {v(R.vT2)}
    s_lshl_b32 {s(R.sT0)}, {s(sCu)}, 9
    s_add_u32 {s(R.sT0)}, {s(R.sT0)}, {WS_FLAG + FLAG_F}
    v_add_u32 {v(R.vT2)}, {s(R.sT0)}, {v(R.vT2)}
    """.replace(f"s_cselect_b32 {s(sSc)}, {f32bits(2.0**-21)}, {f32bits(2.0**-20)}", f"s_mov_b32 {s(sSc)}, {f32bits(2.0**-20)}\n s_cselect_b32 {s(sSc)}, {f32bits(2.0**-21)}, {s(sSc)}"))
    wait_flags(A, R, "F2_w", R.vT2, 4, 1, sGive, sCnt)
    A("s_waitcnt lgkmcnt(0)")
    A("s_barrier")
    if ts: tstamp(A, R, 3, vt=24)
    def op(t_or_ks, im, u=None):
        ks = t_or_ks if u is None else 2*t_or_ks + u
        return v(vOp + 16*im + 4*ks, 4)
    def acc(t, im): return vAc + 32*t + 16*im
    def MF(d, x, y, first):
        A(f"v_mfma_f32_32x32x16_bf16 {v(d,16)}, {x}, {y}, {0 if first else v(d,16)}")
    def cmul_pack(tw, sign):
        for t in range(2):
            c0, s0 = tw(t)
            for r in range(0, 16, 2):
                for e in range(2):
                    re, im = acc(t, 0) + r + e, acc(t, 1) + r + e
                    A(f"v_mul_f32 {v(R.vT0+e)}, {v(re)}, {v(c0+r+e)}")
                    A(f"v_mul_f32 {v(R.vT2+e)}, {v(im)}, {v(c0+r+e)}")
                    A(f"v_fma_f32 {v(R.vT0+e)}, {'-' if sign > 0 else ''}{v(im)}, {v(s0+r+e)}, {v(R.vT0+e)}")
                    A(f"v_fma_f32 {v(R.vT2+e)}, {'-' if sign < 0 else ''}{v(re)}, {v(s0+r+e)}, {v(R.vT2+e)}")
                A(f"v_cvt_pk_bf16_f32 {v(vOp + 8*t + r//2)}, {v(R.vT0)}, {v(R.vT1)}")
                A(f"v_cvt_pk_bf16_f32 {v(vOp + 16 + 8*t + r//2)}, {v(R.vT2)}, {v(R.vT3)}")
    A.label("F2_top")
    for im, so in ((0, sZr), (1, sZi)):
        A(f"s_add_u32 {s(R.sT0)}, {s(so)}, 65536")
        for ks in range(4):
            A(f"buffer_load_dwordx4 {op(ks, im)}, {v(vZa)}, {s(R.sWS,4)}, {s(so if ks < 2 else R.sT0)} offen offset:{32*(ks&1)}")
    A(f"s_add_u32 {s(R.sT0)}, {s(sWo)}, 4096")
    for q in range(8):
        A(f"buffer_load_dwordx4 {v(vW+4*q,4)}, {v(vWa)}, {s(R.sWS,4)}, {s(sWo if q < 4 else R.sT0)} offen offset:{1024*(q&3)}")
    A("s_waitcnt vmcnt(8)")
    for t in range(2):
        for ks in range(4):
            MF(acc(t, 0), op(ks, 0), a(aC64+16*t+4*ks, 4), ks == 0); MF(acc(t, 1), op(ks, 1), a(aC64+16*t+4*ks, 4), ks == 0)
            MF(acc(t, 0), op(ks, 1), a(aS64+16*t+4*ks, 4), False); MF(acc(t, 1), op(ks, 0), a(aN64+16*t+4*ks, 4), False)
    cmul_pack(lambda t: (vTw + 32*t, vTw + 32*t + 16), -1)
    for t in range(2):
        for u in range(2):
            MF(acc(t, 0), a(aC32+4*u, 4), op(t, 0, u), u == 0); MF(acc(t, 1), a(aC32+4*u, 4), op(t, 1, u), u == 0)
            MF(acc(t, 0), a(aS32+4*u, 4), op(t, 1, u), False); MF(acc(t, 1), a(aN32+4*u, 4), op(t, 0, u), False)
    A("s_waitcnt vmcnt(0)")
    vWr, vWi = 20, 22
    for t in range(2):
        for r in range(0, 16, 2):
            for e in range(2):
                re, im = acc(t, 0) + r + e, acc(t, 1) + r + e
                w = vW + 16*t + r + e
                A(f"v_lshlrev_b32 {v(vWr+e)}, 16, {v(w)}")
                A(f"v_and_b32 {v(vWi+e)}, {s(sMsk)}, {v(w)}")
                A(f"v_mul_f32 {v(R.vT0+e)}, {v(re)}, {v(vWr+e)}")
                A(f"v_mul_f32 {v(R.vT2+e)}, {v(im)}, {v(vWr+e)}")
                A(f"v_fma_f32 {v(R.vT0+e)}, -{v(im)}, {v(vWi+e)}, {v(R.vT0+e)}")
                A(f"v_fma_f32 {v(R.vT2+e)}, {v(re)}, {v(vWi+e)}, {v(R.vT2+e)}")
            A(f"v_cvt_pk_bf16_f32 {v(vOp + 8*t + r//2)}, {v(R.vT0)}, {v(R.vT1)}")
            A(f"v_cvt_pk_bf16_f32 {v(vOp + 16 + 8*t + r//2)}, {v(R.vT2)}, {v(R.vT3)}")
    for t in range(2):
        for u in range(2):
            MF(acc(t, 0), op(t, 0, u), a(aC32+4*u, 4), u == 0); MF(acc(t, 1), op(t, 1, u), a(aC32+4*u, 4), u == 0)
            MF(acc(t, 0), op(t, 1, u), a(aN32+4*u, 4), False); MF(acc(t, 1), op(t, 0, u), a(aS32+4*u, 4), False)
    cmul_pack(lambda t: (vTw + 64*t, vTw + 64*t + 16), +1)
    for t in range(2):
        for ks in range(4):
            MF(acc(t, 0), a(aC64+16*t+4*ks, 4), op(ks, 0), ks == 0); MF(acc(t, 1), a(aC64+16*t+4*ks, 4), op(ks, 1), ks == 0)
            MF(acc(t, 0), a(aN64+16*t+4*ks, 4), op(ks, 1), False); MF(acc(t, 1), a(aS64+16*t+4*ks, 4), op(ks, 0), False)
    for t in range(2):
        for r in range(16):
            A(f"v_mul_f32 {v(acc(t,0)+r)}, {s(sSc)}, {v(acc(t,0)+r)}")
            A(f"v_mul_f32 {v(acc(t,1)+r)}, {s(sSc)}, {v(acc(t,1)+r)}")
            A(f"v_cvt_pk_bf16_f32 {v(vW+16*t+r)}, {v(acc(t,0)+r)}, {v(acc(t,1)+r)}")
    for p in range(1, 5):
        A(f"""s_cmp_eq_u32 {s(sPass)}, {p}
        s_cbranch_scc1 F2_o{p}""")
    for p in range(5):
        if p: A.label(f"F2_o{p}")
        for k in range(32):
            if p < 4:
                A(f"v_accvgpr_write_b32 {a(aOut+4*k+p)}, {v(vW+k)}")
            else:
                A(f"v_accvgpr_read_b32 {v(R.vT0)}, {a(aOut+4*k)}")
                A(f"v_lshlrev_b32 {v(R.vT1)}, 16, {v(vW+k)}")
                A(f"v_bfi_b32 {v(R.vT0)}, {s(sMsk)}, {v(R.vT1)}, {v(R.vT0)}")
                A(f"v_accvgpr_write_b32 {a(aOut+4*k)}, {v(R.vT0)}")
        if p < 4: A("s_branch F2_nx")
    A.label("F2_nx")
    A(f"""s_add_u32 {s(sPass)}, {s(sPass)}, 1
    s_add_u32 {s(sZr)}, {s(sZr)}, 128
    s_add_u32 {s(sZi)}, {s(sZr)}, 64
    s_add_u32 {s(sWo)}, {s(sWo)}, 8192
    s_mov_b32 {s(sSc)}, {f32bits(2.0**-20)}
    s_cmp_eq_u32 {s(sPass)}, 4
    s_cselect_b32 {s(sZr)}, {WS_Y + 64}, {s(sZr)}
    s_cselect_b32 {s(sZi)}, {OOB}, {s(sZi)}
    s_cselect_b32 {s(sWo)}, {WS_WT + 512*8192}, {s(sWo)}
    s_cselect_b32 {s(sSc)}, {f32bits(2.0**-21)}, {s(sSc)}
    s_cmp_lt_u32 {s(sPass)}, {s(sNp)}
    s_cbranch_scc1 F2_top
    s_mul_i32 {s(R.sDst)}, {s(sT2)}, {ZCH}
    s_add_u32 {s(R.sDst)}, {s(R.sDst)}, {WS_Z}""")
    for t in range(2):
        for r in range(16):
            o = (32*t + 16*(r >> 3) + (r & 7)) * 512
            if r % 8 == 0: A(f"s_add_u32 {s(R.sT0)}, {s(R.sDst)}, {o}")
            A(f"buffer_store_dwordx4 {a(aOut+4*(16*t+r),4)}, {v(vSo)}, {s(R.sWS,4)}, {s(R.sT0)} offen offset:{(r&7)*512} sc1")
    A("s_waitcnt vmcnt(0)")
    setflag(sT2, FLAG_F2)
    if ts: tstamp(A, R, 4)
    colidx(R.vT2)
    A(f"""v_lshrrev_b32 {v(R.vT3)}, 4, {v(R.vL)}
    v_cvt_f32_u32 {v(R.vT3)}, {v(R.vT3)}
    s_mov_b32 {s(sT2)}, {f32bits(1/1024)}
    v_and_b32 {v(38)}, 1, {v(R.vT2)}""")
    for t in range(2):
        A(f"""v_add_u32 {v(R.vT0)}, {4*t}, {v(R.vT2)}
        v_cvt_f32_u32 {v(R.vT1)}, {v(R.vT0)}
        v_mul_f32 {v(R.vT1)}, {s(sT2)}, {v(R.vT1)}
        v_mov_b32 {v(vD1+t)}, 0x3e800000
        v_sub_f32 {v(vD2+t)}, {v(R.vT1)}, {v(vD1+t)}
        v_mul_f32 {v(vInc+t)}, 0x41800000, {v(R.vT1)}
        v_mul_f32 {v(R.vT0)}, 4.0, {v(R.vT1)}
        v_mul_f32 {v(vB+t)}, {v(R.vT0)}, {v(R.vT3)}""")
    A(f"""v_lshlrev_b32 {v(vM)}, 4, {v(38)}
    v_bfe_u32 {v(R.vT0)}, {v(R.vT2)}, 1, 1
    v_add_u32 {v(R.vT1)}, 1, {v(R.vT2)}
    v_bfe_u32 {v(R.vT1)}, {v(R.vT1)}, 1, 1
    v_lshlrev_b32 {v(R.vT0)}, 15, {v(R.vT0)}
    v_lshl_or_b32 {v(vM+1)}, {v(R.vT1)}, 31, {v(R.vT0)}""")
    gen_dft_weights(A, R, vB, vD1, vD2, vInc, 16, lambda t, q, dst, src: [f"v_alignbit_b32 {v(dst)}, {v(src)}, {v(src)}, {v(vM)}", f"v_xor_b32 {v(dst)}, {v(dst)}, {v(vM+1)}"])
    A(f"""v_lshlrev_b32 {v(R.vT1)}, 31, {v(38)}
    v_or_b32 {v(R.vT1)}, 0x3f803f80, {v(R.vT1)}
    v_cmp_gt_u32 vcc, 16, {v(R.vL)}""")
    for t in range(2):
        A(f"""v_accvgpr_read_b32 {v(R.vT0)}, {a(aw(t,0))}
        v_cndmask_b32 {v(R.vT0)}, {v(R.vT0)}, {v(R.vT1)}, vcc
        v_accvgpr_write_b32 {a(aw(t,0))}, {v(R.vT0)}""")
    A(f"""
    v_and_b32 {v(R.vT0)}, 15, {v(R.vL)}
    v_lshrrev_b32 {v(R.vT1)}, 4, {v(R.vL)}
    v_lshlrev_b32 {v(R.vT0)}, 4, {v(R.vT0)}
    v_lshl_add_u32 {v(R.vRd)}, {v(R.vT1)}, 9, {v(R.vT0)}
    v_add_u32 {v(R.vRd+1)}, 2048, {v(R.vRd)}
    v_add_u32 {v(R.vRd+2)}, 0x10000, {v(R.vRd)}
    v_add_u32 {v(R.vRd+3)}, 0x10000, {v(R.vRd+1)}
    s_lshl_b32 {s(R.sM0)}, {s(R.sWv)}, 10
    s_lshl_b32 {s(R.sT0)}, {s(R.sWv)}, 1
    v_lshrrev_b32 {v(R.vT3)}, 5, {v(R.vL)}
    v_add_u32 {v(R.vT3)}, {s(R.sT0)}, {v(R.vT3)}
    v_and_b32 {v(R.vT2)}, 31, {v(R.vL)}
    v_mul_u32_u24 {v(R.vSrc)}, {ZCH}, {v(R.vT3)}
    v_lshl_add_u32 {v(R.vSrc)}, {v(R.vT2)}, 4, {v(R.vSrc)}
    v_and_b32 {v(R.vDst)}, 15, {v(R.vL)}
    v_and_b32 {v(R.vT0)}, 48, {v(R.vL)}
    v_lshl_add_u32 {v(R.vDst)}, {v(R.vDst)}, 12, {v(R.vT0)}
    v_add_u32 {v(R.vFlag)}, 0x10000, {v(R.vDst)}
    s_lshl_b32 {s(R.sDst)}, {s(sTg)}, 21
    s_lshl_b32 {s(R.sT0)}, {s(sBlk)}, 6
    s_add_u32 {s(R.sDst)}, {s(R.sDst)}, {s(R.sT0)}
    s_lshl_b32 {s(R.sSrc)}, {s(sTg)}, 13
    s_add_u32 {s(R.sSrc)}, {s(R.sSrc)}, {WS_Z}
    s_mov_b32 {s(R.sSrcStep)}, 512
    s_mov_b32 {s(R.sDstStep)}, {32*4096}
    v_and_b32 {v(R.vT2)}, 31, {v(R.vL)}
    v_lshlrev_b32 {v(R.vT2)}, 7, {v(R.vT2)}
    s_lshl_b32 {s(R.sT0)}, {s(R.sWv)}, 12
    s_add_u32 {s(R.sT0)}, {s(R.sT0)}, {WS_FLAG + FLAG_F2}
    v_add_u32 {v(R.vT2)}, {s(R.sT0)}, {v(R.vT2)}
    """)
    wait_flags(A, R, "F3_w0", R.vT2, 64, 1, sGive, sCnt)
    A("s_barrier")
    if ts: tstamp(A, R, 5)
    def dma3(half, b, lds):
        return [f"s_add_u32 m0, {s(R.sM0)}, {lds}", f"s_add_u32 {s(R.sT0)}, {s(R.sSrc)}, {(half*8 + b)*8*ZCH}",
                f"buffer_load_dwordx4 {v(R.vSrc)}, {s(R.sWS,4)}, {s(R.sT0)} offen lds"]
    def store3(u):
        return [f"buffer_store_dwordx4 {v(R.vPk+4*u,4)}, {v(R.vFlag if u else R.vDst)}, {s(R.sO,4)}, {s(R.sDst)} offen"]
    stream_loop(A, R, "F3", 16, False, dma3, store3, flag=False, ttoff=256)
    A(f"s_branch {done}")
```

```python
from asmlib import *
from layout import *
from proto import *
import struct, math

def f32bits(x): return struct.unpack("<I", struct.pack("<f", x))[0]

POLL_LIMIT = 200000

def delay(A, cyc):
    n = cyc // 4
    while n > 0:
        k = min(n, 16); A(f"s_nop {k-1}"); n -= k

def gen_recur(A, stamps=False, force_slow=False, d0=512, dd=128, dmem=64, dob=64, dsc=160, nrep=1, dfar=256, ts=False, par=-1, dz=192, noside=0, pace=48, sc2=1, early=1, wo=0, pre=1, touch=1):
    worder = ((1, 2, 0, 3), (0, 3, 1, 2), (0, 1, 2, 3))[wo]
    MT = "s_memrealtime" if stamps == 2 else "s_memtime"
    sWS = 4
    sW = 8
    sX, sJ, sWv, sStep, sCur, sKx, sVt, sKm, sVm, sT0, sT1, sCnt, sC, sGive, sStO, sCol = range(12, 28)
    sPtr = 28
    sH, sEs, sNext, sArm, sPrev, sFast = 40, 41, 42, 43, 44, 45
    sPm = 84
    sKf, sNeed = 85, 94
    sPmL, sPar = 95, 46
    sMk = 86
    sSt = 48
    vL, vMemR, vScW, vScWm, vScR, vScRm, vObW, vObR, vPmW, vPmR, vMemW, vKx, vVt, vKm, vVm, vLds, vLdsW, vLdsV, vT0, vT1, vT2, vT3, vPmA = range(1, 24)
    vPmB = 244
    vFlg = 245
    vArm = 246
    vFv = 247
    vM = 24
    vAc = 40
    vPk = 72
    vSel = 84
    vX = 88
    vR = 96
    vXO = 128
    vKX = 132
    vD = 140
    vVA = 152
    vVM = 168
    vIdx = 172
    vPB = 176
    vS = 180
    vO = 188
    vOnes = 204
    vP = 208
    vN = 228
    vOneBf = 236
    vSum = 240
    def aw(mat, t, u): return ((mat * 2 + t) * 4 + u) * 8
    def acc(mat, t): return vAc + (4 * (2 * t + mat) if mat < 2 else 8 * mat + 4 * t)
    def stamp(k):
        if stamps: A(f"{MT} {s(sSt + 2 * k, 2)}")
    def lgkm(n): A(f"s_waitcnt lgkmcnt({0 if stamps else n})")

    L_end = "recur_end"
    inloop = [False]
    A(f"""
    s_mov_b32 {s(sX)}, s3
    s_lshr_b32 {s(sJ)}, s2, 3
    s_load_dwordx2 {s(sWS,2)}, s[0:1], {KA_WS}
    s_load_dwordx2 {s(sPtr,2)}, s[0:1], {KA_MEM0}
    s_load_dwordx2 {s(sPtr+2,2)}, s[0:1], {KA_WQ}
    s_load_dwordx2 {s(sPtr+4,2)}, s[0:1], {KA_WK}
    s_load_dwordx2 {s(sPtr+6,2)}, s[0:1], {KA_WV}
    s_load_dwordx2 {s(sPtr+8,2)}, s[0:1], {KA_WO}
    v_lshrrev_b32 {v(vT0)}, 6, v0
    v_and_b32 {v(vL)}, 63, v0
    v_readfirstlane_b32 {s(sWv)}, {v(vT0)}
    s_mov_b32 {s(sWS+2)}, {WS_BYTES}
    s_mov_b32 {s(sWS+3)}, 0x20000
    s_mov_b32 {s(sW+2)}, {8*MB}
    s_mov_b32 {s(sW+3)}, 0x20000
    s_mov_b32 {s(sGive)}, 0
    s_mov_b32 {s(sC)}, {f32bits(128 ** -0.5 * math.log2(math.e))}
    s_waitcnt lgkmcnt(0)
    """)
    if ts: ts(0)
    vm_, vc_, vg_ = vR, vR + 1, vR + 2
    A(f"""
    v_and_b32 {v(vm_)}, 7, {v(vL)}
    v_bfe_u32 {v(vc_)}, {v(vL)}, 3, 1
    v_lshrrev_b32 {v(vg_)}, 4, {v(vL)}
    v_lshlrev_b32 {v(vT0)}, 4, {v(vL)}            ; l*16
    s_lshl_b32 {s(sT0)}, {s(sX)}, 14
    s_lshl_b32 {s(sT1)}, {s(sWv)}, 12
    s_add_u32 {s(sT0)}, {s(sT0)}, {s(sT1)}
    s_add_u32 {s(sT1)}, {s(sT0)}, {HOP_MEM}
    v_add_u32 {v(vMemR)}, {s(sT1)}, {v(vT0)}
    s_add_u32 {s(sT1)}, {s(sT0)}, {HOP_OB}
    v_add_u32 {v(vObR)}, {s(sT1)}, {v(vT0)}
    s_lshr_b32 {s(sT0)}, {s(sJ)}, 1
    s_lshl_b32 {s(sT0)}, {s(sT0)}, 10
    s_and_b32 {s(sT1)}, {s(sJ)}, 1
    s_lshl_b32 {s(sT1)}, {s(sT1)}, 7
    s_add_u32 {s(sT0)}, {s(sT0)}, {s(sT1)}
    s_lshl_b32 {s(sT1)}, {s(sX)}, 14
    s_add_u32 {s(sT0)}, {s(sT0)}, {s(sT1)}
    v_lshlrev_b32 {v(vT1)}, 8, {v(vg_)}
    v_lshl_add_u32 {v(vT1)}, {v(vm_)}, 4, {v(vT1)}
    v_lshl_add_u32 {v(vT1)}, {v(vc_)}, 3, {v(vT1)}
    s_add_u32 {s(sT1)}, {s(sT0)}, {HOP_OB}
    v_add_u32 {v(vObW)}, {s(sT1)}, {v(vT1)}
    s_add_u32 {s(sT1)}, {s(sT0)}, {HOP_MEM}
    v_add_u32 {v(vMemW)}, {s(sT1)}, {v(vT1)}
    s_lshr_b32 {s(sT0)}, {s(sJ)}, 1
    s_lshl_b32 {s(sT0)}, {s(sT0)}, 14
    s_and_b32 {s(sT1)}, {s(sJ)}, 1
    s_lshl_b32 {s(sT1)}, {s(sT1)}, 12
    s_add_u32 {s(sT0)}, {s(sT0)}, {s(sT1)}
    s_lshl_b32 {s(sT1)}, {s(sX)}, 10
    s_add_u32 {s(sT1)}, {s(sT0)}, {s(sT1)}
    v_add_u32 {v(vPmW)}, {s(sT1)}, {v(vT0)}
    v_xor_b32 {v(vPmR)}, 1024, {v(vPmW)}
    v_xor_b32 {v(vPmA)}, 2048, {v(vPmW)}
    v_xor_b32 {v(vPmB)}, 3072, {v(vPmW)}
    s_mov_b32 {s(sPmL)}, {WS_PM}
    s_lshr_b32 {s(sH)}, {s(sJ)}, 2
    s_lshl_b32 {s(sT0)}, {s(sX)}, 3
    s_add_u32 {s(sH)}, {s(sH)}, {s(sT0)}
    s_and_b32 {s(sEs)}, {s(sJ)}, 3
    s_mul_i32 {s(sT0)}, {s(sH)}, 5120
    s_add_u32 {s(sT0)}, {s(sT0)}, {HOP_SC}
    v_add_u32 {v(vScR)}, {s(sT0)}, {v(vT0)}
    v_lshlrev_b32 {v(vT1)}, 2, {v(vL)}
    s_add_u32 {s(sT1)}, {s(sT0)}, 4096
    v_add_u32 {v(vScRm)}, {s(sT1)}, {v(vT1)}
    s_lshl_b32 {s(sT1)}, {s(sEs)}, 10
    s_add_u32 {s(sT1)}, {s(sT1)}, {s(sT0)}
    v_add_u32 {v(vScW)}, {s(sT1)}, {v(vT0)}
    v_mov_b32 {v(vT2)}, {OOB}
    v_cmp_eq_u32 vcc, 0, {v(vc_)}
    v_cndmask_b32 {v(vScW)}, {v(vT2)}, {v(vScW)}, vcc
    s_lshl_b32 {s(sT1)}, {s(sEs)}, 8
    s_add_u32 {s(sT1)}, {s(sT1)}, {s(sT0)}
    s_add_u32 {s(sT1)}, {s(sT1)}, 4096
    v_lshlrev_b32 {v(vT1)}, 4, {v(vg_)}
    v_lshl_add_u32 {v(vT1)}, {v(vm_)}, 5, {v(vT1)}
    v_add_u32 {v(vScWm)}, {s(sT1)}, {v(vT1)}
    v_cndmask_b32 {v(vScWm)}, {v(vScWm)}, {v(vT2)}, vcc
    v_cmp_gt_u32 vcc, 2, {v(vg_)}
    v_cndmask_b32 {v(vScWm)}, {v(vT2)}, {v(vScWm)}, vcc
    s_lshl_b32 {s(sCol)}, {s(sH)}, 7
    s_lshl_b32 {s(sT0)}, {s(sEs)}, 5
    s_add_u32 {s(sCol)}, {s(sCol)}, {s(sT0)}
    v_bfe_u32 {v(vT1)}, {v(vL)}, 2, 2
    v_and_b32 {v(vT3)}, 3, {v(vL)}
    v_lshl_add_u32 {v(vT1)}, {v(vT1)}, 3, {v(vT3)}        ; perm(i) = 8*(i>>2) + (i&3)
    v_lshlrev_b32 {v(vKx)}, 6, {v(vT1)}
    v_lshl_add_u32 {v(vKx)}, {v(vg_)}, 4, {v(vKx)}
    s_and_b32 {s(sT0)}, {s(sWv)}, 1
    s_lshl_b32 {s(sT0)}, {s(sT0)}, 14
    s_lshl_b32 {s(sT1)}, {s(sCol)}, 2
    s_add_u32 {s(sT0)}, {s(sT0)}, {s(sT1)}
    s_add_u32 {s(sT0)}, {s(sT0)}, {WS_FLAG + FLAG_P + 16384}
    v_mov_b32 {v(vFlg)}, {s(sT0)}
    s_mov_b32 {s(sKf)}, 0
    s_mul_i32 {s(sT0)}, {s(sCol)}, {BLK // 32}
    v_add_u32 {v(vKx)}, {s(sT0)}, {v(vKx)}
    v_mov_b32 {v(vVt)}, {v(vKx)}
    v_lshlrev_b32 {v(vVm)}, 4, {v(vT1)}
    v_lshl_add_u32 {v(vVm)}, {v(vg_)}, 5, {v(vVm)}
    s_mul_i32 {s(sT0)}, {s(sCol)}, {MBLK // 32}
    v_add_u32 {v(vVm)}, {s(sT0)}, {v(vVm)}
    v_and_b32 {v(vT3)}, 1, {v(vg_)}
    v_cmp_eq_u32 vcc, 0, {v(vT3)}
    v_cndmask_b32 {v(vVm)}, {v(vT2)}, {v(vVm)}, vcc
    v_lshlrev_b32 {v(vKm)}, 6, {v(vm_)}
    v_lshl_add_u32 {v(vKm)}, {v(vg_)}, 4, {v(vKm)}
    v_add_u32 {v(vKm)}, {s(sT0)}, {v(vKm)}
    v_cmp_eq_u32 vcc, 1, {v(vc_)}
    v_cndmask_b32 {v(vKm)}, {v(vT2)}, {v(vKm)}, vcc
    v_mov_b32 {v(vLds)}, {v(vT0)}
    s_lshl_b32 {s(sT0)}, {s(sWv)}, 11
    v_add_u32 {v(vLdsW)}, {s(sT0)}, {v(vT0)}
    v_and_b32 {v(vT1)}, 15, {v(vL)}
    v_bfe_u32 {v(vT3)}, {v(vL)}, 2, 2
    v_and_b32 {v(vLdsV)}, 1, {v(vL)}
    v_lshl_add_u32 {v(vLdsV)}, {v(vT3)}, 1, {v(vLdsV)}
    v_bfe_u32 {v(vT3)}, {v(vL)}, 1, 1
    v_lshl_add_u32 {v(vLdsV)}, {v(vT3)}, 3, {v(vLdsV)}
    s_cmp_eq_u32 {s(sWv)}, 1
    s_cselect_b64 vcc, -1, 0
    v_cndmask_b32 {v(vT1)}, {v(vT1)}, {v(vLdsV)}, vcc
    v_and_b32 {v(vT3)}, 1, {v(vg_)}
    v_lshlrev_b32 {v(vT3)}, 2, {v(vT3)}
    v_sub_u32 {v(vT1)}, {v(vT1)}, {v(vT3)}
    v_mov_b32 {v(vT3)}, 0x3f80
    v_mov_b32 {v(vLdsV)}, 0x3f800000
    v_mov_b32 {v(vIdx)}, 0x4444
    v_mov_b32 {v(vSel)}, 0xeeee
    v_cmp_eq_u32 vcc, 1, {v(vc_)}
    v_cndmask_b32 {v(vIdx)}, {v(vIdx)}, {v(vSel)}, vcc
    """)
    for r, d in enumerate((0, 2, 8, 10)):
        A(f"""v_cmp_eq_u32 vcc, {d}, {v(vT1)}
        v_cndmask_b32 {v(vSel+r)}, 0, {v(vT3)}, vcc
        v_cmp_eq_u32 vcc, {d+1}, {v(vT1)}
        v_cndmask_b32 {v(vSel+r)}, {v(vSel+r)}, {v(vLdsV)}, vcc""")
    A(f"""
    s_mov_b32 {s(sCur)}, {WS_HOP}
    s_mov_b32 {s(sNext)}, {WS_HOP + HOP_STEP}
    s_mov_b32 {s(sArm)}, {WS_HOP + 2*HOP_STEP}
    s_mov_b32 {s(sPrev)}, {WS_HOP + 3*HOP_STEP}
    s_mov_b32 {s(sKx)}, {WS_K}
    s_mov_b32 {s(sVt)}, {WS_VT}
    s_mov_b32 {s(sKm)}, {WS_KM}
    s_mov_b32 {s(sVm)}, {WS_VMT}
    s_mov_b32 {s(sStep)}, 0
    """)
    for r in range(4): A(f"v_mov_b32 {v(vOnes+r)}, -1")
    for r in range(4): A(f"v_mov_b32 {v(vOneBf+r)}, 0x3f803f80")
    def arm_local(so, sc):
        A(f"""buffer_store_dwordx4 {v(vOnes,4)}, {v(vScW)}, {s(sWS,4)}, {s(so)} offen{sc}
        buffer_store_dwordx4 {v(vOnes,4)}, {v(vScW)}, {s(sWS,4)}, {s(so)} offen offset:128{sc}
        buffer_store_dwordx4 {v(vOnes,4)}, {v(vScWm)}, {s(sWS,4)}, {s(so)} offen{sc}
        buffer_store_dwordx2 {v(vOnes,2)}, {v(vObW)}, {s(sWS,4)}, {s(so)} offen{sc}
        buffer_store_dwordx2 {v(vOnes,2)}, {v(vMemW)}, {s(sWS,4)}, {s(so)} offen{sc}""")
    A(f"""s_mul_i32 {s(sT1)}, {s(sWv)}, {HOP_STEP}
    s_add_u32 {s(sT1)}, {s(sT1)}, {WS_HOP}""")
    arm_local(sT1, " sc1")
    A(f"""s_lshl_b32 {s(sT1)}, {s(sWv)}, 18
    s_add_u32 {s(sT1)}, {s(sT1)}, {WS_PM}
    buffer_store_dwordx4 {v(vOnes,4)}, {v(vPmW)}, {s(sWS,4)}, {s(sT1)} offen sc1
    s_add_u32 {s(sT1)}, {s(sT1)}, 8192
    buffer_store_dwordx4 {v(vOnes,4)}, {v(vPmW)}, {s(sWS,4)}, {s(sT1)} offen sc1""")
    A(f"""s_lshl_b32 {s(sT1)}, {s(sCol)}, 2
    s_add_u32 {s(sT1)}, {s(sT1)}, {WS_FLAG + FLAG_P + 49152}
    v_lshlrev_b32 {v(vArm)}, 2, {v(vL)}
    v_add_u32 {v(vArm)}, {s(sT1)}, {v(vArm)}
    v_cmp_gt_u32 vcc, 32, {v(vL)}
    v_cndmask_b32 {v(vArm)}, {v(vT2)}, {v(vArm)}, vcc
    v_mov_b32 {v(vFv)}, 0
    buffer_store_dword {v(vFv)}, {v(vArm)}, {s(sWS,4)}, 0 offen sc1""")
    NS = 10
    sRing, sSrc = sMk, sMk + 1
    A(f"""
    v_lshrrev_b32 {v(vT0)}, 2, {v(vL)}
    v_and_b32 {v(vT3)}, 3, {v(vL)}
    v_lshlrev_b32 {v(vT3)}, 4, {v(vT3)}
    v_lshl_add_u32 {v(vD)}, {v(vT0)}, 13, {v(vT3)}
    v_lshl_add_u32 {v(vD+1)}, {v(vT0)}, 11, {v(vT3)}
    s_mul_i32 {s(sRing)}, {s(sWv)}, {NS*4096}
    """)
    units = [(mat, u) for mat in worder for u in range(4)]
    def dma(j):
        mat, u = units[j]
        if u == 0:
            A(f"s_mov_b32 {s(sW)}, {s(sPtr+2+2*mat)}")
            A(f"s_mov_b32 {s(sW+1)}, {s(sPtr+3+2*mat)}")
            if mat < 3:
                A(f"""s_lshl_b32 {s(sSrc)}, {s(sWv)}, 21
                s_lshl_b32 {s(sT1)}, {s(sCol)}, 1
                s_add_u32 {s(sSrc)}, {s(sSrc)}, {s(sT1)}""")
            else:
                A(f"""s_lshl_b32 {s(sSrc)}, {s(sX)}, 21
                s_lshl_b32 {s(sT1)}, {s(sWv)}, 19
                s_add_u32 {s(sSrc)}, {s(sSrc)}, {s(sT1)}
                s_lshl_b32 {s(sT1)}, {s(sJ)}, 6
                s_add_u32 {s(sSrc)}, {s(sSrc)}, {s(sT1)}""")
        for q in range(4):
            A(f"s_add_u32 m0, {s(sRing)}, {(j % NS)*4096 + q*1024}")
            A(f"buffer_load_dwordx4 {v(vD if mat < 3 else vD+1)}, {s(sW,4)}, {s(sSrc)} offen lds")
            A(f"s_add_u32 {s(sSrc)}, {s(sSrc)}, {16*8192 if mat < 3 else 16*2048}")
    vq = []
    if touch:
        A(f"""s_lshr_b32 {s(sT0)}, {s(sJ)}, 3
        s_cmp_eq_u32 {s(sT0)}, 1
        s_cselect_b64 {s(sW,2)}, {s(sPtr+4,2)}, {s(sPtr+2,2)}
        s_cmp_eq_u32 {s(sT0)}, 2
        s_cselect_b64 {s(sW,2)}, {s(sPtr+6,2)}, {s(sW,2)}
        s_cmp_eq_u32 {s(sT0)}, 3
        s_cselect_b64 {s(sW,2)}, {s(sPtr+8,2)}, {s(sW,2)}
        s_cselect_b32 {s(sT0)}, 11, 13
        s_cselect_b32 {s(sSrc)}, 21, 11
        s_lshl_b32 {s(sSrc)}, {s(sX)}, {s(sSrc)}
        s_and_b32 {s(sT1)}, {s(sJ)}, 3
        s_lshl_b32 {s(sT1)}, {s(sT1)}, 8
        v_add_u32 {v(vD+2)}, {s(sT1)}, v0
        v_lshlrev_b32 {v(vD+2)}, {s(sT0)}, {v(vD+2)}
        s_and_b32 {s(sT1)}, {s(sJ)}, 4
        s_lshl_b32 {s(sT1)}, {s(sT1)}, 8
        s_add_u32 {s(sSrc)}, {s(sSrc)}, {s(sT1)}
        buffer_load_dword {v(vD+3)}, {v(vD+2)}, {s(sW,4)}, {s(sSrc)} offen offset:384
        s_cmp_eq_u32 {s(sSrc)}, {7*1024}
        s_cselect_b32 {s(sSrc)}, {s(sSrc)}, {OOB}
        buffer_load_dword {v(vD+4)}, {v(vD+2)}, {s(sW,4)}, {s(sSrc)} offen offset:896""")
        vq += [-1, -1]
    def dmat(j):
        dma(j); vq.extend([j] * 4)
    for j in range(pre): dmat(j)
    A(f"""v_bfe_u32 {v(vT0)}, {v(vL)}, 2, 1
    v_lshl_add_u32 {v(vT0)}, {v(vg_)}, 2, {v(vT0)}
    v_lshl_add_u32 {v(vT0)}, {v(vc_)}, 5, {v(vT0)}
    v_lshl_add_u32 {v(vT3)}, {v(vT0)}, 6, {v(vT3)}
    v_add_u32 {v(vT3)}, {s(sRing)}, {v(vT3)}
    s_waitcnt vmcnt({len(vq)})
    s_barrier""")
    register(A, sWv, sT0, sT1, vT1, vT2)
    A("s_barrier")
    for j in range(pre, NS): dmat(j)
    issued = NS
    for j, (mat, u) in enumerate(units):
        A(f"s_waitcnt vmcnt({vq[::-1].index(j)})")
        for t in range(2):
            for aa in range(4):
                A(f"ds_read_b64_tr_b16 {a(aw(mat,t,u)+2*aa,2)}, {v(vT3)} offset:{(j % NS)*4096 + (16*(aa>>1) + 2*(aa&1))*64 + t*8}")
            if t == 0: A("s_waitcnt lgkmcnt(4)")
        if j and issued < 16:
            dmat(issued); issued += 1
    A("s_waitcnt lgkmcnt(0)")
    for t in range(2):
        for c in range(2):
            A(f"v_mov_b32 {v(vVA + (t*2+c)*4 + 3)}, 0")
    A(f"v_mov_b32 {v(vPB+3)}, 0")
    def load_kx(d=vKX):
        if noside & 1 and inloop[0]: return
        A(f"""buffer_load_dwordx4 {v(d,4)}, {v(vKx)}, {s(sWS,4)}, {s(sKx)} offen sc1
        buffer_load_dwordx4 {v(d+4,4)}, {v(vKx)}, {s(sWS,4)}, {s(sKx)} offen offset:256 sc1
        s_add_u32 {s(sKx)}, {s(sKx)}, 2048
        s_min_u32 {s(sKx)}, {s(sKx)}, {WS_K + 63*2048}""")
    def load_vt():
        if noside & 1 and inloop[0]: return
        for t in range(2):
            A(f"buffer_load_dwordx4 {v(vN+4*t,4)}, {v(vVt)}, {s(sWS,4)}, {s(sVt)} offen offset:{t*256} sc1")
        A(f"s_add_u32 {s(sVt)}, {s(sVt)}, 2048")
        A(f"s_min_u32 {s(sVt)}, {s(sVt)}, {WS_VT + 63*2048}")
    def store_km():
        if noside & 2: return
        A(f"buffer_store_dwordx4 {v(vXO,4)}, {v(vKm)}, {s(sWS,4)}, {s(sKm)} offen sc1")
        A(f"s_add_u32 {s(sKm)}, {s(sKm)}, 512")
    def store_vm():
        if noside & 2: return
        A(f"buffer_store_dwordx4 {v(vVM,4)}, {v(vVm)}, {s(sWS,4)}, {s(sVm)} offen sc1")
        A(f"s_add_u32 {s(sVm)}, {s(sVm)}, 512")
    def flagwait():
        Lp = A.newlabel("fw"); Lo = A.newlabel("fo")
        A(f"s_mov_b32 {s(sCnt)}, {s(sGive)}")
        A.label(Lp)
        A(f"""s_cmp_ge_u32 {s(sKf)}, {s(sNeed)}
        s_cbranch_scc1 {Lo}
        buffer_load_dword {v(vFv)}, {v(vFlg)}, {s(sWS,4)}, 0 offen sc1
        s_add_u32 {s(sCnt)}, {s(sCnt)}, 1
        s_waitcnt vmcnt(0)
        v_readfirstlane_b32 {s(sKf)}, {v(vFv)}
        s_cmp_lt_u32 {s(sCnt)}, {POLL_LIMIT}
        s_cbranch_scc1 {Lp}
        s_mov_b32 {s(sGive)}, {POLL_LIMIT}""")
        A.label(Lo)
    A(f"""
    s_mov_b32 {s(sW)}, {s(sPtr)}
    s_mov_b32 {s(sW+1)}, {s(sPtr+1)}
    s_mov_b32 {s(sW+2)}, 16384
    v_lshlrev_b32 {v(vT1)}, 11, {v(vm_)}
    v_lshl_add_u32 {v(vT1)}, {v(vg_)}, 4, {v(vT1)}
    v_lshl_add_u32 {v(vT1)}, {v(vc_)}, 3, {v(vT1)}
    s_lshl_b32 {s(sT0)}, {s(sJ)}, 6
    buffer_load_dwordx2 {v(vX,2)}, {v(vT1)}, {s(sW,4)}, {s(sT0)} offen
    """)
    rendezvous(A, vL, sT0, sT1, vT1, vT2, vT3, sGive, POLL_LIMIT, sPar)
    if par >= 0: A(f"s_mov_b32 {s(sPar)}, {par * 8192}")
    A(f"""s_add_u32 {s(sPm)}, {s(sPmL)}, {s(sPar)}
    s_xor_b32 {s(sFast)}, {s(sPass)}, 1
    v_min_u32 {v(vX)}, -2, {v(vX)}
    v_min_u32 {v(vX+1)}, -2, {v(vX+1)}
    buffer_store_dwordx2 {v(vX,2)}, {v(vMemW)}, {s(sWS,4)}, {s(sCur)} offen sc1
    """)
    if force_slow: A(f"s_mov_b32 {s(sFast)}, 0")
    if stamps:
        A(f"""s_lshl_b32 {s(sStO)}, s2, 2
        s_add_u32 {s(sStO)}, {s(sStO)}, {s(sWv)}
        s_lshl_b32 {s(sStO)}, {s(sStO)}, 13
        s_add_u32 {s(sStO)}, {s(sStO)}, {WS_STAMP}""")
    for r in range(32): A(f"v_mov_b32 {v(vAc+r)}, 0")
    Lkv = A.newlabel("kv"); Lkv1 = A.newlabel("kv")
    A(f"""s_cmp_ge_u32 {s(sWv)}, 2
    s_cbranch_scc1 {Lkv}
    s_mov_b32 {s(sNeed)}, 1""")
    flagwait()
    A(f"""s_cmp_eq_u32 {s(sWv)}, 1
    s_cbranch_scc1 {Lkv1}""")
    load_kx()
    A(f"s_branch {Lkv}")
    A.label(Lkv1)
    load_vt()
    A.label(Lkv)
    if ts: ts(1)
    A(f"s_mov_b32 {s(sCnt)}, {s(sGive)}")
    A("s_barrier")
    A(f"""s_cmp_eq_u32 {s(sFast)}, 0
    s_cbranch_scc1 recur_slow_disp""")
    for mode in ("fast", "slow"):
        if mode == "slow": A.label("recur_slow_disp")
        for w in range(1, 4):
            A(f"""s_cmp_eq_u32 {s(sWv)}, {w}
            s_cbranch_scc1 recur_{mode}_w{w}""")
        A(f"s_branch recur_{mode}_w0")

    def check(regs, tmp, dst="vcc"):
        r = list(regs)
        out = [f"v_max3_u32 {v(tmp)}, {v(r[0])}, {v(r[1])}, {v(r[2])}"]
        r = r[3:]
        while len(r) >= 2:
            out.append(f"v_max3_u32 {v(tmp)}, {v(tmp)}, {v(r[0])}, {v(r[1])}"); r = r[2:]
        if r: out.append(f"v_max_u32 {v(tmp)}, {v(tmp)}, {v(r[0])}")
        out.append(f"v_cmp_eq_u32 {dst}, -1, {v(tmp)}")
        return out
    tails = []
    inloop[0] = True
    def giveup(Lretry, Lgo):
        return [f"s_add_u32 {s(sCnt)}, {s(sCnt)}, 1", f"s_cmp_lt_u32 {s(sCnt)}, {POLL_LIMIT}", f"s_cbranch_scc1 {Lretry}",
                f"s_mov_b32 {s(sGive)}, {POLL_LIMIT}", f"s_branch {Lgo}"]
    def rgather(vaddr, so, blk, simple, st1=None, st2=None, cntreg=None):
        n = 4
        ld = [f"buffer_load_dwordx4 {v(vM+4*i,4)}, {v(vaddr)}, {s(sWS,4)}, {s(so)} offen offset:{i*1024} sc1" for i in range(n)]
        A(f"s_mov_b32 {s(sCnt)}, {s(sGive)}")
        stem = A.newlabel("g")
        if simple:
            A.label(stem)
            for x in ld: A(x)
            A("s_waitcnt vmcnt(0)")
            for x in check(range(vM, vM + 16), vT0): A(x)
            A(f"s_cbranch_vccz {stem}k")
            for x in giveup(stem, stem + "k")[:-1]: A(x)
            A.label(stem + "k")
            for i in range(n):
                for x in blk(i, i == n - 1): A(x)
            return
        for i, x in enumerate(ld):
            A(x)
            if i < n - 1: delay(A, pace)
        Lcont = A.newlabel("gc")
        def nxt(S, c):
            for k in range(1, n + 1):
                if (S >> ((c + k) % n)) & 1: return (c + k) % n
        def pre(S, c): return [f"s_waitcnt vmcnt({bin(S).count('1') - 1})"] + check(range(vM+4*c, vM+4*c+4), vT0)
        full = (1 << n) - 1
        for x in pre(full, 0): A(x)
        for i in range(n):
            S = full - ((1 << i) - 1)
            A(f"s_cbranch_vccnz {stem}F{S}_{i}")
            if i == 0 and st1 is not None: stamp(st1)
            if i == n - 1 and st2 is not None: stamp(st2)
            b = blk(i, i == n - 1); nx = pre(S - (1 << i), i + 1) if i < n - 1 else []
            if len(b) >= 4 and nx:
                b = b[:1] + nx[:3] + b[1:2] + nx[3:] + b[2:] if early else b[:-2] + nx[:3] + b[-2:-1] + nx[3:] + b[-1:]
            else:
                b = b + nx
            for x in b: A(x)
        t = []
        done = set()
        order = sorted(((S, c) for S in range(1, full + 1) for c in range(n) if (S >> c) & 1), key=lambda x: -bin(x[0]).count("1"))
        for st0 in order:
            cur = st0
            while cur is not None and cur not in done:
                done.add(cur); S, c = cur
                t += [f"{stem}L{S}_{c}:"] + pre(S, c) + [f"s_cbranch_vccnz {stem}F{S}_{c}"]
                S2 = S - (1 << c)
                if S2 == 0 and stamps and st2 is not None: t += [f"{MT} {s(sSt + 2 * st2, 2)}"]
                t += blk(c, S2 == 0)
                if S2 == 0:
                    t += [f"s_branch {Lcont}"]; cur = None
                else:
                    cur = (S2, nxt(S2, c))
                    if cur in done: t += [f"s_branch {stem}L{cur[0]}_{cur[1]}"]
        for S, c in order:
            t += [f"{stem}F{S}_{c}:", "s_mov_b64 exec, vcc", ld[c], "s_mov_b64 exec, -1"] + giveup(f"{stem}L{S}_{nxt(S, c)}", Lcont)
        tails.append(t)
        A.label(Lcont)
        if stamps and cntreg is not None: A(f"s_mov_b32 {s(cntreg)}, {s(sCnt)}")
    def combine(dst, lo_own, lo_rot, hi_own, hi_rot):
        o = []
        for r in range(4):
            o.append(f"v_add_f32_dpp {v(dst+r)}, {v(lo_rot+r)}, {v(lo_own+r)} row_ror:8 row_mask:0xf bank_mask:0x3")
        for r in range(4):
            o.append(f"v_add_f32_dpp {v(dst+r)}, {v(hi_rot+r)}, {v(hi_own+r)} row_ror:8 row_mask:0xf bank_mask:0xc")
        return o
    def smf(mat, t, u): return f"v_smfmac_f32_16x16x64_bf16 {v(acc(mat,t),4)}, {v(vM+4*u,4)}, {a(aw(mat,t,u),8)}, {v(vIdx)}"
    def pack(dst, src, n=4): return [f"v_cvt_pk_bf16_f32 {v(dst+r)}, {v(src+2*r)}, {v(src+2*r+1)}" for r in range(n)]
    def mf(d, x, y, c): return f"v_mfma_f32_16x16x32_bf16 {v(d,4)}, {v(x,4)}, {v(y,4)}, {v(d,4) if c else 0}"
    def pka(d, x, y): return f"v_pk_add_f32 {v(d,2)}, {v(x,2)}, {v(y,2)}"
    def zero():
        for r in range(32): A(f"v_mov_b32 {v(vAc+r)}, 0")
    def arm_far():
        if not noside & 8: A(f"""s_add_u32 {s(sT0)}, {s(sPmL)}, {2*PM_STEP}
        s_lshr_b32 {s(sT1)}, {s(sT0)}, 8
        s_and_b32 {s(sT1)}, {s(sT1)}, 8192
        s_xor_b32 {s(sT1)}, {s(sT1)}, {s(sPar)}
        s_add_u32 {s(sT0)}, {s(sT0)}, {s(sT1)}
        buffer_store_dwordx4 {v(vOnes,4)}, {v(vPmW)}, {s(sWS,4)}, {s(sT0)} offen sc1
        s_add_u32 {s(sT0)}, {s(sT0)}, {PM_REP}""")
        if nrep == 2 and not noside & 8: A(f"buffer_store_dwordx4 {v(vOnes,4)}, {v(vPmW)}, {s(sWS,4)}, {s(sT0)} offen sc1")
        if not noside & 4: A(f"buffer_store_dword {v(vFv)}, {v(vArm)}, {s(sWS,4)}, 0 offen sc1")

    for mode in ("fast", "slow"):
      LSC = "" if mode == "fast" else " sc1"
      simple = mode == "slow"
      for w in range(4):
        top = f"recur_{mode}_w{w}"
        last = f"recur_{mode}_last{w}"
        def dump():
            A("s_waitcnt lgkmcnt(0)")
            for k in range(14):
                A(f"v_writelane_b32 {v(vT1)}, {s(sSt+2*k)}, {k}")
            for k in range(4):
                A(f"v_writelane_b32 {v(vT1)}, {s(80+k)}, {16+k}")
            A(f"""v_lshlrev_b32 {v(vT2)}, 2, {v(vL)}
            v_mov_b32 {v(vT3)}, {OOB}
            v_cmp_gt_u32 vcc, 20, {v(vL)}
            v_cndmask_b32 {v(vT2)}, {v(vT3)}, {v(vT2)}, vcc
            buffer_store_dword {v(vT1)}, {v(vT2)}, {s(sWS,4)}, {s(sStO)} offen
            s_add_u32 {s(sStO)}, {s(sStO)}, 128""")
        A(".p2align 6")
        A.label(top)
        stamp(0)
        delay(A, dmem)
        def blk_mem(u, lastc):
            return [smf(0,0,u), smf(1,0,u), smf(0,1,u), smf(1,1,u)]
        rgather(vMemR, sCur, blk_mem, simple, 1, 12, cntreg=80)
        vq = [smf(2,t,u) for u in range(4) for t in range(2)]
        for t in range(2):
            for x in pack(vPk + 4*t, vAc + 8*t): A(x)
            A(f"ds_write_b128 {v(vLdsW)}, {v(vPk+4*t,4)} offset:{1024*t}" if w else vq.pop(0))
        if w == 0:
            A(mf(vX, vPk, vSel, 0)); A(mf(vX+4, vPk+4, vSel, 0))
        for k in range(3 if w else 2): A(vq.pop(0))
        if w: A("s_waitcnt lgkmcnt(0)")
        A("s_barrier")
        stamp(2)
        if w == 0:
            for ww in range(1, 4):
                for t in range(2):
                    A(f"ds_read_b128 {v(vR + (ww*2+t)*4, 4)}, {v(vLds)} offset:{ww*2048 + t*1024}")
        def vpack():
            for x in pack(vPk + 8, acc(2, 0)): A(x)
            A(f"ds_write_b128 {v(vLdsW)}, {v(vPk+8,4)} offset:8192")
        for x in vq: A(x)
        if w: vpack()
        if w == 1:
            for k in range(4):
                for r in range(2): A(f"v_mov_b32 {v(vVA+4*k+r)}, {v(vN+2*k+r)}")
        if w == 0:
            for k in range(6):
                lgkm(5 - k)
                A(mf(vX + 4*(k & 1), vR + 8 + 4*k, vSel, 1))
            vpack()
            for x in pack(vXO, vX): A(x)
            A(mf(vD + 4, vKX, vXO, 0)); A(mf(vD + 8, vKX + 4, vXO, 0)); A(mf(vD, vXO, vXO, 0))
            A(f"buffer_store_dwordx4 {v(vD+4,4)}, {v(vScW)}, {s(sWS,4)}, {s(sCur)} offen{LSC}")
            A(f"buffer_store_dwordx4 {v(vD+8,4)}, {v(vScW)}, {s(sWS,4)}, {s(sCur)} offen offset:128{LSC}")
            A(f"buffer_store_dwordx4 {v(vD,4)}, {v(vScWm)}, {s(sWS,4)}, {s(sCur)} offen{LSC}")
        if w == 3: arm_local(sArm, LSC)
        stamp(3)
        A(f"s_cmp_eq_u32 {s(sStep)}, 63")
        A("s_waitcnt lgkmcnt(0)")
        A("s_barrier")
        stamp(4)
        def vsum(d):
            for ww in range(4):
                if ww != w: A(f"ds_read_b128 {v(vR + 4*ww, 4)}, {v(vLds)} offset:{8192 + ww*2048}")
            A(mf(d, vSel, vPk + 8, 0))
            k = 2
            for ww in range(4):
                if ww != w:
                    lgkm(k); k -= 1
                    A(mf(d, vSel, vR + 4*ww, 1))
        fin_ = ["s_waitcnt vmcnt(0)", f"s_branch {L_end}"]
        if w == 0:
            A(f"s_cbranch_scc1 {last}")
            tails.append([f"{last}:", f"buffer_store_dwordx4 {v(vXO,4)}, {v(vKm)}, {s(sWS,4)}, {s(sKm)} offen sc1"] + fin_)
        elif w == 3:
            A(f"s_cbranch_scc1 {L_end}")
            if stamps: dump()
        elif w == 2:
            vsum(vD)
            for x in pack(vVM, vD, 2): A(x)
            for r in range(2):
                A(f"v_mov_b32 {v(vVM+2+r)}, {v(vVM+r)}")
            for r in range(2):
                A(f"v_permlane16_swap_b32 {v(vVM+r)}, {v(vVM+2+r)}")
            A(f"v_mov_b32 {v(vFv)}, {s(sStep)}")
            A(f"s_cbranch_scc1 {last}")
            tails.append([f"{last}:", f"buffer_store_dwordx4 {v(vVM,4)}, {v(vVm)}, {s(sWS,4)}, {s(sVm)} offen sc1"] + fin_)
        else:
            A(f"s_cbranch_scc1 {L_end}")
            def scl(b):
                return [f"buffer_load_dwordx4 {v(b+4*p,4)}, {v(vScR)}, {s(sWS,4)}, {s(sCur)} offen offset:{p*1024} sc1" for p in range(4)] + \
                       [f"buffer_load_dword {v(b+16+p)}, {v(vScRm)}, {s(sWS,4)}, {s(sCur)} offen offset:{p*256} sc1" for p in range(4)]
            def ssum(b, ex, st=False):
                return [f"s_waitcnt vmcnt({6 + ex})", pka(vS, b, b + 4), pka(vS + 2, b + 2, b + 6), f"s_waitcnt vmcnt({4 + ex})",
                        pka(vO, b + 8, b + 12), pka(vO + 2, b + 10, b + 14), pka(vS, vS, vO), pka(vS + 2, vS + 2, vO + 2),
                        pka(vO, vS, vS + 2), f"v_max3_f32 {v(vS+5)}, {v(vS)}, {v(vS+1)}, {v(vS+2)}",
                        f"s_waitcnt vmcnt({ex})"] + ([f"{MT} {s(sSt + 22, 2)}"] if st and stamps else []) + [pka(vO + 4, b + 16, b + 18),
                        f"v_add_f32 {v(vO)}, {v(vO)}, {v(vO+1)}",
                        f"v_add_f32 {v(vS+4)}, {v(vO+4)}, {v(vO+5)}",
                        f"v_max3_f32 {v(vS+5)}, {v(vS+5)}, {v(vS+3)}, {v(vS+4)}",
                        f"v_cmp_u_f32 vcc, {v(vO)}, {v(vS+4)}",
                        f"v_max_f32_dpp {v(vS+5)}, {v(vS+5)}, {v(vS+5)} row_ror:8 row_mask:0xf bank_mask:0xf",
                        f"v_mov_b32 {v(vS+6)}, {v(vS+5)}",
                        f"v_permlane16_swap_b32 {v(vS+5)}, {v(vS+6)}",
                        f"v_max_f32 {v(vS+5)}, {v(vS+5)}, {v(vS+6)}",
                        f"v_mov_b32 {v(vS+6)}, {v(vS+5)}"]
            vP2 = vR + 12
            delay(A, dsc)
            for x in scl(vP): A(x)
            A(f"s_mov_b32 {s(sCnt)}, {s(sGive)}")
            stamp(9)
            vsum(vD)
            if sc2:
                delay(A, sc2 - 1)
                for x in scl(vM): A(x)
            for k in range(4): A(f"v_cvt_pk_bf16_f32 {v(vVA + 4*k + 2)}, {v(vD+k)}, {v(vPB+3)}")
            Lsum = A.newlabel("ss"); Lbad = A.newlabel("sb"); Lgo = A.newlabel("sg")
            stamp(10)
            for x in ssum(vP, 8 if sc2 else 0, True): A(x)
            A(f"s_cbranch_vccnz {Lsum if sc2 else Lbad}")
            A.label(Lgo)
            vB = vM if sc2 else vP
            tails.append([f"{Lbad}:"] + check(range(vB, vB + 20), vT0) + [f"s_cbranch_vccz {Lgo}"] + scl(vB) + giveup(Lsum, Lgo) +
                         [f"{Lsum}:"] + ([f"s_add_u32 {s(sCnt)}, {s(sCnt)}, 1"] if stamps and sc2 else []) + ssum(vB, 0) + [f"s_cbranch_vccnz {Lbad}", f"s_branch {Lgo}"])
            stamp(5)
            if stamps: A(f"s_mov_b32 {s(82)}, {s(sCnt)}")
            A(f"v_permlane32_swap_b32 {v(vS+5)}, {v(vS+6)}")
            A(f"v_max_f32 {v(vS+5)}, {v(vS+5)}, {v(vS+6)}")
            A(f"v_mul_f32 {v(vS+5)}, {s(sC)}, {v(vS+5)}")
            for r in range(5): A(f"v_fma_f32 {v(vS+r)}, {v(vS+r)}, {s(sC)}, -{v(vS+5)}")
            for r in range(5): A(f"v_exp_f32 {v(vS+r)}, {v(vS+r)}")
            A(f"v_cvt_pk_bf16_f32 {v(vPB)}, {v(vS)}, {v(vS+1)}")
            A(f"v_cvt_pk_bf16_f32 {v(vPB+1)}, {v(vS+2)}, {v(vS+3)}")
            A(f"v_cvt_pk_bf16_f32 {v(vPB+2)}, {v(vS+4)}, {v(vPB+3)}")
            A(mf(vSum, vOneBf, vPB, 0))
            for k in range(4): A(mf(vO + 4*k, vVA + 4*k, vPB, 0))
            A(f"v_add_f32_dpp {v(vS+5)}, {v(vSum)}, {v(vSum)} row_ror:8 row_mask:0xf bank_mask:0xf")
            A(f"v_rcp_f32 {v(vS+5)}, {v(vS+5)}")
            for x in combine(vX, vO + 0, vO + 4, vO + 12, vO + 8): A(x)
            for r in range(4): A(f"v_mul_f32 {v(vX+r)}, {v(vX+r)}, {v(vS+5)}")
            for x in pack(vX, vX, 2): A(x)
            A(f"buffer_store_dwordx2 {v(vX,2)}, {v(vObW)}, {s(sWS,4)}, {s(sCur)} offen{LSC}")
        if w < 2:
            A(f"""v_readfirstlane_b32 {s(sKf)}, {v(vFv)}
            s_add_u32 {s(sNeed)}, {s(sStep)}, 2""")
        stamp(6)
        A("s_barrier")
        delay(A, dob)
        def blk_o(u, lastc):
            o = [smf(3,0,u), smf(3,1,u)]
            if lastc:
                o += pack(vPk + 8, acc(3, 0))
                o.append(f"ds_write_b128 {v(vLdsW)}, {v(vPk+8,4)} offset:9216" if w != 3 else mf(vX, vPk + 8, vSel, 0))
            return o
        rgather(vObR, sCur, blk_o, simple, 7, 13, cntreg=81)
        if w != 3: A("s_waitcnt lgkmcnt(0)")
        A("s_barrier")
        stamp(8)
        if w != 3:
            delay(A, dfar)
            if w == 0: store_km()
            if w == 2: store_vm(); arm_far()
            if w < 2:
                flagwait()
                if w == 0: load_kx()
                else: load_vt()
                if not noside & 1: A(f"buffer_load_dword {v(vFv)}, {v(vFlg)}, {s(sWS,4)}, 0 offen sc1")
            delay(A, max(dz - dfar, 0))
            zero()
        else:
            for ww in range(3):
                A(f"ds_read_b128 {v(vR+4*ww,4)}, {v(vLds)} offset:{9216 + ww*2048}")
            for ww in range(3):
                lgkm(2 - ww)
                A(mf(vX, vR + 4*ww, vSel, 1))
            A(f"buffer_store_dwordx4 {v(vX,4)}, {v(vPmW)}, {s(sWS,4)}, {s(sPm)} offen sc1")
            A(f"s_add_u32 {s(sT1)}, {s(sPm)}, {PM_REP}")
            if nrep == 2: A(f"buffer_store_dwordx4 {v(vX,4)}, {v(vPmW)}, {s(sWS,4)}, {s(sT1)} offen sc1")
            stamp(9)
            def pml(base, so):
                return [f"buffer_load_dwordx4 {v(base+4*i,4)}, {v(va)}, {s(sWS,4)}, {s(so)} offen sc1" for i, va in enumerate((vPmR, vPmA, vPmB))]
            mst = f"buffer_store_dwordx2 {v(vS,2)}, {v(vMemW)}, {s(sWS,4)}, {s(sNext)} offen{LSC}"
            def fin(base, Lbad, ex):
                pk = pack(vS, vR+24, 2)
                return [f"s_waitcnt vmcnt({2+ex})", pka(vR+24, vX, base), pka(vR+26, vX+2, base+2), f"s_waitcnt vmcnt({1+ex})",
                        pka(vR+24, vR+24, base+4), pka(vR+26, vR+26, base+6), f"s_waitcnt vmcnt({ex})",
                        pka(vR+24, vR+24, base+8), pka(vR+26, vR+26, base+10), pk[0], pka(vR+28, vR+24, vR+26), pk[1],
                        f"v_cmpx_o_f32 vcc, {v(vR+28)}, {v(vR+29)}", mst, "s_cmp_eq_u64 vcc, -1", "s_mov_b64 exec, -1", f"s_cbranch_scc0 {Lbad}"]
            delay(A, d0)
            A(f"s_mov_b32 {s(sCnt)}, {s(sGive)}")
            for x in pml(vR, sPm): A(x)
            Lr = A.newlabel("pr"); Lgo = A.newlabel("pg"); Lb = A.newlabel("pb"); Lr2 = A.newlabel("pq"); Lf = A.newlabel("pf")
            if nrep == 2:
                delay(A, dd)
                for x in pml(vR + 12, sT1): A(x)
            zero()
            if nrep == 1: A.label(Lb)
            for x in fin(vR, Lr, 3 if nrep == 2 else 0): A(x)
            A.label(Lgo)
            stamp(10)
            if nrep == 1:
                t = [f"{Lr}:"] + check(range(vR, vR + 12), vT0) + [f"s_cbranch_vccz {Lf}"] + pml(vR, sPm) + giveup(Lb, Lf)[:-1]
            else:
                t = [f"{Lr}:"] + fin(vR + 12, Lr2, 1) + [f"s_branch {Lgo}", f"{Lb}:"] + fin(vR + 12, Lr2, 0) + [f"s_branch {Lgo}", f"{Lr2}:"] + \
                    check(range(vR + 12, vR + 24), vT0) + [f"s_cbranch_vccz {Lf}"] + pml(vR + 12, sT1) + giveup(Lb, Lf)[:-1]
            t += [f"{Lf}:", mst, f"s_branch {Lgo}"]
            tails.append(t)
            if stamps: A(f"s_mov_b32 {s(83)}, {s(sCnt)}")
            stamp(11)
            A("s_barrier")
        adv = f"""s_mov_b32 {s(sT0)}, {s(sCur)}
        s_mov_b32 {s(sCur)}, {s(sNext)}
        s_mov_b32 {s(sNext)}, {s(sArm)}
        s_mov_b32 {s(sArm)}, {s(sPrev)}
        s_mov_b32 {s(sPrev)}, {s(sT0)}
        s_add_u32 {s(sPmL)}, {s(sPmL)}, {PM_STEP}
        s_lshr_b32 {s(sPm)}, {s(sPmL)}, 8
        s_and_b32 {s(sPm)}, {s(sPm)}, 8192
        s_xor_b32 {s(sPm)}, {s(sPm)}, {s(sPar)}
        s_add_u32 {s(sPm)}, {s(sPm)}, {s(sPmL)}
        s_add_u32 {s(sStep)}, {s(sStep)}, 1"""
        A(adv)
        if stamps and w != 3: dump()
        if w != 3: A("s_barrier")
        A(f"s_branch {top}")
        for t in tails:
            for x in t: A(x)
        tails.clear()
    A.label(L_end)
    A(f"""s_barrier
    v_mov_b32 {v(vFv)}, 64
    buffer_store_dword {v(vFv)}, {v(vArm)}, {s(sWS,4)}, 0 offen sc1""")
    if ts: ts(2)
    A("s_endpgm")
```

```python
from asmlib import *
from layout import *

class SR:
    sWS = 4
    sX = 8
    sO = 12
    sWv, sT0, sT1, sM0, sSrc, sDst, sIt, sFlagV, sSrcStep, sDstStep, sDstStep2 = range(16, 27)
    vL, vSrc, vDst, vFlag, vT0, vT1, vT2, vT3, vFv = range(1, 10)
    vRd = 10
    vFr = 20
    vAcc = 52
    vPk = 84

def pi_lane(A, dst, src, t0, t1):
    A(f"""v_and_b32 {v(dst)}, 19, {v(src)}
    v_bfe_u32 {v(t0)}, {v(src)}, 2, 1
    v_bfe_u32 {v(t1)}, {v(src)}, 3, 1
    v_lshl_add_u32 {v(dst)}, {v(t0)}, 3, {v(dst)}
    v_lshl_add_u32 {v(dst)}, {v(t1)}, 2, {v(dst)}""")

def perm16(A, dst, src, t0, with_t):
    A(f"""v_bfe_u32 {v(t0)}, {v(src)}, 2, 2
    v_and_b32 {v(dst)}, 3, {v(src)}
    v_lshl_add_u32 {v(dst)}, {v(t0)}, 3, {v(dst)}""")
    if with_t:
        A(f"""v_bfe_u32 {v(t0)}, {v(src)}, 4, 1
        v_lshl_add_u32 {v(dst)}, {v(t0)}, 2, {v(dst)}""")

def aw(t, ks): return (ks * 2 + t) * 4

NSLOT = 20
def load_weights_tr(A, R, sW, sOff, rowbytes, mid=None, pre=4, touch=0, tch=None):
    sh = rowbytes.bit_length() - 1
    A(f"""
    v_lshrrev_b32 {v(R.vT0)}, 2, {v(R.vL)}
    v_and_b32 {v(R.vT1)}, 3, {v(R.vL)}
    v_lshlrev_b32 {v(R.vT3)}, 4, {v(R.vT1)}
    v_lshl_add_u32 {v(R.vT2)}, {v(R.vT0)}, {sh}, {v(R.vT3)}
    s_mul_i32 {s(R.sM0)}, {s(R.sWv)}, {NSLOT*2048}
    """)
    def dma(j):
        for q in range(2):
            A(f"s_add_u32 m0, {s(R.sM0)}, {(j % NSLOT)*2048 + q*1024}")
            A(f"buffer_load_dwordx4 {v(R.vT2)}, {s(sW,4)}, {s(sOff)} offen lds")
            A(f"s_add_u32 {s(sOff)}, {s(sOff)}, {16*rowbytes}")
    vq = []
    def tc(c):
        if c < 8 and touch: tch(c); vq.append(-1)
    def dmat(j):
        dma(j); vq.extend([j] * 2)
    for c in range(touch): tc(c)
    for j in range(pre): dmat(j)
    A(f"""v_bfe_u32 {v(R.vT0)}, {v(R.vL)}, 2, 2
    v_lshrrev_b32 {v(R.vT1)}, 4, {v(R.vL)}
    v_lshl_add_u32 {v(R.vT0)}, {v(R.vT1)}, 3, {v(R.vT0)}
    v_lshl_add_u32 {v(R.vT3)}, {v(R.vT0)}, 6, {v(R.vT3)}
    v_add_u32 {v(R.vT3)}, {s(R.sM0)}, {v(R.vT3)}
    """)
    if mid: mid(len(vq))
    for j in range(pre, NSLOT): dmat(j)
    issued = NSLOT
    for j in range(32):
        A(f"s_waitcnt vmcnt({vq[::-1].index(j)})")
        for tt in range(2):
            for hh in range(2):
                A(f"ds_read_b64_tr_b16 {a(aw(tt, j) + 2*hh, 2)}, {v(R.vT3)} offset:{(j % NSLOT)*2048 + hh*256 + tt*8}")
        if j and issued < 32:
            A("s_waitcnt lgkmcnt(4)")
            dmat(issued); issued += 1
        elif j & 1: A("s_waitcnt lgkmcnt(7)")
    A("s_waitcnt lgkmcnt(0)")

def setup_reads(A, R):
    A(f"""
    v_and_b32 {v(R.vT0)}, 15, {v(R.vL)}
    v_bfe_u32 {v(R.vT1)}, {v(R.vL)}, 1, 3
    v_lshrrev_b32 {v(R.vT2)}, 4, {v(R.vL)}
    v_xor_b32 {v(R.vT1)}, {v(R.vT1)}, {v(R.vT2)}
    v_lshlrev_b32 {v(R.vT1)}, 4, {v(R.vT1)}
    v_lshl_add_u32 {v(R.vRd)}, {v(R.vT0)}, 7, {v(R.vT1)}
    s_lshl_b32 {s(R.sM0)}, {s(R.sWv)}, 10
    v_xor_b32 {v(R.vRd+1)}, 64, {v(R.vRd)}
    """)
    for kk in range(2): A(f"v_add_u32 {v(R.vRd+2+kk)}, 0x10000, {v(R.vRd+kk)}")

def dma_rows(A, R, vrow, vchunk):
    A(f"""
    v_lshrrev_b32 {v(vrow)}, 3, {v(R.vL)}
    s_lshl_b32 {s(R.sT0)}, {s(R.sWv)}, 3
    v_add_u32 {v(vrow)}, {s(R.sT0)}, {v(vrow)}
    v_bfe_u32 {v(vchunk)}, {v(vrow)}, 1, 3
    v_xor_b32 {v(vchunk)}, {v(vchunk)}, {v(R.vL)}
    v_and_b32 {v(vchunk)}, 7, {v(vchunk)}
    """)

def stream_loop(A, R, name, nseg, vtype, dma, store, flag=True, scale=None, loader=False, ttoff=2048, extra=None):
    def dm(H, b):
        return dma(H & 1, b, (H & 3) * 32768 + b * 4096)
    def rd(H, i):
        sl = H & 3; b = i >> 2; kk = (i >> 1) & 1; tt = i & 1
        return f"ds_read_b128 {v(R.vFr + 4*(i & 7), 4)}, {v(R.vRd + kk + 2*(sl >> 1))} offset:{(sl & 1)*32768 + b*4096 + tt*ttoff}"
    adv = [f"s_add_u32 {s(R.sSrc)}, {s(R.sSrc)}, {s(R.sSrcStep)}"]
    top = f"{name}_top"; ent = f"{name}_ent"
    nst = 2
    if loader: flag = False; nst = 0
    def epi(acc):
        o = []
        for r in range(8):
            if scale is not None:
                o.append([f"v_mul_f32 {v(acc+2*r)}, {scale}, {v(acc+2*r)}", f"v_mul_f32 {v(acc+2*r+1)}, {scale}, {v(acc+2*r+1)}",
                          f"v_cvt_pk_bf16_f32 {v(R.vPk+r)}, {v(acc+2*r)}, {v(acc+2*r+1)}"])
            else:
                o.append([f"v_cvt_pk_bf16_f32 {v(R.vPk+r)}, {v(acc+2*r)}, {v(acc+2*r+1)}"])
        return o
    def flagst():
        return [f"v_mov_b32 {v(R.vFv)}, {s(R.sFlagV)}", f"s_add_u32 {s(R.sFlagV)}, {s(R.sFlagV)}, 1",
                f"buffer_store_dword {v(R.vFv)}, {v(R.vFlag)}, {s(R.sWS,4)}, 0 offen sc1"]
    A(f"""s_mov_b32 {s(R.sDstStep2)}, {s(R.sDstStep)}
    s_sub_u32 {s(R.sDstStep)}, {s(R.sDst)}, {OOB}
    s_mov_b32 {s(R.sDst)}, {OOB}
    s_mov_b32 {s(R.sFlagV)}, 0
    s_mov_b32 {s(R.sIt)}, 0""")
    for H in range(3):
        for b in range(8 if H < 2 else 3):
            for x in dm(H, b): A(x)
        if H == 1:
            for x in adv: A(x)
    if flag:
        for x in flagst(): A(x)
        A(f"s_mov_b32 {s(R.sFlagV)}, 0")
    A(f"s_waitcnt vmcnt({12 if flag else 11})")
    A("s_barrier")
    if not loader:
        for i in range(7): A(rd(0, i))
    A(".p2align 6")
    A.label(top)
    for H in range(4):
        acc = R.vAcc + 16 * (H >> 1); pacc = R.vAcc + 16 * (1 - (H >> 1))
        fill = {i: [] for i in range(32)}
        for k, b in enumerate(range(3, 8)): fill[1 + 2*k] += dm(H + 2, b)
        if H & 1: fill[10] += adv
        for k, b in enumerate(range(3)): fill[26 + 2*k] += dm(H + 3, b)
        if loader: pass
        elif not (H & 1):
            e = epi(pacc)
            for r in range(8): fill[10 + r] += e[r]
            fill[15] += store(0); fill[19] += store(1)
            fill[20] += [f"s_add_u32 {s(R.sDst)}, {s(R.sDst)}, {s(R.sDstStep)}", f"s_mov_b32 {s(R.sDstStep)}, {s(R.sDstStep2)}"]
        elif flag:
            fill[27] += flagst()
        inflight = 8 + (nst + (1 if flag else 0) if not (H & 1) else 0)
        if extra and H == 0:
            fill[22] += extra; inflight += sum(x.startswith('buffer_') for x in extra)
        for i in range(32):
            if loader:
                if i == 25:
                    A(f"s_waitcnt vmcnt({inflight})")
                    A("s_barrier")
                for x in fill[i]: A(x)
                continue
            A(f"s_waitcnt lgkmcnt(6)")
            x = v(R.vFr + 4 * (i & 7), 4); tt = i & 1; ks = (H & 1) * 16 + (i >> 1)
            for t in range(2):
                w = a(aw(t, ks), 4)
                d = v(acc + (t*8 + tt*4 if vtype else tt*8 + t*4), 4)
                A(f"v_mfma_f32_16x16x32_bf16 {d}, {x if vtype else w}, {w if vtype else x}, {0 if ks == 0 else d}")
                if t == 0:
                    if i == 25:
                        A(f"s_waitcnt vmcnt({inflight})")
                        A("s_barrier")
                    A(rd(H, i + 7) if i + 7 < 32 else rd(H + 1, i + 7 - 32))
                    if fill[i] and fill[i][0].startswith("s_add_u32 m0"): A(fill[i].pop(0))
            for x in fill[i]: A(x)
    A(f"""s_add_u32 {s(R.sIt)}, {s(R.sIt)}, 2
    s_cmp_lt_u32 {s(R.sIt)}, {nseg}
    s_cbranch_scc1 {top}""")
    if loader:
        A("s_waitcnt vmcnt(0)")
        return
    for e in epi(R.vAcc + 16):
        for x in e: A(x)
    for x in store(0) + store(1): A(x)
    A("s_waitcnt vmcnt(0) lgkmcnt(0)")
    if flag:
        for x in flagst(): A(x)

def gen_P(A, sMat, sHead, done, ts=False, rdv=None, mid=None, pre=4, touch=1):
    R = SR
    sP = 28
    A(f"""
    s_load_dwordx2 {s(R.sO,2)}, s[0:1], {KA_WQ}
    s_load_dwordx2 {s(sP,2)}, s[0:1], {KA_WK}
    s_load_dwordx2 {s(sP+2,2)}, s[0:1], {KA_WV}
    s_load_dwordx2 {s(R.sX,2)}, s[0:1], {KA_BX}
    s_mov_b32 {s(R.sX+2)}, {4*MB}
    s_mov_b32 {s(R.sX+3)}, 0x20000
    s_mov_b32 {s(R.sO+2)}, {8*MB}
    s_mov_b32 {s(R.sO+3)}, 0x20000
    s_waitcnt lgkmcnt(0)
    s_cmp_eq_u32 {s(sMat)}, 1
    s_cselect_b64 {s(R.sO,2)}, {s(sP,2)}, {s(R.sO,2)}
    s_cmp_eq_u32 {s(sMat)}, 2
    s_cselect_b64 {s(R.sO,2)}, {s(sP+2,2)}, {s(R.sO,2)}
    s_lshl_b32 {s(sP)}, {s(sHead)}, 2
    s_add_u32 {s(sP)}, {s(sP)}, {s(R.sWv)}          ; blk
    s_lshl_b32 {s(R.sSrc)}, {s(sP)}, 6
    """)
    def tch(c):
        A(f"""s_and_b32 {s(R.sT0)}, {s(sHead)}, 3
        s_lshl_b32 {s(R.sT0)}, {s(R.sT0)}, 8
        v_add_lshl_u32 {v(R.vSrc)}, v0, {s(R.sT0)}, 13
        s_andn2_b32 {s(R.sT0)}, {s(sHead)}, 3
        s_lshl_b32 {s(R.sT0)}, {s(R.sT0)}, 8
        buffer_load_dword v253, {v(R.vSrc)}, {s(R.sO,4)}, {s(R.sT0)} offen offset:384""")
    load_weights_tr(A, R, R.sO, R.sSrc, 8192, mid, pre, touch, tch)
    if rdv: rdv()
    if ts: tstamp(A, R, 1)
    setup_reads(A, R)
    dma_rows(A, R, R.vT2, R.vT3)
    perm16(A, R.vSrc, R.vT2, R.vT0, True)
    perm16(A, R.vDst, R.vL, R.vT0, False)
    A(f"""
    v_lshlrev_b32 {v(R.vSrc)}, 11, {v(R.vSrc)}
    v_lshl_add_u32 {v(R.vSrc)}, {v(R.vT3)}, 4, {v(R.vSrc)}
    v_and_b32 {v(R.vT0)}, 48, {v(R.vL)}
    v_lshl_add_u32 {v(R.vDst)}, {v(R.vDst)}, 6, {v(R.vT0)}
    s_mul_i32 {s(R.sDst)}, {s(sP)}, {BLK}
    s_mul_i32 {s(R.sT1)}, {s(sMat)}, {QKV_STRIDE}
    s_add_u32 {s(R.sDst)}, {s(R.sDst)}, {s(R.sT1)}
    s_lshl_b32 {s(R.sT1)}, {s(sMat)}, 7
    s_add_u32 {s(R.sT0)}, {s(sP)}, {s(R.sT1)}
    s_lshl_b32 {s(R.sT0)}, {s(R.sT0)}, 7
    s_add_u32 {s(R.sT0)}, {s(R.sT0)}, {WS_FLAG + FLAG_P}
    v_mov_b32 {v(R.vFlag)}, {s(R.sT0)}
    v_mov_b32 {v(R.vT0)}, {OOB}
    v_cmp_eq_u32 vcc, 0, {v(R.vL)}
    v_cndmask_b32 {v(R.vFlag)}, {v(R.vT0)}, {v(R.vFlag)}, vcc
    s_mov_b32 {s(R.sSrc)}, 0
    s_mov_b32 {s(R.sSrcStep)}, 65536
    s_mov_b32 {s(R.sDstStep)}, 2048
    s_barrier
    s_cmp_eq_u32 {s(sMat)}, 2
    s_cbranch_scc1 P_v
    """)
    def dma(half, b, lds):
        off = half * 1024 + b * 128
        return [f"s_add_u32 m0, {s(R.sM0)}, {lds - off}", f"buffer_load_dwordx4 {v(R.vSrc)}, {s(R.sX,4)}, {s(R.sSrc)} offen offset:{off} lds"]
    def store(u):
        return [f"buffer_store_dwordx4 {v(R.vPk+4*u,4)}, {v(R.vDst)}, {s(R.sWS,4)}, {s(R.sDst)} offen offset:{256*u} sc1"]
    stream_loop(A, R, "P_qk", 64, False, dma, store)
    A(f"s_branch {done}")
    A.label("P_v")
    stream_loop(A, R, "P_v", 64, True, dma, store)
    A(f"s_branch {done}")

def common_entry(A, R, nwg, end):
    A(f"""
    s_cmp_ge_u32 s2, {nwg}
    s_cbranch_scc1 {end}
    s_load_dwordx2 {s(R.sWS,2)}, s[0:1], {KA_WS}
    v_lshrrev_b32 {v(R.vT0)}, 6, v0
    v_and_b32 {v(R.vL)}, 63, v0
    v_readfirstlane_b32 {s(R.sWv)}, {v(R.vT0)}
    s_mov_b32 {s(R.sWS+2)}, {WS_BYTES}
    s_mov_b32 {s(R.sWS+3)}, 0x20000
    s_waitcnt lgkmcnt(0)
    """)

def tstamp(A, R, k, sT=74, vt=252):
    A(f"""s_memrealtime {s(sT,2)}
    s_memtime {s(sT+2,2)}
    s_lshl_b32 {s(sT+4)}, s2, 2
    s_add_u32 {s(sT+4)}, {s(sT+4)}, {s(R.sWv)}
    s_lshl_b32 {s(sT+4)}, {s(sT+4)}, 6
    s_add_u32 {s(sT+4)}, {s(sT+4)}, {WS_STAMP + 12*MB + 8*k}
    s_waitcnt lgkmcnt(0)
    v_mov_b32 {v(vt+2)}, {s(sT)}
    v_mov_b32 {v(vt+3)}, {s(sT+2)}
    v_mov_b32 {v(vt)}, 0
    buffer_store_dwordx2 {v(vt+2,2)}, {v(vt)}, {s(R.sWS,4)}, {s(sT+4)} offen
    s_waitcnt vmcnt(0)""")
```

```python
import sys
from build import *
from stream import *
from attn import *
from fft import *
from recur6 import gen_recur
from proto import *

def dbgdump(A, sWS, sWv, sel, base, mask):
    L = A.newlabel("dd")
    A(f"""s_cmp_lg_u32 s2, {sel}
    s_cbranch_scc1 {L}
    s_cmp_lg_u32 {s(sWv)}, 0
    s_cbranch_scc1 {L}
    s_mov_b64 exec, {mask}
    v_lshlrev_b32 v10, 3, v0
    v_add_u32 v10, {WS_STAMP + 12*MB + sel*256}, v10
    buffer_load_dword v11, v10, {s(sWS,4)}, 0 offen sc1
    v_mbcnt_lo_u32_b32 v12, {mask}, 0
    v_add_lshl_u32 v12, v12, {base}, 2
    s_waitcnt vmcnt(0)
    global_store_dword v12, v11, {s(sDbg,2)} sc1
    s_waitcnt vmcnt(0)""".replace(f"v_mbcnt_lo_u32_b32 v12, {mask}, 0", f"v_mbcnt_lo_u32_b32 v12, exec_lo, 0"))
    A.label(L)

def gen(ts=False, notu=0, **kw):
    A = Asm(); R = SR
    sG, sI, sGive, sCu = 90, 91, 92, 93
    entry(A, "W_end", kw.pop("xmap", 1))
    A("""s_bitcmp1_b32 s3, 2
    s_cbranch_scc0 R_entry""")
    common_entry(A, R, 256, "W_end")
    if ts: tstamp(A, R, 0)
    A(f"""s_lshr_b32 {s(sG)}, s2, 6
    s_bfe_u32 {s(sI)}, s2, 0x30003
    s_lshl_b32 {s(sI)}, {s(sI)}, 2
    s_and_b32 {s(R.sT0)}, s3, 3
    s_add_u32 {s(sI)}, {s(sI)}, {s(R.sT0)}
    s_lshl_b32 {s(sCu)}, {s(R.sT0)}, 3
    s_lshr_b32 {s(R.sT0)}, {s(sI)}, 2
    s_add_u32 {s(sCu)}, {s(sCu)}, {s(R.sT0)}
    s_mov_b32 {s(sGive)}, 0
    s_lshl_b32 {s(R.sT0)}, {s(sCu)}, 2
    s_add_u32 {s(R.sT0)}, {s(R.sT0)}, {s(R.sWv)}            ; 4 idx + w
    s_lshl_b32 {s(R.sT1)}, {s(sG)}, 7
    s_add_u32 {s(R.sT1)}, {s(R.sT1)}, {s(R.sT0)}
    s_lshl_b32 {s(R.sT1)}, {s(R.sT1)}, 7
    s_add_u32 {s(R.sT1)}, {s(R.sT1)}, {WS_FLAG + FLAG_P}
    s_lshl_b32 {s(R.sSrc)}, {s(R.sT0)}, 7
    s_add_u32 {s(R.sSrc)}, {s(R.sSrc)}, {WS_FLAG + FLAG_T}
    s_cmp_eq_u32 {s(sG)}, 3
    s_cselect_b32 {s(R.sT1)}, {s(R.sSrc)}, {s(R.sT1)}
    s_cselect_b64 exec, 7, 1
    v_mov_b32 {v(R.vT0)}, {s(R.sT1)}
    s_and_b32 {s(R.sT1)}, {s(R.sT0)}, 31
    s_lshl_b32 {s(R.sT1)}, {s(R.sT1)}, 2
    s_lshr_b32 {s(R.sSrc)}, {s(sCu)}, 3
    s_add_u32 {s(R.sT1)}, {s(R.sT1)}, {s(R.sSrc)}
    s_lshl_b32 {s(R.sT1)}, {s(R.sT1)}, 7
    s_add_u32 {s(R.sT1)}, {s(R.sT1)}, {WS_FLAG + FLAG_F}
    v_writelane_b32 {v(R.vT0)}, {s(R.sT1)}, 1
    s_lshl_b32 {s(R.sT1)}, {s(R.sT0)}, 7
    s_add_u32 {s(R.sT1)}, {s(R.sT1)}, {WS_FLAG + FLAG_F2}
    v_writelane_b32 {v(R.vT0)}, {s(R.sT1)}, 2
    v_mov_b32 {v(R.vT1)}, 0
    buffer_store_dword {v(R.vT1)}, {v(R.vT0)}, {s(R.sWS,4)}, 0 offen sc1
    s_mov_b64 exec, -1
    s_cmp_eq_u32 {s(sG)}, 3
    s_cbranch_scc1 W_F
    s_load_dwordx2 {s(R.sX,2)}, s[0:1], {KA_BX}
    s_mov_b32 {s(R.sX+2)}, {4*MB}
    s_mov_b32 {s(R.sX+3)}, 0x20000
    s_lshr_b32 {s(R.sT0)}, s2, 3
    s_lshl_b32 {s(R.sT0)}, {s(R.sT0)}, 15
    v_lshlrev_b32 {v(R.vT0)}, 7, v0
    s_waitcnt lgkmcnt(0)
    buffer_load_dword v254, {v(R.vT0)}, {s(R.sX,4)}, {s(R.sT0)} offen""")
    def rdv(): rendezvous(A, R.vL, R.sT0, R.sT1, R.vT0, R.vT1, R.vFv, sGive, SPIN)
    def reg(n):
        A(f"""s_waitcnt vmcnt({n})
        s_barrier""")
        register(A, R.sWv, R.sT0, R.sT1, R.vT0, R.vT1)
    qlate = kw.pop("qlate", 1)
    def notq(f):
        def g(*x):
            L = A.newlabel("nq")
            if qlate: A(f"""s_cmp_eq_u32 {s(sG)}, 0
            s_cbranch_scc1 {L}""")
            f(*x)
            A.label(L)
        return g
    if qlate:
        A(f"""s_cmp_lg_u32 {s(sG)}, 0
        s_cbranch_scc1 W_P""")
        A("""s_waitcnt vmcnt(0)
        s_barrier""")
        vote(A, R, sI)
        reg(0)
        A.label("W_P")
    touch = kw.pop("ptouch", 1)
    gen_P(A, sG, sCu, "W_U", ts=ts, mid=notq(lambda n: (reg(n + 1), A('s_barrier'))), pre=2 * kw.get('pre', 1), touch=touch)
    A.label("W_U")
    rdv()
    if ts: tstamp(A, R, 2)
    if notu & 1: A("s_branch W_fin")
    gen_U64(A, sG, sCu, "W_fin", sGive, ts=ts, usl=kw.pop("usl", 2), touch=touch)
    A.label("W_F")
    if not qlate:
        A("""s_waitcnt vmcnt(0)
        s_barrier""")
        vote(A, R, sI)
    reg(0)
    ft = kw.pop("ft", 0)
    if ft:
        A(f"""s_load_dwordx2 {s(R.sX,2)}, s[0:1], {KA_WO}
        s_load_dwordx2 {s(R.sO,2)}, s[0:1], {KA_WQ}
        s_mov_b32 {s(R.sX+2)}, {8*MB}
        s_mov_b32 {s(R.sX+3)}, 0x20000
        s_mov_b32 {s(R.sO+2)}, {8*MB}
        s_mov_b32 {s(R.sO+3)}, 0x20000
        s_lshl_b32 {s(R.sT0)}, {s(sCu)}, 18
        v_lshlrev_b32 {v(R.vT0)}, 7, v0
        s_waitcnt lgkmcnt(0)""")
        for k in range(8):
            if ft & 2: A(f"buffer_load_dword {v(232+k)}, {v(R.vT0)}, {s(R.sO,4)}, {s(R.sT0)} offen")
            if ft & 1: A(f"buffer_load_dword {v(240+k)}, {v(R.vT0)}, {s(R.sX,4)}, {s(R.sT0)} offen")
            A(f"s_add_u32 {s(R.sT0)}, {s(R.sT0)}, 32768")
    gen_F(A, sCu, "W_T", sGive, rdv=rdv, ts=ts)
    A.label("W_T")
    if ts: tstamp(A, R, 6)
    if notu & 2: A("s_branch W_fin")
    gen_T(A, sCu, "W_fin", sGive)
    A.label("W_fin")
    if ts: tstamp(A, R, 7)
    if ts == 2:
        dbgdump(A, R.sWS, R.sWv, 64 + 12, 3, 0x8f); dbgdump(A, R.sWS, R.sWv, 192 + 12, 8, 0xff)
    A.label("W_end")
    A("s_endpgm")
    A.label("R_entry")
    class RR: sWS = 4; sWv = 14
    def rts(k):
        tstamp(A, RR, k, vt=248)
        if ts == 2 and k == 2: dbgdump(A, RR.sWS, RR.sWv, 8, 0, 7)
    gen_recur(A, ts=rts if ts else None, **kw)
    return A

if __name__ == "__main__":
    kw = {}
    for x in sys.argv[2:]:
        k, val = x.split("="); kw[k] = int(val)
    A = gen(**kw)
    name = NAME + "_kernel"
    txt = assemble_file([(name, 256, 256, LDS_BYTES)], [kernel_text(name, A)])
    open(sys.argv[1], "w").write(txt)
```

```python
from asmlib import *
from layout import *
from stream import *
import struct, math
def f32bits(x): return struct.unpack("<I", struct.pack("<f", x))[0]
SPIN = 1 << 20
LD = ""

def idump(A, R, vv):
    A(f"""s_lshl_b32 {s(R.sT0)}, s2, 10
    s_add_u32 {s(R.sT0)}, {s(R.sT0)}, {WS_STAMP + 13*MB}
    v_lshlrev_b32 {v(R.vT0)}, 2, v0
    buffer_store_dword {v(vv)}, {v(R.vT0)}, {s(R.sWS,4)}, {s(R.sT0)} offen""")

def gen_T(A, sHead, done, sGive, tfree=0, tpat=0, its=0):
    its = its == 1
    R = SR
    sSeg, sC, sCnt, sQ, sKm, sOo, sNx, sHave = 28, 29, 30, 31, 32, 33, 34, 35
    sMask = 36
    sQn, sKn = 68, 69
    vQa, vKa, vKma, vVma, vOa, vFa, vFl, vTf, vMx, vSm = range(10, 20)
    aQ = lambda b: 96*b
    aK = lambda b: 96*b + 32
    aV = lambda b: 96*b + 64
    vKM = lambda b: 20 + 48*b
    vVM = lambda b: 52 + 48*b
    vS, vSM, vP = 116, 132, 148
    vO = 160
    vPk = 224
    pi_lane(A, R.vT2, R.vL, R.vT0, R.vT1)
    A(f"""
    v_lshrrev_b32 {v(R.vT0)}, 5, {v(R.vL)}            ; h2
    v_and_b32 {v(R.vT1)}, 31, {v(R.vL)}               ; q / row
    v_lshlrev_b32 {v(R.vT3)}, 4, {v(R.vT0)}
    v_lshl_add_u32 {v(vQa)}, {v(R.vT1)}, 6, {v(R.vT3)}
    v_lshl_add_u32 {v(vKa)}, {v(R.vT2)}, 6, {v(R.vT3)}
    v_mov_b32 {v(vTf)}, {OOB}
    v_cmp_gt_u32 vcc, 8, {v(R.vT1)}
    v_cndmask_b32 {v(vKma)}, {v(vTf)}, {v(vQa)}, vcc
    v_lshlrev_b32 {v(vVma)}, 3, {v(R.vT0)}
    v_lshl_add_u32 {v(vVma)}, {v(R.vT2)}, 4, {v(vVma)}
    ; O address: (q>>4)*128K + h2*256 + (q&15)*16
    v_and_b32 {v(vOa)}, 15, {v(R.vL)}
    v_lshlrev_b32 {v(vOa)}, 4, {v(vOa)}
    v_lshl_add_u32 {v(vOa)}, {v(R.vT0)}, 8, {v(vOa)}
    v_bfe_u32 {v(R.vT3)}, {v(R.vL)}, 4, 1
    v_lshl_add_u32 {v(vOa)}, {v(R.vT3)}, 17, {v(vOa)}
    v_lshrrev_b32 {v(vFa)}, 2, {v(R.vL)}
    v_and_b32 {v(R.vT3)}, 3, {v(R.vL)}
    v_lshl_add_u32 {v(vFa)}, {v(vFa)}, 7, {v(R.vT3)}
    s_lshl_b32 {s(R.sT0)}, {s(sHead)}, 2
    v_add_u32 {v(vFa)}, {s(R.sT0)}, {v(vFa)}
    v_lshlrev_b32 {v(vFa)}, 7, {v(vFa)}
    v_add_u32 {v(vFa)}, {WS_FLAG + FLAG_P}, {v(vFa)}
    v_cmp_gt_u32 vcc, 16, {v(R.vL)}
    v_cndmask_b32 {v(vFa)}, {v(vTf)}, {v(vFa)}, vcc
    v_mov_b32 {v(vFl)}, 0
    s_add_u32 {s(R.sT1)}, {s(R.sWv)}, {s(R.sT0)}
    s_lshl_b32 {s(R.sT1)}, {s(R.sT1)}, 7
    s_add_u32 {s(R.sT1)}, {s(R.sT1)}, {WS_FLAG + FLAG_T}
    v_lshl_add_u32 {v(R.vFlag)}, {v(R.vL)}, 2, {s(R.sT1)}
    v_cmp_gt_u32 vcc, 32, {v(R.vL)}
    v_cndmask_b32 {v(R.vFlag)}, {v(vTf)}, {v(R.vFlag)}, vcc
    v_lshlrev_b32 {v(R.vT0)}, 3, {v(R.vT0)}
    v_sub_u32 {v(R.vT1)}, {v(R.vT1)}, {v(R.vT0)}      ; q - 8*h2 (signed)
    s_mov_b32 {s(sC)}, {f32bits(128 ** -0.5 * math.log2(math.e))}
    s_mov_b32 {s(sSeg)}, {s(R.sWv)}
    s_mul_i32 {s(sQ)}, {s(R.sT0)}, {BLK}
    s_lshl_b32 {s(R.sT1)}, {s(sSeg)}, 11
    s_add_u32 {s(sQ)}, {s(sQ)}, {s(R.sT1)}
    s_mul_i32 {s(sKm)}, {s(R.sT0)}, {MBLK}
    s_lshl_b32 {s(R.sT1)}, {s(sSeg)}, 9
    s_add_u32 {s(sKm)}, {s(sKm)}, {s(R.sT1)}
    s_add_u32 {s(sKm)}, {s(sKm)}, {WS_KM}
    s_lshl_b32 {s(sOo)}, {s(sSeg)}, 18
    s_lshl_b32 {s(R.sT1)}, {s(sHead)}, 12
    s_add_u32 {s(sOo)}, {s(sOo)}, {s(R.sT1)}
    s_add_u32 {s(sOo)}, {s(sOo)}, {WS_O}
    v_mov_b32 {v(vTf)}, 0xff800000
    s_mov_b32 {s(sHave)}, 0
    v_mov_b32 {v(R.vFv)}, 0
    """)
    if tpat == 1: A(f"""v_lshlrev_b32 {v(vQa)}, 4, {v(R.vL)}
    v_lshlrev_b32 {v(vKa)}, 4, {v(R.vL)}""")
    if tpat == 2: A(f"""v_and_b32 {v(vQa)}, 31, {v(R.vL)}
    v_lshlrev_b32 {v(vQa)}, 5, {v(vQa)}
    v_lshl_add_u32 {v(vQa)}, {v(R.vT0)}, 1, {v(vQa)}
    v_mov_b32 {v(vKa)}, {v(vQa)}""")
    if tpat == 3: A(f"""v_lshlrev_b32 {v(vKa)}, 4, {v(R.vT2)}
    v_lshl_add_u32 {v(vKa)}, {v(R.vT0)}, 6, {v(vKa)}
    v_mov_b32 {v(vQa)}, {v(vKa)}""")
    RM = 0 if tfree else 0xf000
    for r in range(16): A(f"v_cmp_le_i32 {s(sMask+2*r,2)}, {16*(r>>3) + (r&7)}, {v(R.vT1)}")
    for b in range(2):
        for es in range(4):
            A(f"v_mov_b32 {v(vVM(b)+4*es+2)}, 0"); A(f"v_mov_b32 {v(vVM(b)+4*es+3)}, 0")
    A(f"v_mov_b32 {v(vP+10)}, 0"); A(f"v_mov_b32 {v(vP+11)}, 0")
    ldfl = f"buffer_load_dword {v(vFl)}, {v(vFa)}, {s(R.sWS,4)}, 0 offen sc1"
    stfl = f"buffer_store_dword {v(R.vFv)}, {v(R.vFlag)}, {s(R.sWS,4)}, 0 offen sc1"
    def spin(name, sNeed, mask, ok, slp):
        return [f"s_mov_b32 {s(sCnt)}, {s(sGive)}", f"{name}:",
                f"v_cmp_ge_u32 vcc, {s(sNeed)}, {v(vFl)}", f"s_and_b32 {s(R.sT0)}, vcc_lo, {mask}", f"s_cbranch_scc0 {ok}",
                f"s_cmp_ge_u32 {s(sCnt)}, {SPIN}", f"s_cselect_b32 {s(sGive)}, {SPIN}, {s(sGive)}", f"s_cbranch_scc1 {ok}",
                f"s_add_u32 {s(sCnt)}, {s(sCnt)}, 1", ldfl, f"s_sleep {slp}", "s_waitcnt vmcnt(0)", f"s_branch {name}"]
    def ldq(b, so):
        o = []
        for mat, reg, va in ((0, aQ(b), vQa), (1, aK(b), vKa), (2, aV(b), vKa)):
            for es in range(4):
                o.append([f"s_add_u32 {s(R.sT0)}, {s(so)}, {mat*QKV_STRIDE + es*BLK}"] +
                         [f"buffer_load_dwordx4 {a(reg+(es*2+u)*4,4)}, {v(va)}, {s(R.sWS,4)}, {s(R.sT0)} offen offset:{(1024 if tpat else 32)*u}{LD}" for u in range(2)])
        return o
    def ldm(b, so):
        o = []
        for es in range(4):
            o.append([f"s_add_u32 {s(R.sT0)}, {s(so)}, {es*MBLK}", f"s_add_u32 {s(R.sT1)}, {s(so)}, {es*MBLK + WS_VMT - WS_KM}"] +
                     [f"buffer_load_dwordx4 {v(vKM(b)+(es*2+u)*4,4)}, {v(vKma)}, {s(R.sWS,4)}, {s(R.sT0)} offen offset:{32*u}{LD}" for u in range(2)] +
                     [f"buffer_load_dwordx2 {v(vVM(b)+4*es,2)}, {v(vVma)}, {s(R.sWS,4)}, {s(R.sT1)} offen{LD}"])
        return o
    def x32(op, x):
        A(f"""v_mov_b32 {v(R.vT0)}, {v(x)}
        v_permlane32_swap_b32 {v(x)}, {v(R.vT0)}
        {op} {v(x)}, {v(x)}, {v(R.vT0)}""")
    for x in spin("T_p", sSeg, 0xfff, "T_pk", 8): A(x)
    A.label("T_pk")
    for g in ldq(0, sQ):
        for x in g: A(x)
    tails = []
    def ist():
        if its: A(f"""s_memrealtime s[72:73]
        s_waitcnt lgkmcnt(0)
        v_writelane_b32 {v(R.vSrc)}, s72, m0
        s_add_u32 m0, m0, 1""")
    if its: A("s_mov_b32 m0, 0")
    for b in range(2):
        A.label(f"T_top{b}")
        ist()
        A(f"""s_cmp_eq_u32 {s(sHave)}, 0
        s_cbranch_scc1 T_slow{b}""")
        A.label(f"T_go{b}")
        A(f"""s_add_u32 {s(sNx)}, {s(sSeg)}, 4
        s_min_u32 {s(sQn)}, {s(sNx)}, 63
        s_waitcnt vmcnt(8)
        v_cmp_ge_u32 vcc, {s(sQn)}, {v(vFl)}
        s_and_b32 {s(R.sT0)}, vcc_lo, 0xfff
        s_cbranch_scc1 T_pw{b}""")
        A.label(f"T_pok{b}")
        ist()
        A(f"""s_add_u32 {s(sQ)}, {s(sQ)}, {4*2048}
        s_add_u32 {s(sKm)}, {s(sKm)}, {4*512}
        s_and_b32 {s(R.sT0)}, vcc_lo, {RM}
        s_cselect_b32 {s(sHave)}, 0, 1
        s_cselect_b32 {s(sKn)}, {OOB}, {s(sKm)}
        s_cmp_lt_u32 {s(sNx)}, 64
        s_cselect_b32 {s(sQn)}, {s(sQ)}, {OOB}
        s_cselect_b32 {s(sKn)}, {s(sKn)}, {OOB}
        {ldfl}""")
        tails.append([f"T_slow{b}:", "s_waitcnt vmcnt(0)", stfl] + spin(f"T_s{b}", sSeg, RM, f"T_sk{b}", 2) + [f"T_sk{b}:"] +
                     [x for g in ldm(b, sKm) for x in g] + ["s_waitcnt vmcnt(0)", f"s_branch T_go{b}"])
        tails.append([f"T_pw{b}:"] + spin(f"T_q{b}", sQn, 0xfff, f"T_pok{b}", 8))
        nx = ldq(1 - b, sQn) + ldm(1 - b, sKn)
        for k in range(8):
            A(f"v_mfma_f32_32x32x16_bf16 {v(vS,16)}, {a(aK(b)+4*k,4)}, {a(aQ(b)+4*k,4)}, {v(vS,16) if k else 0}")
            for x in nx.pop(0): A(x)
        for k in range(8):
            A(f"v_mfma_f32_32x32x16_bf16 {v(vSM,16)}, {v(vKM(b)+4*k,4)}, {a(aQ(b)+4*k,4)}, {v(vSM,16) if k else 0}")
            for x in nx.pop(0): A(x)
        ist()
        for r in range(16): A(f"v_cndmask_b32 {v(vS+r)}, {v(vTf)}, {v(vS+r)}, {s(sMask+2*r,2)}")
        A(f"v_max3_f32 {v(vMx)}, {v(vS)}, {v(vS+1)}, {v(vS+2)}")
        for r in range(3, 19, 2): A(f"v_max3_f32 {v(vMx)}, {v(vMx)}, {v(vS+r)}, {v(vS+r+1)}")
        A(f"v_max_f32 {v(vMx)}, {v(vMx)}, {v(vS+19)}")
        x32("v_max_f32", vMx)
        A(f"v_mul_f32 {v(vMx)}, {s(sC)}, {v(vMx)}")
        for r in range(20): A(f"v_fma_f32 {v(vS+r)}, {v(vS+r)}, {s(sC)}, -{v(vMx)}")
        for r in range(20): A(f"v_exp_f32 {v(vS+r)}, {v(vS+r)}")
        A("s_waitcnt vmcnt(37)")
        ist()
        A(stfl)
        A(f"v_add_f32 {v(vSm)}, {v(vS)}, {v(vS+1)}")
        A(f"v_add_f32 {v(R.vT1)}, {v(vS+2)}, {v(vS+3)}")
        for r in range(4, 20, 2):
            A(f"v_add_f32 {v(vSm)}, {v(vSm)}, {v(vS+r)}")
            A(f"v_add_f32 {v(R.vT1)}, {v(R.vT1)}, {v(vS+r+1)}")
        A(f"v_add_f32 {v(vSm)}, {v(vSm)}, {v(R.vT1)}")
        x32("v_add_f32", vSm)
        A(f"v_rcp_f32 {v(vSm)}, {v(vSm)}")
        for r in range(20): A(f"v_mul_f32 {v(vS+r)}, {v(vS+r)}, {v(vSm)}")
        for r in range(10): A(f"v_cvt_pk_bf16_f32 {v(vP+r)}, {v(vS+2*r)}, {v(vS+2*r+1)}")
        def epi(e):
            for r in range(8): A(f"v_cvt_pk_bf16_f32 {v(vPk+8*e+r)}, {v(vO+16*e+2*r)}, {v(vO+16*e+2*r+1)}")
            for u in range(2): A(f"buffer_store_dwordx4 {v(vPk+8*e+4*u,4)}, {v(vOa)}, {s(R.sWS,4)}, {s(sOo)} offen offset:{1024*e + 512*u} sc1")
        for es in range(4):
            d = v(vO + 16*es, 16)
            A(f"v_mfma_f32_32x32x16_bf16 {d}, {a(aV(b)+8*es,4)}, {v(vP,4)}, 0")
            A(f"v_mfma_f32_32x32x16_bf16 {d}, {a(aV(b)+8*es+4,4)}, {v(vP+4,4)}, {d}")
            A(f"v_mfma_f32_32x32x16_bf16 {d}, {v(vVM(b)+4*es,4)}, {v(vP+8,4)}, {d}")
            if es >= 1: epi(es - 1)
        A(f"v_add_u32 {v(R.vFv)}, 1, {v(R.vFv)}")
        epi(3)
        A(f"""s_mov_b32 {s(sSeg)}, {s(sNx)}
        s_add_u32 {s(sOo)}, {s(sOo)}, {4 << 18}""")
    A(f"""s_cmp_lt_u32 {s(sSeg)}, 64
    s_cbranch_scc1 T_top0
    s_waitcnt vmcnt(0)
    {stfl}""")
    if its: idump(A, R, R.vSrc)
    A(f"s_branch {done}")
    for t in tails:
        for x in t: A(x)

def gen_U(A, sGrp, sCol, done, sGive, ngrp=3, ts=False, uw=0, usl=2):
    R = SR
    sN, sCnt, sLd, sOut, sPar, sNx = 28, 29, 30, 31, 32, 33
    vLa, vFa, vFl, vOa, vLw, vLr = range(10, 16)
    vAcc = 16
    vRed = 24
    vF = 64
    A(f"""
    s_load_dwordx2 {s(R.sX,2)}, s[0:1], {KA_WO}
    s_load_dwordx2 {s(R.sO,2)}, s[0:1], {KA_OUT}
    s_mov_b32 {s(R.sX+2)}, {8*MB}
    s_mov_b32 {s(R.sX+3)}, 0x20000
    s_mov_b32 {s(R.sO+2)}, {8*MB}
    s_mov_b32 {s(R.sO+3)}, 0x20000
    s_lshl_b32 {s(R.sSrc)}, {s(R.sWv)}, 21
    s_lshl_b32 {s(R.sT0)}, {s(sCol)}, 6
    s_add_u32 {s(R.sSrc)}, {s(R.sSrc)}, {s(R.sT0)}
    s_waitcnt lgkmcnt(0)
    s_barrier
    """)
    load_weights_tr(A, R, R.sX, R.sSrc, 2048)
    if ts: tstamp(A, R, 3)
    A(f"""
    v_lshlrev_b32 {v(vLr)}, 4, {v(R.vL)}
    s_lshl_b32 {s(R.sT0)}, {s(R.sWv)}, 15
    v_add_u32 {v(vLa)}, {s(R.sT0)}, {v(vLr)}
    s_lshl_b32 {s(R.sT0)}, {s(R.sWv)}, 11
    v_add_u32 {v(vLw)}, {s(R.sT0)}, {v(vLr)}
    v_bfe_u32 {v(vFa)}, {v(R.vL)}, 3, 2
    v_and_b32 {v(R.vT0)}, 7, {v(R.vL)}
    v_lshlrev_b32 {v(R.vT0)}, 9, {v(R.vT0)}
    v_lshl_add_u32 {v(vFa)}, {v(vFa)}, 7, {v(R.vT0)}
    s_lshl_b32 {s(R.sT0)}, {s(R.sWv)}, 12
    s_add_u32 {s(R.sT0)}, {s(R.sT0)}, {WS_FLAG + FLAG_T}
    v_add_u32 {v(vFa)}, {s(R.sT0)}, {v(vFa)}
    v_mov_b32 {v(vFl)}, 0
    v_and_b32 {v(vOa)}, 15, {v(R.vL)}
    v_and_b32 {v(R.vT0)}, 48, {v(R.vL)}
    v_lshl_add_u32 {v(vOa)}, {v(vOa)}, 12, {v(R.vT0)}
    s_lshl_b32 {s(R.sT0)}, {s(sCol)}, 6
    s_add_u32 {s(R.sT0)}, {s(R.sT0)}, 2048
    v_add_u32 {v(vOa)}, {s(R.sT0)}, {v(vOa)}
    s_mov_b32 {s(sN)}, {s(sGrp)}
    s_mov_b32 {s(sPar)}, 0
    s_barrier
    """)
    def ready(sItem):
        return [f"s_lshr_b32 {s(R.sT0)}, {s(sItem)}, 3",
                f"v_cmp_ge_u32 vcc, {s(R.sT0)}, {v(vFl)}",
                f"s_lshl_b32 {s(R.sT1)}, {s(sItem)}, 2",
                f"s_and_b32 {s(R.sT1)}, {s(R.sT1)}, 24",
                f"s_lshr_b32 {s(R.sT0)}, vcc_lo, {s(R.sT1)}",
                f"s_and_b32 {s(R.sT0)}, {s(R.sT0)}, 0xff"]
    def ld(ks):
        o = []
        if ks % 4 == 0 and ks: o.append(f"s_add_u32 {s(sLd)}, {s(sLd)}, 4096")
        o.append(f"buffer_load_dwordx4 {v(vF+4*ks,4)}, {v(vLa)}, {s(R.sWS,4)}, {s(sLd)} offen offset:{(ks%4)*1024}{LD}")
        return o
    def setld(sItem):
        return [f"s_lshl_b32 {s(sLd)}, {s(sItem)}, 17", f"s_add_u32 {s(sLd)}, {s(sLd)}, {WS_O}"]
    if uw:
        A(f"""U_uw:
        s_sleep 100
        s_mov_b64 exec, 0xffffffff
        buffer_load_dword {v(vFl)}, {v(vFa)}, {s(R.sWS,4)}, 0 offen sc1
        s_waitcnt vmcnt(0)
        v_cmp_gt_u32 vcc, 16, {v(vFl)}
        s_mov_b64 exec, -1
        s_add_u32 {s(sPar)}, {s(sPar)}, 1
        s_cmp_gt_u32 {s(sPar)}, 1000
        s_cbranch_scc1 U_uw2
        s_cbranch_vccnz U_uw
        U_uw2:
        s_mov_b32 {s(sPar)}, 0""")
    ust = ["s_memrealtime s[72:73]", "s_waitcnt lgkmcnt(0)", f"v_writelane_b32 {v(R.vT2)}, s72, m0", "s_add_u32 m0, m0, 1"] if its else []
    if its: A("s_mov_b32 m0, 0")
    A.label("U_wait")
    A(f"s_mov_b32 {s(sCnt)}, {s(sGive)}")
    A.label("U_fl")
    for x in ready(sN): A(x)
    A(f"""s_cbranch_scc0 U_go
    s_cmp_ge_u32 {s(sCnt)}, {SPIN}
    s_cselect_b32 {s(sGive)}, {SPIN}, {s(sGive)}
    s_cbranch_scc1 U_go
    s_lshl_b32 {s(R.sT0)}, {s(R.sT0)}, {s(R.sT1)}
    s_cmp_eq_u32 {s(sCnt)}, 0
    s_cselect_b32 exec_lo, -1, {s(R.sT0)}
    s_mov_b32 exec_hi, 0
    s_add_u32 {s(sCnt)}, {s(sCnt)}, 1
    buffer_load_dword {v(vFl)}, {v(vFa)}, {s(R.sWS,4)}, 0 offen sc1
    s_mov_b64 exec, -1
    s_sleep {usl}
    s_waitcnt vmcnt(0)
    s_branch U_fl""")
    A.label("U_go")
    for x in setld(sN): A(x)
    for ks in range(32):
        for x in ld(ks): A(x)
    A.label("U_item")
    for x in ust: A(x)
    A(f"s_add_u32 {s(sNx)}, {s(sN)}, {ngrp}")
    for x in ready(sNx): A(x)
    A("s_cbranch_scc1 U_b")
    def mm(ks):
        for t in range(2):
            d = v(vAcc + 4*t, 4)
            A(f"v_mfma_f32_16x16x32_bf16 {d}, {a(aw(t, ks),4)}, {v(vF+4*ks,4)}, {d if ks else 0}")
    def fin(nxt):
        L = A.newlabel("Uf")
        A(f"""s_lshl_b32 {s(sOut)}, {s(sN)}, 16
        v_add_u32 {v(R.vT0)}, {s(sPar)}, {v(vLw)}
        v_add_u32 {v(R.vT1)}, {s(sPar)}, {v(vLr)}
        s_xor_b32 {s(sPar)}, {s(sPar)}, 8192
        s_mov_b32 {s(sN)}, {s(sNx)}
        ds_write_b128 {v(R.vT0)}, {v(vAcc,4)}
        ds_write_b128 {v(R.vT0)}, {v(vAcc+4,4)} offset:1024
        s_waitcnt lgkmcnt(0)
        s_barrier
        s_cmp_lg_u32 {s(R.sWv)}, 0
        s_cbranch_scc1 {L}""")
        for k in range(6): A(f"ds_read_b128 {v(vRed+4*k,4)}, {v(R.vT1)} offset:{2048 + 1024*k}")
        A("s_waitcnt lgkmcnt(4)")
        for r in range(8): A(f"v_add_f32 {v(vRed+r)}, {v(vAcc+r)}, {v(vRed+r)}")
        A("s_waitcnt lgkmcnt(0)")
        for r in range(8): A(f"v_add_f32 {v(vRed+8+r)}, {v(vRed+8+r)}, {v(vRed+16+r)}")
        for r in range(8): A(f"v_add_f32 {v(vRed+r)}, {v(vRed+r)}, {v(vRed+8+r)}")
        for r in range(4): A(f"v_cvt_pk_bf16_f32 {v(vRed+24+r)}, {v(vRed+2*r)}, {v(vRed+2*r+1)}")
        A(f"buffer_store_dwordx4 {v(vRed+24,4)}, {v(vOa)}, {s(R.sO,4)}, {s(sOut)} offen")
        A.label(L)
        A(f"""s_cmp_lt_u32 {s(sN)}, 128
        s_cbranch_scc1 {nxt}
        s_branch {done}""")
    for x in setld(sNx): A(x)
    for ks in range(32):
        A(f"s_waitcnt vmcnt({31 if ks == 0 else 30})")
        mm(ks)
        if ks:
            for x in ld(ks - 1): A(x)
    A("s_nop 7")
    for x in ld(31): A(x)
    fin("U_item")
    A.label("U_b")
    for ks in range(32):
        A(f"s_waitcnt vmcnt({31 - ks})")
        mm(ks)
    fin("U_wait")

def gen_U64(A, sG, sI, done, sGive, ts=False, usl=2, touch=1, rot=1, tpf=12, its=0):
    R = SR
    NG = 6
    sN, sCnt, sLd, sOut, sPar, sNx, sPend, sCol, sOutN, sRot, sTp = range(28, 39)
    vLa, vFa, vFl, vOa, vLw, vLr = range(10, 16)
    vTa, vPf, vTx = R.vSrc, R.vDst, R.vFlag
    vTr = R.vT3
    vAcc, vSt, vRed, vF, vW = 16, 32, 48, 64, 128
    RED = 131072
    A(f"""
    s_load_dwordx2 {s(R.sX,2)}, s[0:1], {KA_WO}
    s_load_dwordx2 {s(R.sO,2)}, s[0:1], {KA_OUT}
    s_mov_b32 {s(R.sX+2)}, {8*MB}
    s_mov_b32 {s(R.sX+3)}, 0x20000
    s_mov_b32 {s(R.sO+2)}, {8*MB}
    s_mov_b32 {s(R.sO+3)}, 0x20000
    s_and_b32 {s(sCol)}, {s(sI)}, 15
    s_lshr_b32 {s(sN)}, {s(sI)}, 4
    s_lshl_b32 {s(R.sT0)}, {s(sG)}, 1
    s_add_u32 {s(sN)}, {s(sN)}, {s(R.sT0)}
    s_lshl_b32 {s(R.sSrc)}, {s(R.sWv)}, 21
    s_lshl_b32 {s(R.sT0)}, {s(sCol)}, 7
    s_add_u32 {s(R.sSrc)}, {s(R.sSrc)}, {s(R.sT0)}
    v_lshrrev_b32 {v(R.vT0)}, 2, {v(R.vL)}
    v_and_b32 {v(R.vT1)}, 3, {v(R.vL)}
    v_lshlrev_b32 {v(R.vT2)}, 4, {v(R.vT1)}
    v_lshl_add_u32 {v(R.vT2)}, {v(R.vT0)}, 11, {v(R.vT2)}
    v_lshlrev_b32 {v(vTr)}, 3, {v(R.vT1)}
    v_bfe_u32 {v(R.vT0)}, {v(R.vL)}, 2, 2
    v_lshrrev_b32 {v(R.vT1)}, 4, {v(R.vL)}
    v_lshl_add_u32 {v(R.vT0)}, {v(R.vT1)}, 3, {v(R.vT0)}
    v_lshl_add_u32 {v(vTr)}, {v(R.vT0)}, 6, {v(vTr)}
    s_lshl_b32 {s(R.sM0)}, {s(R.sWv)}, 15
    v_add_u32 {v(vTr)}, {s(R.sM0)}, {v(vTr)}
    s_and_b32 {s(sRot)}, {s(sI)}, {7 if rot else 0}
    s_lshl_b32 {s(sRot)}, {s(sRot)}, 18
    s_waitcnt lgkmcnt(0)
    s_barrier
    """)
    units = [(0, ks) for ks in range(32)] + [(1, ks) for ks in range(0, 32, 2)] + [(1, ks) for ks in range(1, 32, 2)]
    def dma(j):
        h, ks = units[j]
        for q in range(2):
            A(f"s_add_u32 m0, {s(R.sM0)}, {(j & 15)*2048 + q*1024}")
            A(f"s_add_u32 {s(R.sT0)}, {s(sRot)}, {(ks*32 + q*16)*2048 + h*64}")
            A(f"s_bitset0_b32 {s(R.sT0)}, 21")
            A(f"s_add_u32 {s(R.sT0)}, {s(R.sT0)}, {s(R.sSrc)}")
            A(f"buffer_load_dwordx4 {v(R.vT2)}, {s(R.sX,4)}, {s(R.sT0)} offen lds")
    def trd(dst, slot):
        return [f"ds_read_b64_tr_b16 {dst(4*tt + 2*hh)}, {v(vTr)} offset:{slot*2048 + hh*256 + tt*32}" for tt in range(2) for hh in range(2)]
    if touch:
        A(f"""s_sub_u32 {s(R.sT0)}, {s(sG)}, 1
        s_and_b32 {s(R.sT0)}, {s(R.sT0)}, 3
        s_lshl_b32 {s(R.sT0)}, {s(R.sT0)}, 3
        s_and_b32 {s(R.sT1)}, {s(sI)}, 7
        s_add_u32 {s(R.sT0)}, {s(R.sT0)}, {s(R.sT1)}
        s_lshl_b32 {s(R.sT0)}, {s(R.sT0)}, 8
        v_add_lshl_u32 {v(R.vT0)}, v0, {s(R.sT0)}, 11
        s_and_b32 {s(R.sT0)}, {s(sI)}, 8
        s_lshl_b32 {s(R.sT0)}, {s(R.sT0)}, 7
        buffer_load_dword {v(vRed)}, {v(R.vT0)}, {s(R.sX,4)}, {s(R.sT0)} offen offset:384""")
    for j in range(16): dma(j)
    for j in range(48):
        h, ks = units[j]
        A(f"s_waitcnt vmcnt({30 if j == 0 else 28})")
        for x in trd((lambda o: a(ks*8 + o, 2)) if h == 0 else (lambda o: v(vW + ks*4 + o, 2)), j & 15): A(x)
        if j:
            A("s_waitcnt lgkmcnt(4)")
            dma(j + 15)
    A("s_waitcnt lgkmcnt(0)")
    dma(63)
    if tpf:
        A(f"""s_lshl_b32 {s(R.sT0)}, {s(sI)}, 2
        s_add_u32 {s(R.sT0)}, {s(R.sT0)}, {s(R.sWv)}
        s_lshl_b32 {s(R.sT1)}, {s(R.sT0)}, 7
        s_add_u32 {s(R.sT1)}, {s(R.sT1)}, {WS_FLAG + FLAG_P}
        v_lshrrev_b32 {v(R.vT0)}, 4, {v(R.vL)}
        v_lshlrev_b32 {v(vTx)}, 14, {v(R.vT0)}
        v_mov_b32 {v(vPf)}, 0
        s_mov_b32 exec_hi, 0xffff
        buffer_load_dword {v(vPf)}, {v(vTx)}, {s(R.sWS,4)}, {s(R.sT1)} offen sc1
        s_mov_b32 exec_hi, -1
        s_mul_i32 {s(R.sT0)}, {s(R.sT0)}, {BLK}
        v_mul_u32_u24 {v(vTa)}, {QKV_STRIDE >> 7}, {v(R.vT0)}
        v_and_b32 {v(R.vT0)}, 15, {v(R.vL)}
        v_add_lshl_u32 {v(vTa)}, {v(vTa)}, {v(R.vT0)}, 7
        v_add_u32 {v(vTa)}, {s(R.sT0)}, {v(vTa)}
        v_mov_b32 {v(R.vT1)}, {OOB}""")
    A(f"""
    s_lshr_b32 {s(sRot)}, {s(sRot)}, 6
    s_add_u32 {s(sRot)}, {s(sRot)}, {WS_O}
    v_lshlrev_b32 {v(vLr)}, 4, {v(R.vL)}
    v_add_u32 {v(vLa)}, {s(R.sM0)}, {v(vLr)}
    s_lshl_b32 {s(R.sT0)}, {s(R.sWv)}, 10
    s_add_u32 {s(R.sT0)}, {s(R.sT0)}, {RED}
    v_add_u32 {v(vLw)}, {s(R.sT0)}, {v(vLr)}
    s_lshl_b32 {s(R.sT0)}, {s(R.sWv)}, 12
    s_add_u32 {s(R.sT1)}, {s(R.sT0)}, {RED + 0x4000}
    v_add_u32 {v(vLr)}, {s(R.sT1)}, {v(vLr)}
    v_bfe_u32 {v(vFa)}, {v(R.vL)}, 3, 2
    v_and_b32 {v(R.vT0)}, 7, {v(R.vL)}
    v_lshlrev_b32 {v(R.vT0)}, 9, {v(R.vT0)}
    v_lshl_add_u32 {v(vFa)}, {v(vFa)}, 7, {v(R.vT0)}
    s_add_u32 {s(R.sT0)}, {s(R.sT0)}, {WS_FLAG + FLAG_T}
    v_add_u32 {v(vFa)}, {s(R.sT0)}, {v(vFa)}
    v_mov_b32 {v(vFl)}, 0
    v_and_b32 {v(vOa)}, 15, {v(R.vL)}
    v_lshrrev_b32 {v(R.vT0)}, 4, {v(R.vL)}
    v_lshlrev_b32 {v(R.vT0)}, 3, {v(R.vT0)}
    v_lshl_add_u32 {v(vOa)}, {v(vOa)}, 12, {v(R.vT0)}
    s_lshl_b32 {s(R.sT0)}, {s(sCol)}, 7
    s_lshl_b32 {s(R.sT1)}, {s(R.sWv)}, 5
    s_add_u32 {s(R.sT0)}, {s(R.sT0)}, {s(R.sT1)}
    s_add_u32 {s(R.sT0)}, {s(R.sT0)}, 2048
    v_add_u32 {v(vOa)}, {s(R.sT0)}, {v(vOa)}
    s_waitcnt vmcnt(0)
    """)
    if ts: tstamp(A, R, 3, vt=48)
    def ready(sItem):
        return [f"s_lshr_b32 {s(R.sT0)}, {s(sItem)}, 3",
                f"v_cmp_ge_u32 vcc, {s(R.sT0)}, {v(vFl)}",
                f"s_lshl_b32 {s(R.sT1)}, {s(sItem)}, 2",
                f"s_and_b32 {s(R.sT1)}, {s(R.sT1)}, 24",
                f"s_lshr_b32 {s(R.sT0)}, vcc_lo, {s(R.sT1)}",
                f"s_and_b32 {s(R.sT0)}, {s(R.sT0)}, 0xff"]
    ldfl = f"buffer_load_dword {v(vFl)}, {v(vFa)}, {s(R.sWS,4)}, 0 offen sc1"
    def ld(ks):
        o = []
        if ks % 4 == 0 and ks: o += [f"s_add_u32 {s(sLd)}, {s(sLd)}, 4096", f"s_bitset0_b32 {s(sLd)}, 15"]
        o.append(f"buffer_load_dwordx4 {v(vF+4*(ks&15),4)}, {v(vLa)}, {s(R.sWS,4)}, {s(sLd)} offen offset:{(ks%4)*1024}{LD}")
        return o
    def setld(sItem):
        return [f"s_lshl_b32 {s(sLd)}, {s(sItem)}, 17", f"s_add_u32 {s(sLd)}, {s(sLd)}, {s(sRot)}"]
    rrd = [f"ds_read_b128 {v(vRed+4*k,4)}, {v(vLr)} offset:{1024*k}" for k in range(4)]
    radd = [f"v_add_f32 {v(vRed+r)}, {v(vRed+r)}, {v(vRed+4+r)}" for r in range(4)] + [f"v_add_f32 {v(vRed+8+r)}, {v(vRed+8+r)}, {v(vRed+12+r)}" for r in range(4)] + \
           [f"v_add_f32 {v(vRed+r)}, {v(vRed+r)}, {v(vRed+8+r)}" for r in range(4)] + [f"v_cvt_pk_bf16_f32 {v(vRed+4+r)}, {v(vRed+2*r)}, {v(vRed+2*r+1)}" for r in range(2)]
    ost = f"buffer_store_dwordx2 {v(vRed+4,2)}, {v(vOa)}, {s(R.sO,4)}, {s(sOut)} offen"
    flip = [f"v_xor_b32 {v(vLr)}, 0x4000, {v(vLr)}"]
    ust = ["s_memrealtime s[72:73]", "s_waitcnt lgkmcnt(0)", f"v_writelane_b32 {v(R.vT2)}, s72, m0", "s_add_u32 m0, m0, 1"] if its else []
    if its: A("s_mov_b32 m0, 0")
    A.label("U_wait")
    A(f"s_mov_b32 {s(sCnt)}, {s(sGive)}")
    A.label("U_fl")
    for x in ready(sN): A(x)
    A(f"""s_cbranch_scc0 U_go
    s_cmp_ge_u32 {s(sCnt)}, {SPIN}
    s_cselect_b32 {s(sGive)}, {SPIN}, {s(sGive)}
    s_cbranch_scc1 U_go
    s_lshl_b32 {s(R.sT0)}, {s(R.sT0)}, {s(R.sT1)}
    s_cmp_eq_u32 {s(sCnt)}, 0
    s_cselect_b32 exec_lo, -1, {s(R.sT0)}
    s_mov_b32 exec_hi, 0
    s_add_u32 {s(sCnt)}, {s(sCnt)}, 1
    {ldfl}
    s_mov_b64 exec, -1
    s_sleep {usl}
    s_waitcnt vmcnt(0)
    s_branch U_fl""")
    A.label("U_go")
    for x in setld(sN): A(x)
    for ks in range(15):
        for x in ld(ks): A(x)
    A(f"""s_mov_b32 {s(sPend)}, 0
    s_mov_b32 {s(sOut)}, {OOB}""")
    for x in trd(lambda o: v(vSt + o, 2), 0): A(x)
    for k in range(4): A(rrd[k])
    A(".p2align 6")
    A.label("U_item")
    for x in ust: A(x)
    vq = [("L", k) for k in range(15)]; lq = [("W", 1)] * 4 + [("P", 0)] * 4
    def vwait(tag):
        n = len(vq) - 1 - vq.index(tag); del vq[:len(vq) - n]
        return f"s_waitcnt vmcnt({n})"
    def lwait(tag):
        n = lq[::-1].index(tag); del lq[:len(lq) - n]
        return f"s_waitcnt lgkmcnt({n})"
    for ks in range(32):
        fill = [[], [], [], []]
        A(vwait(("L", ks)))
        fill[0] += ld((ks + 15) & 31); tagv = [("L", ks + 15)]
        if ks & 1:
            pre2 = lwait(("W", ks))
        else:
            pre2 = None
        tagl = []
        if ks == 0:
            fill[1] += [f"s_add_u32 {s(sNx)}, {s(sN)}, {NG}"] + ready(sNx)[:4]
            fill[2] += ready(sNx)[4:] + [f"s_lshl_b32 exec_lo, {s(R.sT0)}, {s(R.sT1)}", "s_mov_b32 exec_hi, 0", ldfl, "s_mov_b64 exec, -1"]; tagv.append(("F", 0))
        if ks == 2:
            fill[1] += [lwait(("P", 0)), f"s_cmp_eq_u32 {s(sPend)}, 0", "s_cbranch_scc1 U_nb", "s_barrier", "U_nb:"]
            fill[2] += rrd[:2]; fill[3] += rrd[2:]; tagl += [("R", 0)] * 4
        if ks == 4:
            fill[0] += [lwait(("R", 0))]
        if 4 <= ks < 8:
            q = radd[4*(ks-4):4*(ks-4)+4]
            for i, x in enumerate(q): fill[1 + i//2].append(x)
        if ks == 8:
            fill[1] += [ost] + flip; tagv.append(("S", 0))
        if ks == 16:
            fill[1] += ready(sNx)[:4]
            fill[2] += setld(sNx) + ready(sNx)[4:] + [f"s_cselect_b32 {s(sPend)}, 0, 1", f"s_cselect_b32 {s(sLd)}, {OOB}, {s(sLd)}"]
        if ks == 14 and tpf:
            fill[1] += [f"s_lshr_b32 {s(sTp)}, {s(sNx)}, 1", f"s_add_u32 {s(sTp)}, {s(sTp)}, {tpf}", f"v_cmp_lt_u32 vcc, {s(sTp)}, {v(vPf)}"]
            fill[2] += [f"s_lshl_b32 {s(sTp)}, {s(sTp)}, 11", f"v_cndmask_b32 {v(vTx)}, {v(R.vT1)}, {v(vTa)}, vcc"]
        if ks == 16 and tpf:
            fill[3] += [f"buffer_load_dword {v(R.vFv)}, {v(vTx)}, {s(R.sWS,4)}, {s(sTp)} offen"]; tagv.append(("T", 0))
        if ks & 1 == 0:
            pass
        else:
            k2 = (ks + 2) & 31
            t_ = trd(lambda o: v(vSt + 8*((k2 >> 1) & 1) + o, 2), k2 >> 1)
            fill[0] += t_[:2]; fill[1] += t_[2:]; tagl += [("W", ks + 2)] * 4
        b = v(vF + 4*(ks & 15), 4)
        for t in range(4):
            d = v(vAcc + 4*t, 4)
            w = a(ks*8 + 4*t, 4) if t < 2 else (v(vSt + 8*((ks >> 1) & 1) + 4*(t-2), 4) if ks & 1 else v(vW + ks*4 + 4*(t-2), 4))
            if t == 0 and pre2: A(pre2)
            A(f"v_mfma_f32_16x16x32_bf16 {d}, {w}, {b}, {d if ks else 0}")
            for x in fill[t]: A(x)
        vq += tagv; lq += tagl
    if tpf: assert vq.pop(0) == ("T", 0)
    assert [k for _, k in vq] == list(range(32, 47)), vq
    for x in ust: A(x)
    A(f"""s_lshl_b32 {s(sOut)}, {s(sN)}, 16
    s_mov_b32 {s(sN)}, {s(sNx)}
    s_cmp_eq_u32 {s(sPend)}, 1""")
    for t in range(4): A(f"ds_write_b128 {v(vLw)}, {v(vAcc+4*t,4)} offset:{4096*t}")
    A(f"""v_xor_b32 {v(vLw)}, 0x4000, {v(vLw)}
    s_cbranch_scc1 U_item
    s_waitcnt lgkmcnt(0)
    s_barrier""")
    for x in rrd: A(x)
    A("s_waitcnt lgkmcnt(0)")
    for x in radd: A(x)
    A(f"""{ost}
    s_cmp_lt_u32 {s(sN)}, 128
    s_cbranch_scc1 U_wait""")
    if its: idump(A, R, R.vT2)
    A(f"s_branch {done}")
```

```python
from asmlib import *
from layout import *
from stream import *
import struct, math
def f32bits(x): return struct.unpack("<I", struct.pack("<f", x))[0]
SPIN = 1 << 20
YS = 2048 + 128
BLKY = 64 * YS + 512
ZCH = 32768 + 256

def gen_dft_weights(A, R, vB, vD1, vD2, vInc, nks, derive):
    vP = 48; vC = 56; vK = 64; vX = 68
    for ks in range(nks):
        for t in range(2):
            A(f"v_fract_f32 {v(vP)}, {v(vB+t)}")
            for j in range(1, 8):
                A(f"v_add_f32 {v(vP+j)}, {v(vP+j-1)}, {v((vD1 if j & 1 else vD2)+t)}")
                A(f"v_cos_f32 {v(vC+j-1)}, {v(vP+j-1)}")
            A(f"v_cos_f32 {v(vC+7)}, {v(vP+7)}")
            A(f"v_add_f32 {v(vB+t)}, {v(vP)}, {v(vInc+t)}")
            for j in range(4): A(f"v_cvt_pk_bf16_f32 {v(vK+j)}, {v(vC+2*j)}, {v(vC+2*j+1)}")
            for j in range(4): A(f"v_accvgpr_write_b32 {a(aw(t, ks)+j)}, {v(vK+j)}")
            for q in range(1, 32 // nks):
                for j in range(4):
                    for x in derive(t, q, vX + j, vK + j): A(x)
                for j in range(4): A(f"v_accvgpr_write_b32 {a(aw(t, ks + q*nks)+j)}, {v(vX+j)}")

def wait_flags(A, R, name, vFa, nl, thr, sGive, sCnt):
    m = (1 << nl) - 1
    A(f"s_mov_b32 {s(sCnt)}, {s(sGive)}")
    A.label(name)
    A(f"""buffer_load_dword {v(R.vT0)}, {v(vFa)}, {s(R.sWS,4)}, 0 offen sc1
    s_waitcnt vmcnt(0)
    v_cmp_gt_u32 vcc, {thr}, {v(R.vT0)}""")
    if nl == 64: A("s_cmp_lg_u64 vcc, 0")
    else: A(f"s_and_b32 {s(R.sT0)}, vcc_lo, {m}")
    A(f"""s_cbranch_scc0 {name}_ok
    s_cmp_ge_u32 {s(sCnt)}, {SPIN}
    s_cselect_b32 {s(sGive)}, {SPIN}, {s(sGive)}
    s_cbranch_scc1 {name}_ok
    s_add_u32 {s(sCnt)}, {s(sCnt)}, 1
    s_sleep 8
    s_branch {name}""")
    A.label(name + "_ok")

def gen_F(A, sCu, done, sGive, rdv=None, ts=False, wt0=2, its=0, hook=None):
    R = SR
    def ist():
        if its == 2: A(f"""s_memrealtime s[72:73]
        s_mov_b32 m0, s70
        s_waitcnt lgkmcnt(0)
        v_writelane_b32 {v(R.vFv)}, s72, m0
        s_add_u32 s70, s70, 1""")
    if its == 2: A('s_mov_b32 s70, 0')
    sTg, sBlk, sCnt, sT2 = 28, 29, 30, 31
    vB, vD1, vD2, vInc = 30, 32, 34, 36
    vM = 40
    sPa, sPb, sAx, sBx, sWr, sWi = 32, 33, 40, 44, 48, 52
    A(f"""
    s_load_dwordx2 {s(sWr,2)}, s[0:1], {KA_WR}
    s_load_dwordx2 {s(sWi,2)}, s[0:1], {KA_WI}
    s_mov_b32 {s(sWr+2)}, {2048*1026}
    s_mov_b32 {s(sWr+3)}, 0x20000
    s_mov_b32 {s(sWi+2)}, {2048*1026}
    s_mov_b32 {s(sWi+3)}, 0x20000
    s_load_dwordx2 {s(sAx,2)}, s[0:1], {KA_AX}
    s_load_dwordx2 {s(sBx,2)}, s[0:1], {KA_BX}
    s_mov_b32 {s(sAx+2)}, {4*MB}
    s_mov_b32 {s(sAx+3)}, 0x20000
    s_mov_b32 {s(sBx+2)}, {4*MB}
    s_mov_b32 {s(sBx+3)}, 0x20000
    s_lshr_b32 {s(sTg)}, {s(sCu)}, 3
    s_and_b32 {s(sBlk)}, {s(sCu)}, 7
    s_lshl_b32 {s(sBlk)}, {s(sBlk)}, 2
    s_add_u32 {s(sBlk)}, {s(sBlk)}, {s(R.sWv)}
    """)
    def colidx(dst):
        perm16(A, dst, R.vL, R.vT0, False)
        A(f"""s_lshl_b32 {s(R.sT0)}, {s(sBlk)}, 5
        v_add_u32 {v(dst)}, {s(R.sT0)}, {v(dst)}""")
    colidx(R.vT2)
    A(f"""v_lshrrev_b32 {v(R.vT3)}, 4, {v(R.vL)}
    v_cvt_f32_u32 {v(R.vT3)}, {v(R.vT3)}
    s_mov_b32 {s(sT2)}, {f32bits(1/1024)}""")
    for t in range(2):
        A(f"""v_add_u32 {v(R.vT0)}, {4*t}, {v(R.vT2)}
        v_lshrrev_b32 {v(R.vT1)}, 1, {v(R.vT0)}
        v_and_b32 {v(vB+t)}, 1, {v(R.vT0)}
        v_cmp_eq_u32 vcc, 1, {v(R.vT0)}
        v_mov_b32 {v(R.vT0)}, 512
        v_cndmask_b32 {v(R.vT1)}, {v(R.vT1)}, {v(R.vT0)}, vcc
        v_cndmask_b32 {v(vB+t)}, {v(vB+t)}, 0, vcc
        v_add_u32 {v(R.vT0)}, {v(R.vT1)}, {v(vB+t)}
        v_bfe_i32 {v(vM+t)}, {v(R.vT0)}, 1, 1
        v_add_u32 {v(R.vT0)}, {v(R.vT1)}, {v(R.vT0)}
        v_bfe_i32 {v(vM+2+t)}, {v(R.vT0)}, 1, 1
        v_add_u32 {v(R.vT0)}, {v(R.vT1)}, {v(R.vT0)}
        v_bfe_i32 {v(vM+4+t)}, {v(R.vT0)}, 1, 1
        v_and_b32 {v(vM+t)}, 0x80008000, {v(vM+t)}
        v_and_b32 {v(vM+2+t)}, 0x80008000, {v(vM+2+t)}
        v_and_b32 {v(vM+4+t)}, 0x80008000, {v(vM+4+t)}
        v_cvt_f32_u32 {v(R.vT1)}, {v(R.vT1)}
        v_cvt_f32_u32 {v(vB+t)}, {v(vB+t)}
        v_mul_f32 {v(vD1+t)}, {s(sT2)}, {v(R.vT1)}
        v_mul_f32 {v(vB+t)}, 0x3e800000, {v(vB+t)}
        v_mov_b32 {v(vD2+t)}, {v(vD1+t)}
        v_mul_f32 {v(vInc+t)}, 0x42000000, {v(vD1+t)}
        v_mul_f32 {v(R.vT0)}, 0x41000000, {v(vD1+t)}
        v_fma_f32 {v(vB+t)}, {v(R.vT0)}, {v(R.vT3)}, {v(vB+t)}""")
    def der1(t, q, dst, src):
        return [f"v_xor_b32_dpp {v(dst)}, {v(src)}, {v(vM+2*q-2+t)} quad_perm:[0,1,3,2] row_mask:0xf bank_mask:0xf" if q & 1 else f"v_xor_b32 {v(dst)}, {v(src)}, {v(vM+2*q-2+t)}"]
    gen_dft_weights(A, R, vB, vD1, vD2, vInc, 8, der1)
    if hook: hook()
    A(f"""s_and_b32 {s(R.sT0)}, {s(sTg)}, 1
    s_lshl_b32 {s(R.sT0)}, {s(R.sT0)}, 15
    s_lshr_b32 {s(R.sT1)}, {s(sTg)}, 1
    s_lshl_b32 {s(R.sT1)}, {s(R.sT1)}, 21
    s_add_u32 {s(R.sT0)}, {s(R.sT0)}, {s(R.sT1)}
    s_lshl_b32 {s(R.sT1)}, {s(sBlk)}, 16
    s_add_u32 {s(R.sT0)}, {s(R.sT0)}, {s(R.sT1)}
    v_lshlrev_b32 {v(15)}, 7, {v(R.vL)}
    s_waitcnt lgkmcnt(0)""")
    for k in range(4):
        A(f"buffer_load_dword {v(248+k)}, {v(15)}, {s(sAx,4)}, {s(R.sT0)} offen")
        A(f"s_add_u32 {s(R.sT0)}, {s(R.sT0)}, 8192")
    sTx = 34
    A(f"""s_lshl_b32 {s(sTx)}, {s(sCu)}, 2
    s_add_u32 {s(sTx)}, {s(sTx)}, {s(R.sWv)}
    s_lshl_b32 {s(sTx)}, {s(sTx)}, 13
    s_sub_u32 {s(sTx)}, {s(sTx)}, {256*1024}
    v_mov_b32 {v(247)}, {v(15)}""")
    xt = [f"buffer_load_dword {v(248)}, {v(247)}, {s(sBx,4)}, {s(sTx)} offen", f"s_add_u32 {s(sTx)}, {s(sTx)}, {MB}"]
    if wt0 >= 0:
        A(f"""s_lshl_b32 {s(R.sT0)}, {s(sBlk)}, 6
        v_add_u32 {v(246)}, {s(R.sT0)}, {v(R.vL)}
        v_mul_u32_u24 {v(246)}, 1026, {v(246)}
        s_lshl_b32 {s(R.sT0)}, {s(sTg)}, 8
        v_add_u32 {v(246)}, {s(R.sT0)}, {v(246)}
        v_and_b32 {v(246)}, -4, {v(246)}""")
        xt += [f"s_sub_u32 {s(sT2)}, {s(R.sIt)}, {2*wt0}", f"s_lshl_b32 {s(sT2)}, {s(sT2)}, 6", f"s_cmp_lt_u32 {s(sT2)}, 384", f"s_cselect_b32 {s(sT2)}, {s(sT2)}, {OOB}",
               f"buffer_load_dword {v(249)}, {v(246)}, {s(sWr,4)}, {s(sT2)} offen", f"buffer_load_dword {v(250)}, {v(246)}, {s(sWi,4)}, {s(sT2)} offen"]
    A(f"""
    s_load_dwordx2 {s(R.sX,2)}, s[0:1], {KA_AX}
    s_mov_b32 {s(R.sX+2)}, {4*MB}
    s_mov_b32 {s(R.sX+3)}, 0x20000
    s_waitcnt lgkmcnt(0)
    """)
    if ts: tstamp(A, R, 1)
    setup_reads(A, R)
    dma_rows(A, R, R.vT2, R.vT3)
    perm16(A, R.vSrc, R.vT2, R.vT0, True)
    perm16(A, R.vDst, R.vL, R.vT0, False)
    A(f"""
    v_lshlrev_b32 {v(R.vSrc)}, 16, {v(R.vSrc)}
    v_lshl_add_u32 {v(R.vSrc)}, {v(R.vT3)}, 4, {v(R.vSrc)}
    v_and_b32 {v(R.vT0)}, 48, {v(R.vL)}
    v_lshl_add_u32 {v(R.vDst)}, {v(R.vDst)}, 6, {v(R.vT0)}
    s_mul_i32 {s(R.sDst)}, {s(sBlk)}, {BLKY}
    s_mul_i32 {s(R.sT0)}, {s(sTg)}, {16 * YS}
    s_add_u32 {s(R.sDst)}, {s(R.sDst)}, {s(R.sT0)}
    s_add_u32 {s(R.sDst)}, {s(R.sDst)}, {WS_Y}
    s_and_b32 {s(R.sSrc)}, {s(sTg)}, 1
    s_lshl_b32 {s(R.sSrc)}, {s(R.sSrc)}, 15
    s_lshr_b32 {s(R.sT0)}, {s(sTg)}, 1
    s_lshl_b32 {s(R.sT0)}, {s(R.sT0)}, 21
    s_add_u32 {s(R.sSrc)}, {s(R.sSrc)}, {s(R.sT0)}
    s_mov_b32 {s(R.sSrcStep)}, 2048
    s_mov_b32 {s(R.sDstStep)}, {YS}
    s_barrier
    """)
    def dma1(half, b, lds):
        off = half * 1024 + b * 128
        return [f"s_add_u32 m0, {s(R.sM0)}, {lds - off}", f"buffer_load_dwordx4 {v(R.vSrc)}, {s(R.sX,4)}, {s(R.sSrc)} offen offset:{off} lds"]
    def store1(u):
        return [f"buffer_store_dwordx4 {v(R.vPk+4*u,4)}, {v(R.vDst)}, {s(R.sWS,4)}, {s(R.sDst)} offen offset:{256*u} sc1"]
    stream_loop(A, R, "F1", 16, True, dma1, store1, flag=False, extra=xt)
    if rdv: rdv()
    A("s_barrier")
    def setflag(sIdx, base):
        A(f"""s_lshl_b32 {s(R.sT0)}, {s(sIdx)}, 7
        s_add_u32 {s(R.sT0)}, {s(R.sT0)}, {WS_FLAG + base}
        v_lshl_add_u32 {v(R.vT0)}, {v(R.vL)}, 2, {s(R.sT0)}
        v_mov_b32 {v(R.vT1)}, 1
        s_mov_b64 exec, 0xffffffff
        buffer_store_dword {v(R.vT1)}, {v(R.vT0)}, {s(R.sWS,4)}, 0 offen sc1
        s_mov_b64 exec, -1""")
    A(f"""s_lshl_b32 {s(sT2)}, {s(sBlk)}, 2
    s_add_u32 {s(sT2)}, {s(sT2)}, {s(sTg)}""")
    setflag(sT2, FLAG_F)
    if ts: tstamp(A, R, 2)
    ist()
    vPi, vH, vAd, vSh, vWa, vLa = 10, 11, 12, 13, 14, 19
    vIn, v512, vOut = 60, 220, 236
    aC64, aS64, aN64, aC32, aS32, aN32, aOut = 0, 32, 64, 96, 104, 112, 120
    vTw = 160
    vAc, vOp, vZ = 32, 96, 128
    vZa, vPf, vHf, vSo = 15, 16, 17, 18
    pi_lane(A, vPi, R.vL, R.vT0, R.vT1)
    A(f"v_lshrrev_b32 {v(R.vT3)}, 1, {v(R.vL)}")
    pi_lane(A, vLa, R.vT3, R.vT0, R.vT1)
    A(f"""
    s_load_dwordx2 {s(R.sO,2)}, s[0:1], {KA_OUT}
    s_mov_b32 {s(R.sO+2)}, {8*MB}
    s_mov_b32 {s(R.sO+3)}, 0x20000
    v_lshrrev_b32 {v(vH)}, 5, {v(R.vL)}
    v_lshl_add_u32 {v(vAd)}, {v(vH)}, 9, {v(vPi)}             ; pi + 512 h
    v_mul_u32_u24 {v(vAd)}, 1026, {v(vAd)}
    v_and_b32 {v(vSh)}, 1, {v(R.vL)}
    v_lshlrev_b32 {v(vSh)}, 4, {v(vSh)}
    v_lshlrev_b32 {v(vWa)}, 4, {v(R.vL)}
    s_lshr_b32 {s(R.sT0)}, {s(R.sWv)}, 1
    s_and_b32 {s(R.sT1)}, {s(R.sWv)}, 1
    s_lshl_b32 {s(R.sT0)}, {s(R.sT0)}, 5
    s_lshl_b32 {s(R.sT1)}, {s(R.sT1)}, 10
    s_add_u32 {s(R.sT0)}, {s(R.sT0)}, {s(R.sT1)}
    s_mul_i32 {s(R.sSrc)}, {s(R.sT0)}, 1026
    s_lshl_b32 {s(R.sT0)}, {s(sCu)}, 5
    s_add_u32 {s(R.sSrc)}, {s(R.sSrc)}, {s(R.sT0)}
    v_mul_u32_u24 {v(vLa)}, 1026, {v(vLa)}
    v_add_u32 {v(vLa)}, {v(vLa)}, {v(vSh)}
    s_mov_b32 {s(sPa)}, 0x05040100
    s_mov_b32 {s(sPb)}, 0x07060302
    v_cvt_f32_u32 {v(vPf)}, {v(vPi)}
    v_lshlrev_b32 {v(vHf)}, 3, {v(vH)}
    v_cvt_f32_u32 {v(vHf)}, {v(vHf)}
""")
    ist()
    def cap(f):
        n = len(A.ins); f(); o = [x.text for x in A.ins[n:]]; del A.ins[n:]; return o
    def merge(X, Y):
        o = []; k = 0
        for i, g in enumerate(X):
            o += g; e = (i + 1) * len(Y) // len(X); o += Y[k:e]; k = e
        return o
    lds_ = []
    def win(g, h, jj, m): return vIn + 4 * (((g*2 + h)*4 + jj)*2 + m)
    for g in range(2):
        for h in range(2):
            for jj in range(4):
                for m, srd in enumerate((sWr, sWi)):
                    lds_.append(([] if m else [f"s_add_u32 {s(R.sT0)}, {s(R.sSrc)}, {((2*jj + g)*64 + 512*h)*1026}"]) +
                                [f"buffer_load_dwordx4 {v(win(g, h, jj, m),4)}, {v(vLa)}, {s(srd,4)}, {s(R.sT0)} offen"])
    def consts(dC, dS, dN, add, N, nks):
        A(f"""v_add_f32 {v(R.vT0)}, {f32bits(float(add))}, {v(vPf)}
        v_mul_f32 {v(R.vT0)}, {f32bits(1.0/N)}, {v(R.vT0)}
        v_mul_f32 {v(R.vT1)}, {v(R.vT0)}, {v(vHf)}
        v_mul_f32 {v(R.vT2)}, 0x41800000, {v(R.vT0)}""")
        for ks in range(nks):
            A(f"v_fract_f32 {v(vAc)}, {v(R.vT1)}")
            for j in range(1, 8): A(f"v_add_f32 {v(vAc+j)}, {v(vAc+j-1)}, {v(R.vT0)}")
            A(f"v_add_f32 {v(R.vT1)}, {v(vAc)}, {v(R.vT2)}")
            for j in range(8):
                A(f"v_cos_f32 {v(vAc+8+j)}, {v(vAc+j)}"); A(f"v_sin_f32 {v(vAc+16+j)}, {v(vAc+j)}")
            if N == 32:
                for j in range(16): A(f"v_mul_f32 {v(vAc+8+j)}, {f32bits(2.0**-10)}, {v(vAc+8+j)}")
            for j in range(4):
                A(f"v_cvt_pk_bf16_f32 {v(vAc+24)}, {v(vAc+8+2*j)}, {v(vAc+9+2*j)}")
                A(f"v_cvt_pk_bf16_f32 {v(vAc+25)}, {v(vAc+16+2*j)}, {v(vAc+17+2*j)}")
                A(f"v_accvgpr_write_b32 {a(dC+4*ks+j)}, {v(vAc+24)}")
                A(f"v_xor_b32 {v(vAc+26)}, 0x80008000, {v(vAc+25)}")
                A(f"v_accvgpr_write_b32 {a(dS+4*ks+j)}, {v(vAc+25)}")
                A(f"v_accvgpr_write_b32 {a(dN+4*ks+j)}, {v(vAc+26)}")
    def allc():
        for t in range(2): consts(aC64 + 16*t, aS64 + 16*t, aN64 + 16*t, 32*t, 64, 4)
        consts(aC32, aS32, aN32, 0, 32, 2)
    for x in merge(lds_, cap(allc)): A(x)
    ist()
    A(f"""s_lshl_b32 {s(R.sT0)}, {s(R.sWv)}, 11
    v_lshlrev_b32 {v(R.vT0)}, 12, {v(vSh)}
    v_lshl_add_u32 {v(R.vT0)}, {v(R.vT3)}, 4, {v(R.vT0)}
    v_add_u32 {v(R.vT0)}, {s(R.sT0)}, {v(R.vT0)}
    s_cmp_eq_u32 {s(R.sWv)}, 0
    s_cselect_b32 {s(R.sT0)}, 0, 10240
    s_add_u32 {s(R.sT0)}, {s(R.sT0)}, 0x20000
    v_add_u32 {v(vSh)}, {s(R.sT0)}, {v(vWa)}""")
    for g in range(2):
        for h in range(2):
            A(f"s_waitcnt vmcnt({24 - 16*g - 8*h})")
            for cc in range(8):
                o = vOut + 4*(cc & 3)
                for jj in range(4):
                    A(f"v_perm_b32 {v(o + jj)}, {v(win(g, h, jj, 1) + cc//2)}, {v(win(g, h, jj, 0) + cc//2)}, {s(sPb if cc & 1 else sPa)}")
                A(f"ds_write_b128 {v(R.vT0)}, {v(o,4)} offset:{cc*8192 + g*1024 + h*512}")
    ist()
    sZr, sZi, sSc, sWo, sPass, sNp, sMsk = 32, 33, 34, 35, 36, 37, 38
    A(f"""
    v_mul_u32_u24 {v(vZa)}, {YS}, {v(vPi)}
    v_lshl_add_u32 {v(vZa)}, {v(vH)}, 4, {v(vZa)}
    v_lshlrev_b32 {v(vSo)}, 12, {v(vH)}
    v_lshl_add_u32 {v(vSo)}, {v(vPi)}, 4, {v(vSo)}
    s_mul_i32 {s(sZr)}, {s(sCu)}, {BLKY}
    s_lshl_b32 {s(R.sT0)}, {s(R.sWv)}, 9
    s_add_u32 {s(sZr)}, {s(sZr)}, {s(R.sT0)}
    s_add_u32 {s(sZr)}, {s(sZr)}, {WS_Y}
    s_add_u32 {s(sZi)}, {s(sZr)}, 64
    s_lshl_b32 {s(sT2)}, {s(sCu)}, 2
    s_add_u32 {s(sT2)}, {s(sT2)}, {s(R.sWv)}
    s_lshl_b32 {s(sWo)}, {s(R.sWv)}, 15
    s_mov_b32 {s(sMsk)}, 0xffff0000
    s_mov_b32 {s(sPass)}, 0
    s_cmp_eq_u32 {s(sT2)}, 0
    s_cselect_b32 {s(sNp)}, 5, 4
    s_cselect_b32 {s(sZi)}, {OOB}, {s(sZi)}
    s_cselect_b32 {s(sSc)}, 1024, {OOB}
    v_and_b32 {v(R.vT3)}, 3, {v(R.vL)}
    v_lshlrev_b32 {v(R.vT3)}, 7, {v(R.vT3)}
    s_lshl_b32 {s(R.sT0)}, {s(sCu)}, 9
    s_add_u32 {s(R.sT0)}, {s(R.sT0)}, {WS_FLAG + FLAG_F}
    v_add_u32 {v(R.vT3)}, {s(R.sT0)}, {v(R.vT3)}
    s_waitcnt lgkmcnt(0)
    """)
    wait_flags(A, R, "F2_w", R.vT3, 4, 1, sGive, sCnt)
    zl = []
    for im, so in ((0, sZr), (1, sZi)):
        for ks in range(4):
            zl.append(([f"s_add_u32 {s(R.sT0)}, {s(so)}, {32 * YS}"] if ks == 2 else []) +
                      [f"buffer_load_dwordx4 {v(vZ + 16*im + 4*ks,4)}, {v(vZa)}, {s(R.sWS,4)}, {s(so if ks < 2 else R.sT0)} offen offset:{32*(ks&1)}"])
    ist()
    for g in zl:
        for x in g: A(x)
    ist()
    for k, (pa, ra) in enumerate(((0, 0), (32, 0), (0, 32))):
        A(f"""v_add_f32 {v(R.vT0)}, {f32bits(float(pa))}, {v(vPf)}
        v_mul_f32 {v(R.vT0)}, {f32bits(1.0/2048)}, {v(R.vT0)}""")
        for r in range(16):
            A(f"""v_add_f32 {v(R.vT1)}, {f32bits(float(16*(r>>3) + (r&7) + ra))}, {v(vHf)}
            v_mul_f32 {v(R.vT1)}, {v(R.vT1)}, {v(R.vT0)}
            v_cos_f32 {v(vTw+32*k+r)}, {v(R.vT1)}
            v_sin_f32 {v(vTw+32*k+16+r)}, {v(R.vT1)}""")
    ist()
    A("s_barrier")
    if ts: tstamp(A, R, 3, vt=24)
    def op(t_or_ks, im, u=None):
        ks = t_or_ks if u is None else 2*t_or_ks + u
        return v(vOp + 16*im + 4*ks, 4)
    def zop(ks, im): return v(vZ + 16*im + 4*ks, 4)
    def acc(t, im): return vAc + 32*t + 16*im
    def MF(d, x, y, first): return [f"v_mfma_f32_32x32x16_bf16 {v(d,16)}, {x}, {y}, {0 if first else v(d,16)}"]
    def cm(t, r, c, sn, sign):
        re, im = acc(t, 0) + r, acc(t, 1) + r; T = 20 + 2*(r & 2)
        return [f"v_mul_f32 {v(T+2*k+e)}, {v((re, im)[k]+e)}, {v(c+e)}" for e in range(2) for k in range(2)] + \
               [f"v_fma_f32 {v(T+2*k+e)}, {'-' if (sign > 0) == (k == 0) else ''}{v((im, re)[k]+e)}, {v(sn+e)}, {v(T+2*k+e)}" for e in range(2) for k in range(2)] + \
               [f"v_cvt_pk_bf16_f32 {v(vOp + 8*t + r//2)}, {v(T)}, {v(T+1)}", f"v_cvt_pk_bf16_f32 {v(vOp + 16 + 8*t + r//2)}, {v(T+2)}, {v(T+3)}"]
    def VT(t, c0, sign): return [x for r in range(0, 16, 2) for x in cm(t, r, c0 + r, c0 + 16 + r, sign)]
    def VW(t):
        o = ["s_waitcnt lgkmcnt(0)"]
        for r in range(0, 16, 2):
            for e in range(2):
                w = vOp + 16*e + 8*t + r//2
                o += [f"v_lshlrev_b32 {v(28+e)}, 16, {v(w)}", f"v_and_b32 {v(30+e)}, {s(sMsk)}, {v(w)}"]
            o += cm(t, r, 28, 30, +1)
        return o
    def VO(t): return [f"v_cvt_pk_bf16_f32 {v(acc(t,0)+r)}, {v(acc(t,0)+r)}, {v(acc(t,1)+r)}" for r in range(16)]
    def wrd(t): return [f"ds_read_b128 {v(vOp + 16*g + 8*t + 4*hh,4)}, {v(vLa)} offset:{(2*t + hh)*2048 + g*1024}" for hh in range(2) for g in range(2)]
    def M1(t): return [x for ks in range(4) for x in (MF(acc(t, 0), zop(ks, 0), a(aC64+16*t+4*ks, 4), ks == 0), MF(acc(t, 1), zop(ks, 1), a(aC64+16*t+4*ks, 4), ks == 0),
                                                     MF(acc(t, 0), zop(ks, 1), a(aS64+16*t+4*ks, 4), False), MF(acc(t, 1), zop(ks, 0), a(aN64+16*t+4*ks, 4), False))]
    def M2(t): return [x for u in range(2) for x in (MF(acc(t, 0), a(aC32+4*u, 4), op(t, 0, u), u == 0), MF(acc(t, 1), a(aC32+4*u, 4), op(t, 1, u), u == 0),
                                                    MF(acc(t, 0), a(aS32+4*u, 4), op(t, 1, u), False), MF(acc(t, 1), a(aN32+4*u, 4), op(t, 0, u), False))]
    def M3(t): return [x for u in range(2) for x in (MF(acc(t, 0), op(t, 0, u), a(aC32+4*u, 4), u == 0), MF(acc(t, 1), op(t, 1, u), a(aC32+4*u, 4), u == 0),
                                                    MF(acc(t, 0), op(t, 1, u), a(aN32+4*u, 4), False), MF(acc(t, 1), op(t, 0, u), a(aS32+4*u, 4), False))]
    def M4(t): return [x for ks in range(4) for x in (MF(acc(t, 0), a(aC64+16*t+4*ks, 4), op(ks, 0), ks == 0), MF(acc(t, 1), a(aC64+16*t+4*ks, 4), op(ks, 1), ks == 0),
                                                     MF(acc(t, 0), a(aN64+16*t+4*ks, 4), op(ks, 1), False), MF(acc(t, 1), a(aS64+16*t+4*ks, 4), op(ks, 0), False))]
    def slot(M, V, lead=2, tail=()):
        M = [list(x) for x in M]; M[-1] += list(tail)
        for x in sum(M[:lead], []) + merge(M[lead:], V): A(x)
    nxt = f"""s_add_u32 {s(sPass)}, {s(sPass)}, 1
    s_add_u32 {s(sZr)}, {s(sZr)}, 128
    s_add_u32 {s(sZi)}, {s(sZr)}, 64
    s_cmp_eq_u32 {s(sPass)}, 4
    s_cselect_b32 {s(sZr)}, {WS_Y + 64}, {s(sZr)}
    s_cselect_b32 {s(sZi)}, {OOB}, {s(sZi)}
    s_cmp_lt_u32 {s(sPass)}, {s(sNp)}
    s_cselect_b32 {s(sZr)}, {s(sZr)}, {OOB}
    s_cselect_b32 {s(sZi)}, {s(sZi)}, {OOB}
    v_add_u32 {v(vLa)}, {s(sWo)}, {v(vWa)}""".split("\n")
    a5 = 248
    v5 = (2, 3, 4, 7, 8, 10, 11, 16)
    c5 = [[f"s_add_u32 {s(R.sT1)}, {s(sSc)}, {i*64*1026}", f"buffer_load_ushort {a(a5 + (i >> 1) + 4*(i & 1))}, {v(vAd)}, {s(sWr,4)}, {s(R.sT1)} offen",
           f"buffer_load_ushort {v(v5[i])}, {v(vAd)}, {s(sWi,4)}, {s(R.sT1)} offen"] for i in range(8)]
    nxt = [f"ds_write_b128 {v(vSh)}, {a(a5,4)}", f"ds_write_b128 {v(vSh)}, {a(a5+4,4)} offset:1024"] + \
          [f"ds_write_b16 {v(vSh)}, {v(v5[i])} offset:{(i & 1)*1024 + (i >> 1)*4 + 2}" for i in range(8)] + [f"v_add_u32 {v(vSh)}, 2048, {v(vSh)}"] + nxt
    def w5(M, ks):
        M = [list(x) for x in M]
        for k in ks: M[k] += c5.pop(0)
        return M
    A(".p2align 6")
    A.label("F2_top")
    ist()
    A("s_waitcnt vmcnt(0)")
    ist()
    slot(M1(0), [x.strip() for x in nxt])
    slot(w5(M1(1), (1,)), VT(0, vTw, -1))
    slot([m + g for m, g in zip(M2(0), zl)], VT(1, vTw + 32, -1), tail=["s_nop 1"] + wrd(0))
    ist()
    slot(w5(M2(1), (1,)), VW(0), tail=["s_nop 1"] + wrd(1))
    slot(w5(M3(0), (1,)), VW(1))
    slot(w5(M3(1), (1,)), VT(0, vTw, +1))
    slot(w5(M4(0)[:8], (1,)), VT(1, vTw + 64, +1))
    slot(w5(M4(0)[8:] + M4(1), (0, 4, 8)), VO(0), lead=10)
    for x in VO(1): A(x)
    for p in range(1, 5):
        A(f"""s_cmp_eq_u32 {s(sPass)}, {p + 1}
        s_cbranch_scc1 F2_o{p}""")
    for p in range(5):
        if p: A.label(f"F2_o{p}")
        for k in range(32):
            w = acc(k >> 4, 0) + (k & 15)
            if p < 4:
                A(f"v_accvgpr_write_b32 {a(aOut+4*k+p)}, {v(w)}")
            else:
                A(f"v_accvgpr_read_b32 {v(R.vT0)}, {a(aOut+4*k)}")
                A(f"v_lshlrev_b32 {v(R.vT1)}, 16, {v(w)}")
                A(f"v_bfi_b32 {v(R.vT0)}, {s(sMsk)}, {v(R.vT1)}, {v(R.vT0)}")
                A(f"v_accvgpr_write_b32 {a(aOut+4*k)}, {v(R.vT0)}")
        if p < 4: A("s_branch F2_nx")
    A.label("F2_nx")
    A(f"""s_add_u32 {s(sWo)}, {s(sWo)}, 8192
    s_bitcmp1_b32 {s(sPass)}, 0
    s_cselect_b32 {s(R.sT0)}, 0, {(2048 - 32)*1026}
    s_add_u32 {s(sSc)}, {s(sSc)}, {1024*1026}
    s_sub_u32 {s(sSc)}, {s(sSc)}, {s(R.sT0)}
    s_cmp_eq_u32 {s(sPass)}, 4
    s_cselect_b32 {s(sWo)}, {16*8192 + 2048}, {s(sWo)}
    s_cselect_b32 {s(sSc)}, {OOB}, {s(sSc)}
    s_cmp_lt_u32 {s(sPass)}, {s(sNp)}
    s_cbranch_scc1 F2_top
    s_mul_i32 {s(R.sDst)}, {s(sT2)}, {ZCH}
    s_add_u32 {s(R.sDst)}, {s(R.sDst)}, {WS_Z}""")
    ist()
    for t in range(2):
        for r in range(16):
            o = (32*t + 16*(r >> 3) + (r & 7)) * 512
            if r % 8 == 0: A(f"s_add_u32 {s(R.sT0)}, {s(R.sDst)}, {o}")
            A(f"buffer_store_dwordx4 {a(aOut+4*(16*t+r),4)}, {v(vSo)}, {s(R.sWS,4)}, {s(R.sT0)} offen offset:{(r&7)*512} sc1")
    ist()
    A("s_waitcnt vmcnt(0)")
    ist()
    setflag(sT2, FLAG_F2)
    if ts: tstamp(A, R, 4)
    colidx(R.vT2)
    A(f"""v_lshrrev_b32 {v(R.vT3)}, 4, {v(R.vL)}
    v_cvt_f32_u32 {v(R.vT3)}, {v(R.vT3)}
    s_mov_b32 {s(sT2)}, {f32bits(1/1024)}
    v_and_b32 {v(38)}, 1, {v(R.vT2)}""")
    for t in range(2):
        A(f"""v_add_u32 {v(R.vT0)}, {4*t}, {v(R.vT2)}
        v_cvt_f32_u32 {v(R.vT1)}, {v(R.vT0)}
        v_mul_f32 {v(R.vT1)}, {s(sT2)}, {v(R.vT1)}
        v_mov_b32 {v(vD1+t)}, 0x3e800000
        v_sub_f32 {v(vD2+t)}, {v(R.vT1)}, {v(vD1+t)}
        v_mul_f32 {v(vInc+t)}, 0x41800000, {v(R.vT1)}
        v_mul_f32 {v(R.vT0)}, 4.0, {v(R.vT1)}
        v_mul_f32 {v(vB+t)}, {v(R.vT0)}, {v(R.vT3)}""")
    A(f"""v_lshlrev_b32 {v(vM)}, 4, {v(38)}
    v_bfe_u32 {v(R.vT0)}, {v(R.vT2)}, 1, 1
    v_add_u32 {v(R.vT1)}, 1, {v(R.vT2)}
    v_bfe_u32 {v(R.vT1)}, {v(R.vT1)}, 1, 1
    v_lshlrev_b32 {v(R.vT0)}, 15, {v(R.vT0)}
    v_lshl_or_b32 {v(vM+1)}, {v(R.vT1)}, 31, {v(R.vT0)}""")
    gen_dft_weights(A, R, vB, vD1, vD2, vInc, 16, lambda t, q, dst, src: [f"v_alignbit_b32 {v(dst)}, {v(src)}, {v(src)}, {v(vM)}", f"v_xor_b32 {v(dst)}, {v(dst)}, {v(vM+1)}"])
    A(f"""v_lshlrev_b32 {v(R.vT1)}, 31, {v(38)}
    v_or_b32 {v(R.vT1)}, 0x3f003f00, {v(R.vT1)}
    v_cmp_gt_u32 vcc, 16, {v(R.vL)}""")
    for t in range(2):
        A(f"""v_accvgpr_read_b32 {v(R.vT0)}, {a(aw(t,0))}
        v_cndmask_b32 {v(R.vT0)}, {v(R.vT0)}, {v(R.vT1)}, vcc
        v_accvgpr_write_b32 {a(aw(t,0))}, {v(R.vT0)}""")
    A(f"""
    v_and_b32 {v(R.vT0)}, 15, {v(R.vL)}
    v_lshrrev_b32 {v(R.vT1)}, 4, {v(R.vL)}
    v_lshlrev_b32 {v(R.vT0)}, 4, {v(R.vT0)}
    v_lshl_add_u32 {v(R.vRd)}, {v(R.vT1)}, 9, {v(R.vT0)}
    v_add_u32 {v(R.vRd+1)}, 2048, {v(R.vRd)}
    v_add_u32 {v(R.vRd+2)}, 0x10000, {v(R.vRd)}
    v_add_u32 {v(R.vRd+3)}, 0x10000, {v(R.vRd+1)}
    s_lshl_b32 {s(R.sM0)}, {s(R.sWv)}, 10
    s_lshl_b32 {s(R.sT0)}, {s(R.sWv)}, 1
    v_lshrrev_b32 {v(R.vT3)}, 5, {v(R.vL)}
    v_add_u32 {v(R.vT3)}, {s(R.sT0)}, {v(R.vT3)}
    v_and_b32 {v(R.vT2)}, 31, {v(R.vL)}
    v_mul_u32_u24 {v(R.vSrc)}, {ZCH}, {v(R.vT3)}
    v_lshl_add_u32 {v(R.vSrc)}, {v(R.vT2)}, 4, {v(R.vSrc)}
    v_and_b32 {v(R.vDst)}, 15, {v(R.vL)}
    v_and_b32 {v(R.vT0)}, 48, {v(R.vL)}
    v_lshl_add_u32 {v(R.vDst)}, {v(R.vDst)}, 12, {v(R.vT0)}
    v_add_u32 {v(R.vFlag)}, 0x10000, {v(R.vDst)}
    s_lshl_b32 {s(R.sDst)}, {s(sTg)}, 21
    s_lshl_b32 {s(R.sT0)}, {s(sBlk)}, 6
    s_add_u32 {s(R.sDst)}, {s(R.sDst)}, {s(R.sT0)}
    s_lshl_b32 {s(R.sSrc)}, {s(sTg)}, 13
    s_add_u32 {s(R.sSrc)}, {s(R.sSrc)}, {WS_Z}
    s_mov_b32 {s(R.sSrcStep)}, 512
    s_mov_b32 {s(R.sDstStep)}, {32*4096}
    v_and_b32 {v(R.vT2)}, 31, {v(R.vL)}
    v_lshlrev_b32 {v(R.vT2)}, 7, {v(R.vT2)}
    s_lshl_b32 {s(R.sT0)}, {s(R.sWv)}, 12
    s_add_u32 {s(R.sT0)}, {s(R.sT0)}, {WS_FLAG + FLAG_F2}
    v_add_u32 {v(R.vT2)}, {s(R.sT0)}, {v(R.vT2)}
    """)
    ist()
    if its == 2:
        from attn import idump
        idump(A, R, R.vFv)
    wait_flags(A, R, "F3_w0", R.vT2, 64, 1, sGive, sCnt)
    A("s_barrier")
    if ts: tstamp(A, R, 5)
    def dma3(half, b, lds):
        return [f"s_add_u32 m0, {s(R.sM0)}, {lds}", f"s_add_u32 {s(R.sT0)}, {s(R.sSrc)}, {(half*8 + b)*8*ZCH}",
                f"buffer_load_dwordx4 {v(R.vSrc)}, {s(R.sWS,4)}, {s(R.sT0)} offen lds"]
    def store3(u):
        return [f"buffer_store_dwordx4 {v(R.vPk+4*u,4)}, {v(R.vFlag if u else R.vDst)}, {s(R.sO,4)}, {s(R.sDst)} offen"]
    stream_loop(A, R, "F3", 16, False, dma3, store3, flag=False, ttoff=256)
    A(f"s_branch {done}")
```

```python
import sys
from build import *
from stream import *
from attn import *
from fft import *
import os
if os.environ.get("R7"): from recur7 import gen_recur
else: from recur6 import gen_recur
from proto import *

def dbgdump(A, sWS, sWv, sel, base, mask):
    L = A.newlabel("dd")
    A(f"""s_cmp_lg_u32 s2, {sel}
    s_cbranch_scc1 {L}
    s_cmp_lg_u32 {s(sWv)}, 0
    s_cbranch_scc1 {L}
    s_mov_b64 exec, {mask}
    v_lshlrev_b32 v10, 3, v0
    v_add_u32 v10, {WS_STAMP + 12*MB + sel*256}, v10
    buffer_load_dword v11, v10, {s(sWS,4)}, 0 offen sc1
    v_mbcnt_lo_u32_b32 v12, {mask}, 0
    v_add_lshl_u32 v12, v12, {base}, 2
    s_waitcnt vmcnt(0)
    global_store_dword v12, v11, {s(sDbg,2)} sc1
    s_waitcnt vmcnt(0)""".replace(f"v_mbcnt_lo_u32_b32 v12, {mask}, 0", f"v_mbcnt_lo_u32_b32 v12, exec_lo, 0"))
    A.label(L)

def gen(ts=False, notu=0, **kw):
    A = Asm(); R = SR
    sG, sI, sGive, sCu = 90, 91, 92, 93
    entry(A, "W_end", kw.pop("xmap", 1))
    A("""s_bitcmp1_b32 s3, 2
    s_cbranch_scc0 R_entry""")
    common_entry(A, R, 256, "W_end")
    if ts: tstamp(A, R, 0)
    A(f"""s_lshr_b32 {s(sG)}, s2, 6
    s_bfe_u32 {s(sI)}, s2, 0x30003
    s_lshl_b32 {s(sI)}, {s(sI)}, 2
    s_and_b32 {s(R.sT0)}, s3, 3
    s_add_u32 {s(sI)}, {s(sI)}, {s(R.sT0)}
    s_lshl_b32 {s(sCu)}, {s(R.sT0)}, 3
    s_lshr_b32 {s(R.sT0)}, {s(sI)}, 2
    s_add_u32 {s(sCu)}, {s(sCu)}, {s(R.sT0)}
    s_mov_b32 {s(sGive)}, 0
    s_lshl_b32 {s(R.sT0)}, {s(sCu)}, 2
    s_add_u32 {s(R.sT0)}, {s(R.sT0)}, {s(R.sWv)}            ; 4 idx + w
    s_lshl_b32 {s(R.sT1)}, {s(sG)}, 7
    s_add_u32 {s(R.sT1)}, {s(R.sT1)}, {s(R.sT0)}
    s_lshl_b32 {s(R.sT1)}, {s(R.sT1)}, 7
    s_add_u32 {s(R.sT1)}, {s(R.sT1)}, {WS_FLAG + FLAG_P}
    s_lshl_b32 {s(R.sSrc)}, {s(R.sT0)}, 7
    s_add_u32 {s(R.sSrc)}, {s(R.sSrc)}, {WS_FLAG + FLAG_T}
    s_cmp_eq_u32 {s(sG)}, 3
    s_cselect_b32 {s(R.sT1)}, {s(R.sSrc)}, {s(R.sT1)}
    s_cselect_b64 exec, 7, 1
    v_mov_b32 {v(R.vT0)}, {s(R.sT1)}
    s_and_b32 {s(R.sT1)}, {s(R.sT0)}, 31
    s_lshl_b32 {s(R.sT1)}, {s(R.sT1)}, 2
    s_lshr_b32 {s(R.sSrc)}, {s(sCu)}, 3
    s_add_u32 {s(R.sT1)}, {s(R.sT1)}, {s(R.sSrc)}
    s_lshl_b32 {s(R.sT1)}, {s(R.sT1)}, 7
    s_add_u32 {s(R.sT1)}, {s(R.sT1)}, {WS_FLAG + FLAG_F}
    v_writelane_b32 {v(R.vT0)}, {s(R.sT1)}, 1
    s_lshl_b32 {s(R.sT1)}, {s(R.sT0)}, 7
    s_add_u32 {s(R.sT1)}, {s(R.sT1)}, {WS_FLAG + FLAG_F2}
    v_writelane_b32 {v(R.vT0)}, {s(R.sT1)}, 2
    v_mov_b32 {v(R.vT1)}, 0
    buffer_store_dword {v(R.vT1)}, {v(R.vT0)}, {s(R.sWS,4)}, 0 offen sc1
    s_mov_b64 exec, -1
    s_cmp_eq_u32 {s(sG)}, 3
    s_cbranch_scc1 W_F
    s_load_dwordx2 {s(R.sX,2)}, s[0:1], {KA_BX}
    s_mov_b32 {s(R.sX+2)}, {4*MB}
    s_mov_b32 {s(R.sX+3)}, 0x20000
    s_lshr_b32 {s(R.sT0)}, s2, 3
    s_lshl_b32 {s(R.sT0)}, {s(R.sT0)}, 15
    v_lshlrev_b32 {v(R.vT0)}, 7, v0
    s_waitcnt lgkmcnt(0)
    buffer_load_dword v254, {v(R.vT0)}, {s(R.sX,4)}, {s(R.sT0)} offen""")
    def rdv(): rendezvous(A, R.vL, R.sT0, R.sT1, R.vT0, R.vT1, R.vFv, sGive, SPIN)
    def reg(n):
        A(f"""s_waitcnt vmcnt({n})
        s_barrier""")
        register(A, R.sWv, R.sT0, R.sT1, R.vT0, R.vT1)
    qlate = kw.pop("qlate", 1)
    def notq(f):
        def g(*x):
            L = A.newlabel("nq")
            if qlate: A(f"""s_cmp_eq_u32 {s(sG)}, 0
            s_cbranch_scc1 {L}""")
            f(*x)
            A.label(L)
        return g
    if qlate:
        A(f"""s_cmp_lg_u32 {s(sG)}, 0
        s_cbranch_scc1 W_P""")
        A("""s_waitcnt vmcnt(0)
        s_barrier""")
        vote(A, R, sI)
        reg(0)
        A.label("W_P")
    touch = kw.pop("ptouch", 1)
    gen_P(A, sG, sCu, "W_U", ts=ts, mid=notq(lambda n: (reg(n + 1), A('s_barrier'))), pre=kw.pop('ppre', 2), touch=touch)
    A.label("W_U")
    rdv()
    if ts: tstamp(A, R, 2)
    if notu & 1: A("s_branch W_fin")
    gen_U64(A, sG, sCu, "W_fin", sGive, ts=ts, usl=kw.pop("usl", 2), touch=touch, rot=kw.pop("rot", 0), tpf=kw.pop("tpf", 0), its=kw.get("its", 0), early=kw.get("tearly", 0))
    A.label("W_F")
    if not qlate:
        A("""s_waitcnt vmcnt(0)
        s_barrier""")
        vote(A, R, sI)
    reg(0)
    ft = kw.pop("ft", 0)
    if ft:
        A(f"""s_load_dwordx2 {s(R.sX,2)}, s[0:1], {KA_WO}
        s_load_dwordx2 {s(R.sO,2)}, s[0:1], {KA_WQ}
        s_mov_b32 {s(R.sX+2)}, {8*MB}
        s_mov_b32 {s(R.sX+3)}, 0x20000
        s_mov_b32 {s(R.sO+2)}, {8*MB}
        s_mov_b32 {s(R.sO+3)}, 0x20000
        s_lshl_b32 {s(R.sT0)}, {s(sCu)}, 18
        v_lshlrev_b32 {v(R.vT0)}, 7, v0
        s_waitcnt lgkmcnt(0)""")
        for k in range(8):
            if ft & 2: A(f"buffer_load_dword {v(232+k)}, {v(R.vT0)}, {s(R.sO,4)}, {s(R.sT0)} offen")
            if ft & 1: A(f"buffer_load_dword {v(240+k)}, {v(R.vT0)}, {s(R.sX,4)}, {s(R.sT0)} offen")
            A(f"s_add_u32 {s(R.sT0)}, {s(R.sT0)}, 32768")
    gen_F(A, sCu, "W_T", sGive, rdv=rdv, ts=ts, wt0=kw.pop("wt0", 5), its=kw.get("its", 0))
    A.label("W_T")
    if ts: tstamp(A, R, 6)
    if notu & 2: A("s_branch W_fin")
    gen_T(A, sCu, "W_fin", sGive, early=kw.pop("tearly", 0), **{k: kw.pop(k) for k in ("tfree", "tpat", "its", "tl", "tsl") if k in kw})
    A.label("W_fin")
    if ts: tstamp(A, R, 7)
    if ts == 2:
        dbgdump(A, R.sWS, R.sWv, 64 + 12, 3, 0x8f); dbgdump(A, R.sWS, R.sWv, 192 + 12, 8, 0xff)
    A.label("W_end")
    A("s_endpgm")
    A.label("R_entry")
    class RR: sWS = 4; sWv = 14
    def rts(k):
        tstamp(A, RR, k, vt=112 if os.environ.get("R7") else 248)
        if ts == 2 and k == 2: dbgdump(A, RR.sWS, RR.sWv, 8, 0, 7)
    gen_recur(A, ts=rts if ts else None, **kw)
    return A

if __name__ == "__main__":
    kw = {}
    for x in sys.argv[2:]:
        k, val = x.split("="); kw[k] = int(val)
    A = gen(**kw)
    name = NAME + "_kernel"
    txt = assemble_file([(name, 256, 256, LDS_BYTES)], [kernel_text(name, A)])
    open(sys.argv[1], "w").write(txt)
```

```python
from asmlib import *
from layout import *
from stream import *
import struct, math
def f32bits(x): return struct.unpack("<I", struct.pack("<f", x))[0]
SPIN = 1 << 20
LD = ""

def idump(A, R, vv):
    A(f"""s_lshl_b32 {s(R.sT0)}, s2, 10
    s_add_u32 {s(R.sT0)}, {s(R.sT0)}, {WS_STAMP + 13*MB}
    v_lshlrev_b32 {v(R.vT0)}, 2, v0
    buffer_store_dword {v(vv)}, {v(R.vT0)}, {s(R.sWS,4)}, {s(R.sT0)} offen""")

def gen_T(A, sHead, done, sGive, tfree=0, tpat=0, its=0, tl=60, early=1, tsl=0):
    its = its == 1
    R = SR
    sSeg, sC, sCnt, sQ, sKm, sOo, sNx, sHave = 28, 29, 30, 31, 32, 33, 34, 35
    sMask = 36
    sQn, sKn = 68, 69
    vQa, vKa, vKma, vVma, vOa, vFa, vFl, vTf, vMx, vSm = range(10, 20)
    aQ = lambda b: 96*b
    aK = lambda b: 96*b + 32
    aV = lambda b: 96*b + 64
    vKM = lambda b: 20 + 48*b
    vVM = lambda b: 52 + 48*b
    vS, vSM, vP = 116, 132, 148
    vO = 160
    vPk = 224
    pi_lane(A, R.vT2, R.vL, R.vT0, R.vT1)
    A(f"""
    v_lshrrev_b32 {v(R.vT0)}, 5, {v(R.vL)}            ; h2
    v_and_b32 {v(R.vT1)}, 31, {v(R.vL)}               ; q / row
    v_lshlrev_b32 {v(R.vT3)}, 4, {v(R.vT0)}
    v_lshl_add_u32 {v(vQa)}, {v(R.vT1)}, 6, {v(R.vT3)}
    v_lshl_add_u32 {v(vKa)}, {v(R.vT2)}, 6, {v(R.vT3)}
    v_mov_b32 {v(vTf)}, {OOB}
    v_cmp_gt_u32 vcc, 8, {v(R.vT1)}
    v_cndmask_b32 {v(vKma)}, {v(vTf)}, {v(vQa)}, vcc
    v_lshlrev_b32 {v(vVma)}, 3, {v(R.vT0)}
    v_lshl_add_u32 {v(vVma)}, {v(R.vT2)}, 4, {v(vVma)}
    ; O address: (q>>4)*128K + h2*256 + (q&15)*16
    v_and_b32 {v(vOa)}, 15, {v(R.vL)}
    v_lshlrev_b32 {v(vOa)}, 4, {v(vOa)}
    v_lshl_add_u32 {v(vOa)}, {v(R.vT0)}, 8, {v(vOa)}
    v_bfe_u32 {v(R.vT3)}, {v(R.vL)}, 4, 1
    v_lshl_add_u32 {v(vOa)}, {v(R.vT3)}, 17, {v(vOa)}
    v_lshrrev_b32 {v(vFa)}, 2, {v(R.vL)}
    v_and_b32 {v(R.vT3)}, 3, {v(R.vL)}
    v_lshl_add_u32 {v(vFa)}, {v(vFa)}, 7, {v(R.vT3)}
    s_lshl_b32 {s(R.sT0)}, {s(sHead)}, 2
    v_add_u32 {v(vFa)}, {s(R.sT0)}, {v(vFa)}
    v_lshlrev_b32 {v(vFa)}, 7, {v(vFa)}
    v_add_u32 {v(vFa)}, {WS_FLAG + FLAG_P}, {v(vFa)}
    v_cmp_gt_u32 vcc, 16, {v(R.vL)}
    v_cndmask_b32 {v(vFa)}, {v(vTf)}, {v(vFa)}, vcc
    v_mov_b32 {v(vFl)}, 0
    s_add_u32 {s(R.sT1)}, {s(R.sWv)}, {s(R.sT0)}
    s_lshl_b32 {s(R.sT1)}, {s(R.sT1)}, 7
    s_add_u32 {s(R.sT1)}, {s(R.sT1)}, {WS_FLAG + FLAG_T}
    v_lshl_add_u32 {v(R.vFlag)}, {v(R.vL)}, 2, {s(R.sT1)}
    v_cmp_gt_u32 vcc, 32, {v(R.vL)}
    v_cndmask_b32 {v(R.vFlag)}, {v(vTf)}, {v(R.vFlag)}, vcc
    v_lshlrev_b32 {v(R.vT0)}, 3, {v(R.vT0)}
    v_sub_u32 {v(R.vT1)}, {v(R.vT1)}, {v(R.vT0)}      ; q - 8*h2 (signed)
    s_mov_b32 {s(sC)}, {f32bits(128 ** -0.5 * math.log2(math.e))}
    s_mov_b32 {s(sSeg)}, {s(R.sWv)}
    s_mul_i32 {s(sQ)}, {s(R.sT0)}, {BLK}
    s_lshl_b32 {s(R.sT1)}, {s(sSeg)}, 11
    s_add_u32 {s(sQ)}, {s(sQ)}, {s(R.sT1)}
    s_mul_i32 {s(sKm)}, {s(R.sT0)}, {MBLK}
    s_lshl_b32 {s(R.sT1)}, {s(sSeg)}, 9
    s_add_u32 {s(sKm)}, {s(sKm)}, {s(R.sT1)}
    s_add_u32 {s(sKm)}, {s(sKm)}, {WS_KM}
    s_lshl_b32 {s(sOo)}, {s(sSeg)}, 18
    s_lshl_b32 {s(R.sT1)}, {s(sHead)}, 12
    s_add_u32 {s(sOo)}, {s(sOo)}, {s(R.sT1)}
    s_add_u32 {s(sOo)}, {s(sOo)}, {WS_O}
    v_mov_b32 {v(vTf)}, 0xff800000
    s_mov_b32 {s(sHave)}, 0
    v_mov_b32 {v(R.vFv)}, 0
    """)
    if tpat == 1: A(f"""v_lshlrev_b32 {v(vQa)}, 4, {v(R.vL)}
    v_lshlrev_b32 {v(vKa)}, 4, {v(R.vL)}""")
    if tpat == 2: A(f"""v_and_b32 {v(vQa)}, 31, {v(R.vL)}
    v_lshlrev_b32 {v(vQa)}, 5, {v(vQa)}
    v_lshl_add_u32 {v(vQa)}, {v(R.vT0)}, 1, {v(vQa)}
    v_mov_b32 {v(vKa)}, {v(vQa)}""")
    if tpat == 3: A(f"""v_lshlrev_b32 {v(vKa)}, 4, {v(R.vT2)}
    v_lshl_add_u32 {v(vKa)}, {v(R.vT0)}, 6, {v(vKa)}
    v_mov_b32 {v(vQa)}, {v(vKa)}""")
    RM = 0 if tfree else 0xf000
    for r in range(16): A(f"v_cmp_le_i32 {s(sMask+2*r,2)}, {16*(r>>3) + (r&7)}, {v(R.vT1)}")
    for b in range(2):
        for es in range(4):
            A(f"v_mov_b32 {v(vVM(b)+4*es+2)}, 0"); A(f"v_mov_b32 {v(vVM(b)+4*es+3)}, 0")
    A(f"v_mov_b32 {v(vP+10)}, 0"); A(f"v_mov_b32 {v(vP+11)}, 0")
    ldfl = f"buffer_load_dword {v(vFl)}, {v(vFa)}, {s(R.sWS,4)}, 0 offen sc1"
    stfl = f"buffer_store_dword {v(R.vFv)}, {v(R.vFlag)}, {s(R.sWS,4)}, 0 offen sc1"
    def spin(name, sNeed, mask, ok, slp):
        return [f"s_mov_b32 {s(sCnt)}, {s(sGive)}", f"{name}:",
                f"v_cmp_ge_u32 vcc, {s(sNeed)}, {v(vFl)}", f"s_and_b32 {s(R.sT0)}, vcc_lo, {mask}", f"s_cbranch_scc0 {ok}",
                f"s_cmp_ge_u32 {s(sCnt)}, {SPIN}", f"s_cselect_b32 {s(sGive)}, {SPIN}, {s(sGive)}", f"s_cbranch_scc1 {ok}",
                f"s_add_u32 {s(sCnt)}, {s(sCnt)}, 1", ldfl, f"s_sleep {slp}", "s_waitcnt vmcnt(0)", f"s_branch {name}"]
    def ldq(b, so):
        o = []
        for mat, reg, va in ((0, aQ(b), vQa), (1, aK(b), vKa), (2, aV(b), vKa)):
            for es in range(4):
                o.append([f"s_add_u32 {s(R.sT0)}, {s(so)}, {mat*QKV_STRIDE + es*BLK}"] +
                         [f"buffer_load_dwordx4 {a(reg+(es*2+u)*4,4)}, {v(va)}, {s(R.sWS,4)}, {s(R.sT0)} offen offset:{(1024 if tpat else 32)*u}{LD}" for u in range(2)])
        return o
    def ldm(b, so):
        o = []
        for es in range(4):
            o.append([f"s_add_u32 {s(R.sT0)}, {s(so)}, {es*MBLK}", f"s_add_u32 {s(R.sT1)}, {s(so)}, {es*MBLK + WS_VMT - WS_KM}"] +
                     [f"buffer_load_dwordx4 {v(vKM(b)+(es*2+u)*4,4)}, {v(vKma)}, {s(R.sWS,4)}, {s(R.sT0)} offen offset:{32*u}{LD}" for u in range(2)] +
                     [f"buffer_load_dwordx2 {v(vVM(b)+4*es,2)}, {v(vVma)}, {s(R.sWS,4)}, {s(R.sT1)} offen{LD}"])
        return o
    def x32(op, x):
        A(f"""v_mov_b32 {v(R.vT0)}, {v(x)}
        v_permlane32_swap_b32 {v(x)}, {v(R.vT0)}
        {op} {v(x)}, {v(x)}, {v(R.vT0)}""")
    if early:
        for r in range(4): A(f"v_mov_b32 {v(vPk+r)}, -1")
        A(f"s_add_u32 {s(R.sT0)}, {s(sOo)}, {60 << 18}")
        for k in range(8): A(f"buffer_store_dwordx4 {v(vPk,4)}, {v(vOa)}, {s(R.sWS,4)}, {s(R.sT0)} offen offset:{512*k} sc1")
    for x in spin("T_p", sSeg, 0xfff, "T_pk", 8): A(x)
    A.label("T_pk")
    for g in ldq(0, sQ):
        for x in g: A(x)
    tails = []
    def ist():
        if its: A(f"""s_memrealtime s[72:73]
        s_waitcnt lgkmcnt(0)
        v_writelane_b32 {v(R.vSrc)}, s72, m0
        s_add_u32 m0, m0, 1""")
    if its: A("s_mov_b32 m0, 0")
    for b in range(2):
        A.label(f"T_top{b}")
        ist()
        A(f"""s_cmp_eq_u32 {s(sHave)}, 0
        s_cbranch_scc1 T_slow{b}""")
        A.label(f"T_go{b}")
        A(f"""s_add_u32 {s(sNx)}, {s(sSeg)}, 4
        s_min_u32 {s(sQn)}, {s(sNx)}, 63
        s_waitcnt vmcnt(8)
        v_cmp_ge_u32 vcc, {s(sQn)}, {v(vFl)}
        s_and_b32 {s(R.sT0)}, vcc_lo, 0xfff
        s_cbranch_scc1 T_pw{b}""")
        A.label(f"T_pok{b}")
        ist()
        A(f"""s_add_u32 {s(sQ)}, {s(sQ)}, {4*2048}
        s_add_u32 {s(sKm)}, {s(sKm)}, {4*512}
        s_and_b32 {s(R.sT0)}, vcc_lo, {RM}
        s_cselect_b32 {s(sHave)}, 0, 1
        s_cselect_b32 {s(sKn)}, {OOB}, {s(sKm)}
        s_cmp_lt_u32 {s(sNx)}, 64
        s_cselect_b32 {s(sQn)}, {s(sQ)}, {OOB}
        s_cselect_b32 {s(sKn)}, {s(sKn)}, {OOB}
        {ldfl}""")
        tails.append([f"T_slow{b}:", "s_waitcnt vmcnt(0)", stfl] + ([f"s_cmp_ge_u32 {s(sSeg)}, {tl}", "s_cbranch_scc1 T_last"] if b else []) + spin(f"T_s{b}", sSeg, RM, f"T_sk{b}", 2) + [f"T_sk{b}:"] +
                     [x for g in ldm(b, sKm) for x in g] + ["s_waitcnt vmcnt(0)", f"s_branch T_go{b}"])
        tails.append([f"T_pw{b}:"] + spin(f"T_q{b}", sQn, 0xfff, f"T_pok{b}", 8))
        nx = ldq(1 - b, sQn) + ldm(1 - b, sKn)
        for k in range(8):
            A(f"v_mfma_f32_32x32x16_bf16 {v(vS,16)}, {a(aK(b)+4*k,4)}, {a(aQ(b)+4*k,4)}, {v(vS,16) if k else 0}")
            for x in nx.pop(0): A(x)
        for k in range(8):
            A(f"v_mfma_f32_32x32x16_bf16 {v(vSM,16)}, {v(vKM(b)+4*k,4)}, {a(aQ(b)+4*k,4)}, {v(vSM,16) if k else 0}")
            for x in nx.pop(0): A(x)
        ist()
        for r in range(16): A(f"v_cndmask_b32 {v(vS+r)}, {v(vTf)}, {v(vS+r)}, {s(sMask+2*r,2)}")
        A(f"v_max3_f32 {v(vMx)}, {v(vS)}, {v(vS+1)}, {v(vS+2)}")
        for r in range(3, 19, 2): A(f"v_max3_f32 {v(vMx)}, {v(vMx)}, {v(vS+r)}, {v(vS+r+1)}")
        A(f"v_max_f32 {v(vMx)}, {v(vMx)}, {v(vS+19)}")
        x32("v_max_f32", vMx)
        A(f"v_mul_f32 {v(vMx)}, {s(sC)}, {v(vMx)}")
        for r in range(20): A(f"v_fma_f32 {v(vS+r)}, {v(vS+r)}, {s(sC)}, -{v(vMx)}")
        for r in range(20): A(f"v_exp_f32 {v(vS+r)}, {v(vS+r)}")
        A("s_waitcnt vmcnt(37)")
        ist()
        A(stfl)
        A(f"v_add_f32 {v(vSm)}, {v(vS)}, {v(vS+1)}")
        A(f"v_add_f32 {v(R.vT1)}, {v(vS+2)}, {v(vS+3)}")
        for r in range(4, 20, 2):
            A(f"v_add_f32 {v(vSm)}, {v(vSm)}, {v(vS+r)}")
            A(f"v_add_f32 {v(R.vT1)}, {v(R.vT1)}, {v(vS+r+1)}")
        A(f"v_add_f32 {v(vSm)}, {v(vSm)}, {v(R.vT1)}")
        x32("v_add_f32", vSm)
        A(f"v_rcp_f32 {v(vSm)}, {v(vSm)}")
        for r in range(20): A(f"v_mul_f32 {v(vS+r)}, {v(vS+r)}, {v(vSm)}")
        for r in range(10): A(f"v_cvt_pk_bf16_f32 {v(vP+r)}, {v(vS+2*r)}, {v(vS+2*r+1)}")
        def epi(e):
            for r in range(8): A(f"v_cvt_pk_bf16_f32 {v(vPk+8*e+r)}, {v(vO+16*e+2*r)}, {v(vO+16*e+2*r+1)}")
            for u in range(2): A(f"buffer_store_dwordx4 {v(vPk+8*e+4*u,4)}, {v(vOa)}, {s(R.sWS,4)}, {s(sOo)} offen offset:{1024*e + 512*u} sc1")
        for es in range(4):
            d = v(vO + 16*es, 16)
            A(f"v_mfma_f32_32x32x16_bf16 {d}, {a(aV(b)+8*es,4)}, {v(vP,4)}, 0")
            A(f"v_mfma_f32_32x32x16_bf16 {d}, {a(aV(b)+8*es+4,4)}, {v(vP+4,4)}, {d}")
            A(f"v_mfma_f32_32x32x16_bf16 {d}, {v(vVM(b)+4*es,4)}, {v(vP+8,4)}, {d}")
            if es >= 1: epi(es - 1)
        A(f"v_add_u32 {v(R.vFv)}, 1, {v(R.vFv)}")
        epi(3)
        A(f"""s_mov_b32 {s(sSeg)}, {s(sNx)}
        s_add_u32 {s(sOo)}, {s(sOo)}, {4 << 18}""")
    A(f"""s_cmp_lt_u32 {s(sSeg)}, 64
    s_cbranch_scc1 T_top0
    T_fin:
    s_waitcnt vmcnt(0)
    {stfl}""")
    if its: idump(A, R, R.vSrc)
    A(f"s_branch {done}")
    for t in tails:
        for x in t: A(x)
    A.label("T_last")
    vMr, vAl = vKM(0), vKM(0) + 1
    for k in range(8): A(f"v_mfma_f32_32x32x16_bf16 {v(vS,16)}, {a(aK(1)+4*k,4)}, {a(aQ(1)+4*k,4)}, {v(vS,16) if k else 0}")
    for r in range(16): A(f"v_cndmask_b32 {v(vS+r)}, {v(vTf)}, {v(vS+r)}, {s(sMask+2*r,2)}")
    A(f"v_max3_f32 {v(vMr)}, {v(vS)}, {v(vS+1)}, {v(vS+2)}")
    for r in range(3, 15, 2): A(f"v_max3_f32 {v(vMr)}, {v(vMr)}, {v(vS+r)}, {v(vS+r+1)}")
    A(f"v_max_f32 {v(vMr)}, {v(vMr)}, {v(vS+15)}")
    x32("v_max_f32", vMr)
    A(f"v_mul_f32 {v(vMx)}, {s(sC)}, {v(vMr)}")
    for r in range(16): A(f"v_fma_f32 {v(vS+r)}, {v(vS+r)}, {s(sC)}, -{v(vMx)}")
    for r in range(16): A(f"v_exp_f32 {v(vS+r)}, {v(vS+r)}")
    A(f"v_add_f32 {v(vSm)}, {v(vS)}, {v(vS+1)}")
    for r in range(2, 16): A(f"v_add_f32 {v(vSm)}, {v(vSm)}, {v(vS+r)}")
    for r in range(8): A(f"v_cvt_pk_bf16_f32 {v(vP+r)}, {v(vS+2*r)}, {v(vS+2*r+1)}")
    for es in range(4):
        d = v(vO + 16*es, 16)
        A(f"v_mfma_f32_32x32x16_bf16 {d}, {a(aV(1)+8*es,4)}, {v(vP,4)}, 0")
        A(f"v_mfma_f32_32x32x16_bf16 {d}, {a(aV(1)+8*es+4,4)}, {v(vP+4,4)}, {d}")
    A(f"""s_cmp_ge_u32 {s(sSeg)}, 61
    s_cselect_b64 {s(sMask+12,2)}, 0xffff, 0
    s_sub_u32 {s(sNx)}, {s(sSeg)}, 2""")
    for es in range(4):
        A(f"s_add_u32 {s(sMask+es)}, {s(sKm)}, {es*MBLK}")
        A(f"s_add_u32 {s(sMask+4+es)}, {s(sKm)}, {es*MBLK + WS_VMT - WS_KM}")
    A(f"v_add_u32 {v(R.vFv)}, 1, {v(R.vFv)}")
    for x in spin("T_l0", sNx, RM, "T_l1", 2): A(x)
    def mx(regs, d):
        r = list(regs); o = [f"v_max3_u32 {v(d)}, {v(r[0])}, {v(r[1])}, {v(r[2])}"]; r = r[3:]
        while len(r) >= 2: o.append(f"v_max3_u32 {v(d)}, {v(d)}, {v(r[0])}, {v(r[1])}"); r = r[2:]
        if r: o.append(f"v_max_u32 {v(d)}, {v(d)}, {v(r[0])}")
        return o
    A.label("T_l2")
    for x in mx(list(range(vKM(1), vKM(1) + 32)) + [R.vT1], R.vT0): A(x)
    A(f"""v_cmp_eq_u32 vcc, -1, {v(R.vT0)}
    s_cbranch_vccz T_l3
    s_add_u32 {s(sCnt)}, {s(sCnt)}, 1
    s_cmp_ge_u32 {s(sCnt)}, {SPIN}
    s_cbranch_scc1 T_l3""")
    if tsl: A(f"s_sleep {tsl}")
    A.label("T_l1")
    for k in range(8): A(f"buffer_load_dwordx4 {v(vKM(1)+4*k,4)}, {v(vKma)}, {s(R.sWS,4)}, {s(sMask + k//2)} offen offset:{32*(k & 1)} sc1")
    for es in range(4): A(f"buffer_load_dwordx2 {v(vVM(1)+4*es,2)}, {v(vVma)}, {s(R.sWS,4)}, {s(sMask+4+es)} offen sc1")
    for k in range(8):
        A(f"s_waitcnt vmcnt({11 - k})")
        A(f"v_mfma_f32_32x32x16_bf16 {v(vSM,16)}, {v(vKM(1)+4*k,4)}, {a(aQ(1)+4*k,4)}, {v(vSM,16) if k else 0}")
    A("s_waitcnt vmcnt(0)")
    for x in mx([vVM(1) + 4*es + e for es in range(4) for e in range(2)], R.vT1): A(x)
    A(f"""v_cmp_eq_u32 {s(sMask+8,2)}, -1, {v(R.vT1)}
    v_cmp_u_f32 {s(sMask+10,2)}, {v(vSM)}, {v(vSM+1)}
    v_cmp_u_f32 vcc, {v(vSM+2)}, {v(vSM+3)}
    v_max3_f32 {v(vMx)}, {v(vSM)}, {v(vSM+1)}, {v(vMr)}
    s_or_b64 {s(sMask+8,2)}, {s(sMask+8,2)}, {s(sMask+10,2)}
    v_max3_f32 {v(vMx)}, {v(vSM+2)}, {v(vSM+3)}, {v(vMx)}
    s_or_b64 vcc, vcc, {s(sMask+8,2)}
    s_cbranch_vccnz T_l2""")
    A.label("T_l3")
    ist(); ist()
    x32("v_max_f32", vMx)
    A(f"v_mul_f32 {v(vMx)}, {s(sC)}, {v(vMx)}")
    A(f"v_fma_f32 {v(vAl)}, {v(vMr)}, {s(sC)}, -{v(vMx)}")
    for r in range(4): A(f"v_fma_f32 {v(vSM+r)}, {v(vSM+r)}, {s(sC)}, -{v(vMx)}")
    A(f"v_exp_f32 {v(vAl)}, {v(vAl)}")
    for r in range(4): A(f"v_exp_f32 {v(vSM+r)}, {v(vSM+r)}")
    A(f"""v_fma_f32 {v(vSm)}, {v(vSm)}, {v(vAl)}, {v(vSM)}
    v_add_f32 {v(R.vT1)}, {v(vSM+1)}, {v(vSM+2)}
    v_add_f32 {v(vSm)}, {v(vSm)}, {v(vSM+3)}
    v_add_f32 {v(vSm)}, {v(vSm)}, {v(R.vT1)}""")
    x32("v_add_f32", vSm)
    A(f"v_rcp_f32 {v(vSm)}, {v(vSm)}")
    A(f"v_mul_f32 {v(vAl)}, {v(vAl)}, {v(vSm)}")
    for r in range(4): A(f"v_mul_f32 {v(vSM+r)}, {v(vSM+r)}, {v(vSm)}")
    for r in range(2): A(f"v_cvt_pk_bf16_f32 {v(vP+8+r)}, {v(vSM+2*r)}, {v(vSM+2*r+1)}")
    if early == 2: A(f"""s_mov_b64 exec, {s(sMask+12,2)}
    {stfl}
    s_mov_b64 exec, -1
    s_sleep 40""")
    for es in range(4):
        for r in range(16): A(f"v_mul_f32 {v(vO+16*es+r)}, {v(vO+16*es+r)}, {v(vAl)}")
        A(f"v_mfma_f32_32x32x16_bf16 {v(vO+16*es,16)}, {v(vVM(1)+4*es,4)}, {v(vP+8,4)}, {v(vO+16*es,16)}")
        if es >= 1: epi(es - 1)
    epi(3)
    if early: A(f"""s_mov_b64 exec, {s(sMask+12,2)}
    {stfl}
    s_mov_b64 exec, -1""")
    ist()
    A("s_branch T_fin")

def gen_U(A, sGrp, sCol, done, sGive, ngrp=3, ts=False, uw=0, usl=2):
    R = SR
    sN, sCnt, sLd, sOut, sPar, sNx = 28, 29, 30, 31, 32, 33
    vLa, vFa, vFl, vOa, vLw, vLr = range(10, 16)
    vAcc = 16
    vRed = 24
    vF = 64
    A(f"""
    s_load_dwordx2 {s(R.sX,2)}, s[0:1], {KA_WO}
    s_load_dwordx2 {s(R.sO,2)}, s[0:1], {KA_OUT}
    s_mov_b32 {s(R.sX+2)}, {8*MB}
    s_mov_b32 {s(R.sX+3)}, 0x20000
    s_mov_b32 {s(R.sO+2)}, {8*MB}
    s_mov_b32 {s(R.sO+3)}, 0x20000
    s_lshl_b32 {s(R.sSrc)}, {s(R.sWv)}, 21
    s_lshl_b32 {s(R.sT0)}, {s(sCol)}, 6
    s_add_u32 {s(R.sSrc)}, {s(R.sSrc)}, {s(R.sT0)}
    s_waitcnt lgkmcnt(0)
    s_barrier
    """)
    load_weights_tr(A, R, R.sX, R.sSrc, 2048)
    if ts: tstamp(A, R, 3)
    A(f"""
    v_lshlrev_b32 {v(vLr)}, 4, {v(R.vL)}
    s_lshl_b32 {s(R.sT0)}, {s(R.sWv)}, 15
    v_add_u32 {v(vLa)}, {s(R.sT0)}, {v(vLr)}
    s_lshl_b32 {s(R.sT0)}, {s(R.sWv)}, 11
    v_add_u32 {v(vLw)}, {s(R.sT0)}, {v(vLr)}
    v_bfe_u32 {v(vFa)}, {v(R.vL)}, 3, 2
    v_and_b32 {v(R.vT0)}, 7, {v(R.vL)}
    v_lshlrev_b32 {v(R.vT0)}, 9, {v(R.vT0)}
    v_lshl_add_u32 {v(vFa)}, {v(vFa)}, 7, {v(R.vT0)}
    s_lshl_b32 {s(R.sT0)}, {s(R.sWv)}, 12
    s_add_u32 {s(R.sT0)}, {s(R.sT0)}, {WS_FLAG + FLAG_T}
    v_add_u32 {v(vFa)}, {s(R.sT0)}, {v(vFa)}
    v_mov_b32 {v(vFl)}, 0
    v_and_b32 {v(vOa)}, 15, {v(R.vL)}
    v_and_b32 {v(R.vT0)}, 48, {v(R.vL)}
    v_lshl_add_u32 {v(vOa)}, {v(vOa)}, 12, {v(R.vT0)}
    s_lshl_b32 {s(R.sT0)}, {s(sCol)}, 6
    s_add_u32 {s(R.sT0)}, {s(R.sT0)}, 2048
    v_add_u32 {v(vOa)}, {s(R.sT0)}, {v(vOa)}
    s_mov_b32 {s(sN)}, {s(sGrp)}
    s_mov_b32 {s(sPar)}, 0
    s_barrier
    """)
    def ready(sItem):
        return [f"s_lshr_b32 {s(R.sT0)}, {s(sItem)}, 3",
                f"v_cmp_ge_u32 vcc, {s(R.sT0)}, {v(vFl)}",
                f"s_lshl_b32 {s(R.sT1)}, {s(sItem)}, 2",
                f"s_and_b32 {s(R.sT1)}, {s(R.sT1)}, 24",
                f"s_lshr_b32 {s(R.sT0)}, vcc_lo, {s(R.sT1)}",
                f"s_and_b32 {s(R.sT0)}, {s(R.sT0)}, 0xff"]
    def ld(ks):
        o = []
        if ks % 4 == 0 and ks: o.append(f"s_add_u32 {s(sLd)}, {s(sLd)}, 4096")
        o.append(f"buffer_load_dwordx4 {v(vF+4*ks,4)}, {v(vLa)}, {s(R.sWS,4)}, {s(sLd)} offen offset:{(ks%4)*1024}{LD}")
        return o
    def setld(sItem):
        return [f"s_lshl_b32 {s(sLd)}, {s(sItem)}, 17", f"s_add_u32 {s(sLd)}, {s(sLd)}, {WS_O}"]
    if uw:
        A(f"""U_uw:
        s_sleep 100
        s_mov_b64 exec, 0xffffffff
        buffer_load_dword {v(vFl)}, {v(vFa)}, {s(R.sWS,4)}, 0 offen sc1
        s_waitcnt vmcnt(0)
        v_cmp_gt_u32 vcc, 16, {v(vFl)}
        s_mov_b64 exec, -1
        s_add_u32 {s(sPar)}, {s(sPar)}, 1
        s_cmp_gt_u32 {s(sPar)}, 1000
        s_cbranch_scc1 U_uw2
        s_cbranch_vccnz U_uw
        U_uw2:
        s_mov_b32 {s(sPar)}, 0""")
    ust = ["s_memrealtime s[72:73]", "s_waitcnt lgkmcnt(0)", f"v_writelane_b32 {v(R.vT2)}, s72, m0", "s_add_u32 m0, m0, 1"] if its else []
    if its: A("s_mov_b32 m0, 0")
    A(f"s_mov_b32 {s(sTry)}, 0")
    A.label("U_wait")
    A(f"s_mov_b32 {s(sCnt)}, {s(sGive)}")
    A.label("U_fl")
    for x in ready(sN): A(x)
    A(f"""s_cbranch_scc0 U_go
    s_cmp_ge_u32 {s(sCnt)}, {SPIN}
    s_cselect_b32 {s(sGive)}, {SPIN}, {s(sGive)}
    s_cbranch_scc1 U_go
    s_lshl_b32 {s(R.sT0)}, {s(R.sT0)}, {s(R.sT1)}
    s_cmp_eq_u32 {s(sCnt)}, 0
    s_cselect_b32 exec_lo, -1, {s(R.sT0)}
    s_mov_b32 exec_hi, 0
    s_add_u32 {s(sCnt)}, {s(sCnt)}, 1
    buffer_load_dword {v(vFl)}, {v(vFa)}, {s(R.sWS,4)}, 0 offen sc1
    s_mov_b64 exec, -1
    s_sleep {usl}
    s_waitcnt vmcnt(0)
    s_branch U_fl""")
    A.label("U_go")
    if early: A(f"""s_cmp_eq_u32 {s(sTry)}, 0
    s_cbranch_scc1 U_g2
    buffer_inv sc1
    s_waitcnt vmcnt(0)
    U_g2:""")
    for x in setld(sN): A(x)
    for ks in range(32):
        for x in ld(ks): A(x)
    A.label("U_item")
    for x in ust: A(x)
    A(f"s_add_u32 {s(sNx)}, {s(sN)}, {ngrp}")
    for x in ready(sNx): A(x)
    A("s_cbranch_scc1 U_b")
    def mm(ks):
        for t in range(2):
            d = v(vAcc + 4*t, 4)
            A(f"v_mfma_f32_16x16x32_bf16 {d}, {a(aw(t, ks),4)}, {v(vF+4*ks,4)}, {d if ks else 0}")
    def fin(nxt):
        L = A.newlabel("Uf")
        A(f"""s_lshl_b32 {s(sOut)}, {s(sN)}, 16
        v_add_u32 {v(R.vT0)}, {s(sPar)}, {v(vLw)}
        v_add_u32 {v(R.vT1)}, {s(sPar)}, {v(vLr)}
        s_xor_b32 {s(sPar)}, {s(sPar)}, 8192
        s_mov_b32 {s(sN)}, {s(sNx)}
        ds_write_b128 {v(R.vT0)}, {v(vAcc,4)}
        ds_write_b128 {v(R.vT0)}, {v(vAcc+4,4)} offset:1024
        s_waitcnt lgkmcnt(0)
        s_barrier
        s_cmp_lg_u32 {s(R.sWv)}, 0
        s_cbranch_scc1 {L}""")
        for k in range(6): A(f"ds_read_b128 {v(vRed+4*k,4)}, {v(R.vT1)} offset:{2048 + 1024*k}")
        A("s_waitcnt lgkmcnt(4)")
        for r in range(8): A(f"v_add_f32 {v(vRed+r)}, {v(vAcc+r)}, {v(vRed+r)}")
        A("s_waitcnt lgkmcnt(0)")
        for r in range(8): A(f"v_add_f32 {v(vRed+8+r)}, {v(vRed+8+r)}, {v(vRed+16+r)}")
        for r in range(8): A(f"v_add_f32 {v(vRed+r)}, {v(vRed+r)}, {v(vRed+8+r)}")
        for r in range(4): A(f"v_cvt_pk_bf16_f32 {v(vRed+24+r)}, {v(vRed+2*r)}, {v(vRed+2*r+1)}")
        A(f"buffer_store_dwordx4 {v(vRed+24,4)}, {v(vOa)}, {s(R.sO,4)}, {s(sOut)} offen")
        A.label(L)
        A(f"""s_cmp_lt_u32 {s(sN)}, 128
        s_cbranch_scc1 {nxt}
        s_branch {done}""")
    for x in setld(sNx): A(x)
    for ks in range(32):
        A(f"s_waitcnt vmcnt({31 if ks == 0 else 30})")
        mm(ks)
        if ks:
            for x in ld(ks - 1): A(x)
    A("s_nop 7")
    for x in ld(31): A(x)
    fin("U_item")
    A.label("U_b")
    for ks in range(32):
        A(f"s_waitcnt vmcnt({31 - ks})")
        mm(ks)
    fin("U_wait")

def gen_U64(A, sG, sI, done, sGive, ts=False, usl=2, touch=1, rot=1, tpf=12, its=0, early=1):
    R = SR
    NG = 6
    sN, sCnt, sLd, sOut, sPar, sNx, sPend, sCol, sTry, sRot, sTp = range(28, 39)
    vLa, vFa, vFl, vOa, vLw, vLr = range(10, 16)
    vTa, vPf, vTx = R.vSrc, R.vDst, R.vFlag
    vTr = R.vT3
    vAcc, vSt, vRed, vF, vW = 16, 32, 48, 64, 128
    RED = 131072
    A(f"""
    s_load_dwordx2 {s(R.sX,2)}, s[0:1], {KA_WO}
    s_load_dwordx2 {s(R.sO,2)}, s[0:1], {KA_OUT}
    s_mov_b32 {s(R.sX+2)}, {8*MB}
    s_mov_b32 {s(R.sX+3)}, 0x20000
    s_mov_b32 {s(R.sO+2)}, {8*MB}
    s_mov_b32 {s(R.sO+3)}, 0x20000
    s_and_b32 {s(sCol)}, {s(sI)}, 15
    s_lshr_b32 {s(sN)}, {s(sI)}, 4
    s_lshl_b32 {s(R.sT0)}, {s(sG)}, 1
    s_add_u32 {s(sN)}, {s(sN)}, {s(R.sT0)}
    s_lshl_b32 {s(R.sSrc)}, {s(R.sWv)}, 21
    s_lshl_b32 {s(R.sT0)}, {s(sCol)}, 7
    s_add_u32 {s(R.sSrc)}, {s(R.sSrc)}, {s(R.sT0)}
    v_lshrrev_b32 {v(R.vT0)}, 2, {v(R.vL)}
    v_and_b32 {v(R.vT1)}, 3, {v(R.vL)}
    v_lshlrev_b32 {v(R.vT2)}, 4, {v(R.vT1)}
    v_lshl_add_u32 {v(R.vT2)}, {v(R.vT0)}, 11, {v(R.vT2)}
    v_lshlrev_b32 {v(vTr)}, 3, {v(R.vT1)}
    v_bfe_u32 {v(R.vT0)}, {v(R.vL)}, 2, 2
    v_lshrrev_b32 {v(R.vT1)}, 4, {v(R.vL)}
    v_lshl_add_u32 {v(R.vT0)}, {v(R.vT1)}, 3, {v(R.vT0)}
    v_lshl_add_u32 {v(vTr)}, {v(R.vT0)}, 6, {v(vTr)}
    s_lshl_b32 {s(R.sM0)}, {s(R.sWv)}, 15
    v_add_u32 {v(vTr)}, {s(R.sM0)}, {v(vTr)}
    s_and_b32 {s(sRot)}, {s(sI)}, {7 if rot else 0}
    s_lshl_b32 {s(sRot)}, {s(sRot)}, 18
    s_waitcnt lgkmcnt(0)
    s_barrier
    """)
    units = [(0, ks) for ks in range(32)] + [(1, ks) for ks in range(0, 32, 2)] + [(1, ks) for ks in range(1, 32, 2)]
    def dma(j):
        h, ks = units[j]
        for q in range(2):
            A(f"s_add_u32 m0, {s(R.sM0)}, {(j & 15)*2048 + q*1024}")
            A(f"s_add_u32 {s(R.sT0)}, {s(sRot)}, {(ks*32 + q*16)*2048 + h*64}")
            A(f"s_bitset0_b32 {s(R.sT0)}, 21")
            A(f"s_add_u32 {s(R.sT0)}, {s(R.sT0)}, {s(R.sSrc)}")
            A(f"buffer_load_dwordx4 {v(R.vT2)}, {s(R.sX,4)}, {s(R.sT0)} offen lds")
    def trd(dst, slot):
        return [f"ds_read_b64_tr_b16 {dst(4*tt + 2*hh)}, {v(vTr)} offset:{slot*2048 + hh*256 + tt*32}" for tt in range(2) for hh in range(2)]
    if touch:
        A(f"""s_sub_u32 {s(R.sT0)}, {s(sG)}, 1
        s_and_b32 {s(R.sT0)}, {s(R.sT0)}, 3
        s_lshl_b32 {s(R.sT0)}, {s(R.sT0)}, 3
        s_and_b32 {s(R.sT1)}, {s(sI)}, 7
        s_add_u32 {s(R.sT0)}, {s(R.sT0)}, {s(R.sT1)}
        s_lshl_b32 {s(R.sT0)}, {s(R.sT0)}, 8
        v_add_lshl_u32 {v(R.vT0)}, v0, {s(R.sT0)}, 11
        s_and_b32 {s(R.sT0)}, {s(sI)}, 8
        s_lshl_b32 {s(R.sT0)}, {s(R.sT0)}, 7
        buffer_load_dword {v(vRed)}, {v(R.vT0)}, {s(R.sX,4)}, {s(R.sT0)} offen offset:384""")
    for j in range(16): dma(j)
    for j in range(48):
        h, ks = units[j]
        A(f"s_waitcnt vmcnt({30 if j == 0 else 28})")
        for x in trd((lambda o: a(ks*8 + o, 2)) if h == 0 else (lambda o: v(vW + ks*4 + o, 2)), j & 15): A(x)
        if j:
            A("s_waitcnt lgkmcnt(4)")
            dma(j + 15)
    A("s_waitcnt lgkmcnt(0)")
    dma(63)
    if tpf:
        A(f"""s_lshl_b32 {s(R.sT0)}, {s(sI)}, 2
        s_add_u32 {s(R.sT0)}, {s(R.sT0)}, {s(R.sWv)}
        s_lshl_b32 {s(R.sT1)}, {s(R.sT0)}, 7
        s_add_u32 {s(R.sT1)}, {s(R.sT1)}, {WS_FLAG + FLAG_P}
        v_lshrrev_b32 {v(R.vT0)}, 4, {v(R.vL)}
        v_lshlrev_b32 {v(vTx)}, 14, {v(R.vT0)}
        v_mov_b32 {v(vPf)}, 0
        s_mov_b32 exec_hi, 0xffff
        buffer_load_dword {v(vPf)}, {v(vTx)}, {s(R.sWS,4)}, {s(R.sT1)} offen sc1
        s_mov_b32 exec_hi, -1
        s_mul_i32 {s(R.sT0)}, {s(R.sT0)}, {BLK}
        v_mul_u32_u24 {v(vTa)}, {QKV_STRIDE >> 7}, {v(R.vT0)}
        v_and_b32 {v(R.vT0)}, 15, {v(R.vL)}
        v_add_lshl_u32 {v(vTa)}, {v(vTa)}, {v(R.vT0)}, 7
        v_add_u32 {v(vTa)}, {s(R.sT0)}, {v(vTa)}
        v_mov_b32 {v(R.vT1)}, {OOB}""")
    A(f"""
    s_lshr_b32 {s(sRot)}, {s(sRot)}, 6
    s_add_u32 {s(sRot)}, {s(sRot)}, {WS_O}
    v_lshlrev_b32 {v(vLr)}, 4, {v(R.vL)}
    v_add_u32 {v(vLa)}, {s(R.sM0)}, {v(vLr)}
    s_lshl_b32 {s(R.sT0)}, {s(R.sWv)}, 10
    s_add_u32 {s(R.sT0)}, {s(R.sT0)}, {RED}
    v_add_u32 {v(vLw)}, {s(R.sT0)}, {v(vLr)}
    s_lshl_b32 {s(R.sT0)}, {s(R.sWv)}, 12
    s_add_u32 {s(R.sT1)}, {s(R.sT0)}, {RED + 0x4000}
    v_add_u32 {v(vLr)}, {s(R.sT1)}, {v(vLr)}
    v_bfe_u32 {v(vFa)}, {v(R.vL)}, 3, 2
    v_and_b32 {v(R.vT0)}, 7, {v(R.vL)}
    v_lshlrev_b32 {v(R.vT0)}, 9, {v(R.vT0)}
    v_lshl_add_u32 {v(vFa)}, {v(vFa)}, 7, {v(R.vT0)}
    s_add_u32 {s(R.sT0)}, {s(R.sT0)}, {WS_FLAG + FLAG_T}
    v_add_u32 {v(vFa)}, {s(R.sT0)}, {v(vFa)}
    v_mov_b32 {v(vFl)}, 0
    v_and_b32 {v(vOa)}, 15, {v(R.vL)}
    v_lshrrev_b32 {v(R.vT0)}, 4, {v(R.vL)}
    v_lshlrev_b32 {v(R.vT0)}, 3, {v(R.vT0)}
    v_lshl_add_u32 {v(vOa)}, {v(vOa)}, 12, {v(R.vT0)}
    s_lshl_b32 {s(R.sT0)}, {s(sCol)}, 7
    s_lshl_b32 {s(R.sT1)}, {s(R.sWv)}, 5
    s_add_u32 {s(R.sT0)}, {s(R.sT0)}, {s(R.sT1)}
    s_add_u32 {s(R.sT0)}, {s(R.sT0)}, 2048
    v_add_u32 {v(vOa)}, {s(R.sT0)}, {v(vOa)}
    s_waitcnt vmcnt(0)
    """)
    if ts: tstamp(A, R, 3, vt=48)
    def ready(sItem):
        return [f"s_lshr_b32 {s(R.sT0)}, {s(sItem)}, 3",
                f"v_cmp_ge_u32 vcc, {s(R.sT0)}, {v(vFl)}",
                f"s_lshl_b32 {s(R.sT1)}, {s(sItem)}, 2",
                f"s_and_b32 {s(R.sT1)}, {s(R.sT1)}, 24",
                f"s_lshr_b32 {s(R.sT0)}, vcc_lo, {s(R.sT1)}",
                f"s_and_b32 {s(R.sT0)}, {s(R.sT0)}, 0xff"]
    ldfl = f"buffer_load_dword {v(vFl)}, {v(vFa)}, {s(R.sWS,4)}, 0 offen sc1"
    def ld(ks):
        o = []
        if ks % 4 == 0 and ks: o += [f"s_add_u32 {s(sLd)}, {s(sLd)}, 4096", f"s_bitset0_b32 {s(sLd)}, 15"]
        o.append(f"buffer_load_dwordx4 {v(vF+4*(ks&15),4)}, {v(vLa)}, {s(R.sWS,4)}, {s(sLd)} offen offset:{(ks%4)*1024}{LD}")
        return o
    def setld(sItem):
        return [f"s_lshl_b32 {s(sLd)}, {s(sItem)}, 17", f"s_add_u32 {s(sLd)}, {s(sLd)}, {s(sRot)}"]
    rrd = [f"ds_read_b128 {v(vRed+4*k,4)}, {v(vLr)} offset:{1024*k}" for k in range(4)]
    radd = [f"v_add_f32 {v(vRed+r)}, {v(vRed+r)}, {v(vRed+4+r)}" for r in range(4)] + [f"v_add_f32 {v(vRed+8+r)}, {v(vRed+8+r)}, {v(vRed+12+r)}" for r in range(4)] + \
           [f"v_add_f32 {v(vRed+r)}, {v(vRed+r)}, {v(vRed+8+r)}" for r in range(4)] + [f"v_cvt_pk_bf16_f32 {v(vRed+4+r)}, {v(vRed+2*r)}, {v(vRed+2*r+1)}" for r in range(2)]
    ost = f"buffer_store_dwordx2 {v(vRed+4,2)}, {v(vOa)}, {s(R.sO,4)}, {s(sOut)} offen"
    flip = [f"v_xor_b32 {v(vLr)}, 0x4000, {v(vLr)}"]
    ust = ["s_memrealtime s[72:73]", "s_waitcnt lgkmcnt(0)", f"v_writelane_b32 {v(R.vT2)}, s72, m0", "s_add_u32 m0, m0, 1"] if its else []
    if its: A("s_mov_b32 m0, 0")
    A(f"s_mov_b32 {s(sTry)}, 0")
    A.label("U_wait")
    A(f"s_mov_b32 {s(sCnt)}, {s(sGive)}")
    A.label("U_fl")
    for x in ready(sN): A(x)
    A(f"""s_cbranch_scc0 U_go
    s_cmp_ge_u32 {s(sCnt)}, {SPIN}
    s_cselect_b32 {s(sGive)}, {SPIN}, {s(sGive)}
    s_cbranch_scc1 U_go
    s_lshl_b32 {s(R.sT0)}, {s(R.sT0)}, {s(R.sT1)}
    s_cmp_eq_u32 {s(sCnt)}, 0
    s_cselect_b32 exec_lo, -1, {s(R.sT0)}
    s_mov_b32 exec_hi, 0
    s_add_u32 {s(sCnt)}, {s(sCnt)}, 1
    {ldfl}
    s_mov_b64 exec, -1
    s_sleep {usl}
    s_waitcnt vmcnt(0)
    s_branch U_fl""")
    A.label("U_go")
    if early: A(f"""s_cmp_eq_u32 {s(sTry)}, 0
    s_cbranch_scc1 U_g2
    buffer_inv sc1
    s_waitcnt vmcnt(0)
    U_g2:""")
    for x in setld(sN): A(x)
    for ks in range(15):
        for x in ld(ks): A(x)
    A(f"""s_mov_b32 {s(sPend)}, 0
    s_mov_b32 {s(sOut)}, {OOB}""")
    for x in trd(lambda o: v(vSt + o, 2), 0): A(x)
    for k in range(4): A(rrd[k])
    A(".p2align 6")
    A.label("U_item")
    for x in ust: A(x)
    vq = [("L", k) for k in range(15)]; lq = [("W", 1)] * 4 + [("P", 0)] * 4
    def vwait(tag):
        n = len(vq) - 1 - vq.index(tag); del vq[:len(vq) - n]
        return f"s_waitcnt vmcnt({n})"
    def lwait(tag):
        n = lq[::-1].index(tag); del lq[:len(lq) - n]
        return f"s_waitcnt lgkmcnt({n})"
    for ks in range(32):
        fill = [[], [], [], []]
        A(vwait(("L", ks)))
        fill[0] += ld((ks + 15) & 31); tagv = [("L", ks + 15)]
        if ks & 1:
            pre2 = lwait(("W", ks))
        else:
            pre2 = None
        tagl = []
        if ks == 0:
            fill[1] += [f"s_add_u32 {s(sNx)}, {s(sN)}, {NG}"] + ready(sNx)[:4]
            fill[2] += ready(sNx)[4:] + [f"s_lshl_b32 exec_lo, {s(R.sT0)}, {s(R.sT1)}", "s_mov_b32 exec_hi, 0", ldfl, "s_mov_b64 exec, -1"]; tagv.append(("F", 0))
        if ks == 2:
            fill[1] += [lwait(("P", 0)), f"s_cmp_eq_u32 {s(sPend)}, 0", "s_cbranch_scc1 U_nb", "s_barrier", "U_nb:"]
            fill[2] += rrd[:2]; fill[3] += rrd[2:]; tagl += [("R", 0)] * 4
        if ks == 4:
            fill[0] += [lwait(("R", 0))]
        if 4 <= ks < 8:
            q = radd[4*(ks-4):4*(ks-4)+4]
            for i, x in enumerate(q): fill[1 + i//2].append(x)
        if ks == 8:
            fill[1] += [ost] + flip; tagv.append(("S", 0))
        if ks == 16:
            fill[1] += ready(sNx)[:4]
            fill[2] += setld(sNx) + ready(sNx)[4:] + [f"s_cselect_b32 {s(sPend)}, 0, 1", f"s_cselect_b32 {s(sLd)}, {OOB}, {s(sLd)}"]
        if ks == 14 and tpf:
            fill[1] += [f"s_lshr_b32 {s(sTp)}, {s(sNx)}, 1", f"s_add_u32 {s(sTp)}, {s(sTp)}, {tpf}", f"v_cmp_lt_u32 vcc, {s(sTp)}, {v(vPf)}"]
            fill[2] += [f"s_lshl_b32 {s(sTp)}, {s(sTp)}, 11", f"v_cndmask_b32 {v(vTx)}, {v(R.vT1)}, {v(vTa)}, vcc"]
        if ks == 16 and tpf:
            fill[3] += [f"buffer_load_dword {v(R.vFv)}, {v(vTx)}, {s(R.sWS,4)}, {s(sTp)} offen"]; tagv.append(("T", 0))
        if ks & 1 == 0:
            pass
        else:
            k2 = (ks + 2) & 31
            t_ = trd(lambda o: v(vSt + 8*((k2 >> 1) & 1) + o, 2), k2 >> 1)
            fill[0] += t_[:2]; fill[1] += t_[2:]; tagl += [("W", ks + 2)] * 4
        b = v(vF + 4*(ks & 15), 4)
        for t in range(4):
            d = v(vAcc + 4*t, 4)
            w = a(ks*8 + 4*t, 4) if t < 2 else (v(vSt + 8*((ks >> 1) & 1) + 4*(t-2), 4) if ks & 1 else v(vW + ks*4 + 4*(t-2), 4))
            if t == 0 and pre2: A(pre2)
            A(f"v_mfma_f32_16x16x32_bf16 {d}, {w}, {b}, {d if ks else 0}")
            for x in fill[t]: A(x)
        vq += tagv; lq += tagl
    if tpf: assert vq.pop(0) == ("T", 0)
    assert [k for _, k in vq] == list(range(32, 47)), vq
    for x in ust: A(x)
    A(f"""s_lshl_b32 {s(sOut)}, {s(sN)}, 16
    s_mov_b32 {s(sN)}, {s(sNx)}
    s_cmp_eq_u32 {s(sPend)}, 1""")
    for t in range(4): A(f"ds_write_b128 {v(vLw)}, {v(vAcc+4*t,4)} offset:{4096*t}")
    A(f"""v_xor_b32 {v(vLw)}, 0x4000, {v(vLw)}
    s_cbranch_scc1 U_item
    s_waitcnt lgkmcnt(0)
    s_barrier""")
    for x in rrd: A(x)
    A("s_waitcnt lgkmcnt(0)")
    for x in radd: A(x)
    A(f"""{ost}
    s_cmp_lt_u32 {s(sN)}, 128
    s_cbranch_scc1 U_wait""")
    if early:
        A(f"""v_cmp_u_f32 vcc, {v(vRed)}, {v(vRed)}
        s_lshr_b32 {s(sN)}, {s(sOut)}, 16
        s_add_u32 {s(sTry)}, {s(sTry)}, 1
        v_or_b32 {v(vFa)}, 64, {v(vFa)}
        s_cmp_lg_u64 vcc, 0
        s_cselect_b32 {s(R.sT0)}, 1, 0
        v_mov_b32 {v(vAcc)}, {s(R.sT0)}
        v_and_b32 {v(R.vT0)}, {RED + 0x4000}, {v(vLw)}
        ds_write_b32 {v(vLw)}, {v(vAcc)}
        s_waitcnt lgkmcnt(0)
        s_barrier
        ds_read2st64_b32 {v(vAcc,2)}, {v(R.vT0)} offset0:0 offset1:4
        ds_read2st64_b32 {v(vAcc+2,2)}, {v(R.vT0)} offset0:8 offset1:12
        s_waitcnt lgkmcnt(0)
        v_and_b32 {v(vAcc)}, {v(vAcc)}, {v(vAcc+1)}
        v_and_b32 {v(vAcc+2)}, {v(vAcc+2)}, {v(vAcc+3)}
        v_and_b32 {v(vAcc)}, {v(vAcc)}, {v(vAcc+2)}
        v_cmp_ne_u32 vcc, 0, {v(vAcc)}
        s_cbranch_vccz U_end
        s_waitcnt vmcnt(0)
        v_mov_b32 {v(vFl)}, 0
        s_cmp_lt_u32 {s(sTry)}, 5
        s_cbranch_scc1 U_wait
        U_end:""")
    if its: idump(A, R, R.vT2)
    A(f"s_branch {done}")
```

```python
from asmlib import *
from layout import *
from stream import *
import struct, math
def f32bits(x): return struct.unpack("<I", struct.pack("<f", x))[0]
SPIN = 1 << 20
LD = ""

def idump(A, R, vv):
    A(f"""s_lshl_b32 {s(R.sT0)}, s2, 10
    s_add_u32 {s(R.sT0)}, {s(R.sT0)}, {WS_STAMP + 13*MB}
    v_lshlrev_b32 {v(R.vT0)}, 2, v0
    buffer_store_dword {v(vv)}, {v(R.vT0)}, {s(R.sWS,4)}, {s(R.sT0)} offen""")

def gen_T(A, sHead, done, sGive, tfree=0, tpat=0, its=0, tl=60, early=1, tsl=0):
    its = its == 1
    R = SR
    sSeg, sC, sCnt, sQ, sKm, sOo, sNx, sHave = 28, 29, 30, 31, 32, 33, 34, 35
    sMask = 36
    sQn, sKn = 68, 69
    vQa, vKa, vKma, vVma, vOa, vFa, vFl, vTf, vMx, vSm = range(10, 20)
    aQ = lambda b: 96*b
    aK = lambda b: 96*b + 32
    aV = lambda b: 96*b + 64
    vKM = lambda b: 20 + 48*b
    vVM = lambda b: 52 + 48*b
    vS, vSM, vP = 116, 132, 148
    vO = 160
    vPk = 224
    pi_lane(A, R.vT2, R.vL, R.vT0, R.vT1)
    A(f"""
    v_lshrrev_b32 {v(R.vT0)}, 5, {v(R.vL)}            ; h2
    v_and_b32 {v(R.vT1)}, 31, {v(R.vL)}               ; q / row
    v_lshlrev_b32 {v(R.vT3)}, 4, {v(R.vT0)}
    v_lshl_add_u32 {v(vQa)}, {v(R.vT1)}, 6, {v(R.vT3)}
    v_lshl_add_u32 {v(vKa)}, {v(R.vT2)}, 6, {v(R.vT3)}
    v_mov_b32 {v(vTf)}, {OOB}
    v_cmp_gt_u32 vcc, 8, {v(R.vT1)}
    v_cndmask_b32 {v(vKma)}, {v(vTf)}, {v(vQa)}, vcc
    v_lshlrev_b32 {v(vVma)}, 3, {v(R.vT0)}
    v_lshl_add_u32 {v(vVma)}, {v(R.vT2)}, 4, {v(vVma)}
    ; O address: (q>>4)*128K + h2*256 + (q&15)*16
    v_and_b32 {v(vOa)}, 15, {v(R.vL)}
    v_lshlrev_b32 {v(vOa)}, 4, {v(vOa)}
    v_lshl_add_u32 {v(vOa)}, {v(R.vT0)}, 8, {v(vOa)}
    v_bfe_u32 {v(R.vT3)}, {v(R.vL)}, 4, 1
    v_lshl_add_u32 {v(vOa)}, {v(R.vT3)}, 17, {v(vOa)}
    v_lshrrev_b32 {v(vFa)}, 2, {v(R.vL)}
    v_and_b32 {v(R.vT3)}, 3, {v(R.vL)}
    v_lshl_add_u32 {v(vFa)}, {v(vFa)}, 7, {v(R.vT3)}
    s_lshl_b32 {s(R.sT0)}, {s(sHead)}, 2
    v_add_u32 {v(vFa)}, {s(R.sT0)}, {v(vFa)}
    v_lshlrev_b32 {v(vFa)}, 7, {v(vFa)}
    v_add_u32 {v(vFa)}, {WS_FLAG + FLAG_P}, {v(vFa)}
    v_cmp_gt_u32 vcc, 16, {v(R.vL)}
    v_cndmask_b32 {v(vFa)}, {v(vTf)}, {v(vFa)}, vcc
    v_mov_b32 {v(vFl)}, 0
    s_add_u32 {s(R.sT1)}, {s(R.sWv)}, {s(R.sT0)}
    s_lshl_b32 {s(R.sT1)}, {s(R.sT1)}, 7
    s_add_u32 {s(R.sT1)}, {s(R.sT1)}, {WS_FLAG + FLAG_T}
    v_lshl_add_u32 {v(R.vFlag)}, {v(R.vL)}, 2, {s(R.sT1)}
    v_cmp_gt_u32 vcc, 32, {v(R.vL)}
    v_cndmask_b32 {v(R.vFlag)}, {v(vTf)}, {v(R.vFlag)}, vcc
    v_lshlrev_b32 {v(R.vT0)}, 3, {v(R.vT0)}
    v_sub_u32 {v(R.vT1)}, {v(R.vT1)}, {v(R.vT0)}      ; q - 8*h2 (signed)
    s_mov_b32 {s(sC)}, {f32bits(128 ** -0.5 * math.log2(math.e))}
    s_mov_b32 {s(sSeg)}, {s(R.sWv)}
    s_mul_i32 {s(sQ)}, {s(R.sT0)}, {BLK}
    s_lshl_b32 {s(R.sT1)}, {s(sSeg)}, 11
    s_add_u32 {s(sQ)}, {s(sQ)}, {s(R.sT1)}
    s_mul_i32 {s(sKm)}, {s(R.sT0)}, {MBLK}
    s_lshl_b32 {s(R.sT1)}, {s(sSeg)}, 9
    s_add_u32 {s(sKm)}, {s(sKm)}, {s(R.sT1)}
    s_add_u32 {s(sKm)}, {s(sKm)}, {WS_KM}
    s_lshl_b32 {s(sOo)}, {s(sSeg)}, 18
    s_lshl_b32 {s(R.sT1)}, {s(sHead)}, 12
    s_add_u32 {s(sOo)}, {s(sOo)}, {s(R.sT1)}
    s_add_u32 {s(sOo)}, {s(sOo)}, {WS_O}
    v_mov_b32 {v(vTf)}, 0xff800000
    s_mov_b32 {s(sHave)}, 0
    v_mov_b32 {v(R.vFv)}, 0
    """)
    if tpat == 1: A(f"""v_lshlrev_b32 {v(vQa)}, 4, {v(R.vL)}
    v_lshlrev_b32 {v(vKa)}, 4, {v(R.vL)}""")
    if tpat == 2: A(f"""v_and_b32 {v(vQa)}, 31, {v(R.vL)}
    v_lshlrev_b32 {v(vQa)}, 5, {v(vQa)}
    v_lshl_add_u32 {v(vQa)}, {v(R.vT0)}, 1, {v(vQa)}
    v_mov_b32 {v(vKa)}, {v(vQa)}""")
    if tpat == 3: A(f"""v_lshlrev_b32 {v(vKa)}, 4, {v(R.vT2)}
    v_lshl_add_u32 {v(vKa)}, {v(R.vT0)}, 6, {v(vKa)}
    v_mov_b32 {v(vQa)}, {v(vKa)}""")
    RM = 0 if tfree else 0xf000
    for r in range(16): A(f"v_cmp_le_i32 {s(sMask+2*r,2)}, {16*(r>>3) + (r&7)}, {v(R.vT1)}")
    for b in range(2):
        for es in range(4):
            A(f"v_mov_b32 {v(vVM(b)+4*es+2)}, 0"); A(f"v_mov_b32 {v(vVM(b)+4*es+3)}, 0")
    A(f"v_mov_b32 {v(vP+10)}, 0"); A(f"v_mov_b32 {v(vP+11)}, 0")
    ldfl = f"buffer_load_dword {v(vFl)}, {v(vFa)}, {s(R.sWS,4)}, 0 offen sc1"
    stfl = f"buffer_store_dword {v(R.vFv)}, {v(R.vFlag)}, {s(R.sWS,4)}, 0 offen sc1"
    def spin(name, sNeed, mask, ok, slp):
        return [f"s_mov_b32 {s(sCnt)}, {s(sGive)}", f"{name}:",
                f"v_cmp_ge_u32 vcc, {s(sNeed)}, {v(vFl)}", f"s_and_b32 {s(R.sT0)}, vcc_lo, {mask}", f"s_cbranch_scc0 {ok}",
                f"s_cmp_ge_u32 {s(sCnt)}, {SPIN}", f"s_cselect_b32 {s(sGive)}, {SPIN}, {s(sGive)}", f"s_cbranch_scc1 {ok}",
                f"s_add_u32 {s(sCnt)}, {s(sCnt)}, 1", ldfl, f"s_sleep {slp}", "s_waitcnt vmcnt(0)", f"s_branch {name}"]
    def ldq(b, so):
        o = []
        for mat, reg, va in ((0, aQ(b), vQa), (1, aK(b), vKa), (2, aV(b), vKa)):
            for es in range(4):
                o.append([f"s_add_u32 {s(R.sT0)}, {s(so)}, {mat*QKV_STRIDE + es*BLK}"] +
                         [f"buffer_load_dwordx4 {a(reg+(es*2+u)*4,4)}, {v(va)}, {s(R.sWS,4)}, {s(R.sT0)} offen offset:{(1024 if tpat else 32)*u}{LD}" for u in range(2)])
        return o
    def ldm(b, so):
        o = []
        for es in range(4):
            o.append([f"s_add_u32 {s(R.sT0)}, {s(so)}, {es*MBLK}", f"s_add_u32 {s(R.sT1)}, {s(so)}, {es*MBLK + WS_VMT - WS_KM}"] +
                     [f"buffer_load_dwordx4 {v(vKM(b)+(es*2+u)*4,4)}, {v(vKma)}, {s(R.sWS,4)}, {s(R.sT0)} offen offset:{32*u}{LD}" for u in range(2)] +
                     [f"buffer_load_dwordx2 {v(vVM(b)+4*es,2)}, {v(vVma)}, {s(R.sWS,4)}, {s(R.sT1)} offen{LD}"])
        return o
    def x32(op, x):
        A(f"""v_mov_b32 {v(R.vT0)}, {v(x)}
        v_permlane32_swap_b32 {v(x)}, {v(R.vT0)}
        {op} {v(x)}, {v(x)}, {v(R.vT0)}""")
    if early:
        for r in range(4): A(f"v_mov_b32 {v(vPk+r)}, -1")
        A(f"s_add_u32 {s(R.sT0)}, {s(sOo)}, {60 << 18}")
        for k in range(8): A(f"buffer_store_dwordx4 {v(vPk,4)}, {v(vOa)}, {s(R.sWS,4)}, {s(R.sT0)} offen offset:{512*k} sc1")
    for x in spin("T_p", sSeg, 0xfff, "T_pk", 8): A(x)
    A.label("T_pk")
    for g in ldq(0, sQ):
        for x in g: A(x)
    tails = []
    def ist():
        if its: A(f"""s_memrealtime s[72:73]
        s_waitcnt lgkmcnt(0)
        v_writelane_b32 {v(R.vSrc)}, s72, m0
        s_add_u32 m0, m0, 1""")
    if its: A("s_mov_b32 m0, 0")
    for b in range(2):
        A.label(f"T_top{b}")
        ist()
        A(f"""s_cmp_eq_u32 {s(sHave)}, 0
        s_cbranch_scc1 T_slow{b}""")
        A.label(f"T_go{b}")
        A(f"""s_add_u32 {s(sNx)}, {s(sSeg)}, 4
        s_min_u32 {s(sQn)}, {s(sNx)}, 63
        s_waitcnt vmcnt(8)
        v_cmp_ge_u32 vcc, {s(sQn)}, {v(vFl)}
        s_and_b32 {s(R.sT0)}, vcc_lo, 0xfff
        s_cbranch_scc1 T_pw{b}""")
        A.label(f"T_pok{b}")
        ist()
        A(f"""s_add_u32 {s(sQ)}, {s(sQ)}, {4*2048}
        s_add_u32 {s(sKm)}, {s(sKm)}, {4*512}
        s_and_b32 {s(R.sT0)}, vcc_lo, {RM}
        s_cselect_b32 {s(sHave)}, 0, 1
        s_cselect_b32 {s(sKn)}, {OOB}, {s(sKm)}
        s_cmp_lt_u32 {s(sNx)}, 64
        s_cselect_b32 {s(sQn)}, {s(sQ)}, {OOB}
        s_cselect_b32 {s(sKn)}, {s(sKn)}, {OOB}
        {ldfl}""")
        tails.append([f"T_slow{b}:", "s_waitcnt vmcnt(0)", stfl] + ([f"s_cmp_ge_u32 {s(sSeg)}, {tl}", "s_cbranch_scc1 T_last"] if b else []) + spin(f"T_s{b}", sSeg, RM, f"T_sk{b}", 2) + [f"T_sk{b}:"] +
                     [x for g in ldm(b, sKm) for x in g] + ["s_waitcnt vmcnt(0)", f"s_branch T_go{b}"])
        tails.append([f"T_pw{b}:"] + spin(f"T_q{b}", sQn, 0xfff, f"T_pok{b}", 8))
        nx = ldq(1 - b, sQn) + ldm(1 - b, sKn)
        for k in range(8):
            A(f"v_mfma_f32_32x32x16_bf16 {v(vS,16)}, {a(aK(b)+4*k,4)}, {a(aQ(b)+4*k,4)}, {v(vS,16) if k else 0}")
            for x in nx.pop(0): A(x)
        for k in range(8):
            A(f"v_mfma_f32_32x32x16_bf16 {v(vSM,16)}, {v(vKM(b)+4*k,4)}, {a(aQ(b)+4*k,4)}, {v(vSM,16) if k else 0}")
            for x in nx.pop(0): A(x)
        ist()
        for r in range(16): A(f"v_cndmask_b32 {v(vS+r)}, {v(vTf)}, {v(vS+r)}, {s(sMask+2*r,2)}")
        A(f"v_max3_f32 {v(vMx)}, {v(vS)}, {v(vS+1)}, {v(vS+2)}")
        for r in range(3, 19, 2): A(f"v_max3_f32 {v(vMx)}, {v(vMx)}, {v(vS+r)}, {v(vS+r+1)}")
        A(f"v_max_f32 {v(vMx)}, {v(vMx)}, {v(vS+19)}")
        x32("v_max_f32", vMx)
        A(f"v_mul_f32 {v(vMx)}, {s(sC)}, {v(vMx)}")
        for r in range(20): A(f"v_fma_f32 {v(vS+r)}, {v(vS+r)}, {s(sC)}, -{v(vMx)}")
        for r in range(20): A(f"v_exp_f32 {v(vS+r)}, {v(vS+r)}")
        A("s_waitcnt vmcnt(37)")
        ist()
        A(stfl)
        A(f"v_add_f32 {v(vSm)}, {v(vS)}, {v(vS+1)}")
        A(f"v_add_f32 {v(R.vT1)}, {v(vS+2)}, {v(vS+3)}")
        for r in range(4, 20, 2):
            A(f"v_add_f32 {v(vSm)}, {v(vSm)}, {v(vS+r)}")
            A(f"v_add_f32 {v(R.vT1)}, {v(R.vT1)}, {v(vS+r+1)}")
        A(f"v_add_f32 {v(vSm)}, {v(vSm)}, {v(R.vT1)}")
        x32("v_add_f32", vSm)
        A(f"v_rcp_f32 {v(vSm)}, {v(vSm)}")
        for r in range(20): A(f"v_mul_f32 {v(vS+r)}, {v(vS+r)}, {v(vSm)}")
        for r in range(10): A(f"v_cvt_pk_bf16_f32 {v(vP+r)}, {v(vS+2*r)}, {v(vS+2*r+1)}")
        def epi(e):
            for r in range(8): A(f"v_cvt_pk_bf16_f32 {v(vPk+8*e+r)}, {v(vO+16*e+2*r)}, {v(vO+16*e+2*r+1)}")
            for u in range(2): A(f"buffer_store_dwordx4 {v(vPk+8*e+4*u,4)}, {v(vOa)}, {s(R.sWS,4)}, {s(sOo)} offen offset:{1024*e + 512*u} sc1")
        for es in range(4):
            d = v(vO + 16*es, 16)
            A(f"v_mfma_f32_32x32x16_bf16 {d}, {a(aV(b)+8*es,4)}, {v(vP,4)}, 0")
            A(f"v_mfma_f32_32x32x16_bf16 {d}, {a(aV(b)+8*es+4,4)}, {v(vP+4,4)}, {d}")
            A(f"v_mfma_f32_32x32x16_bf16 {d}, {v(vVM(b)+4*es,4)}, {v(vP+8,4)}, {d}")
            if es >= 1: epi(es - 1)
        A(f"v_add_u32 {v(R.vFv)}, 1, {v(R.vFv)}")
        epi(3)
        A(f"""s_mov_b32 {s(sSeg)}, {s(sNx)}
        s_add_u32 {s(sOo)}, {s(sOo)}, {4 << 18}""")
    A(f"""s_cmp_lt_u32 {s(sSeg)}, 64
    s_cbranch_scc1 T_top0
    T_fin:
    s_waitcnt vmcnt(0)
    {stfl}""")
    if its: idump(A, R, R.vSrc)
    A(f"s_branch {done}")
    for t in tails:
        for x in t: A(x)
    A.label("T_last")
    vMr, vAl = vKM(0), vKM(0) + 1
    for k in range(8): A(f"v_mfma_f32_32x32x16_bf16 {v(vS,16)}, {a(aK(1)+4*k,4)}, {a(aQ(1)+4*k,4)}, {v(vS,16) if k else 0}")
    for r in range(16): A(f"v_cndmask_b32 {v(vS+r)}, {v(vTf)}, {v(vS+r)}, {s(sMask+2*r,2)}")
    A(f"v_max3_f32 {v(vMr)}, {v(vS)}, {v(vS+1)}, {v(vS+2)}")
    for r in range(3, 15, 2): A(f"v_max3_f32 {v(vMr)}, {v(vMr)}, {v(vS+r)}, {v(vS+r+1)}")
    A(f"v_max_f32 {v(vMr)}, {v(vMr)}, {v(vS+15)}")
    x32("v_max_f32", vMr)
    A(f"v_mul_f32 {v(vMx)}, {s(sC)}, {v(vMr)}")
    for r in range(16): A(f"v_fma_f32 {v(vS+r)}, {v(vS+r)}, {s(sC)}, -{v(vMx)}")
    for r in range(16): A(f"v_exp_f32 {v(vS+r)}, {v(vS+r)}")
    A(f"v_add_f32 {v(vSm)}, {v(vS)}, {v(vS+1)}")
    for r in range(2, 16): A(f"v_add_f32 {v(vSm)}, {v(vSm)}, {v(vS+r)}")
    for r in range(8): A(f"v_cvt_pk_bf16_f32 {v(vP+r)}, {v(vS+2*r)}, {v(vS+2*r+1)}")
    for es in range(4):
        d = v(vO + 16*es, 16)
        A(f"v_mfma_f32_32x32x16_bf16 {d}, {a(aV(1)+8*es,4)}, {v(vP,4)}, 0")
        A(f"v_mfma_f32_32x32x16_bf16 {d}, {a(aV(1)+8*es+4,4)}, {v(vP+4,4)}, {d}")
    A(f"""s_cmp_ge_u32 {s(sSeg)}, 61
    s_cselect_b64 {s(sMask+12,2)}, 0xffff, 0
    s_sub_u32 {s(sNx)}, {s(sSeg)}, 2""")
    for es in range(4):
        A(f"s_add_u32 {s(sMask+es)}, {s(sKm)}, {es*MBLK}")
        A(f"s_add_u32 {s(sMask+4+es)}, {s(sKm)}, {es*MBLK + WS_VMT - WS_KM}")
    A(f"v_add_u32 {v(R.vFv)}, 1, {v(R.vFv)}")
    for x in spin("T_l0", sNx, RM, "T_l1", 2): A(x)
    def mx(regs, d):
        r = list(regs); o = [f"v_max3_u32 {v(d)}, {v(r[0])}, {v(r[1])}, {v(r[2])}"]; r = r[3:]
        while len(r) >= 2: o.append(f"v_max3_u32 {v(d)}, {v(d)}, {v(r[0])}, {v(r[1])}"); r = r[2:]
        if r: o.append(f"v_max_u32 {v(d)}, {v(d)}, {v(r[0])}")
        return o
    A.label("T_l2")
    for x in mx(list(range(vKM(1), vKM(1) + 32)) + [R.vT1], R.vT0): A(x)
    A(f"""v_cmp_eq_u32 vcc, -1, {v(R.vT0)}
    s_cbranch_vccz T_l3
    s_add_u32 {s(sCnt)}, {s(sCnt)}, 1
    s_cmp_ge_u32 {s(sCnt)}, {SPIN}
    s_cbranch_scc1 T_l3""")
    if tsl: A(f"s_sleep {tsl}")
    A.label("T_l1")
    for k in range(8): A(f"buffer_load_dwordx4 {v(vKM(1)+4*k,4)}, {v(vKma)}, {s(R.sWS,4)}, {s(sMask + k//2)} offen offset:{32*(k & 1)} sc1")
    for es in range(4): A(f"buffer_load_dwordx2 {v(vVM(1)+4*es,2)}, {v(vVma)}, {s(R.sWS,4)}, {s(sMask+4+es)} offen sc1")
    for k in range(8):
        A(f"s_waitcnt vmcnt({11 - k})")
        A(f"v_mfma_f32_32x32x16_bf16 {v(vSM,16)}, {v(vKM(1)+4*k,4)}, {a(aQ(1)+4*k,4)}, {v(vSM,16) if k else 0}")
    A("s_waitcnt vmcnt(0)")
    for x in mx([vVM(1) + 4*es + e for es in range(4) for e in range(2)], R.vT1): A(x)
    A(f"""v_cmp_eq_u32 {s(sMask+8,2)}, -1, {v(R.vT1)}
    v_cmp_u_f32 {s(sMask+10,2)}, {v(vSM)}, {v(vSM+1)}
    v_cmp_u_f32 vcc, {v(vSM+2)}, {v(vSM+3)}
    v_max3_f32 {v(vMx)}, {v(vSM)}, {v(vSM+1)}, {v(vMr)}
    s_or_b64 {s(sMask+8,2)}, {s(sMask+8,2)}, {s(sMask+10,2)}
    v_max3_f32 {v(vMx)}, {v(vSM+2)}, {v(vSM+3)}, {v(vMx)}
    s_or_b64 vcc, vcc, {s(sMask+8,2)}
    s_cbranch_vccnz T_l2""")
    A.label("T_l3")
    ist(); ist()
    x32("v_max_f32", vMx)
    A(f"v_mul_f32 {v(vMx)}, {s(sC)}, {v(vMx)}")
    A(f"v_fma_f32 {v(vAl)}, {v(vMr)}, {s(sC)}, -{v(vMx)}")
    for r in range(4): A(f"v_fma_f32 {v(vSM+r)}, {v(vSM+r)}, {s(sC)}, -{v(vMx)}")
    A(f"v_exp_f32 {v(vAl)}, {v(vAl)}")
    for r in range(4): A(f"v_exp_f32 {v(vSM+r)}, {v(vSM+r)}")
    A(f"""v_fma_f32 {v(vSm)}, {v(vSm)}, {v(vAl)}, {v(vSM)}
    v_add_f32 {v(R.vT1)}, {v(vSM+1)}, {v(vSM+2)}
    v_add_f32 {v(vSm)}, {v(vSm)}, {v(vSM+3)}
    v_add_f32 {v(vSm)}, {v(vSm)}, {v(R.vT1)}""")
    x32("v_add_f32", vSm)
    A(f"v_rcp_f32 {v(vSm)}, {v(vSm)}")
    A(f"v_mul_f32 {v(vAl)}, {v(vAl)}, {v(vSm)}")
    for r in range(4): A(f"v_mul_f32 {v(vSM+r)}, {v(vSM+r)}, {v(vSm)}")
    for r in range(2): A(f"v_cvt_pk_bf16_f32 {v(vP+8+r)}, {v(vSM+2*r)}, {v(vSM+2*r+1)}")
    if early == 2: A(f"""s_mov_b64 exec, {s(sMask+12,2)}
    {stfl}
    s_mov_b64 exec, -1
    s_sleep 40""")
    for es in range(4):
        for r in range(16): A(f"v_mul_f32 {v(vO+16*es+r)}, {v(vO+16*es+r)}, {v(vAl)}")
        A(f"v_mfma_f32_32x32x16_bf16 {v(vO+16*es,16)}, {v(vVM(1)+4*es,4)}, {v(vP+8,4)}, {v(vO+16*es,16)}")
        if es >= 1: epi(es - 1)
    epi(3)
    if early: A(f"""s_mov_b64 exec, {s(sMask+12,2)}
    {stfl}
    s_mov_b64 exec, -1""")
    ist()
    A("s_branch T_fin")

def gen_U(A, sGrp, sCol, done, sGive, ngrp=3, ts=False, uw=0, usl=2):
    R = SR
    sN, sCnt, sLd, sOut, sPar, sNx = 28, 29, 30, 31, 32, 33
    vLa, vFa, vFl, vOa, vLw, vLr = range(10, 16)
    vAcc = 16
    vRed = 24
    vF = 64
    A(f"""
    s_load_dwordx2 {s(R.sX,2)}, s[0:1], {KA_WO}
    s_load_dwordx2 {s(R.sO,2)}, s[0:1], {KA_OUT}
    s_mov_b32 {s(R.sX+2)}, {8*MB}
    s_mov_b32 {s(R.sX+3)}, 0x20000
    s_mov_b32 {s(R.sO+2)}, {8*MB}
    s_mov_b32 {s(R.sO+3)}, 0x20000
    s_lshl_b32 {s(R.sSrc)}, {s(R.sWv)}, 21
    s_lshl_b32 {s(R.sT0)}, {s(sCol)}, 6
    s_add_u32 {s(R.sSrc)}, {s(R.sSrc)}, {s(R.sT0)}
    s_waitcnt lgkmcnt(0)
    s_barrier
    """)
    load_weights_tr(A, R, R.sX, R.sSrc, 2048)
    if ts: tstamp(A, R, 3)
    A(f"""
    v_lshlrev_b32 {v(vLr)}, 4, {v(R.vL)}
    s_lshl_b32 {s(R.sT0)}, {s(R.sWv)}, 15
    v_add_u32 {v(vLa)}, {s(R.sT0)}, {v(vLr)}
    s_lshl_b32 {s(R.sT0)}, {s(R.sWv)}, 11
    v_add_u32 {v(vLw)}, {s(R.sT0)}, {v(vLr)}
    v_bfe_u32 {v(vFa)}, {v(R.vL)}, 3, 2
    v_and_b32 {v(R.vT0)}, 7, {v(R.vL)}
    v_lshlrev_b32 {v(R.vT0)}, 9, {v(R.vT0)}
    v_lshl_add_u32 {v(vFa)}, {v(vFa)}, 7, {v(R.vT0)}
    s_lshl_b32 {s(R.sT0)}, {s(R.sWv)}, 12
    s_add_u32 {s(R.sT0)}, {s(R.sT0)}, {WS_FLAG + FLAG_T}
    v_add_u32 {v(vFa)}, {s(R.sT0)}, {v(vFa)}
    v_mov_b32 {v(vFl)}, 0
    v_and_b32 {v(vOa)}, 15, {v(R.vL)}
    v_and_b32 {v(R.vT0)}, 48, {v(R.vL)}
    v_lshl_add_u32 {v(vOa)}, {v(vOa)}, 12, {v(R.vT0)}
    s_lshl_b32 {s(R.sT0)}, {s(sCol)}, 6
    s_add_u32 {s(R.sT0)}, {s(R.sT0)}, 2048
    v_add_u32 {v(vOa)}, {s(R.sT0)}, {v(vOa)}
    s_mov_b32 {s(sN)}, {s(sGrp)}
    s_mov_b32 {s(sPar)}, 0
    s_barrier
    """)
    def ready(sItem):
        return [f"s_lshr_b32 {s(R.sT0)}, {s(sItem)}, 3",
                f"v_cmp_ge_u32 vcc, {s(R.sT0)}, {v(vFl)}",
                f"s_lshl_b32 {s(R.sT1)}, {s(sItem)}, 2",
                f"s_and_b32 {s(R.sT1)}, {s(R.sT1)}, 24",
                f"s_lshr_b32 {s(R.sT0)}, vcc_lo, {s(R.sT1)}",
                f"s_and_b32 {s(R.sT0)}, {s(R.sT0)}, 0xff"]
    def ld(ks):
        o = []
        if ks % 4 == 0 and ks: o.append(f"s_add_u32 {s(sLd)}, {s(sLd)}, 4096")
        o.append(f"buffer_load_dwordx4 {v(vF+4*ks,4)}, {v(vLa)}, {s(R.sWS,4)}, {s(sLd)} offen offset:{(ks%4)*1024}{LD}")
        return o
    def setld(sItem):
        return [f"s_lshl_b32 {s(sLd)}, {s(sItem)}, 17", f"s_add_u32 {s(sLd)}, {s(sLd)}, {WS_O}"]
    if uw:
        A(f"""U_uw:
        s_sleep 100
        s_mov_b64 exec, 0xffffffff
        buffer_load_dword {v(vFl)}, {v(vFa)}, {s(R.sWS,4)}, 0 offen sc1
        s_waitcnt vmcnt(0)
        v_cmp_gt_u32 vcc, 16, {v(vFl)}
        s_mov_b64 exec, -1
        s_add_u32 {s(sPar)}, {s(sPar)}, 1
        s_cmp_gt_u32 {s(sPar)}, 1000
        s_cbranch_scc1 U_uw2
        s_cbranch_vccnz U_uw
        U_uw2:
        s_mov_b32 {s(sPar)}, 0""")
    ust = ["s_memrealtime s[72:73]", "s_waitcnt lgkmcnt(0)", f"v_writelane_b32 {v(R.vT2)}, s72, m0", "s_add_u32 m0, m0, 1"] if its else []
    if its: A("s_mov_b32 m0, 0")
    A(f"s_mov_b32 {s(sTry)}, 0")
    A.label("U_wait")
    A(f"s_mov_b32 {s(sCnt)}, {s(sGive)}")
    A.label("U_fl")
    for x in ready(sN): A(x)
    A(f"""s_cbranch_scc0 U_go
    s_cmp_ge_u32 {s(sCnt)}, {SPIN}
    s_cselect_b32 {s(sGive)}, {SPIN}, {s(sGive)}
    s_cbranch_scc1 U_go
    s_lshl_b32 {s(R.sT0)}, {s(R.sT0)}, {s(R.sT1)}
    s_cmp_eq_u32 {s(sCnt)}, 0
    s_cselect_b32 exec_lo, -1, {s(R.sT0)}
    s_mov_b32 exec_hi, 0
    s_add_u32 {s(sCnt)}, {s(sCnt)}, 1
    buffer_load_dword {v(vFl)}, {v(vFa)}, {s(R.sWS,4)}, 0 offen sc1
    s_mov_b64 exec, -1
    s_sleep {usl}
    s_waitcnt vmcnt(0)
    s_branch U_fl""")
    A.label("U_go")
    if early: A(f"""s_cmp_eq_u32 {s(sTry)}, 0
    s_cbranch_scc1 U_g2
    buffer_inv sc1
    s_waitcnt vmcnt(0)
    U_g2:""")
    for x in setld(sN): A(x)
    for ks in range(32):
        for x in ld(ks): A(x)
    A.label("U_item")
    for x in ust: A(x)
    A(f"s_add_u32 {s(sNx)}, {s(sN)}, {ngrp}")
    for x in ready(sNx): A(x)
    A("s_cbranch_scc1 U_b")
    def mm(ks):
        for t in range(2):
            d = v(vAcc + 4*t, 4)
            A(f"v_mfma_f32_16x16x32_bf16 {d}, {a(aw(t, ks),4)}, {v(vF+4*ks,4)}, {d if ks else 0}")
    def fin(nxt):
        L = A.newlabel("Uf")
        A(f"""s_lshl_b32 {s(sOut)}, {s(sN)}, 16
        v_add_u32 {v(R.vT0)}, {s(sPar)}, {v(vLw)}
        v_add_u32 {v(R.vT1)}, {s(sPar)}, {v(vLr)}
        s_xor_b32 {s(sPar)}, {s(sPar)}, 8192
        s_mov_b32 {s(sN)}, {s(sNx)}
        ds_write_b128 {v(R.vT0)}, {v(vAcc,4)}
        ds_write_b128 {v(R.vT0)}, {v(vAcc+4,4)} offset:1024
        s_waitcnt lgkmcnt(0)
        s_barrier
        s_cmp_lg_u32 {s(R.sWv)}, 0
        s_cbranch_scc1 {L}""")
        for k in range(6): A(f"ds_read_b128 {v(vRed+4*k,4)}, {v(R.vT1)} offset:{2048 + 1024*k}")
        A("s_waitcnt lgkmcnt(4)")
        for r in range(8): A(f"v_add_f32 {v(vRed+r)}, {v(vAcc+r)}, {v(vRed+r)}")
        A("s_waitcnt lgkmcnt(0)")
        for r in range(8): A(f"v_add_f32 {v(vRed+8+r)}, {v(vRed+8+r)}, {v(vRed+16+r)}")
        for r in range(8): A(f"v_add_f32 {v(vRed+r)}, {v(vRed+r)}, {v(vRed+8+r)}")
        for r in range(4): A(f"v_cvt_pk_bf16_f32 {v(vRed+24+r)}, {v(vRed+2*r)}, {v(vRed+2*r+1)}")
        A(f"buffer_store_dwordx4 {v(vRed+24,4)}, {v(vOa)}, {s(R.sO,4)}, {s(sOut)} offen")
        A.label(L)
        A(f"""s_cmp_lt_u32 {s(sN)}, 128
        s_cbranch_scc1 {nxt}
        s_branch {done}""")
    for x in setld(sNx): A(x)
    for ks in range(32):
        A(f"s_waitcnt vmcnt({31 if ks == 0 else 30})")
        mm(ks)
        if ks:
            for x in ld(ks - 1): A(x)
    A("s_nop 7")
    for x in ld(31): A(x)
    fin("U_item")
    A.label("U_b")
    for ks in range(32):
        A(f"s_waitcnt vmcnt({31 - ks})")
        mm(ks)
    fin("U_wait")

def gen_U64(A, sG, sI, done, sGive, ts=False, usl=2, touch=1, rot=1, tpf=12, its=0, early=1, gsh=2, csp=1):
    R = SR
    NG = 6
    sN, sCnt, sLd, sOut, sPar, sNx, sPend, sCol, sTry, sRot, sTp = range(28, 39)
    vLa, vFa, vFl, vOa, vLw, vLr = range(10, 16)
    vTa, vPf, vTx = R.vSrc, R.vDst, R.vFlag
    vTr = R.vT3
    vAcc, vSt, vRed, vF, vW = 16, 32, 48, 64, 128
    RED = 131072
    A(f"""
    s_load_dwordx2 {s(R.sX,2)}, s[0:1], {KA_WO}
    s_load_dwordx2 {s(R.sO,2)}, s[0:1], {KA_OUT}
    s_mov_b32 {s(R.sX+2)}, {8*MB}
    s_mov_b32 {s(R.sX+3)}, 0x20000
    s_mov_b32 {s(R.sO+2)}, {8*MB}
    s_mov_b32 {s(R.sO+3)}, 0x20000
    s_lshl_b32 {s(R.sT0)}, {s(sG)}, 2
    s_lshr_b32 {s(R.sT0)}, {(0, 0x084, 0x808, 0x480)[csp]}, {s(R.sT0)}
    s_add_u32 {s(sCol)}, {s(sI)}, {s(R.sT0)}
    s_and_b32 {s(sCol)}, {s(sCol)}, 15
    s_lshr_b32 {s(sN)}, {s(sI)}, 4
    s_lshl_b32 {s(R.sT0)}, {s(sG)}, 2
    s_lshr_b32 {s(R.sT0)}, {sum(2 * ((g + gsh) % 3) << 4*g for g in range(3))}, {s(R.sT0)}
    s_and_b32 {s(R.sT0)}, {s(R.sT0)}, 15
    s_add_u32 {s(sN)}, {s(sN)}, {s(R.sT0)}
    s_lshl_b32 {s(R.sSrc)}, {s(R.sWv)}, 21
    s_lshl_b32 {s(R.sT0)}, {s(sCol)}, 7
    s_add_u32 {s(R.sSrc)}, {s(R.sSrc)}, {s(R.sT0)}
    v_lshrrev_b32 {v(R.vT0)}, 2, {v(R.vL)}
    v_and_b32 {v(R.vT1)}, 3, {v(R.vL)}
    v_lshlrev_b32 {v(R.vT2)}, 4, {v(R.vT1)}
    v_lshl_add_u32 {v(R.vT2)}, {v(R.vT0)}, 11, {v(R.vT2)}
    v_lshlrev_b32 {v(vTr)}, 3, {v(R.vT1)}
    v_bfe_u32 {v(R.vT0)}, {v(R.vL)}, 2, 2
    v_lshrrev_b32 {v(R.vT1)}, 4, {v(R.vL)}
    v_lshl_add_u32 {v(R.vT0)}, {v(R.vT1)}, 3, {v(R.vT0)}
    v_lshl_add_u32 {v(vTr)}, {v(R.vT0)}, 6, {v(vTr)}
    s_lshl_b32 {s(R.sM0)}, {s(R.sWv)}, 15
    v_add_u32 {v(vTr)}, {s(R.sM0)}, {v(vTr)}
    s_and_b32 {s(sRot)}, {s(sI)}, {7 if rot else 0}
    s_lshl_b32 {s(sRot)}, {s(sRot)}, 18
    s_waitcnt lgkmcnt(0)
    s_barrier
    """)
    units = [(0, ks) for ks in range(32)] + [(1, ks) for ks in range(0, 32, 2)] + [(1, ks) for ks in range(1, 32, 2)]
    def dma(j):
        h, ks = units[j]
        for q in range(2):
            A(f"s_add_u32 m0, {s(R.sM0)}, {(j & 15)*2048 + q*1024}")
            A(f"s_add_u32 {s(R.sT0)}, {s(sRot)}, {(ks*32 + q*16)*2048 + h*64}")
            A(f"s_bitset0_b32 {s(R.sT0)}, 21")
            A(f"s_add_u32 {s(R.sT0)}, {s(R.sT0)}, {s(R.sSrc)}")
            A(f"buffer_load_dwordx4 {v(R.vT2)}, {s(R.sX,4)}, {s(R.sT0)} offen lds")
    def trd(dst, slot):
        return [f"ds_read_b64_tr_b16 {dst(4*tt + 2*hh)}, {v(vTr)} offset:{slot*2048 + hh*256 + tt*32}" for tt in range(2) for hh in range(2)]
    if touch:
        A(f"""s_sub_u32 {s(R.sT0)}, {s(sG)}, 1
        s_and_b32 {s(R.sT0)}, {s(R.sT0)}, 3
        s_lshl_b32 {s(R.sT0)}, {s(R.sT0)}, 3
        s_and_b32 {s(R.sT1)}, {s(sI)}, 7
        s_add_u32 {s(R.sT0)}, {s(R.sT0)}, {s(R.sT1)}
        s_lshl_b32 {s(R.sT0)}, {s(R.sT0)}, 8
        v_add_lshl_u32 {v(R.vT0)}, v0, {s(R.sT0)}, 11
        s_and_b32 {s(R.sT0)}, {s(sI)}, 8
        s_lshl_b32 {s(R.sT0)}, {s(R.sT0)}, 7
        buffer_load_dword {v(vRed)}, {v(R.vT0)}, {s(R.sX,4)}, {s(R.sT0)} offen offset:384""")
        if csp and touch > 1: A(f"""s_xor_b32 {s(R.sT0)}, {s(R.sT0)}, 1024
        buffer_load_dword {v(vRed)}, {v(R.vT0)}, {s(R.sX,4)}, {s(R.sT0)} offen offset:384""")
    for j in range(16): dma(j)
    for j in range(48):
        h, ks = units[j]
        A(f"s_waitcnt vmcnt({30 if j == 0 else 28})")
        for x in trd((lambda o: a(ks*8 + o, 2)) if h == 0 else (lambda o: v(vW + ks*4 + o, 2)), j & 15): A(x)
        if j:
            A("s_waitcnt lgkmcnt(4)")
            dma(j + 15)
    A("s_waitcnt lgkmcnt(0)")
    dma(63)
    if tpf:
        A(f"""s_lshl_b32 {s(R.sT0)}, {s(sI)}, 2
        s_add_u32 {s(R.sT0)}, {s(R.sT0)}, {s(R.sWv)}
        s_lshl_b32 {s(R.sT1)}, {s(R.sT0)}, 7
        s_add_u32 {s(R.sT1)}, {s(R.sT1)}, {WS_FLAG + FLAG_P}
        v_lshrrev_b32 {v(R.vT0)}, 4, {v(R.vL)}
        v_lshlrev_b32 {v(vTx)}, 14, {v(R.vT0)}
        v_mov_b32 {v(vPf)}, 0
        s_mov_b32 exec_hi, 0xffff
        buffer_load_dword {v(vPf)}, {v(vTx)}, {s(R.sWS,4)}, {s(R.sT1)} offen sc1
        s_mov_b32 exec_hi, -1
        s_mul_i32 {s(R.sT0)}, {s(R.sT0)}, {BLK}
        v_mul_u32_u24 {v(vTa)}, {QKV_STRIDE >> 7}, {v(R.vT0)}
        v_and_b32 {v(R.vT0)}, 15, {v(R.vL)}
        v_add_lshl_u32 {v(vTa)}, {v(vTa)}, {v(R.vT0)}, 7
        v_add_u32 {v(vTa)}, {s(R.sT0)}, {v(vTa)}
        v_mov_b32 {v(R.vT1)}, {OOB}""")
    A(f"""
    s_lshr_b32 {s(sRot)}, {s(sRot)}, 6
    s_add_u32 {s(sRot)}, {s(sRot)}, {WS_O}
    v_lshlrev_b32 {v(vLr)}, 4, {v(R.vL)}
    v_add_u32 {v(vLa)}, {s(R.sM0)}, {v(vLr)}
    s_lshl_b32 {s(R.sT0)}, {s(R.sWv)}, 10
    s_add_u32 {s(R.sT0)}, {s(R.sT0)}, {RED}
    v_add_u32 {v(vLw)}, {s(R.sT0)}, {v(vLr)}
    s_lshl_b32 {s(R.sT0)}, {s(R.sWv)}, 12
    s_add_u32 {s(R.sT1)}, {s(R.sT0)}, {RED + 0x4000}
    v_add_u32 {v(vLr)}, {s(R.sT1)}, {v(vLr)}
    v_bfe_u32 {v(vFa)}, {v(R.vL)}, 3, 2
    v_and_b32 {v(R.vT0)}, 7, {v(R.vL)}
    v_lshlrev_b32 {v(R.vT0)}, 9, {v(R.vT0)}
    v_lshl_add_u32 {v(vFa)}, {v(vFa)}, 7, {v(R.vT0)}
    s_add_u32 {s(R.sT0)}, {s(R.sT0)}, {WS_FLAG + FLAG_T}
    v_add_u32 {v(vFa)}, {s(R.sT0)}, {v(vFa)}
    v_mov_b32 {v(vFl)}, 0
    v_and_b32 {v(vOa)}, 15, {v(R.vL)}
    v_lshrrev_b32 {v(R.vT0)}, 4, {v(R.vL)}
    v_lshlrev_b32 {v(R.vT0)}, 3, {v(R.vT0)}
    v_lshl_add_u32 {v(vOa)}, {v(vOa)}, 12, {v(R.vT0)}
    s_lshl_b32 {s(R.sT0)}, {s(sCol)}, 7
    s_lshl_b32 {s(R.sT1)}, {s(R.sWv)}, 5
    s_add_u32 {s(R.sT0)}, {s(R.sT0)}, {s(R.sT1)}
    s_add_u32 {s(R.sT0)}, {s(R.sT0)}, 2048
    v_add_u32 {v(vOa)}, {s(R.sT0)}, {v(vOa)}
    s_waitcnt vmcnt(0)
    """)
    if ts: tstamp(A, R, 3, vt=48)
    def ready(sItem):
        return [f"s_lshr_b32 {s(R.sT0)}, {s(sItem)}, 3",
                f"v_cmp_ge_u32 vcc, {s(R.sT0)}, {v(vFl)}",
                f"s_lshl_b32 {s(R.sT1)}, {s(sItem)}, 2",
                f"s_and_b32 {s(R.sT1)}, {s(R.sT1)}, 24",
                f"s_lshr_b32 {s(R.sT0)}, vcc_lo, {s(R.sT1)}",
                f"s_and_b32 {s(R.sT0)}, {s(R.sT0)}, 0xff"]
    ldfl = f"buffer_load_dword {v(vFl)}, {v(vFa)}, {s(R.sWS,4)}, 0 offen sc1"
    def ld(ks):
        o = []
        if ks % 4 == 0 and ks: o += [f"s_add_u32 {s(sLd)}, {s(sLd)}, 4096", f"s_bitset0_b32 {s(sLd)}, 15"]
        o.append(f"buffer_load_dwordx4 {v(vF+4*(ks&15),4)}, {v(vLa)}, {s(R.sWS,4)}, {s(sLd)} offen offset:{(ks%4)*1024}{LD}")
        return o
    def setld(sItem):
        return [f"s_lshl_b32 {s(sLd)}, {s(sItem)}, 17", f"s_add_u32 {s(sLd)}, {s(sLd)}, {s(sRot)}"]
    rrd = [f"ds_read_b128 {v(vRed+4*k,4)}, {v(vLr)} offset:{1024*k}" for k in range(4)]
    radd = [f"v_add_f32 {v(vRed+r)}, {v(vRed+r)}, {v(vRed+4+r)}" for r in range(4)] + [f"v_add_f32 {v(vRed+8+r)}, {v(vRed+8+r)}, {v(vRed+12+r)}" for r in range(4)] + \
           [f"v_add_f32 {v(vRed+r)}, {v(vRed+r)}, {v(vRed+8+r)}" for r in range(4)] + [f"v_cvt_pk_bf16_f32 {v(vRed+4+r)}, {v(vRed+2*r)}, {v(vRed+2*r+1)}" for r in range(2)]
    ost = f"buffer_store_dwordx2 {v(vRed+4,2)}, {v(vOa)}, {s(R.sO,4)}, {s(sOut)} offen"
    flip = [f"v_xor_b32 {v(vLr)}, 0x4000, {v(vLr)}"]
    ust = ["s_memrealtime s[72:73]", "s_waitcnt lgkmcnt(0)", f"v_writelane_b32 {v(R.vT2)}, s72, m0", "s_add_u32 m0, m0, 1"] if its else []
    if its: A("s_mov_b32 m0, 0")
    A(f"s_mov_b32 {s(sTry)}, 0")
    A.label("U_wait")
    A(f"s_mov_b32 {s(sCnt)}, {s(sGive)}")
    A.label("U_fl")
    for x in ready(sN): A(x)
    A(f"""s_cbranch_scc0 U_go
    s_cmp_ge_u32 {s(sCnt)}, {SPIN}
    s_cselect_b32 {s(sGive)}, {SPIN}, {s(sGive)}
    s_cbranch_scc1 U_go
    s_lshl_b32 {s(R.sT0)}, {s(R.sT0)}, {s(R.sT1)}
    s_cmp_eq_u32 {s(sCnt)}, 0
    s_cselect_b32 exec_lo, -1, {s(R.sT0)}
    s_mov_b32 exec_hi, 0
    s_add_u32 {s(sCnt)}, {s(sCnt)}, 1
    {ldfl}
    s_mov_b64 exec, -1
    s_sleep {usl}
    s_waitcnt vmcnt(0)
    s_branch U_fl""")
    A.label("U_go")
    if early: A(f"""s_cmp_eq_u32 {s(sTry)}, 0
    s_cbranch_scc1 U_g2
    buffer_inv sc1
    s_waitcnt vmcnt(0)
    U_g2:""")
    for x in setld(sN): A(x)
    for ks in range(15):
        for x in ld(ks): A(x)
    A(f"""s_mov_b32 {s(sPend)}, 0
    s_mov_b32 {s(sOut)}, {OOB}""")
    for x in trd(lambda o: v(vSt + o, 2), 0): A(x)
    for k in range(4): A(rrd[k])
    A(".p2align 6")
    A.label("U_item")
    for x in ust: A(x)
    vq = [("L", k) for k in range(15)]; lq = [("W", 1)] * 4 + [("P", 0)] * 4
    def vwait(tag):
        n = len(vq) - 1 - vq.index(tag); del vq[:len(vq) - n]
        return f"s_waitcnt vmcnt({n})"
    def lwait(tag):
        n = lq[::-1].index(tag); del lq[:len(lq) - n]
        return f"s_waitcnt lgkmcnt({n})"
    for ks in range(32):
        fill = [[], [], [], []]
        A(vwait(("L", ks)))
        fill[0] += ld((ks + 15) & 31); tagv = [("L", ks + 15)]
        if ks & 1:
            pre2 = lwait(("W", ks))
        else:
            pre2 = None
        tagl = []
        if ks == 0:
            fill[1] += [f"s_add_u32 {s(sNx)}, {s(sN)}, {NG}"] + ready(sNx)[:4]
            fill[2] += ready(sNx)[4:] + [f"s_lshl_b32 exec_lo, {s(R.sT0)}, {s(R.sT1)}", "s_mov_b32 exec_hi, 0", ldfl, "s_mov_b64 exec, -1"]; tagv.append(("F", 0))
        if ks == 2:
            fill[1] += [lwait(("P", 0)), f"s_cmp_eq_u32 {s(sPend)}, 0", "s_cbranch_scc1 U_nb", "s_barrier", "U_nb:"]
            fill[2] += rrd[:2]; fill[3] += rrd[2:]; tagl += [("R", 0)] * 4
        if ks == 4:
            fill[0] += [lwait(("R", 0))]
        if 4 <= ks < 8:
            q = radd[4*(ks-4):4*(ks-4)+4]
            for i, x in enumerate(q): fill[1 + i//2].append(x)
        if ks == 8:
            fill[1] += [ost] + flip; tagv.append(("S", 0))
        if ks == 16:
            fill[1] += ready(sNx)[:4]
            fill[2] += setld(sNx) + ready(sNx)[4:] + [f"s_cselect_b32 {s(sPend)}, 0, 1", f"s_cselect_b32 {s(sLd)}, {OOB}, {s(sLd)}"]
        if ks == 14 and tpf:
            fill[1] += [f"s_lshr_b32 {s(sTp)}, {s(sNx)}, 1", f"s_add_u32 {s(sTp)}, {s(sTp)}, {tpf}", f"v_cmp_lt_u32 vcc, {s(sTp)}, {v(vPf)}"]
            fill[2] += [f"s_lshl_b32 {s(sTp)}, {s(sTp)}, 11", f"v_cndmask_b32 {v(vTx)}, {v(R.vT1)}, {v(vTa)}, vcc"]
        if ks == 16 and tpf:
            fill[3] += [f"buffer_load_dword {v(R.vFv)}, {v(vTx)}, {s(R.sWS,4)}, {s(sTp)} offen"]; tagv.append(("T", 0))
        if ks & 1 == 0:
            pass
        else:
            k2 = (ks + 2) & 31
            t_ = trd(lambda o: v(vSt + 8*((k2 >> 1) & 1) + o, 2), k2 >> 1)
            fill[0] += t_[:2]; fill[1] += t_[2:]; tagl += [("W", ks + 2)] * 4
        b = v(vF + 4*(ks & 15), 4)
        for t in range(4):
            d = v(vAcc + 4*t, 4)
            w = a(ks*8 + 4*t, 4) if t < 2 else (v(vSt + 8*((ks >> 1) & 1) + 4*(t-2), 4) if ks & 1 else v(vW + ks*4 + 4*(t-2), 4))
            if t == 0 and pre2: A(pre2)
            A(f"v_mfma_f32_16x16x32_bf16 {d}, {w}, {b}, {d if ks else 0}")
            for x in fill[t]: A(x)
        vq += tagv; lq += tagl
    if tpf: assert vq.pop(0) == ("T", 0)
    assert [k for _, k in vq] == list(range(32, 47)), vq
    for x in ust: A(x)
    A(f"""s_lshl_b32 {s(sOut)}, {s(sN)}, 16
    s_mov_b32 {s(sN)}, {s(sNx)}
    s_cmp_eq_u32 {s(sPend)}, 1""")
    for t in range(4): A(f"ds_write_b128 {v(vLw)}, {v(vAcc+4*t,4)} offset:{4096*t}")
    A(f"""v_xor_b32 {v(vLw)}, 0x4000, {v(vLw)}
    s_cbranch_scc1 U_item
    s_waitcnt lgkmcnt(0)
    s_barrier""")
    for x in rrd: A(x)
    A("s_waitcnt lgkmcnt(0)")
    for x in radd: A(x)
    A(f"""{ost}
    s_cmp_lt_u32 {s(sN)}, 128
    s_cbranch_scc1 U_wait""")
    if early:
        A(f"""v_cmp_u_f32 vcc, {v(vRed)}, {v(vRed)}
        s_lshr_b32 {s(sN)}, {s(sOut)}, 16
        s_add_u32 {s(sTry)}, {s(sTry)}, 1
        v_or_b32 {v(vFa)}, 64, {v(vFa)}
        s_cmp_lg_u64 vcc, 0
        s_cselect_b32 {s(R.sT0)}, 1, 0
        v_mov_b32 {v(vAcc)}, {s(R.sT0)}
        v_and_b32 {v(R.vT0)}, {RED + 0x4000}, {v(vLw)}
        ds_write_b32 {v(vLw)}, {v(vAcc)}
        s_waitcnt lgkmcnt(0)
        s_barrier
        ds_read2st64_b32 {v(vAcc,2)}, {v(R.vT0)} offset0:0 offset1:4
        ds_read2st64_b32 {v(vAcc+2,2)}, {v(R.vT0)} offset0:8 offset1:12
        s_waitcnt lgkmcnt(0)
        v_and_b32 {v(vAcc)}, {v(vAcc)}, {v(vAcc+1)}
        v_and_b32 {v(vAcc+2)}, {v(vAcc+2)}, {v(vAcc+3)}
        v_and_b32 {v(vAcc)}, {v(vAcc)}, {v(vAcc+2)}
        v_cmp_ne_u32 vcc, 0, {v(vAcc)}
        s_cbranch_vccz U_end
        s_waitcnt vmcnt(0)
        v_mov_b32 {v(vFl)}, 0
        s_cmp_lt_u32 {s(sTry)}, 5
        s_cbranch_scc1 U_wait
        U_end:""")
    if its: idump(A, R, R.vT2)
    A(f"s_branch {done}")
```

```python
from asmlib import *
from layout import *

class SR:
    sWS = 4
    sX = 8
    sO = 12
    sWv, sT0, sT1, sM0, sSrc, sDst, sIt, sFlagV, sSrcStep, sDstStep, sDstStep2 = range(16, 27)
    vL, vSrc, vDst, vFlag, vT0, vT1, vT2, vT3, vFv = range(1, 10)
    vRd = 10
    vFr = 20
    vAcc = 52
    vPk = 84

def pi_lane(A, dst, src, t0, t1):
    A(f"""v_and_b32 {v(dst)}, 19, {v(src)}
    v_bfe_u32 {v(t0)}, {v(src)}, 2, 1
    v_bfe_u32 {v(t1)}, {v(src)}, 3, 1
    v_lshl_add_u32 {v(dst)}, {v(t0)}, 3, {v(dst)}
    v_lshl_add_u32 {v(dst)}, {v(t1)}, 2, {v(dst)}""")

def perm16(A, dst, src, t0, with_t):
    A(f"""v_bfe_u32 {v(t0)}, {v(src)}, 2, 2
    v_and_b32 {v(dst)}, 3, {v(src)}
    v_lshl_add_u32 {v(dst)}, {v(t0)}, 3, {v(dst)}""")
    if with_t:
        A(f"""v_bfe_u32 {v(t0)}, {v(src)}, 4, 1
        v_lshl_add_u32 {v(dst)}, {v(t0)}, 2, {v(dst)}""")

def aw(t, ks): return (ks * 2 + t) * 4

NSLOT = 20
PNT = [0]
def load_weights_tr(A, R, sW, sOff, rowbytes, mid=None, pre=4, touch=0, tch=None):
    sh = rowbytes.bit_length() - 1
    A(f"""
    v_lshrrev_b32 {v(R.vT0)}, 2, {v(R.vL)}
    v_and_b32 {v(R.vT1)}, 3, {v(R.vL)}
    v_lshlrev_b32 {v(R.vT3)}, 4, {v(R.vT1)}
    v_lshl_add_u32 {v(R.vT2)}, {v(R.vT0)}, {sh}, {v(R.vT3)}
    s_mul_i32 {s(R.sM0)}, {s(R.sWv)}, {NSLOT*2048}
    """)
    def dma(j):
        for q in range(2):
            A(f"s_add_u32 m0, {s(R.sM0)}, {(j % NSLOT)*2048 + q*1024}")
            A(f"buffer_load_dwordx4 {v(R.vT2)}, {s(sW,4)}, {s(sOff)} offen{' nt' if PNT[0] & 1 else ''} lds")
            A(f"s_add_u32 {s(sOff)}, {s(sOff)}, {16*rowbytes}")
    vq = []
    def tc(c):
        if c < 8 and touch: tch(c); vq.append(-1)
    def dmat(j):
        dma(j); vq.extend([j] * 2)
    for c in range(touch): tc(c)
    for j in range(pre): dmat(j)
    A(f"""v_bfe_u32 {v(R.vT0)}, {v(R.vL)}, 2, 2
    v_lshrrev_b32 {v(R.vT1)}, 4, {v(R.vL)}
    v_lshl_add_u32 {v(R.vT0)}, {v(R.vT1)}, 3, {v(R.vT0)}
    v_lshl_add_u32 {v(R.vT3)}, {v(R.vT0)}, 6, {v(R.vT3)}
    v_add_u32 {v(R.vT3)}, {s(R.sM0)}, {v(R.vT3)}
    """)
    if mid: mid(len(vq))
    for j in range(pre, NSLOT): dmat(j)
    issued = NSLOT
    for j in range(32):
        A(f"s_waitcnt vmcnt({vq[::-1].index(j)})")
        for tt in range(2):
            for hh in range(2):
                A(f"ds_read_b64_tr_b16 {a(aw(tt, j) + 2*hh, 2)}, {v(R.vT3)} offset:{(j % NSLOT)*2048 + hh*256 + tt*8}")
        if j and issued < 32:
            A("s_waitcnt lgkmcnt(4)")
            dmat(issued); issued += 1
        elif j & 1: A("s_waitcnt lgkmcnt(7)")
    A("s_waitcnt lgkmcnt(0)")

def setup_reads(A, R):
    A(f"""
    v_and_b32 {v(R.vT0)}, 15, {v(R.vL)}
    v_bfe_u32 {v(R.vT1)}, {v(R.vL)}, 1, 3
    v_lshrrev_b32 {v(R.vT2)}, 4, {v(R.vL)}
    v_xor_b32 {v(R.vT1)}, {v(R.vT1)}, {v(R.vT2)}
    v_lshlrev_b32 {v(R.vT1)}, 4, {v(R.vT1)}
    v_lshl_add_u32 {v(R.vRd)}, {v(R.vT0)}, 7, {v(R.vT1)}
    s_lshl_b32 {s(R.sM0)}, {s(R.sWv)}, 10
    v_xor_b32 {v(R.vRd+1)}, 64, {v(R.vRd)}
    """)
    for kk in range(2): A(f"v_add_u32 {v(R.vRd+2+kk)}, 0x10000, {v(R.vRd+kk)}")

def dma_rows(A, R, vrow, vchunk):
    A(f"""
    v_lshrrev_b32 {v(vrow)}, 3, {v(R.vL)}
    s_lshl_b32 {s(R.sT0)}, {s(R.sWv)}, 3
    v_add_u32 {v(vrow)}, {s(R.sT0)}, {v(vrow)}
    v_bfe_u32 {v(vchunk)}, {v(vrow)}, 1, 3
    v_xor_b32 {v(vchunk)}, {v(vchunk)}, {v(R.vL)}
    v_and_b32 {v(vchunk)}, 7, {v(vchunk)}
    """)

def stream_loop(A, R, name, nseg, vtype, dma, store, flag=True, scale=None, loader=False, ttoff=2048, extra=None):
    def dm(H, b):
        return dma(H & 1, b, (H & 3) * 32768 + b * 4096)
    def rd(H, i):
        sl = H & 3; b = i >> 2; kk = (i >> 1) & 1; tt = i & 1
        return f"ds_read_b128 {v(R.vFr + 4*(i & 7), 4)}, {v(R.vRd + kk + 2*(sl >> 1))} offset:{(sl & 1)*32768 + b*4096 + tt*ttoff}"
    adv = [f"s_add_u32 {s(R.sSrc)}, {s(R.sSrc)}, {s(R.sSrcStep)}"]
    top = f"{name}_top"; ent = f"{name}_ent"
    nst = 2
    if loader: flag = False; nst = 0
    def epi(acc):
        o = []
        for r in range(8):
            if scale is not None:
                o.append([f"v_mul_f32 {v(acc+2*r)}, {scale}, {v(acc+2*r)}", f"v_mul_f32 {v(acc+2*r+1)}, {scale}, {v(acc+2*r+1)}",
                          f"v_cvt_pk_bf16_f32 {v(R.vPk+r)}, {v(acc+2*r)}, {v(acc+2*r+1)}"])
            else:
                o.append([f"v_cvt_pk_bf16_f32 {v(R.vPk+r)}, {v(acc+2*r)}, {v(acc+2*r+1)}"])
        return o
    def flagst():
        return [f"v_mov_b32 {v(R.vFv)}, {s(R.sFlagV)}", f"s_add_u32 {s(R.sFlagV)}, {s(R.sFlagV)}, 1",
                f"buffer_store_dword {v(R.vFv)}, {v(R.vFlag)}, {s(R.sWS,4)}, 0 offen sc1"]
    A(f"""s_mov_b32 {s(R.sDstStep2)}, {s(R.sDstStep)}
    s_sub_u32 {s(R.sDstStep)}, {s(R.sDst)}, {OOB}
    s_mov_b32 {s(R.sDst)}, {OOB}
    s_mov_b32 {s(R.sFlagV)}, 0
    s_mov_b32 {s(R.sIt)}, 0""")
    for H in range(3):
        for b in range(8 if H < 2 else 3):
            for x in dm(H, b): A(x)
        if H == 1:
            for x in adv: A(x)
    if flag:
        for x in flagst(): A(x)
        A(f"s_mov_b32 {s(R.sFlagV)}, 0")
    A(f"s_waitcnt vmcnt({12 if flag else 11})")
    A("s_barrier")
    if not loader:
        for i in range(7): A(rd(0, i))
    A(".p2align 6")
    A.label(top)
    for H in range(4):
        acc = R.vAcc + 16 * (H >> 1); pacc = R.vAcc + 16 * (1 - (H >> 1))
        fill = {i: [] for i in range(32)}
        for k, b in enumerate(range(3, 8)): fill[1 + 2*k] += dm(H + 2, b)
        if H & 1: fill[10] += adv
        for k, b in enumerate(range(3)): fill[26 + 2*k] += dm(H + 3, b)
        if loader: pass
        elif not (H & 1):
            e = epi(pacc)
            for r in range(8): fill[10 + r] += e[r]
            fill[15] += store(0); fill[19] += store(1)
            fill[20] += [f"s_add_u32 {s(R.sDst)}, {s(R.sDst)}, {s(R.sDstStep)}", f"s_mov_b32 {s(R.sDstStep)}, {s(R.sDstStep2)}"]
        elif flag:
            fill[27] += flagst()
        inflight = 8 + (nst + (1 if flag else 0) if not (H & 1) else 0)
        if extra and H == 0:
            fill[22] += extra; inflight += sum(x.startswith('buffer_') for x in extra)
        for i in range(32):
            if loader:
                if i == 25:
                    A(f"s_waitcnt vmcnt({inflight})")
                    A("s_barrier")
                for x in fill[i]: A(x)
                continue
            A(f"s_waitcnt lgkmcnt(6)")
            x = v(R.vFr + 4 * (i & 7), 4); tt = i & 1; ks = (H & 1) * 16 + (i >> 1)
            for t in range(2):
                w = a(aw(t, ks), 4)
                d = v(acc + (t*8 + tt*4 if vtype else tt*8 + t*4), 4)
                A(f"v_mfma_f32_16x16x32_bf16 {d}, {x if vtype else w}, {w if vtype else x}, {0 if ks == 0 else d}")
                if t == 0:
                    if i == 25:
                        A(f"s_waitcnt vmcnt({inflight})")
                        A("s_barrier")
                    A(rd(H, i + 7) if i + 7 < 32 else rd(H + 1, i + 7 - 32))
                    if fill[i] and fill[i][0].startswith("s_add_u32 m0"): A(fill[i].pop(0))
            for x in fill[i]: A(x)
    A(f"""s_add_u32 {s(R.sIt)}, {s(R.sIt)}, 2
    s_cmp_lt_u32 {s(R.sIt)}, {nseg}
    s_cbranch_scc1 {top}""")
    if loader:
        A("s_waitcnt vmcnt(0)")
        return
    for e in epi(R.vAcc + 16):
        for x in e: A(x)
    for x in store(0) + store(1): A(x)
    A("s_waitcnt vmcnt(0) lgkmcnt(0)")
    if flag:
        for x in flagst(): A(x)

def gen_P(A, sMat, sHead, done, ts=False, rdv=None, mid=None, pre=4, touch=1, prr=0):
    R = SR
    sP = 28
    A(f"""
    s_load_dwordx2 {s(R.sO,2)}, s[0:1], {KA_WQ}
    s_load_dwordx2 {s(sP,2)}, s[0:1], {KA_WK}
    s_load_dwordx2 {s(sP+2,2)}, s[0:1], {KA_WV}
    s_load_dwordx2 {s(R.sX,2)}, s[0:1], {KA_BX}
    s_mov_b32 {s(R.sX+2)}, {4*MB}
    s_mov_b32 {s(R.sX+3)}, 0x20000
    s_mov_b32 {s(R.sO+2)}, {8*MB}
    s_mov_b32 {s(R.sO+3)}, 0x20000
    s_waitcnt lgkmcnt(0)
    s_cmp_eq_u32 {s(sMat)}, 1
    s_cselect_b64 {s(R.sO,2)}, {s(sP,2)}, {s(R.sO,2)}
    s_cmp_eq_u32 {s(sMat)}, 2
    s_cselect_b64 {s(R.sO,2)}, {s(sP+2,2)}, {s(R.sO,2)}
    s_lshl_b32 {s(sP)}, {s(sHead)}, 2
    s_add_u32 {s(sP)}, {s(sP)}, {s(R.sWv)}          ; blk
    s_lshl_b32 {s(R.sSrc)}, {s(sP)}, 6
    """)
    def tch(c):
        A(f"""s_and_b32 {s(R.sT0)}, {s(sHead)}, 3
        s_lshl_b32 {s(R.sT0)}, {s(R.sT0)}, 8
        v_add_lshl_u32 {v(R.vSrc)}, v0, {s(R.sT0)}, 13
        s_andn2_b32 {s(R.sT0)}, {s(sHead)}, 3
        s_lshl_b32 {s(R.sT0)}, {s(R.sT0)}, 8
        buffer_load_dword v253, {v(R.vSrc)}, {s(R.sO,4)}, {s(R.sT0)} offen offset:384""")
    load_weights_tr(A, R, R.sO, R.sSrc, 8192, mid, pre, touch, tch)
    if rdv: rdv()
    if ts: tstamp(A, R, 1)
    setup_reads(A, R)
    dma_rows(A, R, R.vT2, R.vT3)
    perm16(A, R.vSrc, R.vT2, R.vT0, True)
    perm16(A, R.vDst, R.vL, R.vT0, False)
    A(f"""
    v_lshlrev_b32 {v(R.vSrc)}, 11, {v(R.vSrc)}
    v_lshl_add_u32 {v(R.vSrc)}, {v(R.vT3)}, 4, {v(R.vSrc)}
    v_and_b32 {v(R.vT0)}, 48, {v(R.vL)}
    v_lshl_add_u32 {v(R.vDst)}, {v(R.vDst)}, 6, {v(R.vT0)}
    s_mul_i32 {s(R.sDst)}, {s(sP)}, {BLK}
    s_mul_i32 {s(R.sT1)}, {s(sMat)}, {QKV_STRIDE}
    s_add_u32 {s(R.sDst)}, {s(R.sDst)}, {s(R.sT1)}
    s_lshl_b32 {s(R.sT1)}, {s(sMat)}, 7
    s_add_u32 {s(R.sT0)}, {s(sP)}, {s(R.sT1)}
    s_lshl_b32 {s(R.sT0)}, {s(R.sT0)}, 7
    s_add_u32 {s(R.sT0)}, {s(R.sT0)}, {WS_FLAG + FLAG_P}
    v_mov_b32 {v(R.vFlag)}, {s(R.sT0)}
    v_mov_b32 {v(R.vT0)}, {OOB}
    v_cmp_eq_u32 vcc, 0, {v(R.vL)}
    v_cndmask_b32 {v(R.vFlag)}, {v(R.vT0)}, {v(R.vFlag)}, vcc
    v_lshlrev_b32 v252, 7, {v(R.vL)}
    s_cmp_eq_u32 {s(sMat)}, 0
    s_cselect_b32 {s(R.sSrc)}, 0, 32
    v_cmp_gt_u32 vcc, {s(R.sSrc)}, {v(R.vL)}
    v_cndmask_b32 v252, {v(R.vT0)}, v252, vcc
    s_mov_b32 {s(R.sSrc)}, 0
    s_mov_b32 {s(R.sSrcStep)}, 65536
    s_mov_b32 {s(R.sDstStep)}, 2048
    s_barrier
    s_cmp_eq_u32 {s(sMat)}, 2
    s_cbranch_scc1 P_v
    """)
    def dma(half, b, lds):
        off = half * 1024 + b * 128
        return [f"s_add_u32 m0, {s(R.sM0)}, {lds - off}", f"buffer_load_dwordx4 {v(R.vSrc)}, {s(R.sX,4)}, {s(R.sSrc)} offen offset:{off} lds"]
    def store(u):
        return [f"buffer_store_dwordx4 {v(R.vPk+4*u,4)}, {v(R.vDst)}, {s(R.sWS,4)}, {s(R.sDst)} offen offset:{256*u} sc1"]
    ex = None
    if prr:
        ex = [f"s_sub_u32 {s(sP+1)}, {s(R.sDst)}, {2048 * (prr & 15)}", f"s_cmp_ge_u32 {s(R.sIt)}, {(prr & 15) + 1}", f"s_cselect_b32 {s(sP+1)}, {s(sP+1)}, {OOB}",
              f"buffer_load_dword v253, v252, {s(R.sWS,4)}, {s(sP+1)} offen{' sc1' if prr < 16 else ' sc0 sc1'}"]
    stream_loop(A, R, "P_qk", 64, False, dma, store, extra=ex)
    A(f"s_branch {done}")
    A.label("P_v")
    stream_loop(A, R, "P_v", 64, True, dma, store, extra=ex)
    A(f"s_branch {done}")

def common_entry(A, R, nwg, end):
    A(f"""
    s_cmp_ge_u32 s2, {nwg}
    s_cbranch_scc1 {end}
    s_load_dwordx2 {s(R.sWS,2)}, s[0:1], {KA_WS}
    v_lshrrev_b32 {v(R.vT0)}, 6, v0
    v_and_b32 {v(R.vL)}, 63, v0
    v_readfirstlane_b32 {s(R.sWv)}, {v(R.vT0)}
    s_mov_b32 {s(R.sWS+2)}, {WS_BYTES}
    s_mov_b32 {s(R.sWS+3)}, 0x20000
    s_waitcnt lgkmcnt(0)
    """)

def tstamp(A, R, k, sT=74, vt=252):
    A(f"""s_memrealtime {s(sT,2)}
    s_memtime {s(sT+2,2)}
    s_lshl_b32 {s(sT+4)}, s2, 2
    s_add_u32 {s(sT+4)}, {s(sT+4)}, {s(R.sWv)}
    s_lshl_b32 {s(sT+4)}, {s(sT+4)}, 6
    s_add_u32 {s(sT+4)}, {s(sT+4)}, {WS_STAMP + 12*MB + 8*k}
    s_waitcnt lgkmcnt(0)
    v_mov_b32 {v(vt+2)}, {s(sT)}
    v_mov_b32 {v(vt+3)}, {s(sT+2)}
    v_mov_b32 {v(vt)}, 0
    buffer_store_dwordx2 {v(vt+2,2)}, {v(vt)}, {s(R.sWS,4)}, {s(sT+4)} offen
    s_waitcnt vmcnt(0)""")
```

```python
import sys
from build import *
from stream import *
from attn import *
from fft import *
import os
if os.environ.get("R7"): from recur7 import gen_recur
else: from recur6 import gen_recur
from proto import *

def dbgdump(A, sWS, sWv, sel, base, mask):
    L = A.newlabel("dd")
    A(f"""s_cmp_lg_u32 s2, {sel}
    s_cbranch_scc1 {L}
    s_cmp_lg_u32 {s(sWv)}, 0
    s_cbranch_scc1 {L}
    s_mov_b64 exec, {mask}
    v_lshlrev_b32 v10, 3, v0
    v_add_u32 v10, {WS_STAMP + 12*MB + sel*256}, v10
    buffer_load_dword v11, v10, {s(sWS,4)}, 0 offen sc1
    v_mbcnt_lo_u32_b32 v12, {mask}, 0
    v_add_lshl_u32 v12, v12, {base}, 2
    s_waitcnt vmcnt(0)
    global_store_dword v12, v11, {s(sDbg,2)} sc1
    s_waitcnt vmcnt(0)""".replace(f"v_mbcnt_lo_u32_b32 v12, {mask}, 0", f"v_mbcnt_lo_u32_b32 v12, exec_lo, 0"))
    A.label(L)

def gen(ts=False, notu=0, **kw):
    A = Asm(); R = SR
    PNT[0] = kw.pop("pnt", 0)
    sG, sI, sGive, sCu = 90, 91, 92, 93
    entry(A, "W_end", kw.pop("xmap", 1))
    A("""s_bitcmp1_b32 s3, 2
    s_cbranch_scc0 R_entry""")
    common_entry(A, R, 256, "W_end")
    if ts: tstamp(A, R, 0)
    A(f"""s_lshr_b32 {s(sG)}, s2, 6
    s_bfe_u32 {s(sI)}, s2, 0x30003
    s_lshl_b32 {s(sI)}, {s(sI)}, 2
    s_and_b32 {s(R.sT0)}, s3, 3
    s_add_u32 {s(sI)}, {s(sI)}, {s(R.sT0)}
    s_lshl_b32 {s(sCu)}, {s(R.sT0)}, 3
    s_lshr_b32 {s(R.sT0)}, {s(sI)}, 2
    s_add_u32 {s(sCu)}, {s(sCu)}, {s(R.sT0)}
    s_mov_b32 {s(sGive)}, 0
    s_lshl_b32 {s(R.sT0)}, {s(sCu)}, 2
    s_add_u32 {s(R.sT0)}, {s(R.sT0)}, {s(R.sWv)}            ; 4 idx + w
    s_lshl_b32 {s(R.sT1)}, {s(sG)}, 7
    s_add_u32 {s(R.sT1)}, {s(R.sT1)}, {s(R.sT0)}
    s_lshl_b32 {s(R.sT1)}, {s(R.sT1)}, 7
    s_add_u32 {s(R.sT1)}, {s(R.sT1)}, {WS_FLAG + FLAG_P}
    s_lshl_b32 {s(R.sSrc)}, {s(R.sT0)}, 7
    s_add_u32 {s(R.sSrc)}, {s(R.sSrc)}, {WS_FLAG + FLAG_T}
    s_cmp_eq_u32 {s(sG)}, 3
    s_cselect_b32 {s(R.sT1)}, {s(R.sSrc)}, {s(R.sT1)}
    s_cselect_b64 exec, 7, 1
    v_mov_b32 {v(R.vT0)}, {s(R.sT1)}
    s_and_b32 {s(R.sT1)}, {s(R.sT0)}, 31
    s_lshl_b32 {s(R.sT1)}, {s(R.sT1)}, 2
    s_lshr_b32 {s(R.sSrc)}, {s(sCu)}, 3
    s_add_u32 {s(R.sT1)}, {s(R.sT1)}, {s(R.sSrc)}
    s_lshl_b32 {s(R.sT1)}, {s(R.sT1)}, 7
    s_add_u32 {s(R.sT1)}, {s(R.sT1)}, {WS_FLAG + FLAG_F}
    v_writelane_b32 {v(R.vT0)}, {s(R.sT1)}, 1
    s_lshl_b32 {s(R.sT1)}, {s(R.sT0)}, 7
    s_add_u32 {s(R.sT1)}, {s(R.sT1)}, {WS_FLAG + FLAG_F2}
    v_writelane_b32 {v(R.vT0)}, {s(R.sT1)}, 2
    v_mov_b32 {v(R.vT1)}, 0
    buffer_store_dword {v(R.vT1)}, {v(R.vT0)}, {s(R.sWS,4)}, 0 offen sc1
    s_mov_b64 exec, -1
    s_cmp_eq_u32 {s(sG)}, 3
    s_cbranch_scc1 W_F
    s_load_dwordx2 {s(R.sX,2)}, s[0:1], {KA_BX}
    s_mov_b32 {s(R.sX+2)}, {4*MB}
    s_mov_b32 {s(R.sX+3)}, 0x20000
    s_lshr_b32 {s(R.sT0)}, s2, 3
    s_lshl_b32 {s(R.sT0)}, {s(R.sT0)}, 15
    v_lshlrev_b32 {v(R.vT0)}, 7, v0
    s_waitcnt lgkmcnt(0)
    buffer_load_dword v254, {v(R.vT0)}, {s(R.sX,4)}, {s(R.sT0)} offen""")
    def rdv(): rendezvous(A, R.vL, R.sT0, R.sT1, R.vT0, R.vT1, R.vFv, sGive, SPIN)
    def reg(n):
        A(f"""s_waitcnt vmcnt({n})
        s_barrier""")
        register(A, R.sWv, R.sT0, R.sT1, R.vT0, R.vT1)
    qlate = kw.pop("qlate", 1)
    def notq(f):
        def g(*x):
            L = A.newlabel("nq")
            if qlate: A(f"""s_cmp_eq_u32 {s(sG)}, 0
            s_cbranch_scc1 {L}""")
            f(*x)
            A.label(L)
        return g
    if qlate:
        A(f"""s_cmp_lg_u32 {s(sG)}, 0
        s_cbranch_scc1 W_P""")
        A("""s_waitcnt vmcnt(0)
        s_barrier""")
        vote(A, R, sI)
        reg(0)
        A.label("W_P")
    touch = kw.pop("ptouch", 1)
    gen_P(A, sG, sCu, "W_U", ts=ts, mid=notq(lambda n: (reg(n + 1), A('s_barrier'))), pre=kw.pop('ppre', 2), touch=touch, prr=kw.pop('prr', 0))
    A.label("W_U")
    rdv()
    if ts: tstamp(A, R, 2)
    if notu & 1: A("s_branch W_fin")
    gen_U64(A, sG, sCu, "W_fin", sGive, ts=ts, usl=kw.pop("usl", 2), touch=kw.pop("utouch", 2), rot=kw.pop("rot", 0), tpf=kw.pop("tpf", 0), its=kw.get("its", 0), early=kw.get("tearly", 0), gsh=kw.pop("gsh", 2), csp=kw.pop("csp", 0), fl=kw.pop("fl", 1))
    A.label("W_F")
    if not qlate:
        A("""s_waitcnt vmcnt(0)
        s_barrier""")
        vote(A, R, sI)
    reg(0)
    ft = kw.pop("ft", 0)
    def ftouch():
        A(f"""s_load_dwordx2 {s(R.sX,2)}, s[0:1], {KA_WO}
        s_load_dwordx2 {s(R.sO,2)}, s[0:1], {KA_WQ}
        s_mov_b32 {s(R.sX+2)}, {8*MB}
        s_mov_b32 {s(R.sX+3)}, 0x20000
        s_mov_b32 {s(R.sO+2)}, {8*MB}
        s_mov_b32 {s(R.sO+3)}, 0x20000
        s_lshl_b32 {s(R.sT0)}, {s(sCu)}, 18
        v_lshlrev_b32 {v(R.vT0)}, 7, v0
        s_waitcnt lgkmcnt(0)""")
        for k in range(8):
            if ft & 2: A(f"buffer_load_dword {v(220+k)}, {v(R.vT0)}, {s(R.sO,4)}, {s(R.sT0)} offen")
            if ft & 1: A(f"buffer_load_dword {v(228+k)}, {v(R.vT0)}, {s(R.sX,4)}, {s(R.sT0)} offen")
            A(f"s_add_u32 {s(R.sT0)}, {s(R.sT0)}, 32768")
    if ft & 3 and not ft & 4: ftouch()
    gen_F(A, sCu, "W_T", sGive, hook=ftouch if ft & 4 else None, rdv=rdv, ts=ts, wt0=kw.pop("wt0", 5), its=kw.get("its", 0))
    A.label("W_T")
    if ts: tstamp(A, R, 6)
    if notu & 2: A("s_branch W_fin")
    gen_T(A, sCu, "W_fin", sGive, early=kw.pop("tearly", 0), **{k: kw.pop(k) for k in ("tfree", "tpat", "its", "tl", "tsl") if k in kw})
    A.label("W_fin")
    if ts: tstamp(A, R, 7)
    if ts == 2:
        dbgdump(A, R.sWS, R.sWv, 64 + 12, 3, 0x8f); dbgdump(A, R.sWS, R.sWv, 192 + 12, 8, 0xff)
    A.label("W_end")
    A("s_endpgm")
    A.label("R_entry")
    class RR: sWS = 4; sWv = 14
    def rts(k):
        tstamp(A, RR, k, vt=112 if os.environ.get("R7") else 248)
        if ts == 2 and k == 2: dbgdump(A, RR.sWS, RR.sWv, 8, 0, 7)
    gen_recur(A, ts=rts if ts else None, **kw)
    return A

if __name__ == "__main__":
    kw = {}
    for x in sys.argv[2:]:
        k, val = x.split("="); kw[k] = int(val)
    A = gen(**kw)
    name = NAME + "_kernel"
    txt = assemble_file([(name, 256, 256, LDS_BYTES)], [kernel_text(name, A)])
    open(sys.argv[1], "w").write(txt)
```

```python
from asmlib import *
from layout import *
from stream import *
import struct, math
def f32bits(x): return struct.unpack("<I", struct.pack("<f", x))[0]
SPIN = 1 << 20
LD = ""

def idump(A, R, vv):
    A(f"""s_lshl_b32 {s(R.sT0)}, s2, 10
    s_add_u32 {s(R.sT0)}, {s(R.sT0)}, {WS_STAMP + 13*MB}
    v_lshlrev_b32 {v(R.vT0)}, 2, v0
    buffer_store_dword {v(vv)}, {v(R.vT0)}, {s(R.sWS,4)}, {s(R.sT0)} offen""")

def gen_T(A, sHead, done, sGive, tfree=0, tpat=0, its=0, tl=60, early=1, tsl=0):
    its = its == 1
    R = SR
    sSeg, sC, sCnt, sQ, sKm, sOo, sNx, sHave = 28, 29, 30, 31, 32, 33, 34, 35
    sMask = 36
    sQn, sKn = 68, 69
    vQa, vKa, vKma, vVma, vOa, vFa, vFl, vTf, vMx, vSm = range(10, 20)
    aQ = lambda b: 96*b
    aK = lambda b: 96*b + 32
    aV = lambda b: 96*b + 64
    vKM = lambda b: 20 + 48*b
    vVM = lambda b: 52 + 48*b
    vS, vSM, vP = 116, 132, 148
    vO = 160
    vPk = 224
    pi_lane(A, R.vT2, R.vL, R.vT0, R.vT1)
    A(f"""
    v_lshrrev_b32 {v(R.vT0)}, 5, {v(R.vL)}            ; h2
    v_and_b32 {v(R.vT1)}, 31, {v(R.vL)}               ; q / row
    v_lshlrev_b32 {v(R.vT3)}, 4, {v(R.vT0)}
    v_lshl_add_u32 {v(vQa)}, {v(R.vT1)}, 6, {v(R.vT3)}
    v_lshl_add_u32 {v(vKa)}, {v(R.vT2)}, 6, {v(R.vT3)}
    v_mov_b32 {v(vTf)}, {OOB}
    v_cmp_gt_u32 vcc, 8, {v(R.vT1)}
    v_cndmask_b32 {v(vKma)}, {v(vTf)}, {v(vQa)}, vcc
    v_lshlrev_b32 {v(vVma)}, 3, {v(R.vT0)}
    v_lshl_add_u32 {v(vVma)}, {v(R.vT2)}, 4, {v(vVma)}
    ; O address: (q>>4)*128K + h2*256 + (q&15)*16
    v_and_b32 {v(vOa)}, 15, {v(R.vL)}
    v_lshlrev_b32 {v(vOa)}, 4, {v(vOa)}
    v_lshl_add_u32 {v(vOa)}, {v(R.vT0)}, 8, {v(vOa)}
    v_bfe_u32 {v(R.vT3)}, {v(R.vL)}, 4, 1
    v_lshl_add_u32 {v(vOa)}, {v(R.vT3)}, 17, {v(vOa)}
    v_lshrrev_b32 {v(vFa)}, 2, {v(R.vL)}
    v_and_b32 {v(R.vT3)}, 3, {v(R.vL)}
    v_lshl_add_u32 {v(vFa)}, {v(vFa)}, 7, {v(R.vT3)}
    s_lshl_b32 {s(R.sT0)}, {s(sHead)}, 2
    v_add_u32 {v(vFa)}, {s(R.sT0)}, {v(vFa)}
    v_lshlrev_b32 {v(vFa)}, 7, {v(vFa)}
    v_add_u32 {v(vFa)}, {WS_FLAG + FLAG_P}, {v(vFa)}
    v_cmp_gt_u32 vcc, 16, {v(R.vL)}
    v_cndmask_b32 {v(vFa)}, {v(vTf)}, {v(vFa)}, vcc
    v_mov_b32 {v(vFl)}, 0
    s_add_u32 {s(R.sT1)}, {s(R.sWv)}, {s(R.sT0)}
    s_lshl_b32 {s(R.sT1)}, {s(R.sT1)}, 7
    s_add_u32 {s(R.sT1)}, {s(R.sT1)}, {WS_FLAG + FLAG_T}
    v_lshl_add_u32 {v(R.vFlag)}, {v(R.vL)}, 2, {s(R.sT1)}
    v_cmp_gt_u32 vcc, 32, {v(R.vL)}
    v_cndmask_b32 {v(R.vFlag)}, {v(vTf)}, {v(R.vFlag)}, vcc
    v_lshlrev_b32 {v(R.vT0)}, 3, {v(R.vT0)}
    v_sub_u32 {v(R.vT1)}, {v(R.vT1)}, {v(R.vT0)}      ; q - 8*h2 (signed)
    s_mov_b32 {s(sC)}, {f32bits(128 ** -0.5 * math.log2(math.e))}
    s_mov_b32 {s(sSeg)}, {s(R.sWv)}
    s_mul_i32 {s(sQ)}, {s(R.sT0)}, {BLK}
    s_lshl_b32 {s(R.sT1)}, {s(sSeg)}, 11
    s_add_u32 {s(sQ)}, {s(sQ)}, {s(R.sT1)}
    s_mul_i32 {s(sKm)}, {s(R.sT0)}, {MBLK}
    s_lshl_b32 {s(R.sT1)}, {s(sSeg)}, 9
    s_add_u32 {s(sKm)}, {s(sKm)}, {s(R.sT1)}
    s_add_u32 {s(sKm)}, {s(sKm)}, {WS_KM}
    s_lshl_b32 {s(sOo)}, {s(sSeg)}, 18
    s_lshl_b32 {s(R.sT1)}, {s(sHead)}, 12
    s_add_u32 {s(sOo)}, {s(sOo)}, {s(R.sT1)}
    s_add_u32 {s(sOo)}, {s(sOo)}, {WS_O}
    v_mov_b32 {v(vTf)}, 0xff800000
    s_mov_b32 {s(sHave)}, 0
    v_mov_b32 {v(R.vFv)}, 0
    """)
    if tpat == 1: A(f"""v_lshlrev_b32 {v(vQa)}, 4, {v(R.vL)}
    v_lshlrev_b32 {v(vKa)}, 4, {v(R.vL)}""")
    if tpat == 2: A(f"""v_and_b32 {v(vQa)}, 31, {v(R.vL)}
    v_lshlrev_b32 {v(vQa)}, 5, {v(vQa)}
    v_lshl_add_u32 {v(vQa)}, {v(R.vT0)}, 1, {v(vQa)}
    v_mov_b32 {v(vKa)}, {v(vQa)}""")
    if tpat == 3: A(f"""v_lshlrev_b32 {v(vKa)}, 4, {v(R.vT2)}
    v_lshl_add_u32 {v(vKa)}, {v(R.vT0)}, 6, {v(vKa)}
    v_mov_b32 {v(vQa)}, {v(vKa)}""")
    RM = 0 if tfree else 0xf000
    for r in range(16): A(f"v_cmp_le_i32 {s(sMask+2*r,2)}, {16*(r>>3) + (r&7)}, {v(R.vT1)}")
    for b in range(2):
        for es in range(4):
            A(f"v_mov_b32 {v(vVM(b)+4*es+2)}, 0"); A(f"v_mov_b32 {v(vVM(b)+4*es+3)}, 0")
    A(f"v_mov_b32 {v(vP+10)}, 0"); A(f"v_mov_b32 {v(vP+11)}, 0")
    ldfl = f"buffer_load_dword {v(vFl)}, {v(vFa)}, {s(R.sWS,4)}, 0 offen sc1"
    stfl = f"buffer_store_dword {v(R.vFv)}, {v(R.vFlag)}, {s(R.sWS,4)}, 0 offen sc1"
    def spin(name, sNeed, mask, ok, slp):
        return [f"s_mov_b32 {s(sCnt)}, {s(sGive)}", f"{name}:",
                f"v_cmp_ge_u32 vcc, {s(sNeed)}, {v(vFl)}", f"s_and_b32 {s(R.sT0)}, vcc_lo, {mask}", f"s_cbranch_scc0 {ok}",
                f"s_cmp_ge_u32 {s(sCnt)}, {SPIN}", f"s_cselect_b32 {s(sGive)}, {SPIN}, {s(sGive)}", f"s_cbranch_scc1 {ok}",
                f"s_add_u32 {s(sCnt)}, {s(sCnt)}, 1", ldfl, f"s_sleep {slp}", "s_waitcnt vmcnt(0)", f"s_branch {name}"]
    def ldq(b, so):
        o = []
        for mat, reg, va in ((0, aQ(b), vQa), (1, aK(b), vKa), (2, aV(b), vKa)):
            for es in range(4):
                o.append([f"s_add_u32 {s(R.sT0)}, {s(so)}, {mat*QKV_STRIDE + es*BLK}"] +
                         [f"buffer_load_dwordx4 {a(reg+(es*2+u)*4,4)}, {v(va)}, {s(R.sWS,4)}, {s(R.sT0)} offen offset:{(1024 if tpat else 32)*u}{LD}" for u in range(2)])
        return o
    def ldm(b, so):
        o = []
        for es in range(4):
            o.append([f"s_add_u32 {s(R.sT0)}, {s(so)}, {es*MBLK}", f"s_add_u32 {s(R.sT1)}, {s(so)}, {es*MBLK + WS_VMT - WS_KM}"] +
                     [f"buffer_load_dwordx4 {v(vKM(b)+(es*2+u)*4,4)}, {v(vKma)}, {s(R.sWS,4)}, {s(R.sT0)} offen offset:{32*u}{LD}" for u in range(2)] +
                     [f"buffer_load_dwordx2 {v(vVM(b)+4*es,2)}, {v(vVma)}, {s(R.sWS,4)}, {s(R.sT1)} offen{LD}"])
        return o
    def x32(op, x):
        A(f"""v_mov_b32 {v(R.vT0)}, {v(x)}
        v_permlane32_swap_b32 {v(x)}, {v(R.vT0)}
        {op} {v(x)}, {v(x)}, {v(R.vT0)}""")
    if early:
        for r in range(4): A(f"v_mov_b32 {v(vPk+r)}, -1")
        A(f"s_add_u32 {s(R.sT0)}, {s(sOo)}, {60 << 18}")
        for k in range(8): A(f"buffer_store_dwordx4 {v(vPk,4)}, {v(vOa)}, {s(R.sWS,4)}, {s(R.sT0)} offen offset:{512*k} sc1")
    for x in spin("T_p", sSeg, 0xfff, "T_pk", 8): A(x)
    A.label("T_pk")
    for g in ldq(0, sQ):
        for x in g: A(x)
    tails = []
    def ist():
        if its: A(f"""s_memrealtime s[72:73]
        s_waitcnt lgkmcnt(0)
        v_writelane_b32 {v(R.vSrc)}, s72, m0
        s_add_u32 m0, m0, 1""")
    if its: A("s_mov_b32 m0, 0")
    for b in range(2):
        A.label(f"T_top{b}")
        ist()
        A(f"""s_cmp_eq_u32 {s(sHave)}, 0
        s_cbranch_scc1 T_slow{b}""")
        A.label(f"T_go{b}")
        A(f"""s_add_u32 {s(sNx)}, {s(sSeg)}, 4
        s_min_u32 {s(sQn)}, {s(sNx)}, 63
        s_waitcnt vmcnt(8)
        v_cmp_ge_u32 vcc, {s(sQn)}, {v(vFl)}
        s_and_b32 {s(R.sT0)}, vcc_lo, 0xfff
        s_cbranch_scc1 T_pw{b}""")
        A.label(f"T_pok{b}")
        ist()
        A(f"""s_add_u32 {s(sQ)}, {s(sQ)}, {4*2048}
        s_add_u32 {s(sKm)}, {s(sKm)}, {4*512}
        s_and_b32 {s(R.sT0)}, vcc_lo, {RM}
        s_cselect_b32 {s(sHave)}, 0, 1
        s_cselect_b32 {s(sKn)}, {OOB}, {s(sKm)}
        s_cmp_lt_u32 {s(sNx)}, 64
        s_cselect_b32 {s(sQn)}, {s(sQ)}, {OOB}
        s_cselect_b32 {s(sKn)}, {s(sKn)}, {OOB}
        {ldfl}""")
        tails.append([f"T_slow{b}:", "s_waitcnt vmcnt(0)", stfl] + ([f"s_cmp_ge_u32 {s(sSeg)}, {tl}", "s_cbranch_scc1 T_last"] if b else []) + spin(f"T_s{b}", sSeg, RM, f"T_sk{b}", 2) + [f"T_sk{b}:"] +
                     [x for g in ldm(b, sKm) for x in g] + ["s_waitcnt vmcnt(0)", f"s_branch T_go{b}"])
        tails.append([f"T_pw{b}:"] + spin(f"T_q{b}", sQn, 0xfff, f"T_pok{b}", 8))
        nx = ldq(1 - b, sQn) + ldm(1 - b, sKn)
        for k in range(8):
            A(f"v_mfma_f32_32x32x16_bf16 {v(vS,16)}, {a(aK(b)+4*k,4)}, {a(aQ(b)+4*k,4)}, {v(vS,16) if k else 0}")
            for x in nx.pop(0): A(x)
        for k in range(8):
            A(f"v_mfma_f32_32x32x16_bf16 {v(vSM,16)}, {v(vKM(b)+4*k,4)}, {a(aQ(b)+4*k,4)}, {v(vSM,16) if k else 0}")
            for x in nx.pop(0): A(x)
        ist()
        for r in range(16): A(f"v_cndmask_b32 {v(vS+r)}, {v(vTf)}, {v(vS+r)}, {s(sMask+2*r,2)}")
        A(f"v_max3_f32 {v(vMx)}, {v(vS)}, {v(vS+1)}, {v(vS+2)}")
        for r in range(3, 19, 2): A(f"v_max3_f32 {v(vMx)}, {v(vMx)}, {v(vS+r)}, {v(vS+r+1)}")
        A(f"v_max_f32 {v(vMx)}, {v(vMx)}, {v(vS+19)}")
        x32("v_max_f32", vMx)
        A(f"v_mul_f32 {v(vMx)}, {s(sC)}, {v(vMx)}")
        for r in range(20): A(f"v_fma_f32 {v(vS+r)}, {v(vS+r)}, {s(sC)}, -{v(vMx)}")
        for r in range(20): A(f"v_exp_f32 {v(vS+r)}, {v(vS+r)}")
        A("s_waitcnt vmcnt(37)")
        ist()
        A(stfl)
        A(f"v_add_f32 {v(vSm)}, {v(vS)}, {v(vS+1)}")
        A(f"v_add_f32 {v(R.vT1)}, {v(vS+2)}, {v(vS+3)}")
        for r in range(4, 20, 2):
            A(f"v_add_f32 {v(vSm)}, {v(vSm)}, {v(vS+r)}")
            A(f"v_add_f32 {v(R.vT1)}, {v(R.vT1)}, {v(vS+r+1)}")
        A(f"v_add_f32 {v(vSm)}, {v(vSm)}, {v(R.vT1)}")
        x32("v_add_f32", vSm)
        A(f"v_rcp_f32 {v(vSm)}, {v(vSm)}")
        for r in range(20): A(f"v_mul_f32 {v(vS+r)}, {v(vS+r)}, {v(vSm)}")
        for r in range(10): A(f"v_cvt_pk_bf16_f32 {v(vP+r)}, {v(vS+2*r)}, {v(vS+2*r+1)}")
        def epi(e):
            for r in range(8): A(f"v_cvt_pk_bf16_f32 {v(vPk+8*e+r)}, {v(vO+16*e+2*r)}, {v(vO+16*e+2*r+1)}")
            for u in range(2): A(f"buffer_store_dwordx4 {v(vPk+8*e+4*u,4)}, {v(vOa)}, {s(R.sWS,4)}, {s(sOo)} offen offset:{1024*e + 512*u} sc1")
        for es in range(4):
            d = v(vO + 16*es, 16)
            A(f"v_mfma_f32_32x32x16_bf16 {d}, {a(aV(b)+8*es,4)}, {v(vP,4)}, 0")
            A(f"v_mfma_f32_32x32x16_bf16 {d}, {a(aV(b)+8*es+4,4)}, {v(vP+4,4)}, {d}")
            A(f"v_mfma_f32_32x32x16_bf16 {d}, {v(vVM(b)+4*es,4)}, {v(vP+8,4)}, {d}")
            if es >= 1: epi(es - 1)
        A(f"v_add_u32 {v(R.vFv)}, 1, {v(R.vFv)}")
        epi(3)
        A(f"""s_mov_b32 {s(sSeg)}, {s(sNx)}
        s_add_u32 {s(sOo)}, {s(sOo)}, {4 << 18}""")
    A(f"""s_cmp_lt_u32 {s(sSeg)}, 64
    s_cbranch_scc1 T_top0
    T_fin:
    s_waitcnt vmcnt(0)
    {stfl}""")
    if its: idump(A, R, R.vSrc)
    A(f"s_branch {done}")
    for t in tails:
        for x in t: A(x)
    A.label("T_last")
    vMr, vAl = vKM(0), vKM(0) + 1
    for k in range(8): A(f"v_mfma_f32_32x32x16_bf16 {v(vS,16)}, {a(aK(1)+4*k,4)}, {a(aQ(1)+4*k,4)}, {v(vS,16) if k else 0}")
    for r in range(16): A(f"v_cndmask_b32 {v(vS+r)}, {v(vTf)}, {v(vS+r)}, {s(sMask+2*r,2)}")
    A(f"v_max3_f32 {v(vMr)}, {v(vS)}, {v(vS+1)}, {v(vS+2)}")
    for r in range(3, 15, 2): A(f"v_max3_f32 {v(vMr)}, {v(vMr)}, {v(vS+r)}, {v(vS+r+1)}")
    A(f"v_max_f32 {v(vMr)}, {v(vMr)}, {v(vS+15)}")
    x32("v_max_f32", vMr)
    A(f"v_mul_f32 {v(vMx)}, {s(sC)}, {v(vMr)}")
    for r in range(16): A(f"v_fma_f32 {v(vS+r)}, {v(vS+r)}, {s(sC)}, -{v(vMx)}")
    for r in range(16): A(f"v_exp_f32 {v(vS+r)}, {v(vS+r)}")
    A(f"v_add_f32 {v(vSm)}, {v(vS)}, {v(vS+1)}")
    for r in range(2, 16): A(f"v_add_f32 {v(vSm)}, {v(vSm)}, {v(vS+r)}")
    for r in range(8): A(f"v_cvt_pk_bf16_f32 {v(vP+r)}, {v(vS+2*r)}, {v(vS+2*r+1)}")
    for es in range(4):
        d = v(vO + 16*es, 16)
        A(f"v_mfma_f32_32x32x16_bf16 {d}, {a(aV(1)+8*es,4)}, {v(vP,4)}, 0")
        A(f"v_mfma_f32_32x32x16_bf16 {d}, {a(aV(1)+8*es+4,4)}, {v(vP+4,4)}, {d}")
    A(f"""s_cmp_ge_u32 {s(sSeg)}, 61
    s_cselect_b64 {s(sMask+12,2)}, 0xffff, 0
    s_sub_u32 {s(sNx)}, {s(sSeg)}, 2""")
    for es in range(4):
        A(f"s_add_u32 {s(sMask+es)}, {s(sKm)}, {es*MBLK}")
        A(f"s_add_u32 {s(sMask+4+es)}, {s(sKm)}, {es*MBLK + WS_VMT - WS_KM}")
    A(f"v_add_u32 {v(R.vFv)}, 1, {v(R.vFv)}")
    for x in spin("T_l0", sNx, RM, "T_l1", 2): A(x)
    def mx(regs, d):
        r = list(regs); o = [f"v_max3_u32 {v(d)}, {v(r[0])}, {v(r[1])}, {v(r[2])}"]; r = r[3:]
        while len(r) >= 2: o.append(f"v_max3_u32 {v(d)}, {v(d)}, {v(r[0])}, {v(r[1])}"); r = r[2:]
        if r: o.append(f"v_max_u32 {v(d)}, {v(d)}, {v(r[0])}")
        return o
    A.label("T_l2")
    for x in mx(list(range(vKM(1), vKM(1) + 32)) + [R.vT1], R.vT0): A(x)
    A(f"""v_cmp_eq_u32 vcc, -1, {v(R.vT0)}
    s_cbranch_vccz T_l3
    s_add_u32 {s(sCnt)}, {s(sCnt)}, 1
    s_cmp_ge_u32 {s(sCnt)}, {SPIN}
    s_cbranch_scc1 T_l3""")
    if tsl: A(f"s_sleep {tsl}")
    A.label("T_l1")
    for k in range(8): A(f"buffer_load_dwordx4 {v(vKM(1)+4*k,4)}, {v(vKma)}, {s(R.sWS,4)}, {s(sMask + k//2)} offen offset:{32*(k & 1)} sc1")
    for es in range(4): A(f"buffer_load_dwordx2 {v(vVM(1)+4*es,2)}, {v(vVma)}, {s(R.sWS,4)}, {s(sMask+4+es)} offen sc1")
    for k in range(8):
        A(f"s_waitcnt vmcnt({11 - k})")
        A(f"v_mfma_f32_32x32x16_bf16 {v(vSM,16)}, {v(vKM(1)+4*k,4)}, {a(aQ(1)+4*k,4)}, {v(vSM,16) if k else 0}")
    A("s_waitcnt vmcnt(0)")
    for x in mx([vVM(1) + 4*es + e for es in range(4) for e in range(2)], R.vT1): A(x)
    A(f"""v_cmp_eq_u32 {s(sMask+8,2)}, -1, {v(R.vT1)}
    v_cmp_u_f32 {s(sMask+10,2)}, {v(vSM)}, {v(vSM+1)}
    v_cmp_u_f32 vcc, {v(vSM+2)}, {v(vSM+3)}
    v_max3_f32 {v(vMx)}, {v(vSM)}, {v(vSM+1)}, {v(vMr)}
    s_or_b64 {s(sMask+8,2)}, {s(sMask+8,2)}, {s(sMask+10,2)}
    v_max3_f32 {v(vMx)}, {v(vSM+2)}, {v(vSM+3)}, {v(vMx)}
    s_or_b64 vcc, vcc, {s(sMask+8,2)}
    s_cbranch_vccnz T_l2""")
    A.label("T_l3")
    ist(); ist()
    x32("v_max_f32", vMx)
    A(f"v_mul_f32 {v(vMx)}, {s(sC)}, {v(vMx)}")
    A(f"v_fma_f32 {v(vAl)}, {v(vMr)}, {s(sC)}, -{v(vMx)}")
    for r in range(4): A(f"v_fma_f32 {v(vSM+r)}, {v(vSM+r)}, {s(sC)}, -{v(vMx)}")
    A(f"v_exp_f32 {v(vAl)}, {v(vAl)}")
    for r in range(4): A(f"v_exp_f32 {v(vSM+r)}, {v(vSM+r)}")
    A(f"""v_fma_f32 {v(vSm)}, {v(vSm)}, {v(vAl)}, {v(vSM)}
    v_add_f32 {v(R.vT1)}, {v(vSM+1)}, {v(vSM+2)}
    v_add_f32 {v(vSm)}, {v(vSm)}, {v(vSM+3)}
    v_add_f32 {v(vSm)}, {v(vSm)}, {v(R.vT1)}""")
    x32("v_add_f32", vSm)
    A(f"v_rcp_f32 {v(vSm)}, {v(vSm)}")
    A(f"v_mul_f32 {v(vAl)}, {v(vAl)}, {v(vSm)}")
    for r in range(4): A(f"v_mul_f32 {v(vSM+r)}, {v(vSM+r)}, {v(vSm)}")
    for r in range(2): A(f"v_cvt_pk_bf16_f32 {v(vP+8+r)}, {v(vSM+2*r)}, {v(vSM+2*r+1)}")
    if early == 2: A(f"""s_mov_b64 exec, {s(sMask+12,2)}
    {stfl}
    s_mov_b64 exec, -1
    s_sleep 40""")
    for es in range(4):
        for r in range(16): A(f"v_mul_f32 {v(vO+16*es+r)}, {v(vO+16*es+r)}, {v(vAl)}")
        A(f"v_mfma_f32_32x32x16_bf16 {v(vO+16*es,16)}, {v(vVM(1)+4*es,4)}, {v(vP+8,4)}, {v(vO+16*es,16)}")
        if es >= 1: epi(es - 1)
    epi(3)
    if early: A(f"""s_mov_b64 exec, {s(sMask+12,2)}
    {stfl}
    s_mov_b64 exec, -1""")
    ist()
    A("s_branch T_fin")

def gen_U(A, sGrp, sCol, done, sGive, ngrp=3, ts=False, uw=0, usl=2):
    R = SR
    sN, sCnt, sLd, sOut, sPar, sNx = 28, 29, 30, 31, 32, 33
    vLa, vFa, vFl, vOa, vLw, vLr = range(10, 16)
    vAcc = 16
    vRed = 24
    vF = 64
    A(f"""
    s_load_dwordx2 {s(R.sX,2)}, s[0:1], {KA_WO}
    s_load_dwordx2 {s(R.sO,2)}, s[0:1], {KA_OUT}
    s_mov_b32 {s(R.sX+2)}, {8*MB}
    s_mov_b32 {s(R.sX+3)}, 0x20000
    s_mov_b32 {s(R.sO+2)}, {8*MB}
    s_mov_b32 {s(R.sO+3)}, 0x20000
    s_lshl_b32 {s(R.sSrc)}, {s(R.sWv)}, 21
    s_lshl_b32 {s(R.sT0)}, {s(sCol)}, 6
    s_add_u32 {s(R.sSrc)}, {s(R.sSrc)}, {s(R.sT0)}
    s_waitcnt lgkmcnt(0)
    s_barrier
    """)
    load_weights_tr(A, R, R.sX, R.sSrc, 2048)
    if ts: tstamp(A, R, 3)
    A(f"""
    v_lshlrev_b32 {v(vLr)}, 4, {v(R.vL)}
    s_lshl_b32 {s(R.sT0)}, {s(R.sWv)}, 15
    v_add_u32 {v(vLa)}, {s(R.sT0)}, {v(vLr)}
    s_lshl_b32 {s(R.sT0)}, {s(R.sWv)}, 11
    v_add_u32 {v(vLw)}, {s(R.sT0)}, {v(vLr)}
    v_bfe_u32 {v(vFa)}, {v(R.vL)}, 3, 2
    v_and_b32 {v(R.vT0)}, 7, {v(R.vL)}
    v_lshlrev_b32 {v(R.vT0)}, 9, {v(R.vT0)}
    v_lshl_add_u32 {v(vFa)}, {v(vFa)}, 7, {v(R.vT0)}
    s_lshl_b32 {s(R.sT0)}, {s(R.sWv)}, 12
    s_add_u32 {s(R.sT0)}, {s(R.sT0)}, {WS_FLAG + FLAG_T}
    v_add_u32 {v(vFa)}, {s(R.sT0)}, {v(vFa)}
    v_mov_b32 {v(vFl)}, 0
    v_and_b32 {v(vOa)}, 15, {v(R.vL)}
    v_and_b32 {v(R.vT0)}, 48, {v(R.vL)}
    v_lshl_add_u32 {v(vOa)}, {v(vOa)}, 12, {v(R.vT0)}
    s_lshl_b32 {s(R.sT0)}, {s(sCol)}, 6
    s_add_u32 {s(R.sT0)}, {s(R.sT0)}, 2048
    v_add_u32 {v(vOa)}, {s(R.sT0)}, {v(vOa)}
    s_mov_b32 {s(sN)}, {s(sGrp)}
    s_mov_b32 {s(sPar)}, 0
    s_barrier
    """)
    def ready(sItem):
        return [f"s_lshr_b32 {s(R.sT0)}, {s(sItem)}, 3",
                f"v_cmp_ge_u32 vcc, {s(R.sT0)}, {v(vFl)}",
                f"s_lshl_b32 {s(R.sT1)}, {s(sItem)}, 2",
                f"s_and_b32 {s(R.sT1)}, {s(R.sT1)}, 24",
                f"s_lshr_b32 {s(R.sT0)}, vcc_lo, {s(R.sT1)}",
                f"s_and_b32 {s(R.sT0)}, {s(R.sT0)}, 0xff"]
    def ld(ks):
        o = []
        if ks % 4 == 0 and ks: o.append(f"s_add_u32 {s(sLd)}, {s(sLd)}, 4096")
        o.append(f"buffer_load_dwordx4 {v(vF+4*ks,4)}, {v(vLa)}, {s(R.sWS,4)}, {s(sLd)} offen offset:{(ks%4)*1024}{LD}")
        return o
    def setld(sItem):
        return [f"s_lshl_b32 {s(sLd)}, {s(sItem)}, 17", f"s_add_u32 {s(sLd)}, {s(sLd)}, {WS_O}"]
    if uw:
        A(f"""U_uw:
        s_sleep 100
        s_mov_b64 exec, 0xffffffff
        buffer_load_dword {v(vFl)}, {v(vFa)}, {s(R.sWS,4)}, 0 offen sc1
        s_waitcnt vmcnt(0)
        v_cmp_gt_u32 vcc, 16, {v(vFl)}
        s_mov_b64 exec, -1
        s_add_u32 {s(sPar)}, {s(sPar)}, 1
        s_cmp_gt_u32 {s(sPar)}, 1000
        s_cbranch_scc1 U_uw2
        s_cbranch_vccnz U_uw
        U_uw2:
        s_mov_b32 {s(sPar)}, 0""")
    ust = ["s_memrealtime s[72:73]", "s_waitcnt lgkmcnt(0)", f"v_writelane_b32 {v(R.vT2)}, s72, m0", "s_add_u32 m0, m0, 1"] if its else []
    if its: A("s_mov_b32 m0, 0")
    A(f"s_mov_b32 {s(sTry)}, 0")
    A.label("U_wait")
    A(f"s_mov_b32 {s(sCnt)}, {s(sGive)}")
    A.label("U_fl")
    for x in ready(sN): A(x)
    A(f"""s_cbranch_scc0 U_go
    s_cmp_ge_u32 {s(sCnt)}, {SPIN}
    s_cselect_b32 {s(sGive)}, {SPIN}, {s(sGive)}
    s_cbranch_scc1 U_go
    s_lshl_b32 {s(R.sT0)}, {s(R.sT0)}, {s(R.sT1)}
    s_cmp_eq_u32 {s(sCnt)}, 0
    s_cselect_b32 exec_lo, -1, {s(R.sT0)}
    s_mov_b32 exec_hi, 0
    s_add_u32 {s(sCnt)}, {s(sCnt)}, 1
    buffer_load_dword {v(vFl)}, {v(vFa)}, {s(R.sWS,4)}, 0 offen sc1
    s_mov_b64 exec, -1
    s_sleep {usl}
    s_waitcnt vmcnt(0)
    s_branch U_fl""")
    A.label("U_go")
    if early: A(f"""s_cmp_eq_u32 {s(sTry)}, 0
    s_cbranch_scc1 U_g2
    buffer_inv sc1
    s_waitcnt vmcnt(0)
    U_g2:""")
    for x in setld(sN): A(x)
    for ks in range(32):
        for x in ld(ks): A(x)
    A.label("U_item")
    for x in ust: A(x)
    A(f"s_add_u32 {s(sNx)}, {s(sN)}, {ngrp}")
    for x in ready(sNx): A(x)
    A("s_cbranch_scc1 U_b")
    def mm(ks):
        for t in range(2):
            d = v(vAcc + 4*t, 4)
            A(f"v_mfma_f32_16x16x32_bf16 {d}, {a(aw(t, ks),4)}, {v(vF+4*ks,4)}, {d if ks else 0}")
    def fin(nxt):
        L = A.newlabel("Uf")
        A(f"""s_lshl_b32 {s(sOut)}, {s(sN)}, 16
        v_add_u32 {v(R.vT0)}, {s(sPar)}, {v(vLw)}
        v_add_u32 {v(R.vT1)}, {s(sPar)}, {v(vLr)}
        s_xor_b32 {s(sPar)}, {s(sPar)}, 8192
        s_mov_b32 {s(sN)}, {s(sNx)}
        ds_write_b128 {v(R.vT0)}, {v(vAcc,4)}
        ds_write_b128 {v(R.vT0)}, {v(vAcc+4,4)} offset:1024
        s_waitcnt lgkmcnt(0)
        s_barrier
        s_cmp_lg_u32 {s(R.sWv)}, 0
        s_cbranch_scc1 {L}""")
        for k in range(6): A(f"ds_read_b128 {v(vRed+4*k,4)}, {v(R.vT1)} offset:{2048 + 1024*k}")
        A("s_waitcnt lgkmcnt(4)")
        for r in range(8): A(f"v_add_f32 {v(vRed+r)}, {v(vAcc+r)}, {v(vRed+r)}")
        A("s_waitcnt lgkmcnt(0)")
        for r in range(8): A(f"v_add_f32 {v(vRed+8+r)}, {v(vRed+8+r)}, {v(vRed+16+r)}")
        for r in range(8): A(f"v_add_f32 {v(vRed+r)}, {v(vRed+r)}, {v(vRed+8+r)}")
        for r in range(4): A(f"v_cvt_pk_bf16_f32 {v(vRed+24+r)}, {v(vRed+2*r)}, {v(vRed+2*r+1)}")
        A(f"buffer_store_dwordx4 {v(vRed+24,4)}, {v(vOa)}, {s(R.sO,4)}, {s(sOut)} offen")
        A.label(L)
        A(f"""s_cmp_lt_u32 {s(sN)}, 128
        s_cbranch_scc1 {nxt}
        s_branch {done}""")
    for x in setld(sNx): A(x)
    for ks in range(32):
        A(f"s_waitcnt vmcnt({31 if ks == 0 else 30})")
        mm(ks)
        if ks:
            for x in ld(ks - 1): A(x)
    A("s_nop 7")
    for x in ld(31): A(x)
    fin("U_item")
    A.label("U_b")
    for ks in range(32):
        A(f"s_waitcnt vmcnt({31 - ks})")
        mm(ks)
    fin("U_wait")

def gen_U64(A, sG, sI, done, sGive, ts=False, usl=2, touch=1, rot=1, tpf=12, its=0, early=1, gsh=2, csp=1, fl=1):
    R = SR
    NG = 6
    sN, sCnt, sLd, sOut, sPar, sNx, sPend, sCol, sTry, sRot, sTp = range(28, 39)
    vLa, vFa, vFl, vOa, vLw, vLr = range(10, 16)
    vTa, vPf, vTx = R.vSrc, R.vDst, R.vFlag
    vTr = R.vT3
    vAcc, vSt, vRed, vF, vW = 16, 32, 48, 64, 128
    RED = 131072
    A(f"""
    s_load_dwordx2 {s(R.sX,2)}, s[0:1], {KA_WO}
    s_load_dwordx2 {s(R.sO,2)}, s[0:1], {KA_OUT}
    s_mov_b32 {s(R.sX+2)}, {8*MB}
    s_mov_b32 {s(R.sX+3)}, 0x20000
    s_mov_b32 {s(R.sO+2)}, {8*MB}
    s_mov_b32 {s(R.sO+3)}, 0x20000
    s_lshl_b32 {s(R.sT0)}, {s(sG)}, 2
    s_lshr_b32 {s(R.sT0)}, {(0, 0x084, 0x808, 0x480)[csp]}, {s(R.sT0)}
    s_add_u32 {s(sCol)}, {s(sI)}, {s(R.sT0)}
    s_and_b32 {s(sCol)}, {s(sCol)}, 15
    s_lshr_b32 {s(sN)}, {s(sI)}, 4
    s_lshl_b32 {s(R.sT0)}, {s(sG)}, 2
    s_lshr_b32 {s(R.sT0)}, {sum(2 * ((g + gsh) % 3) << 4*g for g in range(3))}, {s(R.sT0)}
    s_and_b32 {s(R.sT0)}, {s(R.sT0)}, 15
    s_add_u32 {s(sN)}, {s(sN)}, {s(R.sT0)}
    s_lshl_b32 {s(R.sSrc)}, {s(R.sWv)}, 21
    s_lshl_b32 {s(R.sT0)}, {s(sCol)}, 7
    s_add_u32 {s(R.sSrc)}, {s(R.sSrc)}, {s(R.sT0)}
    v_lshrrev_b32 {v(R.vT0)}, 2, {v(R.vL)}
    v_and_b32 {v(R.vT1)}, 3, {v(R.vL)}
    v_lshlrev_b32 {v(R.vT2)}, 4, {v(R.vT1)}
    v_lshl_add_u32 {v(R.vT2)}, {v(R.vT0)}, 11, {v(R.vT2)}
    v_lshlrev_b32 {v(vTr)}, 3, {v(R.vT1)}
    v_bfe_u32 {v(R.vT0)}, {v(R.vL)}, 2, 2
    v_lshrrev_b32 {v(R.vT1)}, 4, {v(R.vL)}
    v_lshl_add_u32 {v(R.vT0)}, {v(R.vT1)}, 3, {v(R.vT0)}
    v_lshl_add_u32 {v(vTr)}, {v(R.vT0)}, 6, {v(vTr)}
    s_lshl_b32 {s(R.sM0)}, {s(R.sWv)}, 15
    v_add_u32 {v(vTr)}, {s(R.sM0)}, {v(vTr)}
    s_and_b32 {s(sRot)}, {s(sI)}, {7 if rot else 0}
    s_lshl_b32 {s(sRot)}, {s(sRot)}, 18
    s_waitcnt lgkmcnt(0)
    s_barrier
    """)
    units = [(0, ks) for ks in range(32)] + [(1, ks) for ks in range(0, 32, 2)] + [(1, ks) for ks in range(1, 32, 2)]
    if fl:
        assert not tpf
        vTq = (vTr, vTa, vPf, vTx)
        A(f"""v_lshrrev_b32 {v(R.vT0)}, 3, {v(R.vL)}
        v_and_b32 {v(R.vT1)}, 3, {v(R.vT0)}
        v_lshlrev_b32 {v(R.vT1)}, 1, {v(R.vT1)}
        v_xor_b32 {v(R.vT1)}, {v(R.vT1)}, {v(R.vL)}
        v_and_b32 {v(R.vT1)}, 7, {v(R.vT1)}
        v_lshlrev_b32 {v(R.vT1)}, 4, {v(R.vT1)}
        v_lshl_add_u32 {v(R.vT2)}, {v(R.vT0)}, 11, {v(R.vT1)}
        v_xor_b32 {v(vRed+1)}, 32, {v(R.vT2)}
        v_bfe_u32 {v(R.vT0)}, {v(R.vL)}, 2, 2
        v_lshrrev_b32 {v(R.vT1)}, 4, {v(R.vL)}
        v_lshl_add_u32 {v(vTr)}, {v(R.vT1)}, 3, {v(R.vT0)}
        v_lshl_add_u32 {v(vTr)}, {v(vTr)}, 7, {s(R.sM0)}
        v_and_b32 {v(R.vT1)}, 1, {v(R.vT1)}
        v_xor_b32 {v(R.vT0)}, {v(R.vT0)}, {v(R.vT1)}
        v_lshl_add_u32 {v(vTr)}, {v(R.vT0)}, 5, {v(vTr)}
        v_and_b32 {v(R.vT1)}, 3, {v(R.vL)}
        v_lshl_add_u32 {v(vTr)}, {v(R.vT1)}, 3, {v(vTr)}""")
        for k in range(1, 4): A(f"v_xor_b32 {v(vTq[k])}, {32*k}, {v(vTr)}")
        units = [ks for ks in range(32) if ks & 3 != 3] + list(range(3, 32, 4))
    def wreg(ks, o, n):
        j = units.index(ks)
        return a(16*j + o, n) if j < 16 else v(vW + 16*(j - 16) + o, n) if j < 24 else v(vSt + o, n)
    def dmaf(j):
        for q in range(4):
            A(f"s_add_u32 m0, {s(R.sM0)}, {(j & 7)*4096 + q*1024}")
            A(f"s_add_u32 {s(R.sT0)}, {s(R.sSrc)}, {(units[j]*32 + q*8)*2048}")
            A(f"buffer_load_dwordx4 {v(vRed+1 if q & 1 else R.vT2)}, {s(R.sX,4)}, {s(R.sT0)} offen lds")
    def trf(ks):
        return [f"ds_read_b64_tr_b16 {wreg(ks, 4*t + 2*hh, 2)}, {v(vTq[t])} offset:{(units.index(ks) & 7)*4096 + hh*512}" for t in range(4) for hh in range(2)]
    def dma(j):
        h, ks = units[j]
        for q in range(2):
            A(f"s_add_u32 m0, {s(R.sM0)}, {(j & 15)*2048 + q*1024}")
            A(f"s_add_u32 {s(R.sT0)}, {s(sRot)}, {(ks*32 + q*16)*2048 + h*64}")
            A(f"s_bitset0_b32 {s(R.sT0)}, 21")
            A(f"s_add_u32 {s(R.sT0)}, {s(R.sT0)}, {s(R.sSrc)}")
            A(f"buffer_load_dwordx4 {v(R.vT2)}, {s(R.sX,4)}, {s(R.sT0)} offen lds")
    def trd(dst, slot):
        return [f"ds_read_b64_tr_b16 {dst(4*tt + 2*hh)}, {v(vTr)} offset:{slot*2048 + hh*256 + tt*32}" for tt in range(2) for hh in range(2)]
    if touch:
        A(f"""s_sub_u32 {s(R.sT0)}, {s(sG)}, 1
        s_and_b32 {s(R.sT0)}, {s(R.sT0)}, 3
        s_lshl_b32 {s(R.sT0)}, {s(R.sT0)}, 3
        s_and_b32 {s(R.sT1)}, {s(sI)}, 7
        s_add_u32 {s(R.sT0)}, {s(R.sT0)}, {s(R.sT1)}
        s_lshl_b32 {s(R.sT0)}, {s(R.sT0)}, 8
        v_add_lshl_u32 {v(R.vT0)}, v0, {s(R.sT0)}, 11
        s_and_b32 {s(R.sT0)}, {s(sI)}, 8
        s_lshl_b32 {s(R.sT0)}, {s(R.sT0)}, 7
        buffer_load_dword {v(vRed)}, {v(R.vT0)}, {s(R.sX,4)}, {s(R.sT0)} offen offset:384""")
        if csp and touch > 1: A(f"""s_xor_b32 {s(R.sT0)}, {s(R.sT0)}, 1024
        buffer_load_dword {v(vRed)}, {v(R.vT0)}, {s(R.sX,4)}, {s(R.sT0)} offen offset:384""")
    if fl:
        for j in range(8): dmaf(j)
        for j in range(24):
            A(f"s_waitcnt vmcnt({28 if j == 0 else 24})")
            for i, x in enumerate(trf(units[j])):
                A(x)
                if j and i == 3:
                    A("s_waitcnt lgkmcnt(4)")
                    dmaf(j + 7)
        A("s_waitcnt lgkmcnt(0)")
        dmaf(31)
    for j in range(0 if fl else 16): dma(j)
    for j in range(0 if fl else 48):
        h, ks = units[j]
        A(f"s_waitcnt vmcnt({30 if j == 0 else 28})")
        for x in trd((lambda o: a(ks*8 + o, 2)) if h == 0 else (lambda o: v(vW + ks*4 + o, 2)), j & 15): A(x)
        if j:
            A("s_waitcnt lgkmcnt(4)")
            dma(j + 15)
    if not fl:
        A("s_waitcnt lgkmcnt(0)")
        dma(63)
    if tpf:
        A(f"""s_lshl_b32 {s(R.sT0)}, {s(sI)}, 2
        s_add_u32 {s(R.sT0)}, {s(R.sT0)}, {s(R.sWv)}
        s_lshl_b32 {s(R.sT1)}, {s(R.sT0)}, 7
        s_add_u32 {s(R.sT1)}, {s(R.sT1)}, {WS_FLAG + FLAG_P}
        v_lshrrev_b32 {v(R.vT0)}, 4, {v(R.vL)}
        v_lshlrev_b32 {v(vTx)}, 14, {v(R.vT0)}
        v_mov_b32 {v(vPf)}, 0
        s_mov_b32 exec_hi, 0xffff
        buffer_load_dword {v(vPf)}, {v(vTx)}, {s(R.sWS,4)}, {s(R.sT1)} offen sc1
        s_mov_b32 exec_hi, -1
        s_mul_i32 {s(R.sT0)}, {s(R.sT0)}, {BLK}
        v_mul_u32_u24 {v(vTa)}, {QKV_STRIDE >> 7}, {v(R.vT0)}
        v_and_b32 {v(R.vT0)}, 15, {v(R.vL)}
        v_add_lshl_u32 {v(vTa)}, {v(vTa)}, {v(R.vT0)}, 7
        v_add_u32 {v(vTa)}, {s(R.sT0)}, {v(vTa)}
        v_mov_b32 {v(R.vT1)}, {OOB}""")
    A(f"""
    s_lshr_b32 {s(sRot)}, {s(sRot)}, 6
    s_add_u32 {s(sRot)}, {s(sRot)}, {WS_O}
    v_lshlrev_b32 {v(vLr)}, 4, {v(R.vL)}
    v_add_u32 {v(vLa)}, {s(R.sM0)}, {v(vLr)}
    s_lshl_b32 {s(R.sT0)}, {s(R.sWv)}, 10
    s_add_u32 {s(R.sT0)}, {s(R.sT0)}, {RED}
    v_add_u32 {v(vLw)}, {s(R.sT0)}, {v(vLr)}
    s_lshl_b32 {s(R.sT0)}, {s(R.sWv)}, 12
    s_add_u32 {s(R.sT1)}, {s(R.sT0)}, {RED + 0x4000}
    v_add_u32 {v(vLr)}, {s(R.sT1)}, {v(vLr)}
    v_bfe_u32 {v(vFa)}, {v(R.vL)}, 3, 2
    v_and_b32 {v(R.vT0)}, 7, {v(R.vL)}
    v_lshlrev_b32 {v(R.vT0)}, 9, {v(R.vT0)}
    v_lshl_add_u32 {v(vFa)}, {v(vFa)}, 7, {v(R.vT0)}
    s_add_u32 {s(R.sT0)}, {s(R.sT0)}, {WS_FLAG + FLAG_T}
    v_add_u32 {v(vFa)}, {s(R.sT0)}, {v(vFa)}
    v_mov_b32 {v(vFl)}, 0
    v_and_b32 {v(vOa)}, 15, {v(R.vL)}
    v_lshrrev_b32 {v(R.vT0)}, 4, {v(R.vL)}
    v_lshlrev_b32 {v(R.vT0)}, 3, {v(R.vT0)}
    v_lshl_add_u32 {v(vOa)}, {v(vOa)}, 12, {v(R.vT0)}
    s_lshl_b32 {s(R.sT0)}, {s(sCol)}, 7
    s_lshl_b32 {s(R.sT1)}, {s(R.sWv)}, 5
    s_add_u32 {s(R.sT0)}, {s(R.sT0)}, {s(R.sT1)}
    s_add_u32 {s(R.sT0)}, {s(R.sT0)}, 2048
    v_add_u32 {v(vOa)}, {s(R.sT0)}, {v(vOa)}
    s_waitcnt vmcnt(0)
    """)
    if ts: tstamp(A, R, 3, vt=48)
    def ready(sItem):
        return [f"s_lshr_b32 {s(R.sT0)}, {s(sItem)}, 3",
                f"v_cmp_ge_u32 vcc, {s(R.sT0)}, {v(vFl)}",
                f"s_lshl_b32 {s(R.sT1)}, {s(sItem)}, 2",
                f"s_and_b32 {s(R.sT1)}, {s(R.sT1)}, 24",
                f"s_lshr_b32 {s(R.sT0)}, vcc_lo, {s(R.sT1)}",
                f"s_and_b32 {s(R.sT0)}, {s(R.sT0)}, 0xff"]
    ldfl = f"buffer_load_dword {v(vFl)}, {v(vFa)}, {s(R.sWS,4)}, 0 offen sc1"
    def ld(ks):
        o = []
        if ks % 4 == 0 and ks: o += [f"s_add_u32 {s(sLd)}, {s(sLd)}, 4096", f"s_bitset0_b32 {s(sLd)}, 15"]
        o.append(f"buffer_load_dwordx4 {v(vF+4*(ks&15),4)}, {v(vLa)}, {s(R.sWS,4)}, {s(sLd)} offen offset:{(ks%4)*1024}{LD}")
        return o
    def setld(sItem):
        return [f"s_lshl_b32 {s(sLd)}, {s(sItem)}, 17", f"s_add_u32 {s(sLd)}, {s(sLd)}, {s(sRot)}"]
    rrd = [f"ds_read_b128 {v(vRed+4*k,4)}, {v(vLr)} offset:{1024*k}" for k in range(4)]
    radd = [f"v_add_f32 {v(vRed+r)}, {v(vRed+r)}, {v(vRed+4+r)}" for r in range(4)] + [f"v_add_f32 {v(vRed+8+r)}, {v(vRed+8+r)}, {v(vRed+12+r)}" for r in range(4)] + \
           [f"v_add_f32 {v(vRed+r)}, {v(vRed+r)}, {v(vRed+8+r)}" for r in range(4)] + [f"v_cvt_pk_bf16_f32 {v(vRed+4+r)}, {v(vRed+2*r)}, {v(vRed+2*r+1)}" for r in range(2)]
    ost = f"buffer_store_dwordx2 {v(vRed+4,2)}, {v(vOa)}, {s(R.sO,4)}, {s(sOut)} offen"
    flip = [f"v_xor_b32 {v(vLr)}, 0x4000, {v(vLr)}"]
    ust = ["s_memrealtime s[72:73]", "s_waitcnt lgkmcnt(0)", f"v_writelane_b32 {v(R.vT2)}, s72, m0", "s_add_u32 m0, m0, 1"] if its else []
    if its: A("s_mov_b32 m0, 0")
    A(f"s_mov_b32 {s(sTry)}, 0")
    A.label("U_wait")
    A(f"s_mov_b32 {s(sCnt)}, {s(sGive)}")
    A.label("U_fl")
    for x in ready(sN): A(x)
    A(f"""s_cbranch_scc0 U_go
    s_cmp_ge_u32 {s(sCnt)}, {SPIN}
    s_cselect_b32 {s(sGive)}, {SPIN}, {s(sGive)}
    s_cbranch_scc1 U_go
    s_lshl_b32 {s(R.sT0)}, {s(R.sT0)}, {s(R.sT1)}
    s_cmp_eq_u32 {s(sCnt)}, 0
    s_cselect_b32 exec_lo, -1, {s(R.sT0)}
    s_mov_b32 exec_hi, 0
    s_add_u32 {s(sCnt)}, {s(sCnt)}, 1
    {ldfl}
    s_mov_b64 exec, -1
    s_sleep {usl}
    s_waitcnt vmcnt(0)
    s_branch U_fl""")
    A.label("U_go")
    if early: A(f"""s_cmp_eq_u32 {s(sTry)}, 0
    s_cbranch_scc1 U_g2
    buffer_inv sc1
    s_waitcnt vmcnt(0)
    U_g2:""")
    for x in setld(sN): A(x)
    for ks in range(15):
        for x in ld(ks): A(x)
    A(f"""s_mov_b32 {s(sPend)}, 0
    s_mov_b32 {s(sOut)}, {OOB}""")
    for x in [] if fl else trd(lambda o: v(vSt + o, 2), 0): A(x)
    for k in range(4): A(rrd[k])
    A(".p2align 6")
    A.label("U_item")
    for x in ust: A(x)
    vq = [("L", k) for k in range(15)]; lq = [("W", 1)] * (0 if fl else 4) + [("P", 0)] * 4
    def vwait(tag):
        n = len(vq) - 1 - vq.index(tag); del vq[:len(vq) - n]
        return f"s_waitcnt vmcnt({n})"
    def lwait(tag):
        n = lq[::-1].index(tag); del lq[:len(lq) - n]
        return f"s_waitcnt lgkmcnt({n})"
    for ks in range(32):
        fill = [[], [], [], []]
        A(vwait(("L", ks)))
        fill[0] += ld((ks + 15) & 31); tagv = [("L", ks + 15)]
        if ks & 3 == 3 or (ks & 1 and not fl):
            pre2 = lwait(("W", ks))
        else:
            pre2 = None
        tagl = []
        if ks == 0:
            fill[1] += [f"s_add_u32 {s(sNx)}, {s(sN)}, {NG}"] + ready(sNx)[:4]
            fill[2] += ready(sNx)[4:] + [f"s_lshl_b32 exec_lo, {s(R.sT0)}, {s(R.sT1)}", "s_mov_b32 exec_hi, 0", ldfl, "s_mov_b64 exec, -1"]; tagv.append(("F", 0))
        if ks == 2:
            fill[1] += [lwait(("P", 0)), f"s_cmp_eq_u32 {s(sPend)}, 0", "s_cbranch_scc1 U_nb", "s_barrier", "U_nb:"]
            fill[2] += rrd[:2]; fill[3] += rrd[2:]; tagl += [("R", 0)] * 4
        if ks == 4:
            fill[0] += [lwait(("R", 0))]
        if 4 <= ks < 8:
            q = radd[4*(ks-4):4*(ks-4)+4]
            for i, x in enumerate(q): fill[1 + i//2].append(x)
        if ks == 8:
            fill[1] += [ost] + flip; tagv.append(("S", 0))
        if ks == 16:
            fill[1] += ready(sNx)[:4]
            fill[2] += setld(sNx) + ready(sNx)[4:] + [f"s_cselect_b32 {s(sPend)}, 0, 1", f"s_cselect_b32 {s(sLd)}, {OOB}, {s(sLd)}"]
        if ks == 14 and tpf:
            fill[1] += [f"s_lshr_b32 {s(sTp)}, {s(sNx)}, 1", f"s_add_u32 {s(sTp)}, {s(sTp)}, {tpf}", f"v_cmp_lt_u32 vcc, {s(sTp)}, {v(vPf)}"]
            fill[2] += [f"s_lshl_b32 {s(sTp)}, {s(sTp)}, 11", f"v_cndmask_b32 {v(vTx)}, {v(R.vT1)}, {v(vTa)}, vcc"]
        if ks == 16 and tpf:
            fill[3] += [f"buffer_load_dword {v(R.vFv)}, {v(vTx)}, {s(R.sWS,4)}, {s(sTp)} offen"]; tagv.append(("T", 0))
        if fl:
            if ks & 3 < 2:
                t_ = trf(ks | 3)[4*(ks & 1):4*(ks & 1) + 4]
                fill[1] += t_[:1]; fill[2] += t_[1:2]; fill[3] += t_[2:]; tagl += [("W", ks | 3)] * 4
        elif ks & 1 == 0:
            pass
        else:
            k2 = (ks + 2) & 31
            t_ = trd(lambda o: v(vSt + 8*((k2 >> 1) & 1) + o, 2), k2 >> 1)
            fill[0] += t_[:2]; fill[1] += t_[2:]; tagl += [("W", ks + 2)] * 4
        b = v(vF + 4*(ks & 15), 4)
        for t in range(4):
            d = v(vAcc + 4*t, 4)
            w = a(ks*8 + 4*t, 4) if t < 2 else (v(vSt + 8*((ks >> 1) & 1) + 4*(t-2), 4) if ks & 1 else v(vW + ks*4 + 4*(t-2), 4))
            if fl: w = wreg(ks, 4*t, 4)
            if t == 0 and pre2: A(pre2)
            A(f"v_mfma_f32_16x16x32_bf16 {d}, {w}, {b}, {d if ks else 0}")
            for x in fill[t]: A(x)
        vq += tagv; lq += tagl
    if tpf: assert vq.pop(0) == ("T", 0)
    assert [k for _, k in vq] == list(range(32, 47)), vq
    for x in ust: A(x)
    A(f"""s_lshl_b32 {s(sOut)}, {s(sN)}, 16
    s_mov_b32 {s(sN)}, {s(sNx)}
    s_cmp_eq_u32 {s(sPend)}, 1""")
    for t in range(4): A(f"ds_write_b128 {v(vLw)}, {v(vAcc+4*t,4)} offset:{4096*t}")
    A(f"""v_xor_b32 {v(vLw)}, 0x4000, {v(vLw)}
    s_cbranch_scc1 U_item
    s_waitcnt lgkmcnt(0)
    s_barrier""")
    for x in rrd: A(x)
    A("s_waitcnt lgkmcnt(0)")
    for x in radd: A(x)
    A(f"""{ost}
    s_cmp_lt_u32 {s(sN)}, 128
    s_cbranch_scc1 U_wait""")
    if early:
        A(f"""v_cmp_u_f32 vcc, {v(vRed)}, {v(vRed)}
        s_lshr_b32 {s(sN)}, {s(sOut)}, 16
        s_add_u32 {s(sTry)}, {s(sTry)}, 1
        v_or_b32 {v(vFa)}, 64, {v(vFa)}
        s_cmp_lg_u64 vcc, 0
        s_cselect_b32 {s(R.sT0)}, 1, 0
        v_mov_b32 {v(vAcc)}, {s(R.sT0)}
        v_and_b32 {v(R.vT0)}, {RED + 0x4000}, {v(vLw)}
        ds_write_b32 {v(vLw)}, {v(vAcc)}
        s_waitcnt lgkmcnt(0)
        s_barrier
        ds_read2st64_b32 {v(vAcc,2)}, {v(R.vT0)} offset0:0 offset1:4
        ds_read2st64_b32 {v(vAcc+2,2)}, {v(R.vT0)} offset0:8 offset1:12
        s_waitcnt lgkmcnt(0)
        v_and_b32 {v(vAcc)}, {v(vAcc)}, {v(vAcc+1)}
        v_and_b32 {v(vAcc+2)}, {v(vAcc+2)}, {v(vAcc+3)}
        v_and_b32 {v(vAcc)}, {v(vAcc)}, {v(vAcc+2)}
        v_cmp_ne_u32 vcc, 0, {v(vAcc)}
        s_cbranch_vccz U_end
        s_waitcnt vmcnt(0)
        v_mov_b32 {v(vFl)}, 0
        s_cmp_lt_u32 {s(sTry)}, 5
        s_cbranch_scc1 U_wait
        U_end:""")
    if its: idump(A, R, R.vT2)
    A(f"s_branch {done}")
```

```python
from asmlib import *
from layout import *
from stream import *
import struct, math
def f32bits(x): return struct.unpack("<I", struct.pack("<f", x))[0]
SPIN = 1 << 20
LD = ""

def idump(A, R, vv):
    A(f"""s_lshl_b32 {s(R.sT0)}, s2, 10
    s_add_u32 {s(R.sT0)}, {s(R.sT0)}, {WS_STAMP + 13*MB}
    v_lshlrev_b32 {v(R.vT0)}, 2, v0
    buffer_store_dword {v(vv)}, {v(R.vT0)}, {s(R.sWS,4)}, {s(R.sT0)} offen""")

def gen_T(A, sHead, done, sGive, tfree=0, tpat=0, its=0, tl=60, early=1, tsl=0, os_=0, sPar=None):
    its = its == 1
    R = SR
    sSeg, sC, sCnt, sQ, sKm, sOo, sNx, sHave = 28, 29, 30, 31, 32, 33, 34, 35
    sMask = 36
    sQn, sKn = 68, 69
    vQa, vKa, vKma, vVma, vOa, vFa, vFl, vTf, vMx, vSm = range(10, 20)
    aQ = lambda b: 96*b
    aK = lambda b: 96*b + 32
    aV = lambda b: 96*b + 64
    vKM = lambda b: 20 + 48*b
    vVM = lambda b: 52 + 48*b
    vS, vSM, vP = 116, 132, 148
    vO = 160
    vPk = 224
    pi_lane(A, R.vT2, R.vL, R.vT0, R.vT1)
    A(f"""
    v_lshrrev_b32 {v(R.vT0)}, 5, {v(R.vL)}            ; h2
    v_and_b32 {v(R.vT1)}, 31, {v(R.vL)}               ; q / row
    v_lshlrev_b32 {v(R.vT3)}, 4, {v(R.vT0)}
    v_lshl_add_u32 {v(vQa)}, {v(R.vT1)}, 6, {v(R.vT3)}
    v_lshl_add_u32 {v(vKa)}, {v(R.vT2)}, 6, {v(R.vT3)}
    v_mov_b32 {v(vTf)}, {OOB}
    v_cmp_gt_u32 vcc, 8, {v(R.vT1)}
    v_cndmask_b32 {v(vKma)}, {v(vTf)}, {v(vQa)}, vcc
    v_lshlrev_b32 {v(vVma)}, 3, {v(R.vT0)}
    v_lshl_add_u32 {v(vVma)}, {v(R.vT2)}, 4, {v(vVma)}
    ; O address: (q>>4)*128K + h2*256 + (q&15)*16
    v_and_b32 {v(vOa)}, 15, {v(R.vL)}
    v_lshlrev_b32 {v(vOa)}, 4, {v(vOa)}
    v_lshl_add_u32 {v(vOa)}, {v(R.vT0)}, 8, {v(vOa)}
    v_bfe_u32 {v(R.vT3)}, {v(R.vL)}, 4, 1
    v_lshl_add_u32 {v(vOa)}, {v(R.vT3)}, {18 if os_ else 17}, {v(vOa)}
    v_lshrrev_b32 {v(vFa)}, 2, {v(R.vL)}
    v_and_b32 {v(R.vT3)}, 3, {v(R.vL)}
    v_lshl_add_u32 {v(vFa)}, {v(vFa)}, 7, {v(R.vT3)}
    s_lshl_b32 {s(R.sT0)}, {s(sHead)}, 2
    v_add_u32 {v(vFa)}, {s(R.sT0)}, {v(vFa)}
    v_lshlrev_b32 {v(vFa)}, 7, {v(vFa)}
    v_add_u32 {v(vFa)}, {WS_FLAG + FLAG_P}, {v(vFa)}
    v_cmp_gt_u32 vcc, 16, {v(R.vL)}
    v_cndmask_b32 {v(vFa)}, {v(vTf)}, {v(vFa)}, vcc
    v_mov_b32 {v(vFl)}, 0
    s_add_u32 {s(R.sT1)}, {s(R.sWv)}, {s(R.sT0)}
    s_lshl_b32 {s(R.sT1)}, {s(R.sT1)}, 7
    s_add_u32 {s(R.sT1)}, {s(R.sT1)}, {WS_FLAG + FLAG_T}
    v_lshl_add_u32 {v(R.vFlag)}, {v(R.vL)}, 2, {s(R.sT1)}
    v_cmp_gt_u32 vcc, 32, {v(R.vL)}
    v_cndmask_b32 {v(R.vFlag)}, {v(vTf)}, {v(R.vFlag)}, vcc
    v_lshlrev_b32 {v(R.vT0)}, 3, {v(R.vT0)}
    v_sub_u32 {v(R.vT1)}, {v(R.vT1)}, {v(R.vT0)}      ; q - 8*h2 (signed)
    s_mov_b32 {s(sC)}, {f32bits(128 ** -0.5 * math.log2(math.e))}
    s_mov_b32 {s(sSeg)}, {s(R.sWv)}
    s_mul_i32 {s(sQ)}, {s(R.sT0)}, {BLK}
    s_lshl_b32 {s(R.sT1)}, {s(sSeg)}, 11
    s_add_u32 {s(sQ)}, {s(sQ)}, {s(R.sT1)}
    s_mul_i32 {s(sKm)}, {s(R.sT0)}, {MBLK}
    s_lshl_b32 {s(R.sT1)}, {s(sSeg)}, 9
    s_add_u32 {s(sKm)}, {s(sKm)}, {s(R.sT1)}
    s_add_u32 {s(sKm)}, {s(sKm)}, {WS_KM}
    s_lshl_b32 {s(sOo)}, {s(sSeg)}, 18
    s_lshl_b32 {s(R.sT1)}, {s(sHead)}, 12
    s_add_u32 {s(sOo)}, {s(sOo)}, {s(R.sT1)}
    s_add_u32 {s(sOo)}, {s(sOo)}, {WS_O}
    v_mov_b32 {v(vTf)}, 0xff800000
    s_mov_b32 {s(sHave)}, 0
    v_mov_b32 {v(R.vFv)}, 0
    """)
    if os_:
        assert not early
        A(f"""s_lshl_b32 {s(sOo)}, {s(sSeg)}, 19
        s_lshr_b32 {s(R.sT1)}, {s(sHead)}, 1
        s_lshl_b32 {s(R.sT1)}, {s(R.sT1)}, 14
        s_add_u32 {s(sOo)}, {s(sOo)}, {s(R.sT1)}
        s_and_b32 {s(R.sT1)}, {s(sHead)}, 1
        s_lshl_b32 {s(R.sT1)}, {s(R.sT1)}, 12
        s_add_u32 {s(sOo)}, {s(sOo)}, {s(R.sT1)}
        s_add_u32 {s(sOo)}, {s(sOo)}, {WS_O2 + (8192 if os_ == 1 else 0)}
        s_xor_b32 {s(sOo)}, {s(sOo)}, {s(sPar)}""")
    if QL[0]: A(f"""v_and_b32 {v(vQa)}, 31, {v(R.vL)}
    v_lshlrev_b32 {v(vQa)}, 5, {v(vQa)}
    v_lshl_add_u32 {v(vQa)}, {v(R.vT0)}, 1, {v(vQa)}
    v_lshlrev_b32 {v(vKa)}, 5, {v(R.vT2)}
    v_lshl_add_u32 {v(vKa)}, {v(R.vT0)}, 1, {v(vKa)}""")
    if tpat == 1: A(f"""v_lshlrev_b32 {v(vQa)}, 4, {v(R.vL)}
    v_lshlrev_b32 {v(vKa)}, 4, {v(R.vL)}""")
    if tpat == 2: A(f"""v_and_b32 {v(vQa)}, 31, {v(R.vL)}
    v_lshlrev_b32 {v(vQa)}, 5, {v(vQa)}
    v_lshl_add_u32 {v(vQa)}, {v(R.vT0)}, 1, {v(vQa)}
    v_mov_b32 {v(vKa)}, {v(vQa)}""")
    if tpat == 3: A(f"""v_lshlrev_b32 {v(vKa)}, 4, {v(R.vT2)}
    v_lshl_add_u32 {v(vKa)}, {v(R.vT0)}, 6, {v(vKa)}
    v_mov_b32 {v(vQa)}, {v(vKa)}""")
    RM = 0 if tfree else 0xf000
    for r in range(16): A(f"v_cmp_le_i32 {s(sMask+2*r,2)}, {16*(r>>3) + (r&7)}, {v(R.vT1)}")
    for b in range(2):
        for es in range(4):
            A(f"v_mov_b32 {v(vVM(b)+4*es+2)}, 0"); A(f"v_mov_b32 {v(vVM(b)+4*es+3)}, 0")
    A(f"v_mov_b32 {v(vP+10)}, 0"); A(f"v_mov_b32 {v(vP+11)}, 0")
    ldfl = f"buffer_load_dword {v(vFl)}, {v(vFa)}, {s(R.sWS,4)}, 0 offen sc1"
    stfl = f"buffer_store_dword {v(R.vFv)}, {v(R.vFlag)}, {s(R.sWS,4)}, 0 offen sc1"
    def spin(name, sNeed, mask, ok, slp):
        return [f"s_mov_b32 {s(sCnt)}, {s(sGive)}", f"{name}:",
                f"v_cmp_ge_u32 vcc, {s(sNeed)}, {v(vFl)}", f"s_and_b32 {s(R.sT0)}, vcc_lo, {mask}", f"s_cbranch_scc0 {ok}",
                f"s_cmp_ge_u32 {s(sCnt)}, {SPIN}", f"s_cselect_b32 {s(sGive)}, {SPIN}, {s(sGive)}", f"s_cbranch_scc1 {ok}",
                f"s_add_u32 {s(sCnt)}, {s(sCnt)}, 1", ldfl, f"s_sleep {slp}", "s_waitcnt vmcnt(0)", f"s_branch {name}"]
    def ldq(b, so):
        o = []
        for mat, reg, va in ((0, aQ(b), vQa), (1, aK(b), vKa), (2, aV(b), vKa)):
            for es in range(4):
                o.append([f"s_add_u32 {s(R.sT0)}, {s(so)}, {mat*QKV_STRIDE + es*BLK}"] +
                         [f"buffer_load_dwordx4 {a(reg+(es*2+u)*4,4)}, {v(va)}, {s(R.sWS,4)}, {s(R.sT0)} offen offset:{(1024 if tpat or QL[0] else 32)*u}{LD}" for u in range(2)])
        return o
    def ldm(b, so):
        o = []
        for es in range(4):
            o.append([f"s_add_u32 {s(R.sT0)}, {s(so)}, {es*MBLK}", f"s_add_u32 {s(R.sT1)}, {s(so)}, {es*MBLK + WS_VMT - WS_KM}"] +
                     [f"buffer_load_dwordx4 {v(vKM(b)+(es*2+u)*4,4)}, {v(vKma)}, {s(R.sWS,4)}, {s(R.sT0)} offen offset:{32*u}{LD}" for u in range(2)] +
                     [f"buffer_load_dwordx2 {v(vVM(b)+4*es,2)}, {v(vVma)}, {s(R.sWS,4)}, {s(R.sT1)} offen{LD}"])
        return o
    def x32(op, x):
        A(f"""v_mov_b32 {v(R.vT0)}, {v(x)}
        v_permlane32_swap_b32 {v(x)}, {v(R.vT0)}
        {op} {v(x)}, {v(x)}, {v(R.vT0)}""")
    if early:
        for r in range(4): A(f"v_mov_b32 {v(vPk+r)}, -1")
        A(f"s_add_u32 {s(R.sT0)}, {s(sOo)}, {60 << 18}")
        for k in range(8): A(f"buffer_store_dwordx4 {v(vPk,4)}, {v(vOa)}, {s(R.sWS,4)}, {s(R.sT0)} offen offset:{512*k} sc1")
    for x in spin("T_p", sSeg, 0xfff, "T_pk", 8): A(x)
    A.label("T_pk")
    for g in ldq(0, sQ):
        for x in g: A(x)
    tails = []
    def ist():
        if its: A(f"""s_memrealtime s[72:73]
        s_waitcnt lgkmcnt(0)
        v_writelane_b32 {v(R.vSrc)}, s72, m0
        s_add_u32 m0, m0, 1""")
    if its: A("s_mov_b32 m0, 0")
    for b in range(2):
        A.label(f"T_top{b}")
        ist()
        A(f"""s_cmp_eq_u32 {s(sHave)}, 0
        s_cbranch_scc1 T_slow{b}""")
        A.label(f"T_go{b}")
        A(f"""s_add_u32 {s(sNx)}, {s(sSeg)}, 4
        s_min_u32 {s(sQn)}, {s(sNx)}, 63
        s_waitcnt vmcnt(8)
        v_cmp_ge_u32 vcc, {s(sQn)}, {v(vFl)}
        s_and_b32 {s(R.sT0)}, vcc_lo, 0xfff
        s_cbranch_scc1 T_pw{b}""")
        A.label(f"T_pok{b}")
        ist()
        A(f"""s_add_u32 {s(sQ)}, {s(sQ)}, {4*2048}
        s_add_u32 {s(sKm)}, {s(sKm)}, {4*512}
        s_and_b32 {s(R.sT0)}, vcc_lo, {RM}
        s_cselect_b32 {s(sHave)}, 0, 1
        s_cselect_b32 {s(sKn)}, {OOB}, {s(sKm)}
        s_cmp_lt_u32 {s(sNx)}, 64
        s_cselect_b32 {s(sQn)}, {s(sQ)}, {OOB}
        s_cselect_b32 {s(sKn)}, {s(sKn)}, {OOB}
        {ldfl}""")
        tails.append([f"T_slow{b}:", "s_waitcnt vmcnt(0)", stfl] + ([f"s_cmp_ge_u32 {s(sSeg)}, {tl}", "s_cbranch_scc1 T_last"] if b else []) + spin(f"T_s{b}", sSeg, RM, f"T_sk{b}", 2) + [f"T_sk{b}:"] +
                     [x for g in ldm(b, sKm) for x in g] + ["s_waitcnt vmcnt(0)", f"s_branch T_go{b}"])
        tails.append([f"T_pw{b}:"] + spin(f"T_q{b}", sQn, 0xfff, f"T_pok{b}", 8))
        nx = ldq(1 - b, sQn) + ldm(1 - b, sKn)
        for k in range(8):
            A(f"v_mfma_f32_32x32x16_bf16 {v(vS,16)}, {a(aK(b)+4*k,4)}, {a(aQ(b)+4*k,4)}, {v(vS,16) if k else 0}")
            for x in nx.pop(0): A(x)
        for k in range(8):
            A(f"v_mfma_f32_32x32x16_bf16 {v(vSM,16)}, {v(vKM(b)+4*k,4)}, {a(aQ(b)+4*k,4)}, {v(vSM,16) if k else 0}")
            for x in nx.pop(0): A(x)
        ist()
        for r in range(16): A(f"v_cndmask_b32 {v(vS+r)}, {v(vTf)}, {v(vS+r)}, {s(sMask+2*r,2)}")
        A(f"v_max3_f32 {v(vMx)}, {v(vS)}, {v(vS+1)}, {v(vS+2)}")
        for r in range(3, 19, 2): A(f"v_max3_f32 {v(vMx)}, {v(vMx)}, {v(vS+r)}, {v(vS+r+1)}")
        A(f"v_max_f32 {v(vMx)}, {v(vMx)}, {v(vS+19)}")
        x32("v_max_f32", vMx)
        A(f"v_mul_f32 {v(vMx)}, {s(sC)}, {v(vMx)}")
        for r in range(20): A(f"v_fma_f32 {v(vS+r)}, {v(vS+r)}, {s(sC)}, -{v(vMx)}")
        for r in range(20): A(f"v_exp_f32 {v(vS+r)}, {v(vS+r)}")
        A("s_waitcnt vmcnt(37)")
        ist()
        A(stfl)
        A(f"v_add_f32 {v(vSm)}, {v(vS)}, {v(vS+1)}")
        A(f"v_add_f32 {v(R.vT1)}, {v(vS+2)}, {v(vS+3)}")
        for r in range(4, 20, 2):
            A(f"v_add_f32 {v(vSm)}, {v(vSm)}, {v(vS+r)}")
            A(f"v_add_f32 {v(R.vT1)}, {v(R.vT1)}, {v(vS+r+1)}")
        A(f"v_add_f32 {v(vSm)}, {v(vSm)}, {v(R.vT1)}")
        x32("v_add_f32", vSm)
        A(f"v_rcp_f32 {v(vSm)}, {v(vSm)}")
        for r in range(20): A(f"v_mul_f32 {v(vS+r)}, {v(vS+r)}, {v(vSm)}")
        for r in range(10): A(f"v_cvt_pk_bf16_f32 {v(vP+r)}, {v(vS+2*r)}, {v(vS+2*r+1)}")
        def epi(e):
            for r in range(8): A(f"v_cvt_pk_bf16_f32 {v(vPk+8*e+r)}, {v(vO+16*e+2*r)}, {v(vO+16*e+2*r+1)}")
            for u in range(2): A(f"buffer_store_dwordx4 {v(vPk+8*e+4*u,4)}, {v(vOa)}, {s(R.sWS,4)}, {s(sOo)} offen offset:{1024*e + 512*u} sc1")
        for es in range(4):
            d = v(vO + 16*es, 16)
            A(f"v_mfma_f32_32x32x16_bf16 {d}, {a(aV(b)+8*es,4)}, {v(vP,4)}, 0")
            A(f"v_mfma_f32_32x32x16_bf16 {d}, {a(aV(b)+8*es+4,4)}, {v(vP+4,4)}, {d}")
            A(f"v_mfma_f32_32x32x16_bf16 {d}, {v(vVM(b)+4*es,4)}, {v(vP+8,4)}, {d}")
            if es >= 1: epi(es - 1)
        A(f"v_add_u32 {v(R.vFv)}, 1, {v(R.vFv)}")
        epi(3)
        A(f"""s_mov_b32 {s(sSeg)}, {s(sNx)}
        s_add_u32 {s(sOo)}, {s(sOo)}, {4 << (19 if os_ else 18)}""")
        if os_: A(f"s_xor_b32 {s(sOo)}, {s(sOo)}, 8192")
    A(f"""s_cmp_lt_u32 {s(sSeg)}, 64
    s_cbranch_scc1 T_top0
    T_fin:
    s_waitcnt vmcnt(0)
    {stfl}""")
    if its: idump(A, R, R.vSrc)
    A(f"s_branch {done}")
    for t in tails:
        for x in t: A(x)
    A.label("T_last")
    vMr, vAl = vKM(0), vKM(0) + 1
    for k in range(8): A(f"v_mfma_f32_32x32x16_bf16 {v(vS,16)}, {a(aK(1)+4*k,4)}, {a(aQ(1)+4*k,4)}, {v(vS,16) if k else 0}")
    for r in range(16): A(f"v_cndmask_b32 {v(vS+r)}, {v(vTf)}, {v(vS+r)}, {s(sMask+2*r,2)}")
    A(f"v_max3_f32 {v(vMr)}, {v(vS)}, {v(vS+1)}, {v(vS+2)}")
    for r in range(3, 15, 2): A(f"v_max3_f32 {v(vMr)}, {v(vMr)}, {v(vS+r)}, {v(vS+r+1)}")
    A(f"v_max_f32 {v(vMr)}, {v(vMr)}, {v(vS+15)}")
    x32("v_max_f32", vMr)
    A(f"v_mul_f32 {v(vMx)}, {s(sC)}, {v(vMr)}")
    for r in range(16): A(f"v_fma_f32 {v(vS+r)}, {v(vS+r)}, {s(sC)}, -{v(vMx)}")
    for r in range(16): A(f"v_exp_f32 {v(vS+r)}, {v(vS+r)}")
    A(f"v_add_f32 {v(vSm)}, {v(vS)}, {v(vS+1)}")
    for r in range(2, 16): A(f"v_add_f32 {v(vSm)}, {v(vSm)}, {v(vS+r)}")
    for r in range(8): A(f"v_cvt_pk_bf16_f32 {v(vP+r)}, {v(vS+2*r)}, {v(vS+2*r+1)}")
    for es in range(4):
        d = v(vO + 16*es, 16)
        A(f"v_mfma_f32_32x32x16_bf16 {d}, {a(aV(1)+8*es,4)}, {v(vP,4)}, 0")
        A(f"v_mfma_f32_32x32x16_bf16 {d}, {a(aV(1)+8*es+4,4)}, {v(vP+4,4)}, {d}")
    A(f"""s_cmp_ge_u32 {s(sSeg)}, 61
    s_cselect_b64 {s(sMask+12,2)}, 0xffff, 0
    s_sub_u32 {s(sNx)}, {s(sSeg)}, 2""")
    for es in range(4):
        A(f"s_add_u32 {s(sMask+es)}, {s(sKm)}, {es*MBLK}")
        A(f"s_add_u32 {s(sMask+4+es)}, {s(sKm)}, {es*MBLK + WS_VMT - WS_KM}")
    A(f"v_add_u32 {v(R.vFv)}, 1, {v(R.vFv)}")
    for x in spin("T_l0", sNx, RM, "T_l1", 2): A(x)
    def mx(regs, d):
        r = list(regs); o = [f"v_max3_u32 {v(d)}, {v(r[0])}, {v(r[1])}, {v(r[2])}"]; r = r[3:]
        while len(r) >= 2: o.append(f"v_max3_u32 {v(d)}, {v(d)}, {v(r[0])}, {v(r[1])}"); r = r[2:]
        if r: o.append(f"v_max_u32 {v(d)}, {v(d)}, {v(r[0])}")
        return o
    A.label("T_l2")
    for x in mx(list(range(vKM(1), vKM(1) + 32)) + [R.vT1], R.vT0): A(x)
    A(f"""v_cmp_eq_u32 vcc, -1, {v(R.vT0)}
    s_cbranch_vccz T_l3
    s_add_u32 {s(sCnt)}, {s(sCnt)}, 1
    s_cmp_ge_u32 {s(sCnt)}, {SPIN}
    s_cbranch_scc1 T_l3""")
    if tsl: A(f"s_sleep {tsl}")
    A.label("T_l1")
    for k in range(8): A(f"buffer_load_dwordx4 {v(vKM(1)+4*k,4)}, {v(vKma)}, {s(R.sWS,4)}, {s(sMask + k//2)} offen offset:{32*(k & 1)} sc1")
    for es in range(4): A(f"buffer_load_dwordx2 {v(vVM(1)+4*es,2)}, {v(vVma)}, {s(R.sWS,4)}, {s(sMask+4+es)} offen sc1")
    for k in range(8):
        A(f"s_waitcnt vmcnt({11 - k})")
        A(f"v_mfma_f32_32x32x16_bf16 {v(vSM,16)}, {v(vKM(1)+4*k,4)}, {a(aQ(1)+4*k,4)}, {v(vSM,16) if k else 0}")
    A("s_waitcnt vmcnt(0)")
    for x in mx([vVM(1) + 4*es + e for es in range(4) for e in range(2)], R.vT1): A(x)
    A(f"""v_cmp_eq_u32 {s(sMask+8,2)}, -1, {v(R.vT1)}
    v_cmp_u_f32 {s(sMask+10,2)}, {v(vSM)}, {v(vSM+1)}
    v_cmp_u_f32 vcc, {v(vSM+2)}, {v(vSM+3)}
    v_max3_f32 {v(vMx)}, {v(vSM)}, {v(vSM+1)}, {v(vMr)}
    s_or_b64 {s(sMask+8,2)}, {s(sMask+8,2)}, {s(sMask+10,2)}
    v_max3_f32 {v(vMx)}, {v(vSM+2)}, {v(vSM+3)}, {v(vMx)}
    s_or_b64 vcc, vcc, {s(sMask+8,2)}
    s_cbranch_vccnz T_l2""")
    A.label("T_l3")
    ist(); ist()
    x32("v_max_f32", vMx)
    A(f"v_mul_f32 {v(vMx)}, {s(sC)}, {v(vMx)}")
    A(f"v_fma_f32 {v(vAl)}, {v(vMr)}, {s(sC)}, -{v(vMx)}")
    for r in range(4): A(f"v_fma_f32 {v(vSM+r)}, {v(vSM+r)}, {s(sC)}, -{v(vMx)}")
    A(f"v_exp_f32 {v(vAl)}, {v(vAl)}")
    for r in range(4): A(f"v_exp_f32 {v(vSM+r)}, {v(vSM+r)}")
    A(f"""v_fma_f32 {v(vSm)}, {v(vSm)}, {v(vAl)}, {v(vSM)}
    v_add_f32 {v(R.vT1)}, {v(vSM+1)}, {v(vSM+2)}
    v_add_f32 {v(vSm)}, {v(vSm)}, {v(vSM+3)}
    v_add_f32 {v(vSm)}, {v(vSm)}, {v(R.vT1)}""")
    x32("v_add_f32", vSm)
    A(f"v_rcp_f32 {v(vSm)}, {v(vSm)}")
    A(f"v_mul_f32 {v(vAl)}, {v(vAl)}, {v(vSm)}")
    for r in range(4): A(f"v_mul_f32 {v(vSM+r)}, {v(vSM+r)}, {v(vSm)}")
    for r in range(2): A(f"v_cvt_pk_bf16_f32 {v(vP+8+r)}, {v(vSM+2*r)}, {v(vSM+2*r+1)}")
    if early == 2: A(f"""s_mov_b64 exec, {s(sMask+12,2)}
    {stfl}
    s_mov_b64 exec, -1
    s_sleep 40""")
    for es in range(4):
        for r in range(16): A(f"v_mul_f32 {v(vO+16*es+r)}, {v(vO+16*es+r)}, {v(vAl)}")
        A(f"v_mfma_f32_32x32x16_bf16 {v(vO+16*es,16)}, {v(vVM(1)+4*es,4)}, {v(vP+8,4)}, {v(vO+16*es,16)}")
        if es >= 1: epi(es - 1)
    epi(3)
    if early: A(f"""s_mov_b64 exec, {s(sMask+12,2)}
    {stfl}
    s_mov_b64 exec, -1""")
    ist()
    A("s_branch T_fin")

def gen_U(A, sGrp, sCol, done, sGive, ngrp=3, ts=False, uw=0, usl=2):
    R = SR
    sN, sCnt, sLd, sOut, sPar, sNx = 28, 29, 30, 31, 32, 33
    vLa, vFa, vFl, vOa, vLw, vLr = range(10, 16)
    vAcc = 16
    vRed = 24
    vF = 64
    A(f"""
    s_load_dwordx2 {s(R.sX,2)}, s[0:1], {KA_WO}
    s_load_dwordx2 {s(R.sO,2)}, s[0:1], {KA_OUT}
    s_mov_b32 {s(R.sX+2)}, {8*MB}
    s_mov_b32 {s(R.sX+3)}, 0x20000
    s_mov_b32 {s(R.sO+2)}, {8*MB}
    s_mov_b32 {s(R.sO+3)}, 0x20000
    s_lshl_b32 {s(R.sSrc)}, {s(R.sWv)}, 21
    s_lshl_b32 {s(R.sT0)}, {s(sCol)}, 6
    s_add_u32 {s(R.sSrc)}, {s(R.sSrc)}, {s(R.sT0)}
    s_waitcnt lgkmcnt(0)
    s_barrier
    """)
    load_weights_tr(A, R, R.sX, R.sSrc, 2048)
    if ts: tstamp(A, R, 3)
    A(f"""
    v_lshlrev_b32 {v(vLr)}, 4, {v(R.vL)}
    s_lshl_b32 {s(R.sT0)}, {s(R.sWv)}, 15
    v_add_u32 {v(vLa)}, {s(R.sT0)}, {v(vLr)}
    s_lshl_b32 {s(R.sT0)}, {s(R.sWv)}, 11
    v_add_u32 {v(vLw)}, {s(R.sT0)}, {v(vLr)}
    v_bfe_u32 {v(vFa)}, {v(R.vL)}, 3, 2
    v_and_b32 {v(R.vT0)}, 7, {v(R.vL)}
    v_lshlrev_b32 {v(R.vT0)}, 9, {v(R.vT0)}
    v_lshl_add_u32 {v(vFa)}, {v(vFa)}, 7, {v(R.vT0)}
    s_lshl_b32 {s(R.sT0)}, {s(R.sWv)}, 12
    s_add_u32 {s(R.sT0)}, {s(R.sT0)}, {WS_FLAG + FLAG_T}
    v_add_u32 {v(vFa)}, {s(R.sT0)}, {v(vFa)}
    v_mov_b32 {v(vFl)}, 0
    v_and_b32 {v(vOa)}, 15, {v(R.vL)}
    v_and_b32 {v(R.vT0)}, 48, {v(R.vL)}
    v_lshl_add_u32 {v(vOa)}, {v(vOa)}, 12, {v(R.vT0)}
    s_lshl_b32 {s(R.sT0)}, {s(sCol)}, 6
    s_add_u32 {s(R.sT0)}, {s(R.sT0)}, 2048
    v_add_u32 {v(vOa)}, {s(R.sT0)}, {v(vOa)}
    s_mov_b32 {s(sN)}, {s(sGrp)}
    s_mov_b32 {s(sPar)}, 0
    s_barrier
    """)
    def ready(sItem):
        return [f"s_lshr_b32 {s(R.sT0)}, {s(sItem)}, 3",
                f"v_cmp_ge_u32 vcc, {s(R.sT0)}, {v(vFl)}",
                f"s_lshl_b32 {s(R.sT1)}, {s(sItem)}, 2",
                f"s_and_b32 {s(R.sT1)}, {s(R.sT1)}, 24",
                f"s_lshr_b32 {s(R.sT0)}, vcc_lo, {s(R.sT1)}",
                f"s_and_b32 {s(R.sT0)}, {s(R.sT0)}, 0xff"]
    def ld(ks):
        o = []
        if ks % 4 == 0 and ks: o.append(f"s_add_u32 {s(sLd)}, {s(sLd)}, 4096")
        o.append(f"buffer_load_dwordx4 {v(vF+4*ks,4)}, {v(vLa)}, {s(R.sWS,4)}, {s(sLd)} offen offset:{(ks%4)*1024}{LD}")
        return o
    def setld(sItem):
        return [f"s_lshl_b32 {s(sLd)}, {s(sItem)}, 17", f"s_add_u32 {s(sLd)}, {s(sLd)}, {WS_O}"]
    if uw:
        A(f"""U_uw:
        s_sleep 100
        s_mov_b64 exec, 0xffffffff
        buffer_load_dword {v(vFl)}, {v(vFa)}, {s(R.sWS,4)}, 0 offen sc1
        s_waitcnt vmcnt(0)
        v_cmp_gt_u32 vcc, 16, {v(vFl)}
        s_mov_b64 exec, -1
        s_add_u32 {s(sPar)}, {s(sPar)}, 1
        s_cmp_gt_u32 {s(sPar)}, 1000
        s_cbranch_scc1 U_uw2
        s_cbranch_vccnz U_uw
        U_uw2:
        s_mov_b32 {s(sPar)}, 0""")
    ust = ["s_memrealtime s[72:73]", "s_waitcnt lgkmcnt(0)", f"v_writelane_b32 {v(R.vT2)}, s72, m0", "s_add_u32 m0, m0, 1"] if its else []
    if its: A("s_mov_b32 m0, 0")
    A(f"s_mov_b32 {s(sTry)}, 0")
    A.label("U_wait")
    A(f"s_mov_b32 {s(sCnt)}, {s(sGive)}")
    A.label("U_fl")
    for x in ready(sN): A(x)
    A(f"""s_cbranch_scc0 U_go
    s_cmp_ge_u32 {s(sCnt)}, {SPIN}
    s_cselect_b32 {s(sGive)}, {SPIN}, {s(sGive)}
    s_cbranch_scc1 U_go
    s_lshl_b32 {s(R.sT0)}, {s(R.sT0)}, {s(R.sT1)}
    s_cmp_eq_u32 {s(sCnt)}, 0
    s_cselect_b32 exec_lo, -1, {s(R.sT0)}
    s_mov_b32 exec_hi, 0
    s_add_u32 {s(sCnt)}, {s(sCnt)}, 1
    buffer_load_dword {v(vFl)}, {v(vFa)}, {s(R.sWS,4)}, 0 offen sc1
    s_mov_b64 exec, -1
    s_sleep {usl}
    s_waitcnt vmcnt(0)
    s_branch U_fl""")
    A.label("U_go")
    if early: A(f"""s_cmp_eq_u32 {s(sTry)}, 0
    s_cbranch_scc1 U_g2
    buffer_inv sc1
    s_waitcnt vmcnt(0)
    U_g2:""")
    for x in setld(sN): A(x)
    for ks in range(32):
        for x in ld(ks): A(x)
    A.label("U_item")
    for x in ust: A(x)
    A(f"s_add_u32 {s(sNx)}, {s(sN)}, {ngrp}")
    for x in ready(sNx): A(x)
    A("s_cbranch_scc1 U_b")
    def mm(ks):
        for t in range(2):
            d = v(vAcc + 4*t, 4)
            A(f"v_mfma_f32_16x16x32_bf16 {d}, {a(aw(t, ks),4)}, {v(vF+4*ks,4)}, {d if ks else 0}")
    def fin(nxt):
        L = A.newlabel("Uf")
        A(f"""s_lshl_b32 {s(sOut)}, {s(sN)}, 16
        v_add_u32 {v(R.vT0)}, {s(sPar)}, {v(vLw)}
        v_add_u32 {v(R.vT1)}, {s(sPar)}, {v(vLr)}
        s_xor_b32 {s(sPar)}, {s(sPar)}, 8192
        s_mov_b32 {s(sN)}, {s(sNx)}
        ds_write_b128 {v(R.vT0)}, {v(vAcc,4)}
        ds_write_b128 {v(R.vT0)}, {v(vAcc+4,4)} offset:1024
        s_waitcnt lgkmcnt(0)
        s_barrier
        s_cmp_lg_u32 {s(R.sWv)}, 0
        s_cbranch_scc1 {L}""")
        for k in range(6): A(f"ds_read_b128 {v(vRed+4*k,4)}, {v(R.vT1)} offset:{2048 + 1024*k}")
        A("s_waitcnt lgkmcnt(4)")
        for r in range(8): A(f"v_add_f32 {v(vRed+r)}, {v(vAcc+r)}, {v(vRed+r)}")
        A("s_waitcnt lgkmcnt(0)")
        for r in range(8): A(f"v_add_f32 {v(vRed+8+r)}, {v(vRed+8+r)}, {v(vRed+16+r)}")
        for r in range(8): A(f"v_add_f32 {v(vRed+r)}, {v(vRed+r)}, {v(vRed+8+r)}")
        for r in range(4): A(f"v_cvt_pk_bf16_f32 {v(vRed+24+r)}, {v(vRed+2*r)}, {v(vRed+2*r+1)}")
        A(f"buffer_store_dwordx4 {v(vRed+24,4)}, {v(vOa)}, {s(R.sO,4)}, {s(sOut)} offen")
        A.label(L)
        A(f"""s_cmp_lt_u32 {s(sN)}, 128
        s_cbranch_scc1 {nxt}
        s_branch {done}""")
    for x in setld(sNx): A(x)
    for ks in range(32):
        A(f"s_waitcnt vmcnt({31 if ks == 0 else 30})")
        mm(ks)
        if ks:
            for x in ld(ks - 1): A(x)
    A("s_nop 7")
    for x in ld(31): A(x)
    fin("U_item")
    A.label("U_b")
    for ks in range(32):
        A(f"s_waitcnt vmcnt({31 - ks})")
        mm(ks)
    fin("U_wait")

def gen_U64(A, sG, sI, done, sGive, ts=False, usl=2, touch=1, rot=1, tpf=12, its=0, early=1, gsh=2, csp=1, fl=1, os_=0, sSide=None):
    R = SR
    NG = 6
    sN, sCnt, sLd, sOut, sPar, sNx, sPend, sCol, sTry, sRot, sTp = range(28, 39)
    vLa, vFa, vFl, vOa, vLw, vLr = range(10, 16)
    vTa, vPf, vTx = R.vSrc, R.vDst, R.vFlag
    vTr = R.vT3
    vAcc, vSt, vRed, vF, vW = 16, 32, 48, 64, 128
    RED = 131072
    A(f"""
    s_load_dwordx2 {s(R.sX,2)}, s[0:1], {KA_WO}
    s_load_dwordx2 {s(R.sO,2)}, s[0:1], {KA_OUT}
    s_mov_b32 {s(R.sX+2)}, {8*MB}
    s_mov_b32 {s(R.sX+3)}, 0x20000
    s_mov_b32 {s(R.sO+2)}, {8*MB}
    s_mov_b32 {s(R.sO+3)}, 0x20000
    s_lshl_b32 {s(R.sT0)}, {s(sG)}, 2
    s_lshr_b32 {s(R.sT0)}, {(0, 0x084, 0x808, 0x480)[csp]}, {s(R.sT0)}
    s_add_u32 {s(sCol)}, {s(sI)}, {s(R.sT0)}
    s_and_b32 {s(sCol)}, {s(sCol)}, 15
    s_lshr_b32 {s(sN)}, {s(sI)}, 4
    s_lshl_b32 {s(R.sT0)}, {s(sG)}, 2
    s_lshr_b32 {s(R.sT0)}, {sum(2 * ((g + gsh) % 3) << 4*g for g in range(3))}, {s(R.sT0)}
    s_and_b32 {s(R.sT0)}, {s(R.sT0)}, 15
    s_add_u32 {s(sN)}, {s(sN)}, {s(R.sT0)}
    s_lshl_b32 {s(R.sSrc)}, {s(R.sWv)}, 21
    s_lshl_b32 {s(R.sT0)}, {s(sCol)}, 7
    s_add_u32 {s(R.sSrc)}, {s(R.sSrc)}, {s(R.sT0)}
    v_lshrrev_b32 {v(R.vT0)}, 2, {v(R.vL)}
    v_and_b32 {v(R.vT1)}, 3, {v(R.vL)}
    v_lshlrev_b32 {v(R.vT2)}, 4, {v(R.vT1)}
    v_lshl_add_u32 {v(R.vT2)}, {v(R.vT0)}, 11, {v(R.vT2)}
    v_lshlrev_b32 {v(vTr)}, 3, {v(R.vT1)}
    v_bfe_u32 {v(R.vT0)}, {v(R.vL)}, 2, 2
    v_lshrrev_b32 {v(R.vT1)}, 4, {v(R.vL)}
    v_lshl_add_u32 {v(R.vT0)}, {v(R.vT1)}, 3, {v(R.vT0)}
    v_lshl_add_u32 {v(vTr)}, {v(R.vT0)}, 6, {v(vTr)}
    s_lshl_b32 {s(R.sM0)}, {s(R.sWv)}, 15
    v_add_u32 {v(vTr)}, {s(R.sM0)}, {v(vTr)}
    s_and_b32 {s(sRot)}, {s(sI)}, {7 if rot else 0}
    s_lshl_b32 {s(sRot)}, {s(sRot)}, 18
    s_waitcnt lgkmcnt(0)
    s_barrier
    """)
    units = [(0, ks) for ks in range(32)] + [(1, ks) for ks in range(0, 32, 2)] + [(1, ks) for ks in range(1, 32, 2)]
    if fl:
        assert not tpf
        vTq = (vTr, vTa, vPf, vTx)
        A(f"""v_lshrrev_b32 {v(R.vT0)}, 3, {v(R.vL)}
        v_and_b32 {v(R.vT1)}, 3, {v(R.vT0)}
        v_lshlrev_b32 {v(R.vT1)}, 1, {v(R.vT1)}
        v_xor_b32 {v(R.vT1)}, {v(R.vT1)}, {v(R.vL)}
        v_and_b32 {v(R.vT1)}, 7, {v(R.vT1)}
        v_lshlrev_b32 {v(R.vT1)}, 4, {v(R.vT1)}
        v_lshl_add_u32 {v(R.vT2)}, {v(R.vT0)}, 11, {v(R.vT1)}
        v_xor_b32 {v(vRed+1)}, 32, {v(R.vT2)}
        v_bfe_u32 {v(R.vT0)}, {v(R.vL)}, 2, 2
        v_lshrrev_b32 {v(R.vT1)}, 4, {v(R.vL)}
        v_lshl_add_u32 {v(vTr)}, {v(R.vT1)}, 3, {v(R.vT0)}
        v_lshl_add_u32 {v(vTr)}, {v(vTr)}, 7, {s(R.sM0)}
        v_and_b32 {v(R.vT1)}, 1, {v(R.vT1)}
        v_xor_b32 {v(R.vT0)}, {v(R.vT0)}, {v(R.vT1)}
        v_lshl_add_u32 {v(vTr)}, {v(R.vT0)}, 5, {v(vTr)}
        v_and_b32 {v(R.vT1)}, 3, {v(R.vL)}
        v_lshl_add_u32 {v(vTr)}, {v(R.vT1)}, 3, {v(vTr)}""")
        for k in range(1, 4): A(f"v_xor_b32 {v(vTq[k])}, {32*k}, {v(vTr)}")
        units = [ks for ks in range(32) if ks & 3 != 3] + list(range(3, 32, 4))
    def wreg(ks, o, n):
        j = units.index(ks)
        return a(16*j + o, n) if j < 16 else v(vW + 16*(j - 16) + o, n) if j < 24 else v(vSt + o, n)
    def dmaf(j):
        for q in range(4):
            A(f"s_add_u32 m0, {s(R.sM0)}, {(j & 7)*4096 + q*1024}")
            A(f"s_add_u32 {s(R.sT0)}, {s(R.sSrc)}, {(units[j]*32 + q*8)*2048}")
            A(f"buffer_load_dwordx4 {v(vRed+1 if q & 1 else R.vT2)}, {s(R.sX,4)}, {s(R.sT0)} offen lds")
    def trf(ks):
        return [f"ds_read_b64_tr_b16 {wreg(ks, 4*t + 2*hh, 2)}, {v(vTq[t])} offset:{(units.index(ks) & 7)*4096 + hh*512}" for t in range(4) for hh in range(2)]
    def dma(j):
        h, ks = units[j]
        for q in range(2):
            A(f"s_add_u32 m0, {s(R.sM0)}, {(j & 15)*2048 + q*1024}")
            A(f"s_add_u32 {s(R.sT0)}, {s(sRot)}, {(ks*32 + q*16)*2048 + h*64}")
            A(f"s_bitset0_b32 {s(R.sT0)}, 21")
            A(f"s_add_u32 {s(R.sT0)}, {s(R.sT0)}, {s(R.sSrc)}")
            A(f"buffer_load_dwordx4 {v(R.vT2)}, {s(R.sX,4)}, {s(R.sT0)} offen lds")
    def trd(dst, slot):
        return [f"ds_read_b64_tr_b16 {dst(4*tt + 2*hh)}, {v(vTr)} offset:{slot*2048 + hh*256 + tt*32}" for tt in range(2) for hh in range(2)]
    if touch:
        A(f"""s_sub_u32 {s(R.sT0)}, {s(sG)}, 1
        s_and_b32 {s(R.sT0)}, {s(R.sT0)}, 3
        s_lshl_b32 {s(R.sT0)}, {s(R.sT0)}, 3
        s_and_b32 {s(R.sT1)}, {s(sI)}, 7
        s_add_u32 {s(R.sT0)}, {s(R.sT0)}, {s(R.sT1)}
        s_lshl_b32 {s(R.sT0)}, {s(R.sT0)}, 8
        v_add_lshl_u32 {v(R.vT0)}, v0, {s(R.sT0)}, 11
        s_and_b32 {s(R.sT0)}, {s(sI)}, 8
        s_lshl_b32 {s(R.sT0)}, {s(R.sT0)}, 7
        buffer_load_dword {v(vRed)}, {v(R.vT0)}, {s(R.sX,4)}, {s(R.sT0)} offen offset:384""")
        if csp and touch > 1: A(f"""s_xor_b32 {s(R.sT0)}, {s(R.sT0)}, 1024
        buffer_load_dword {v(vRed)}, {v(R.vT0)}, {s(R.sX,4)}, {s(R.sT0)} offen offset:384""")
    if fl:
        for j in range(8): dmaf(j)
        for j in range(24):
            A(f"s_waitcnt vmcnt({28 if j == 0 else 24})")
            for i, x in enumerate(trf(units[j])):
                A(x)
                if j and i == 3:
                    A("s_waitcnt lgkmcnt(4)")
                    dmaf(j + 7)
        A("s_waitcnt lgkmcnt(0)")
        dmaf(31)
    for j in range(0 if fl else 16): dma(j)
    for j in range(0 if fl else 48):
        h, ks = units[j]
        A(f"s_waitcnt vmcnt({30 if j == 0 else 28})")
        for x in trd((lambda o: a(ks*8 + o, 2)) if h == 0 else (lambda o: v(vW + ks*4 + o, 2)), j & 15): A(x)
        if j:
            A("s_waitcnt lgkmcnt(4)")
            dma(j + 15)
    if not fl:
        A("s_waitcnt lgkmcnt(0)")
        dma(63)
    if tpf:
        A(f"""s_lshl_b32 {s(R.sT0)}, {s(sI)}, 2
        s_add_u32 {s(R.sT0)}, {s(R.sT0)}, {s(R.sWv)}
        s_lshl_b32 {s(R.sT1)}, {s(R.sT0)}, 7
        s_add_u32 {s(R.sT1)}, {s(R.sT1)}, {WS_FLAG + FLAG_P}
        v_lshrrev_b32 {v(R.vT0)}, 4, {v(R.vL)}
        v_lshlrev_b32 {v(vTx)}, 14, {v(R.vT0)}
        v_mov_b32 {v(vPf)}, 0
        s_mov_b32 exec_hi, 0xffff
        buffer_load_dword {v(vPf)}, {v(vTx)}, {s(R.sWS,4)}, {s(R.sT1)} offen sc1
        s_mov_b32 exec_hi, -1
        s_mul_i32 {s(R.sT0)}, {s(R.sT0)}, {BLK}
        v_mul_u32_u24 {v(vTa)}, {QKV_STRIDE >> 7}, {v(R.vT0)}
        v_and_b32 {v(R.vT0)}, 15, {v(R.vL)}
        v_add_lshl_u32 {v(vTa)}, {v(vTa)}, {v(R.vT0)}, 7
        v_add_u32 {v(vTa)}, {s(R.sT0)}, {v(vTa)}
        v_mov_b32 {v(R.vT1)}, {OOB}""")
    A(f"""
    s_lshr_b32 {s(sRot)}, {s(sRot)}, 6
    s_add_u32 {s(sRot)}, {s(sRot)}, {WS_O}
    v_lshlrev_b32 {v(vLr)}, 4, {v(R.vL)}
    v_add_u32 {v(vLa)}, {s(R.sM0)}, {v(vLr)}
    s_lshl_b32 {s(R.sT0)}, {s(R.sWv)}, 10
    s_add_u32 {s(R.sT0)}, {s(R.sT0)}, {RED}
    v_add_u32 {v(vLw)}, {s(R.sT0)}, {v(vLr)}
    s_lshl_b32 {s(R.sT0)}, {s(R.sWv)}, 12
    s_add_u32 {s(R.sT1)}, {s(R.sT0)}, {RED + 0x4000}
    v_add_u32 {v(vLr)}, {s(R.sT1)}, {v(vLr)}
    v_bfe_u32 {v(vFa)}, {v(R.vL)}, 3, 2
    v_and_b32 {v(R.vT0)}, 7, {v(R.vL)}
    v_lshlrev_b32 {v(R.vT0)}, 9, {v(R.vT0)}
    v_lshl_add_u32 {v(vFa)}, {v(vFa)}, 7, {v(R.vT0)}
    s_add_u32 {s(R.sT0)}, {s(R.sT0)}, {WS_FLAG + FLAG_T}
    v_add_u32 {v(vFa)}, {s(R.sT0)}, {v(vFa)}
    v_mov_b32 {v(vFl)}, 0
    v_and_b32 {v(vOa)}, 15, {v(R.vL)}
    v_lshrrev_b32 {v(R.vT0)}, 4, {v(R.vL)}
    v_lshlrev_b32 {v(R.vT0)}, 3, {v(R.vT0)}
    v_lshl_add_u32 {v(vOa)}, {v(vOa)}, 12, {v(R.vT0)}
    s_lshl_b32 {s(R.sT0)}, {s(sCol)}, 7
    s_lshl_b32 {s(R.sT1)}, {s(R.sWv)}, 5
    s_add_u32 {s(R.sT0)}, {s(R.sT0)}, {s(R.sT1)}
    s_add_u32 {s(R.sT0)}, {s(R.sT0)}, 2048
    v_add_u32 {v(vOa)}, {s(R.sT0)}, {v(vOa)}
    s_waitcnt vmcnt(0)
    """)
    if os_:
        assert not rot
        A(f"""v_add_u32 {v(vLa)}, {s(R.sM0)}, {v(vLa)}
        s_xor_b32 {s(sRot)}, {s(sSide)}, {WS_O2 + (8192 if os_ == 1 else 0)}""")
    if ts: tstamp(A, R, 3, vt=48)
    def ready(sItem):
        return [f"s_lshr_b32 {s(R.sT0)}, {s(sItem)}, 3",
                f"v_cmp_ge_u32 vcc, {s(R.sT0)}, {v(vFl)}",
                f"s_lshl_b32 {s(R.sT1)}, {s(sItem)}, 2",
                f"s_and_b32 {s(R.sT1)}, {s(R.sT1)}, 24",
                f"s_lshr_b32 {s(R.sT0)}, vcc_lo, {s(R.sT1)}",
                f"s_and_b32 {s(R.sT0)}, {s(R.sT0)}, 0xff"]
    ldfl = f"buffer_load_dword {v(vFl)}, {v(vFa)}, {s(R.sWS,4)}, 0 offen sc1"
    def ld(ks):
        o = []
        if ks % 4 == 0 and ks: o += [f"s_add_u32 {s(sLd)}, {s(sLd)}, {12288 if os_ and ks % 8 == 0 else 4096}"] + ([f"s_bitset0_b32 {s(sLd)}, 15"] if rot else [])
        o.append(f"buffer_load_dwordx4 {v(vF+4*(ks&15),4)}, {v(vLa)}, {s(R.sWS,4)}, {s(sLd)} offen offset:{(ks%4)*1024}{LD}")
        return o
    def setld(sItem):
        if os_: return [f"s_mul_i32 {s(sLd)}, {s(sItem)}, {(1 << 18) + (1 << 10)}", f"s_and_b32 {s(sLd)}, {s(sLd)}, {0x1fc0000 + 8192}", f"s_xor_b32 {s(sLd)}, {s(sLd)}, {s(sRot)}"]
        return [f"s_lshl_b32 {s(sLd)}, {s(sItem)}, 17", f"s_add_u32 {s(sLd)}, {s(sLd)}, {s(sRot)}"]
    rrd = [f"ds_read_b128 {v(vRed+4*k,4)}, {v(vLr)} offset:{1024*k}" for k in range(4)]
    radd = [f"v_add_f32 {v(vRed+r)}, {v(vRed+r)}, {v(vRed+4+r)}" for r in range(4)] + [f"v_add_f32 {v(vRed+8+r)}, {v(vRed+8+r)}, {v(vRed+12+r)}" for r in range(4)] + \
           [f"v_add_f32 {v(vRed+r)}, {v(vRed+r)}, {v(vRed+8+r)}" for r in range(4)] + [f"v_cvt_pk_bf16_f32 {v(vRed+4+r)}, {v(vRed+2*r)}, {v(vRed+2*r+1)}" for r in range(2)]
    ost = f"buffer_store_dwordx2 {v(vRed+4,2)}, {v(vOa)}, {s(R.sO,4)}, {s(sOut)} offen"
    flip = [f"v_xor_b32 {v(vLr)}, 0x4000, {v(vLr)}"]
    ust = ["s_memrealtime s[72:73]", "s_waitcnt lgkmcnt(0)", f"v_writelane_b32 {v(R.vT2)}, s72, m0", "s_add_u32 m0, m0, 1"] if its else []
    if its: A("s_mov_b32 m0, 0")
    A(f"s_mov_b32 {s(sTry)}, 0")
    A.label("U_wait")
    A(f"s_mov_b32 {s(sCnt)}, {s(sGive)}")
    A.label("U_fl")
    for x in ready(sN): A(x)
    A(f"""s_cbranch_scc0 U_go
    s_cmp_ge_u32 {s(sCnt)}, {SPIN}
    s_cselect_b32 {s(sGive)}, {SPIN}, {s(sGive)}
    s_cbranch_scc1 U_go
    s_lshl_b32 {s(R.sT0)}, {s(R.sT0)}, {s(R.sT1)}
    s_cmp_eq_u32 {s(sCnt)}, 0
    s_cselect_b32 exec_lo, -1, {s(R.sT0)}
    s_mov_b32 exec_hi, 0
    s_add_u32 {s(sCnt)}, {s(sCnt)}, 1
    {ldfl}
    s_mov_b64 exec, -1
    s_sleep {usl}
    s_waitcnt vmcnt(0)
    s_branch U_fl""")
    A.label("U_go")
    if early: A(f"""s_cmp_eq_u32 {s(sTry)}, 0
    s_cbranch_scc1 U_g2
    buffer_inv sc1
    s_waitcnt vmcnt(0)
    U_g2:""")
    for x in setld(sN): A(x)
    for ks in range(15):
        for x in ld(ks): A(x)
    A(f"""s_mov_b32 {s(sPend)}, 0
    s_mov_b32 {s(sOut)}, {OOB}""")
    for x in [] if fl else trd(lambda o: v(vSt + o, 2), 0): A(x)
    for k in range(4): A(rrd[k])
    A(".p2align 6")
    A.label("U_item")
    for x in ust: A(x)
    vq = [("L", k) for k in range(15)]; lq = [("W", 1)] * (0 if fl else 4) + [("P", 0)] * 4
    def vwait(tag):
        n = len(vq) - 1 - vq.index(tag); del vq[:len(vq) - n]
        return f"s_waitcnt vmcnt({n})"
    def lwait(tag):
        n = lq[::-1].index(tag); del lq[:len(lq) - n]
        return f"s_waitcnt lgkmcnt({n})"
    for ks in range(32):
        fill = [[], [], [], []]
        A(vwait(("L", ks)))
        fill[0] += ld((ks + 15) & 31); tagv = [("L", ks + 15)]
        if ks & 3 == 3 or (ks & 1 and not fl):
            pre2 = lwait(("W", ks))
        else:
            pre2 = None
        tagl = []
        if ks == 0:
            fill[1] += [f"s_add_u32 {s(sNx)}, {s(sN)}, {NG}"] + ready(sNx)[:4]
            fill[2] += ready(sNx)[4:] + [f"s_lshl_b32 exec_lo, {s(R.sT0)}, {s(R.sT1)}", "s_mov_b32 exec_hi, 0", ldfl, "s_mov_b64 exec, -1"]; tagv.append(("F", 0))
        if ks == 2:
            fill[1] += [lwait(("P", 0)), f"s_cmp_eq_u32 {s(sPend)}, 0", "s_cbranch_scc1 U_nb", "s_barrier", "U_nb:"]
            fill[2] += rrd[:2]; fill[3] += rrd[2:]; tagl += [("R", 0)] * 4
        if ks == 4:
            fill[0] += [lwait(("R", 0))]
        if 4 <= ks < 8:
            q = radd[4*(ks-4):4*(ks-4)+4]
            for i, x in enumerate(q): fill[1 + i//2].append(x)
        if ks == 8:
            fill[1] += [ost] + flip; tagv.append(("S", 0))
        if ks == 16:
            fill[1] += ready(sNx)[:4]
            fill[2] += setld(sNx) + ready(sNx)[4:] + [f"s_cselect_b32 {s(sPend)}, 0, 1", f"s_cselect_b32 {s(sLd)}, {OOB}, {s(sLd)}"]
        if ks == 14 and tpf:
            fill[1] += [f"s_lshr_b32 {s(sTp)}, {s(sNx)}, 1", f"s_add_u32 {s(sTp)}, {s(sTp)}, {tpf}", f"v_cmp_lt_u32 vcc, {s(sTp)}, {v(vPf)}"]
            fill[2] += [f"s_lshl_b32 {s(sTp)}, {s(sTp)}, 11", f"v_cndmask_b32 {v(vTx)}, {v(R.vT1)}, {v(vTa)}, vcc"]
        if ks == 16 and tpf:
            fill[3] += [f"buffer_load_dword {v(R.vFv)}, {v(vTx)}, {s(R.sWS,4)}, {s(sTp)} offen"]; tagv.append(("T", 0))
        if fl:
            if ks & 3 < 2:
                t_ = trf(ks | 3)[4*(ks & 1):4*(ks & 1) + 4]
                fill[1] += t_[:1]; fill[2] += t_[1:2]; fill[3] += t_[2:]; tagl += [("W", ks | 3)] * 4
        elif ks & 1 == 0:
            pass
        else:
            k2 = (ks + 2) & 31
            t_ = trd(lambda o: v(vSt + 8*((k2 >> 1) & 1) + o, 2), k2 >> 1)
            fill[0] += t_[:2]; fill[1] += t_[2:]; tagl += [("W", ks + 2)] * 4
        b = v(vF + 4*(ks & 15), 4)
        for t in range(4):
            d = v(vAcc + 4*t, 4)
            w = a(ks*8 + 4*t, 4) if t < 2 else (v(vSt + 8*((ks >> 1) & 1) + 4*(t-2), 4) if ks & 1 else v(vW + ks*4 + 4*(t-2), 4))
            if fl: w = wreg(ks, 4*t, 4)
            if t == 0 and pre2: A(pre2)
            A(f"v_mfma_f32_16x16x32_bf16 {d}, {w}, {b}, {d if ks else 0}")
            for x in fill[t]: A(x)
        vq += tagv; lq += tagl
    if tpf: assert vq.pop(0) == ("T", 0)
    assert [k for _, k in vq] == list(range(32, 47)), vq
    for x in ust: A(x)
    A(f"""s_lshl_b32 {s(sOut)}, {s(sN)}, 16
    s_mov_b32 {s(sN)}, {s(sNx)}
    s_cmp_eq_u32 {s(sPend)}, 1""")
    for t in range(4): A(f"ds_write_b128 {v(vLw)}, {v(vAcc+4*t,4)} offset:{4096*t}")
    A(f"""v_xor_b32 {v(vLw)}, 0x4000, {v(vLw)}
    s_cbranch_scc1 U_item
    s_waitcnt lgkmcnt(0)
    s_barrier""")
    for x in rrd: A(x)
    A("s_waitcnt lgkmcnt(0)")
    for x in radd: A(x)
    A(f"""{ost}
    s_cmp_lt_u32 {s(sN)}, 128
    s_cbranch_scc1 U_wait""")
    if early:
        A(f"""v_cmp_u_f32 vcc, {v(vRed)}, {v(vRed)}
        s_lshr_b32 {s(sN)}, {s(sOut)}, 16
        s_add_u32 {s(sTry)}, {s(sTry)}, 1
        v_or_b32 {v(vFa)}, 64, {v(vFa)}
        s_cmp_lg_u64 vcc, 0
        s_cselect_b32 {s(R.sT0)}, 1, 0
        v_mov_b32 {v(vAcc)}, {s(R.sT0)}
        v_and_b32 {v(R.vT0)}, {RED + 0x4000}, {v(vLw)}
        ds_write_b32 {v(vLw)}, {v(vAcc)}
        s_waitcnt lgkmcnt(0)
        s_barrier
        ds_read2st64_b32 {v(vAcc,2)}, {v(R.vT0)} offset0:0 offset1:4
        ds_read2st64_b32 {v(vAcc+2,2)}, {v(R.vT0)} offset0:8 offset1:12
        s_waitcnt lgkmcnt(0)
        v_and_b32 {v(vAcc)}, {v(vAcc)}, {v(vAcc+1)}
        v_and_b32 {v(vAcc+2)}, {v(vAcc+2)}, {v(vAcc+3)}
        v_and_b32 {v(vAcc)}, {v(vAcc)}, {v(vAcc+2)}
        v_cmp_ne_u32 vcc, 0, {v(vAcc)}
        s_cbranch_vccz U_end
        s_waitcnt vmcnt(0)
        v_mov_b32 {v(vFl)}, 0
        s_cmp_lt_u32 {s(sTry)}, 5
        s_cbranch_scc1 U_wait
        U_end:""")
    if its: idump(A, R, R.vT2)
    A(f"s_branch {done}")
```

```python
from asmlib import *
from layout import *
from stream import *
import struct, math
def f32bits(x): return struct.unpack("<I", struct.pack("<f", x))[0]
SPIN = 1 << 20
YS = 2048 + 128
BLKY = 64 * YS + 512
ZCH = 32768 + 256

def gen_dft_weights(A, R, vB, vD1, vD2, vInc, nks, derive):
    vP = 48; vC = 56; vK = 64; vX = 68
    for ks in range(nks):
        for t in range(2):
            A(f"v_fract_f32 {v(vP)}, {v(vB+t)}")
            for j in range(1, 8):
                A(f"v_add_f32 {v(vP+j)}, {v(vP+j-1)}, {v((vD1 if j & 1 else vD2)+t)}")
                A(f"v_cos_f32 {v(vC+j-1)}, {v(vP+j-1)}")
            A(f"v_cos_f32 {v(vC+7)}, {v(vP+7)}")
            A(f"v_add_f32 {v(vB+t)}, {v(vP)}, {v(vInc+t)}")
            for j in range(4): A(f"v_cvt_pk_bf16_f32 {v(vK+j)}, {v(vC+2*j)}, {v(vC+2*j+1)}")
            for j in range(4): A(f"v_accvgpr_write_b32 {a(aw(t, ks)+j)}, {v(vK+j)}")
            for q in range(1, 32 // nks):
                for j in range(4):
                    for x in derive(t, q, vX + j, vK + j): A(x)
                for j in range(4): A(f"v_accvgpr_write_b32 {a(aw(t, ks + q*nks)+j)}, {v(vX+j)}")

def wait_flags(A, R, name, vFa, nl, thr, sGive, sCnt):
    m = (1 << nl) - 1
    A(f"s_mov_b32 {s(sCnt)}, {s(sGive)}")
    A.label(name)
    A(f"""buffer_load_dword {v(R.vT0)}, {v(vFa)}, {s(R.sWS,4)}, 0 offen sc1
    s_waitcnt vmcnt(0)
    v_cmp_gt_u32 vcc, {thr}, {v(R.vT0)}""")
    if nl == 64: A("s_cmp_lg_u64 vcc, 0")
    else: A(f"s_and_b32 {s(R.sT0)}, vcc_lo, {m}")
    A(f"""s_cbranch_scc0 {name}_ok
    s_cmp_ge_u32 {s(sCnt)}, {SPIN}
    s_cselect_b32 {s(sGive)}, {SPIN}, {s(sGive)}
    s_cbranch_scc1 {name}_ok
    s_add_u32 {s(sCnt)}, {s(sCnt)}, 1
    s_sleep 8
    s_branch {name}""")
    A.label(name + "_ok")

def gen_F(A, sCu, done, sGive, rdv=None, ts=False, wt0=2, its=0, hook=None, stg=0, at=4, xs=0, ai=-1):
    R = SR
    def ist():
        if its == 2: A(f"""s_memrealtime s[72:73]
        s_mov_b32 m0, s70
        s_waitcnt lgkmcnt(0)
        v_writelane_b32 {v(R.vFv)}, s72, m0
        s_add_u32 s70, s70, 1""")
    if its == 2: A('s_mov_b32 s70, 0')
    sTg, sBlk, sCnt, sT2 = 28, 29, 30, 31
    vB, vD1, vD2, vInc = 30, 32, 34, 36
    vM = 40
    sPa, sPb, sAx, sBx, sWr, sWi = 32, 33, 40, 44, 48, 52
    A(f"""
    s_load_dwordx2 {s(sWr,2)}, s[0:1], {KA_WR}
    s_load_dwordx2 {s(sWi,2)}, s[0:1], {KA_WI}
    s_mov_b32 {s(sWr+2)}, {2048*1026}
    s_mov_b32 {s(sWr+3)}, 0x20000
    s_mov_b32 {s(sWi+2)}, {2048*1026}
    s_mov_b32 {s(sWi+3)}, 0x20000
    s_load_dwordx2 {s(sAx,2)}, s[0:1], {KA_AX}
    s_load_dwordx2 {s(sBx,2)}, s[0:1], {KA_BX}
    s_mov_b32 {s(sAx+2)}, {4*MB}
    s_mov_b32 {s(sAx+3)}, 0x20000
    s_mov_b32 {s(sBx+2)}, {4*MB}
    s_mov_b32 {s(sBx+3)}, 0x20000
    s_lshr_b32 {s(sTg)}, {s(sCu)}, 3
    s_and_b32 {s(sBlk)}, {s(sCu)}, 7
    s_lshl_b32 {s(sBlk)}, {s(sBlk)}, 2
    s_add_u32 {s(sBlk)}, {s(sBlk)}, {s(R.sWv)}
    """)
    def colidx(dst):
        perm16(A, dst, R.vL, R.vT0, False)
        A(f"""s_lshl_b32 {s(R.sT0)}, {s(sBlk)}, 5
        v_add_u32 {v(dst)}, {s(R.sT0)}, {v(dst)}""")
    colidx(R.vT2)
    A(f"""v_lshrrev_b32 {v(R.vT3)}, 4, {v(R.vL)}
    v_cvt_f32_u32 {v(R.vT3)}, {v(R.vT3)}
    s_mov_b32 {s(sT2)}, {f32bits(1/1024)}""")
    for t in range(2):
        A(f"""v_add_u32 {v(R.vT0)}, {4*t}, {v(R.vT2)}
        v_lshrrev_b32 {v(R.vT1)}, 1, {v(R.vT0)}
        v_and_b32 {v(vB+t)}, 1, {v(R.vT0)}
        v_cmp_eq_u32 vcc, 1, {v(R.vT0)}
        v_mov_b32 {v(R.vT0)}, 512
        v_cndmask_b32 {v(R.vT1)}, {v(R.vT1)}, {v(R.vT0)}, vcc
        v_cndmask_b32 {v(vB+t)}, {v(vB+t)}, 0, vcc
        v_add_u32 {v(R.vT0)}, {v(R.vT1)}, {v(vB+t)}
        v_bfe_i32 {v(vM+t)}, {v(R.vT0)}, 1, 1
        v_add_u32 {v(R.vT0)}, {v(R.vT1)}, {v(R.vT0)}
        v_bfe_i32 {v(vM+2+t)}, {v(R.vT0)}, 1, 1
        v_add_u32 {v(R.vT0)}, {v(R.vT1)}, {v(R.vT0)}
        v_bfe_i32 {v(vM+4+t)}, {v(R.vT0)}, 1, 1
        v_and_b32 {v(vM+t)}, 0x80008000, {v(vM+t)}
        v_and_b32 {v(vM+2+t)}, 0x80008000, {v(vM+2+t)}
        v_and_b32 {v(vM+4+t)}, 0x80008000, {v(vM+4+t)}
        v_cvt_f32_u32 {v(R.vT1)}, {v(R.vT1)}
        v_cvt_f32_u32 {v(vB+t)}, {v(vB+t)}
        v_mul_f32 {v(vD1+t)}, {s(sT2)}, {v(R.vT1)}
        v_mul_f32 {v(vB+t)}, 0x3e800000, {v(vB+t)}
        v_mov_b32 {v(vD2+t)}, {v(vD1+t)}
        v_mul_f32 {v(vInc+t)}, 0x42000000, {v(vD1+t)}
        v_mul_f32 {v(R.vT0)}, 0x41000000, {v(vD1+t)}
        v_fma_f32 {v(vB+t)}, {v(R.vT0)}, {v(R.vT3)}, {v(vB+t)}""")
    def der1(t, q, dst, src):
        return [f"v_xor_b32_dpp {v(dst)}, {v(src)}, {v(vM+2*q-2+t)} quad_perm:[0,1,3,2] row_mask:0xf bank_mask:0xf" if q & 1 else f"v_xor_b32 {v(dst)}, {v(src)}, {v(vM+2*q-2+t)}"]
    gen_dft_weights(A, R, vB, vD1, vD2, vInc, 8, der1)
    if hook: hook()
    A(f"""s_and_b32 {s(R.sT0)}, {s(sTg)}, 1
    s_lshl_b32 {s(R.sT0)}, {s(R.sT0)}, 15
    s_lshr_b32 {s(R.sT1)}, {s(sTg)}, 1
    s_lshl_b32 {s(R.sT1)}, {s(R.sT1)}, 21
    s_add_u32 {s(R.sT0)}, {s(R.sT0)}, {s(R.sT1)}
    s_lshl_b32 {s(R.sT1)}, {s(sBlk)}, 16
    s_add_u32 {s(R.sT0)}, {s(R.sT0)}, {s(R.sT1)}
    v_lshlrev_b32 {v(15)}, 7, {v(R.vL)}
    s_waitcnt lgkmcnt(0)""")
    sTa = 35
    A(f"s_mov_b32 {s(sTa)}, {s(R.sT0)}")
    for k in range(at if ai < 0 else 0):
        A(f"buffer_load_dword {v(248+k)}, {v(15)}, {s(sAx,4)}, {s(R.sT0)} offen")
        A(f"s_add_u32 {s(R.sT0)}, {s(R.sT0)}, 8192")
    sTx = 34
    A(f"""s_lshl_b32 {s(sTx)}, {s(sCu)}, 2
    s_add_u32 {s(sTx)}, {s(sTx)}, {s(R.sWv)}
    s_lshl_b32 {s(sTx)}, {s(sTx)}, 13
    s_sub_u32 {s(sTx)}, {s(sTx)}, {256*1024 + xs*MB}
    v_mov_b32 {v(247)}, {v(15)}""")
    xt = [f"buffer_load_dword {v(248)}, {v(247)}, {s(sBx,4)}, {s(sTx)} offen", f"s_add_u32 {s(sTx)}, {s(sTx)}, {MB}"]
    if wt0 >= 0:
        A(f"""s_lshl_b32 {s(R.sT0)}, {s(sBlk)}, 6
        v_add_u32 {v(246)}, {s(R.sT0)}, {v(R.vL)}
        v_mul_u32_u24 {v(246)}, 1026, {v(246)}
        s_lshl_b32 {s(R.sT0)}, {s(sTg)}, 8
        v_add_u32 {v(246)}, {s(R.sT0)}, {v(246)}
        v_and_b32 {v(246)}, -4, {v(246)}""")
        xt += [f"s_sub_u32 {s(sT2)}, {s(R.sIt)}, {2*wt0}", f"s_lshl_b32 {s(sT2)}, {s(sT2)}, 6", f"s_cmp_lt_u32 {s(sT2)}, 384", f"s_cselect_b32 {s(sT2)}, {s(sT2)}, {OOB}",
               f"buffer_load_dword {v(249)}, {v(246)}, {s(sWr,4)}, {s(sT2)} offen", f"buffer_load_dword {v(250)}, {v(246)}, {s(sWi,4)}, {s(sT2)} offen"]
    if ai >= 0:
        xt += [f"s_cmp_eq_u32 {s(R.sIt)}, {2*ai}", f"s_cselect_b32 {s(sT2)}, {s(sTa)}, {OOB}"]
        for k in range(4): xt += [f"buffer_load_dword {v(251)}, {v(247)}, {s(sAx,4)}, {s(sT2)} offen", f"s_add_u32 {s(sT2)}, {s(sT2)}, 8192"]
    if stg:
        xt0 = xt
        xt = lambda H: [f"s_cmp_eq_u32 {s(R.sWv)}, {H}", "s_cselect_b64 exec, -1, 0"] + [x for x in xt0 if H == 3 or x != xt0[1]] + ["s_mov_b64 exec, -1"]
    A(f"""
    s_load_dwordx2 {s(R.sX,2)}, s[0:1], {KA_AX}
    s_mov_b32 {s(R.sX+2)}, {4*MB}
    s_mov_b32 {s(R.sX+3)}, 0x20000
    s_waitcnt lgkmcnt(0)
    """)
    if ts: tstamp(A, R, 1)
    setup_reads(A, R)
    dma_rows(A, R, R.vT2, R.vT3)
    perm16(A, R.vSrc, R.vT2, R.vT0, True)
    perm16(A, R.vDst, R.vL, R.vT0, False)
    A(f"""
    v_lshlrev_b32 {v(R.vSrc)}, 16, {v(R.vSrc)}
    v_lshl_add_u32 {v(R.vSrc)}, {v(R.vT3)}, 4, {v(R.vSrc)}
    v_and_b32 {v(R.vT0)}, 48, {v(R.vL)}
    v_lshl_add_u32 {v(R.vDst)}, {v(R.vDst)}, 6, {v(R.vT0)}
    s_mul_i32 {s(R.sDst)}, {s(sBlk)}, {BLKY}
    s_mul_i32 {s(R.sT0)}, {s(sTg)}, {16 * YS}
    s_add_u32 {s(R.sDst)}, {s(R.sDst)}, {s(R.sT0)}
    s_add_u32 {s(R.sDst)}, {s(R.sDst)}, {WS_Y}
    s_and_b32 {s(R.sSrc)}, {s(sTg)}, 1
    s_lshl_b32 {s(R.sSrc)}, {s(R.sSrc)}, 15
    s_lshr_b32 {s(R.sT0)}, {s(sTg)}, 1
    s_lshl_b32 {s(R.sT0)}, {s(R.sT0)}, 21
    s_add_u32 {s(R.sSrc)}, {s(R.sSrc)}, {s(R.sT0)}
    s_mov_b32 {s(R.sSrcStep)}, 2048
    s_mov_b32 {s(R.sDstStep)}, {YS}
    s_barrier
    """)
    def dma1(half, b, lds):
        off = half * 1024 + b * 128
        return [f"s_add_u32 m0, {s(R.sM0)}, {lds - off}", f"buffer_load_dwordx4 {v(R.vSrc)}, {s(R.sX,4)}, {s(R.sSrc)} offen offset:{off} lds"]
    def store1(u):
        return [f"buffer_store_dwordx4 {v(R.vPk+4*u,4)}, {v(R.vDst)}, {s(R.sWS,4)}, {s(R.sDst)} offen offset:{256*u} sc1"]
    stream_loop(A, R, "F1", 16, True, dma1, store1, flag=False, extra=xt)
    if rdv: rdv()
    A("s_barrier")
    def setflag(sIdx, base):
        A(f"""s_lshl_b32 {s(R.sT0)}, {s(sIdx)}, 7
        s_add_u32 {s(R.sT0)}, {s(R.sT0)}, {WS_FLAG + base}
        v_lshl_add_u32 {v(R.vT0)}, {v(R.vL)}, 2, {s(R.sT0)}
        v_mov_b32 {v(R.vT1)}, 1
        s_mov_b64 exec, 0xffffffff
        buffer_store_dword {v(R.vT1)}, {v(R.vT0)}, {s(R.sWS,4)}, 0 offen sc1
        s_mov_b64 exec, -1""")
    A(f"""s_lshl_b32 {s(sT2)}, {s(sBlk)}, 2
    s_add_u32 {s(sT2)}, {s(sT2)}, {s(sTg)}""")
    setflag(sT2, FLAG_F)
    if ts: tstamp(A, R, 2)
    ist()
    vPi, vH, vAd, vSh, vWa, vLa = 10, 11, 12, 13, 14, 19
    vIn, v512, vOut = 60, 220, 236
    aC64, aS64, aN64, aC32, aS32, aN32, aOut = 0, 32, 64, 96, 104, 112, 120
    vTw = 160
    vAc, vOp, vZ = 32, 96, 128
    vZa, vPf, vHf, vSo = 15, 16, 17, 18
    pi_lane(A, vPi, R.vL, R.vT0, R.vT1)
    A(f"v_lshrrev_b32 {v(R.vT3)}, 1, {v(R.vL)}")
    pi_lane(A, vLa, R.vT3, R.vT0, R.vT1)
    A(f"""
    s_load_dwordx2 {s(R.sO,2)}, s[0:1], {KA_OUT}
    s_mov_b32 {s(R.sO+2)}, {8*MB}
    s_mov_b32 {s(R.sO+3)}, 0x20000
    v_lshrrev_b32 {v(vH)}, 5, {v(R.vL)}
    v_lshl_add_u32 {v(vAd)}, {v(vH)}, 9, {v(vPi)}             ; pi + 512 h
    v_mul_u32_u24 {v(vAd)}, 1026, {v(vAd)}
    v_and_b32 {v(vSh)}, 1, {v(R.vL)}
    v_lshlrev_b32 {v(vSh)}, 4, {v(vSh)}
    v_lshlrev_b32 {v(vWa)}, 4, {v(R.vL)}
    s_lshr_b32 {s(R.sT0)}, {s(R.sWv)}, 1
    s_and_b32 {s(R.sT1)}, {s(R.sWv)}, 1
    s_lshl_b32 {s(R.sT0)}, {s(R.sT0)}, 5
    s_lshl_b32 {s(R.sT1)}, {s(R.sT1)}, 10
    s_add_u32 {s(R.sT0)}, {s(R.sT0)}, {s(R.sT1)}
    s_mul_i32 {s(R.sSrc)}, {s(R.sT0)}, 1026
    s_lshl_b32 {s(R.sT0)}, {s(sCu)}, 5
    s_add_u32 {s(R.sSrc)}, {s(R.sSrc)}, {s(R.sT0)}
    v_mul_u32_u24 {v(vLa)}, 1026, {v(vLa)}
    v_add_u32 {v(vLa)}, {v(vLa)}, {v(vSh)}
    s_mov_b32 {s(sPa)}, 0x05040100
    s_mov_b32 {s(sPb)}, 0x07060302
    v_cvt_f32_u32 {v(vPf)}, {v(vPi)}
    v_lshlrev_b32 {v(vHf)}, 3, {v(vH)}
    v_cvt_f32_u32 {v(vHf)}, {v(vHf)}
""")
    ist()
    def cap(f):
        n = len(A.ins); f(); o = [x.text for x in A.ins[n:]]; del A.ins[n:]; return o
    def merge(X, Y):
        o = []; k = 0
        for i, g in enumerate(X):
            o += g; e = (i + 1) * len(Y) // len(X); o += Y[k:e]; k = e
        return o
    lds_ = []
    def win(g, h, jj, m): return vIn + 4 * (((g*2 + h)*4 + jj)*2 + m)
    for g in range(2):
        for h in range(2):
            for jj in range(4):
                for m, srd in enumerate((sWr, sWi)):
                    lds_.append(([] if m else [f"s_add_u32 {s(R.sT0)}, {s(R.sSrc)}, {((2*jj + g)*64 + 512*h)*1026}"]) +
                                [f"buffer_load_dwordx4 {v(win(g, h, jj, m),4)}, {v(vLa)}, {s(srd,4)}, {s(R.sT0)} offen"])
    def consts(dC, dS, dN, add, N, nks):
        A(f"""v_add_f32 {v(R.vT0)}, {f32bits(float(add))}, {v(vPf)}
        v_mul_f32 {v(R.vT0)}, {f32bits(1.0/N)}, {v(R.vT0)}
        v_mul_f32 {v(R.vT1)}, {v(R.vT0)}, {v(vHf)}
        v_mul_f32 {v(R.vT2)}, 0x41800000, {v(R.vT0)}""")
        for ks in range(nks):
            A(f"v_fract_f32 {v(vAc)}, {v(R.vT1)}")
            for j in range(1, 8): A(f"v_add_f32 {v(vAc+j)}, {v(vAc+j-1)}, {v(R.vT0)}")
            A(f"v_add_f32 {v(R.vT1)}, {v(vAc)}, {v(R.vT2)}")
            for j in range(8):
                A(f"v_cos_f32 {v(vAc+8+j)}, {v(vAc+j)}"); A(f"v_sin_f32 {v(vAc+16+j)}, {v(vAc+j)}")
            if N == 32:
                for j in range(16): A(f"v_mul_f32 {v(vAc+8+j)}, {f32bits(2.0**-10)}, {v(vAc+8+j)}")
            for j in range(4):
                A(f"v_cvt_pk_bf16_f32 {v(vAc+24)}, {v(vAc+8+2*j)}, {v(vAc+9+2*j)}")
                A(f"v_cvt_pk_bf16_f32 {v(vAc+25)}, {v(vAc+16+2*j)}, {v(vAc+17+2*j)}")
                A(f"v_accvgpr_write_b32 {a(dC+4*ks+j)}, {v(vAc+24)}")
                A(f"v_xor_b32 {v(vAc+26)}, 0x80008000, {v(vAc+25)}")
                A(f"v_accvgpr_write_b32 {a(dS+4*ks+j)}, {v(vAc+25)}")
                A(f"v_accvgpr_write_b32 {a(dN+4*ks+j)}, {v(vAc+26)}")
    def allc():
        for t in range(2): consts(aC64 + 16*t, aS64 + 16*t, aN64 + 16*t, 32*t, 64, 4)
        consts(aC32, aS32, aN32, 0, 32, 2)
    for x in merge(lds_, cap(allc)): A(x)
    ist()
    A(f"""s_lshl_b32 {s(R.sT0)}, {s(R.sWv)}, 11
    v_lshlrev_b32 {v(R.vT0)}, 12, {v(vSh)}
    v_lshl_add_u32 {v(R.vT0)}, {v(R.vT3)}, 4, {v(R.vT0)}
    v_add_u32 {v(R.vT0)}, {s(R.sT0)}, {v(R.vT0)}
    s_cmp_eq_u32 {s(R.sWv)}, 0
    s_cselect_b32 {s(R.sT0)}, 0, 10240
    s_add_u32 {s(R.sT0)}, {s(R.sT0)}, 0x20000
    v_add_u32 {v(vSh)}, {s(R.sT0)}, {v(vWa)}""")
    for g in range(2):
        for h in range(2):
            A(f"s_waitcnt vmcnt({24 - 16*g - 8*h})")
            for cc in range(8):
                o = vOut + 4*(cc & 3)
                for jj in range(4):
                    A(f"v_perm_b32 {v(o + jj)}, {v(win(g, h, jj, 1) + cc//2)}, {v(win(g, h, jj, 0) + cc//2)}, {s(sPb if cc & 1 else sPa)}")
                A(f"ds_write_b128 {v(R.vT0)}, {v(o,4)} offset:{cc*8192 + g*1024 + h*512}")
    ist()
    sZr, sZi, sSc, sWo, sPass, sNp, sMsk = 32, 33, 34, 35, 36, 37, 38
    A(f"""
    v_mul_u32_u24 {v(vZa)}, {YS}, {v(vPi)}
    v_lshl_add_u32 {v(vZa)}, {v(vH)}, 4, {v(vZa)}
    v_lshlrev_b32 {v(vSo)}, 12, {v(vH)}
    v_lshl_add_u32 {v(vSo)}, {v(vPi)}, 4, {v(vSo)}
    s_mul_i32 {s(sZr)}, {s(sCu)}, {BLKY}
    s_lshl_b32 {s(R.sT0)}, {s(R.sWv)}, 9
    s_add_u32 {s(sZr)}, {s(sZr)}, {s(R.sT0)}
    s_add_u32 {s(sZr)}, {s(sZr)}, {WS_Y}
    s_add_u32 {s(sZi)}, {s(sZr)}, 64
    s_lshl_b32 {s(sT2)}, {s(sCu)}, 2
    s_add_u32 {s(sT2)}, {s(sT2)}, {s(R.sWv)}
    s_lshl_b32 {s(sWo)}, {s(R.sWv)}, 15
    s_mov_b32 {s(sMsk)}, 0xffff0000
    s_mov_b32 {s(sPass)}, 0
    s_cmp_eq_u32 {s(sT2)}, 0
    s_cselect_b32 {s(sNp)}, 5, 4
    s_cselect_b32 {s(sZi)}, {OOB}, {s(sZi)}
    s_cselect_b32 {s(sSc)}, 1024, {OOB}
    v_and_b32 {v(R.vT3)}, 3, {v(R.vL)}
    v_lshlrev_b32 {v(R.vT3)}, 7, {v(R.vT3)}
    s_lshl_b32 {s(R.sT0)}, {s(sCu)}, 9
    s_add_u32 {s(R.sT0)}, {s(R.sT0)}, {WS_FLAG + FLAG_F}
    v_add_u32 {v(R.vT3)}, {s(R.sT0)}, {v(R.vT3)}
    s_waitcnt lgkmcnt(0)
    """)
    wait_flags(A, R, "F2_w", R.vT3, 4, 1, sGive, sCnt)
    zl = []
    for im, so in ((0, sZr), (1, sZi)):
        for ks in range(4):
            zl.append(([f"s_add_u32 {s(R.sT0)}, {s(so)}, {32 * YS}"] if ks == 2 else []) +
                      [f"buffer_load_dwordx4 {v(vZ + 16*im + 4*ks,4)}, {v(vZa)}, {s(R.sWS,4)}, {s(so if ks < 2 else R.sT0)} offen offset:{32*(ks&1)}"])
    ist()
    for g in zl:
        for x in g: A(x)
    ist()
    for k, (pa, ra) in enumerate(((0, 0), (32, 0), (0, 32))):
        A(f"""v_add_f32 {v(R.vT0)}, {f32bits(float(pa))}, {v(vPf)}
        v_mul_f32 {v(R.vT0)}, {f32bits(1.0/2048)}, {v(R.vT0)}""")
        for r in range(16):
            A(f"""v_add_f32 {v(R.vT1)}, {f32bits(float(16*(r>>3) + (r&7) + ra))}, {v(vHf)}
            v_mul_f32 {v(R.vT1)}, {v(R.vT1)}, {v(R.vT0)}
            v_cos_f32 {v(vTw+32*k+r)}, {v(R.vT1)}
            v_sin_f32 {v(vTw+32*k+16+r)}, {v(R.vT1)}""")
    ist()
    A("s_barrier")
    if ts: tstamp(A, R, 3, vt=24)
    def op(t_or_ks, im, u=None):
        ks = t_or_ks if u is None else 2*t_or_ks + u
        return v(vOp + 16*im + 4*ks, 4)
    def zop(ks, im): return v(vZ + 16*im + 4*ks, 4)
    def acc(t, im): return vAc + 32*t + 16*im
    def MF(d, x, y, first): return [f"v_mfma_f32_32x32x16_bf16 {v(d,16)}, {x}, {y}, {0 if first else v(d,16)}"]
    def cm(t, r, c, sn, sign):
        re, im = acc(t, 0) + r, acc(t, 1) + r; T = 20 + 2*(r & 2)
        return [f"v_mul_f32 {v(T+2*k+e)}, {v((re, im)[k]+e)}, {v(c+e)}" for e in range(2) for k in range(2)] + \
               [f"v_fma_f32 {v(T+2*k+e)}, {'-' if (sign > 0) == (k == 0) else ''}{v((im, re)[k]+e)}, {v(sn+e)}, {v(T+2*k+e)}" for e in range(2) for k in range(2)] + \
               [f"v_cvt_pk_bf16_f32 {v(vOp + 8*t + r//2)}, {v(T)}, {v(T+1)}", f"v_cvt_pk_bf16_f32 {v(vOp + 16 + 8*t + r//2)}, {v(T+2)}, {v(T+3)}"]
    def VT(t, c0, sign): return [x for r in range(0, 16, 2) for x in cm(t, r, c0 + r, c0 + 16 + r, sign)]
    def VW(t):
        o = ["s_waitcnt lgkmcnt(0)"]
        for r in range(0, 16, 2):
            for e in range(2):
                w = vOp + 16*e + 8*t + r//2
                o += [f"v_lshlrev_b32 {v(28+e)}, 16, {v(w)}", f"v_and_b32 {v(30+e)}, {s(sMsk)}, {v(w)}"]
            o += cm(t, r, 28, 30, +1)
        return o
    def VO(t): return [f"v_cvt_pk_bf16_f32 {v(acc(t,0)+r)}, {v(acc(t,0)+r)}, {v(acc(t,1)+r)}" for r in range(16)]
    def wrd(t): return [f"ds_read_b128 {v(vOp + 16*g + 8*t + 4*hh,4)}, {v(vLa)} offset:{(2*t + hh)*2048 + g*1024}" for hh in range(2) for g in range(2)]
    def M1(t): return [x for ks in range(4) for x in (MF(acc(t, 0), zop(ks, 0), a(aC64+16*t+4*ks, 4), ks == 0), MF(acc(t, 1), zop(ks, 1), a(aC64+16*t+4*ks, 4), ks == 0),
                                                     MF(acc(t, 0), zop(ks, 1), a(aS64+16*t+4*ks, 4), False), MF(acc(t, 1), zop(ks, 0), a(aN64+16*t+4*ks, 4), False))]
    def M2(t): return [x for u in range(2) for x in (MF(acc(t, 0), a(aC32+4*u, 4), op(t, 0, u), u == 0), MF(acc(t, 1), a(aC32+4*u, 4), op(t, 1, u), u == 0),
                                                    MF(acc(t, 0), a(aS32+4*u, 4), op(t, 1, u), False), MF(acc(t, 1), a(aN32+4*u, 4), op(t, 0, u), False))]
    def M3(t): return [x for u in range(2) for x in (MF(acc(t, 0), op(t, 0, u), a(aC32+4*u, 4), u == 0), MF(acc(t, 1), op(t, 1, u), a(aC32+4*u, 4), u == 0),
                                                    MF(acc(t, 0), op(t, 1, u), a(aN32+4*u, 4), False), MF(acc(t, 1), op(t, 0, u), a(aS32+4*u, 4), False))]
    def M4(t): return [x for ks in range(4) for x in (MF(acc(t, 0), a(aC64+16*t+4*ks, 4), op(ks, 0), ks == 0), MF(acc(t, 1), a(aC64+16*t+4*ks, 4), op(ks, 1), ks == 0),
                                                     MF(acc(t, 0), a(aN64+16*t+4*ks, 4), op(ks, 1), False), MF(acc(t, 1), a(aS64+16*t+4*ks, 4), op(ks, 0), False))]
    def slot(M, V, lead=2, tail=()):
        M = [list(x) for x in M]; M[-1] += list(tail)
        for x in sum(M[:lead], []) + merge(M[lead:], V): A(x)
    nxt = f"""s_add_u32 {s(sPass)}, {s(sPass)}, 1
    s_add_u32 {s(sZr)}, {s(sZr)}, 128
    s_add_u32 {s(sZi)}, {s(sZr)}, 64
    s_cmp_eq_u32 {s(sPass)}, 4
    s_cselect_b32 {s(sZr)}, {WS_Y + 64}, {s(sZr)}
    s_cselect_b32 {s(sZi)}, {OOB}, {s(sZi)}
    s_cmp_lt_u32 {s(sPass)}, {s(sNp)}
    s_cselect_b32 {s(sZr)}, {s(sZr)}, {OOB}
    s_cselect_b32 {s(sZi)}, {s(sZi)}, {OOB}
    v_add_u32 {v(vLa)}, {s(sWo)}, {v(vWa)}""".split("\n")
    a5 = 248
    v5 = (2, 3, 4, 7, 8, 10, 11, 16)
    c5 = [[f"s_add_u32 {s(R.sT1)}, {s(sSc)}, {i*64*1026}", f"buffer_load_ushort {a(a5 + (i >> 1) + 4*(i & 1))}, {v(vAd)}, {s(sWr,4)}, {s(R.sT1)} offen",
           f"buffer_load_ushort {v(v5[i])}, {v(vAd)}, {s(sWi,4)}, {s(R.sT1)} offen"] for i in range(8)]
    nxt = [f"ds_write_b128 {v(vSh)}, {a(a5,4)}", f"ds_write_b128 {v(vSh)}, {a(a5+4,4)} offset:1024"] + \
          [f"ds_write_b16 {v(vSh)}, {v(v5[i])} offset:{(i & 1)*1024 + (i >> 1)*4 + 2}" for i in range(8)] + [f"v_add_u32 {v(vSh)}, 2048, {v(vSh)}"] + nxt
    def w5(M, ks):
        M = [list(x) for x in M]
        for k in ks: M[k] += c5.pop(0)
        return M
    A(".p2align 6")
    A.label("F2_top")
    ist()
    A("s_waitcnt vmcnt(0)")
    ist()
    slot(M1(0), [x.strip() for x in nxt])
    slot(w5(M1(1), (1,)), VT(0, vTw, -1))
    slot([m + g for m, g in zip(M2(0), zl)], VT(1, vTw + 32, -1), tail=["s_nop 1"] + wrd(0))
    ist()
    slot(w5(M2(1), (1,)), VW(0), tail=["s_nop 1"] + wrd(1))
    slot(w5(M3(0), (1,)), VW(1))
    slot(w5(M3(1), (1,)), VT(0, vTw, +1))
    slot(w5(M4(0)[:8], (1,)), VT(1, vTw + 64, +1))
    slot(w5(M4(0)[8:] + M4(1), (0, 4, 8)), VO(0), lead=10)
    for x in VO(1): A(x)
    for p in range(1, 5):
        A(f"""s_cmp_eq_u32 {s(sPass)}, {p + 1}
        s_cbranch_scc1 F2_o{p}""")
    for p in range(5):
        if p: A.label(f"F2_o{p}")
        for k in range(32):
            w = acc(k >> 4, 0) + (k & 15)
            if p < 4:
                A(f"v_accvgpr_write_b32 {a(aOut+4*k+p)}, {v(w)}")
            else:
                A(f"v_accvgpr_read_b32 {v(R.vT0)}, {a(aOut+4*k)}")
                A(f"v_lshlrev_b32 {v(R.vT1)}, 16, {v(w)}")
                A(f"v_bfi_b32 {v(R.vT0)}, {s(sMsk)}, {v(R.vT1)}, {v(R.vT0)}")
                A(f"v_accvgpr_write_b32 {a(aOut+4*k)}, {v(R.vT0)}")
        if p < 4: A("s_branch F2_nx")
    A.label("F2_nx")
    A(f"""s_add_u32 {s(sWo)}, {s(sWo)}, 8192
    s_bitcmp1_b32 {s(sPass)}, 0
    s_cselect_b32 {s(R.sT0)}, 0, {(2048 - 32)*1026}
    s_add_u32 {s(sSc)}, {s(sSc)}, {1024*1026}
    s_sub_u32 {s(sSc)}, {s(sSc)}, {s(R.sT0)}
    s_cmp_eq_u32 {s(sPass)}, 4
    s_cselect_b32 {s(sWo)}, {16*8192 + 2048}, {s(sWo)}
    s_cselect_b32 {s(sSc)}, {OOB}, {s(sSc)}
    s_cmp_lt_u32 {s(sPass)}, {s(sNp)}
    s_cbranch_scc1 F2_top
    s_mul_i32 {s(R.sDst)}, {s(sT2)}, {ZCH}
    s_add_u32 {s(R.sDst)}, {s(R.sDst)}, {WS_Z}""")
    ist()
    for t in range(2):
        for r in range(16):
            o = (32*t + 16*(r >> 3) + (r & 7)) * 512
            if r % 8 == 0: A(f"s_add_u32 {s(R.sT0)}, {s(R.sDst)}, {o}")
            A(f"buffer_store_dwordx4 {a(aOut+4*(16*t+r),4)}, {v(vSo)}, {s(R.sWS,4)}, {s(R.sT0)} offen offset:{(r&7)*512} sc1")
    ist()
    A("s_waitcnt vmcnt(0)")
    ist()
    setflag(sT2, FLAG_F2)
    if ts: tstamp(A, R, 4)
    colidx(R.vT2)
    A(f"""v_lshrrev_b32 {v(R.vT3)}, 4, {v(R.vL)}
    v_cvt_f32_u32 {v(R.vT3)}, {v(R.vT3)}
    s_mov_b32 {s(sT2)}, {f32bits(1/1024)}
    v_and_b32 {v(38)}, 1, {v(R.vT2)}""")
    for t in range(2):
        A(f"""v_add_u32 {v(R.vT0)}, {4*t}, {v(R.vT2)}
        v_cvt_f32_u32 {v(R.vT1)}, {v(R.vT0)}
        v_mul_f32 {v(R.vT1)}, {s(sT2)}, {v(R.vT1)}
        v_mov_b32 {v(vD1+t)}, 0x3e800000
        v_sub_f32 {v(vD2+t)}, {v(R.vT1)}, {v(vD1+t)}
        v_mul_f32 {v(vInc+t)}, 0x41800000, {v(R.vT1)}
        v_mul_f32 {v(R.vT0)}, 4.0, {v(R.vT1)}
        v_mul_f32 {v(vB+t)}, {v(R.vT0)}, {v(R.vT3)}""")
    A(f"""v_lshlrev_b32 {v(vM)}, 4, {v(38)}
    v_bfe_u32 {v(R.vT0)}, {v(R.vT2)}, 1, 1
    v_add_u32 {v(R.vT1)}, 1, {v(R.vT2)}
    v_bfe_u32 {v(R.vT1)}, {v(R.vT1)}, 1, 1
    v_lshlrev_b32 {v(R.vT0)}, 15, {v(R.vT0)}
    v_lshl_or_b32 {v(vM+1)}, {v(R.vT1)}, 31, {v(R.vT0)}""")
    gen_dft_weights(A, R, vB, vD1, vD2, vInc, 16, lambda t, q, dst, src: [f"v_alignbit_b32 {v(dst)}, {v(src)}, {v(src)}, {v(vM)}", f"v_xor_b32 {v(dst)}, {v(dst)}, {v(vM+1)}"])
    A(f"""v_lshlrev_b32 {v(R.vT1)}, 31, {v(38)}
    v_or_b32 {v(R.vT1)}, 0x3f003f00, {v(R.vT1)}
    v_cmp_gt_u32 vcc, 16, {v(R.vL)}""")
    for t in range(2):
        A(f"""v_accvgpr_read_b32 {v(R.vT0)}, {a(aw(t,0))}
        v_cndmask_b32 {v(R.vT0)}, {v(R.vT0)}, {v(R.vT1)}, vcc
        v_accvgpr_write_b32 {a(aw(t,0))}, {v(R.vT0)}""")
    A(f"""
    v_and_b32 {v(R.vT0)}, 15, {v(R.vL)}
    v_lshrrev_b32 {v(R.vT1)}, 4, {v(R.vL)}
    v_lshlrev_b32 {v(R.vT0)}, 4, {v(R.vT0)}
    v_lshl_add_u32 {v(R.vRd)}, {v(R.vT1)}, 9, {v(R.vT0)}
    v_add_u32 {v(R.vRd+1)}, 2048, {v(R.vRd)}
    v_add_u32 {v(R.vRd+2)}, 0x10000, {v(R.vRd)}
    v_add_u32 {v(R.vRd+3)}, 0x10000, {v(R.vRd+1)}
    s_lshl_b32 {s(R.sM0)}, {s(R.sWv)}, 10
    s_lshl_b32 {s(R.sT0)}, {s(R.sWv)}, 1
    v_lshrrev_b32 {v(R.vT3)}, 5, {v(R.vL)}
    v_add_u32 {v(R.vT3)}, {s(R.sT0)}, {v(R.vT3)}
    v_and_b32 {v(R.vT2)}, 31, {v(R.vL)}
    v_mul_u32_u24 {v(R.vSrc)}, {ZCH}, {v(R.vT3)}
    v_lshl_add_u32 {v(R.vSrc)}, {v(R.vT2)}, 4, {v(R.vSrc)}
    v_and_b32 {v(R.vDst)}, 15, {v(R.vL)}
    v_and_b32 {v(R.vT0)}, 48, {v(R.vL)}
    v_lshl_add_u32 {v(R.vDst)}, {v(R.vDst)}, 12, {v(R.vT0)}
    v_add_u32 {v(R.vFlag)}, 0x10000, {v(R.vDst)}
    s_lshl_b32 {s(R.sDst)}, {s(sTg)}, 21
    s_lshl_b32 {s(R.sT0)}, {s(sBlk)}, 6
    s_add_u32 {s(R.sDst)}, {s(R.sDst)}, {s(R.sT0)}
    s_lshl_b32 {s(R.sSrc)}, {s(sTg)}, 13
    s_add_u32 {s(R.sSrc)}, {s(R.sSrc)}, {WS_Z}
    s_mov_b32 {s(R.sSrcStep)}, 512
    s_mov_b32 {s(R.sDstStep)}, {32*4096}
    v_and_b32 {v(R.vT2)}, 31, {v(R.vL)}
    v_lshlrev_b32 {v(R.vT2)}, 7, {v(R.vT2)}
    s_lshl_b32 {s(R.sT0)}, {s(R.sWv)}, 12
    s_add_u32 {s(R.sT0)}, {s(R.sT0)}, {WS_FLAG + FLAG_F2}
    v_add_u32 {v(R.vT2)}, {s(R.sT0)}, {v(R.vT2)}
    """)
    ist()
    if its == 2:
        from attn import idump
        idump(A, R, R.vFv)
    wait_flags(A, R, "F3_w0", R.vT2, 64, 1, sGive, sCnt)
    A("s_barrier")
    if ts: tstamp(A, R, 5)
    def dma3(half, b, lds):
        return [f"s_add_u32 m0, {s(R.sM0)}, {lds}", f"s_add_u32 {s(R.sT0)}, {s(R.sSrc)}, {(half*8 + b)*8*ZCH}",
                f"buffer_load_dwordx4 {v(R.vSrc)}, {s(R.sWS,4)}, {s(R.sT0)} offen lds"]
    def store3(u):
        return [f"buffer_store_dwordx4 {v(R.vPk+4*u,4)}, {v(R.vFlag if u else R.vDst)}, {s(R.sO,4)}, {s(R.sDst)} offen"]
    stream_loop(A, R, "F3", 16, False, dma3, store3, flag=False, ttoff=256)
    A(f"s_branch {done}")
```

```python
from asmlib import *
from layout import *
SPIN = 1 << 20
sOrig, sPass, sDbg = 97, 98, 100

def entry(A, end, xmap=1):
    A(f"""s_cmp_ge_u32 s2, 256
    s_cbranch_scc1 {end}
    s_load_dwordx2 {s(sDbg,2)}, s[0:1], {KA_DBG}
    s_mov_b32 {s(sOrig)}, s2
    s_mov_b32 {s(sPass)}, 0
    s_getreg_b32 s3, hwreg(HW_REG_XCC_ID, 0, 3)""")
    if xmap == 2: A("s_and_b32 s3, s3, 6")
    A.label("role_start")
    A(f"""s_andn2_b32 s2, {s(sOrig)}, 7
    s_or_b32 s2, s2, s3""")

def register(A, sWv, sT0, sT1, vA, vB):
    L = A.newlabel("reg")
    A(f"""s_cmp_lg_u32 {s(sWv)}, 0
    s_cbranch_scc1 {L}
    s_and_b32 {s(sT0)}, s2, 3
    s_lshl_b32 {s(sT0)}, {s(sT0)}, 3
    s_lshl_b32 {s(sT1)}, {s(sPass)}, 2
    s_add_u32 {s(sT0)}, {s(sT0)}, {s(sT1)}
    s_lshl_b32 {s(sT0)}, 1, {s(sT0)}
    s_andn2_b32 {s(sT1)}, s2, 3
    v_mov_b32 {v(vA)}, {s(sT1)}
    v_mov_b32 {v(vB)}, {s(sT0)}
    s_mov_b64 exec, 1
    global_atomic_add {v(vA)}, {v(vB)}, {s(sDbg,2)} sc1
    s_mov_b64 exec, -1""")
    A.label(L)

def rdv_load(A, vL, vA, vB):
    A(f"""v_lshlrev_b32 {v(vA)}, 2, {v(vL)}
    global_load_dword {v(vB)}, {v(vA)}, {s(sDbg,2)} sc1""")

def rendezvous(A, vL, sT0, sT1, vA, vB, vC, sGive, give, sPar=None, pre=False):
    L = A.newlabel("rdv"); Lok = A.newlabel("rdvok"); Lw = A.newlabel("rdvw")
    A(f"""v_lshlrev_b32 {v(vA)}, 2, {v(vL)}
    s_mov_b32 {s(sT1)}, 0""")
    if pre: A(f"s_branch {L}p")
    A.label(L)
    A(f"""global_load_dword {v(vB)}, {v(vA)}, {s(sDbg,2)} sc1
    s_waitcnt vmcnt(0)
    {L}p:
    s_lshl_b32 {s(sT0)}, {s(sPass)}, 2
    v_lshrrev_b32 {v(vC)}, {s(sT0)}, {v(vB)}
    s_cmp_eq_u32 {s(sPass)}, 0
    s_cselect_b32 {s(sT0)}, 0x0f0f0f0f, {s(sT0)}
    s_cselect_b32 {s(sT0)}, {s(sT0)}, 0x01010101
    v_and_b32 {v(vC)}, {s(sT0)}, {v(vC)}
    v_cmp_ne_u32 vcc, 0x01010101, {v(vC)}
    s_cbranch_vccz {Lok}
    v_sad_u8 {v(vC)}, {v(vC)}, 0, 0
    s_nop 1
    v_add_u32_dpp {v(vC)}, {v(vC)}, {v(vC)} quad_perm:[1,0,3,2] row_mask:0xf bank_mask:0xf
    v_cmp_ne_u32 vcc, 8, {v(vC)}
    s_cbranch_vccnz {Lw}
    s_mov_b32 {s(sPass)}, 1
    s_and_b32 s3, {s(sOrig)}, 7
    s_waitcnt vmcnt(0) lgkmcnt(0)
    s_barrier
    s_branch role_start""")
    A.label(Lw)
    A(f"""s_sleep 4
    s_add_u32 {s(sT1)}, {s(sT1)}, 1
    s_cmp_lt_u32 {s(sT1)}, {SPIN >> 2}
    s_cbranch_scc1 {L}
    s_mov_b32 {s(sGive)}, {give}""")
    A.label(Lok)
    if sPar is not None:
        A(f"""v_and_b32 {v(vC)}, 0x40404040, {v(vB)}
        v_bcnt_u32_b32 {v(vC)}, {v(vC)}, 0
        s_mov_b32 {s(sPar)}, 0""")
        for k in range(1, 5):
            A(f"""v_cmp_le_u32 vcc, {k}, {v(vC)}
            s_bcnt1_i32_b64 {s(sT0)}, vcc
            s_add_u32 {s(sPar)}, {s(sPar)}, {s(sT0)}""")
        A(f"""s_cmp_gt_u32 {s(sPar)}, 16
        s_cselect_b32 {s(sPar)}, 8192, 0""")

def vote(A, R, sIdx):
    L = A.newlabel("vote")
    sA, sB, sC = R.sSrc, R.sDst, R.sIt
    A(f"""s_or_b32 {s(R.sT0)}, {s(R.sWv)}, {s(sPass)}
    s_cmp_lg_u32 {s(R.sT0)}, 0
    s_cbranch_scc1 {L}
    s_lshl_b32 {s(R.sT0)}, {s(sIdx)}, 14
    s_add_u32 {s(R.sT0)}, {s(R.sT0)}, {WS_CAL}
    v_lshlrev_b32 {v(R.vT0)}, 2, {v(R.vL)}
    v_add_u32 {v(R.vT0)}, {s(R.sT0)}, {v(R.vT0)}
    v_add_u32 {v(R.vT1)}, 8192, {v(R.vT0)}
    s_mov_b32 {s(sA)}, -1
    s_mov_b32 {s(sB)}, -1
    s_mov_b64 exec, 1""")
    for it in range(4):
        for va, sm in ((R.vT0, sA), (R.vT1, sB)):
            Lp = A.newlabel("vp")
            A(f"""buffer_store_dword {v(R.vL)}, {v(va)}, {s(R.sWS,4)}, 0 offen sc1
            s_mov_b32 {s(sC)}, 0""")
            A.label(Lp)
            A(f"""s_add_u32 {s(sC)}, {s(sC)}, 1
            s_getreg_b32 {s(R.sT1)}, hwreg(HW_REG_IB_STS, 0, 4)
            s_cmp_lt_u32 {s(sC)}, 2048
            s_cselect_b32 {s(R.sT1)}, {s(R.sT1)}, 0
            s_cmp_lg_u32 {s(R.sT1)}, 0
            s_cbranch_scc1 {Lp}
            s_min_u32 {s(sm)}, {s(sm)}, {s(sC)}""")
    A(f"""s_and_b32 {s(R.sT0)}, {s(sOrig)}, 3
    s_lshl_b32 {s(R.sT0)}, {s(R.sT0)}, 3
    s_lshl_b32 {s(R.sT0)}, 0x40, {s(R.sT0)}
    s_cmp_lt_u32 {s(sA)}, {s(sB)}
    s_cselect_b32 {s(R.sT0)}, {s(R.sT0)}, 0
    s_andn2_b32 {s(R.sT1)}, {s(sOrig)}, 3
    v_mov_b32 {v(R.vT0)}, {s(R.sT1)}
    v_mov_b32 {v(R.vT1)}, {s(R.sT0)}
    global_atomic_add {v(R.vT0)}, {v(R.vT1)}, {s(sDbg,2)} sc1
    s_mov_b64 exec, -1
    s_waitcnt vmcnt(0)""")
    A.label(L)
```

```python
from asmlib import *
from layout import *

class SR:
    sWS = 4
    sX = 8
    sO = 12
    sWv, sT0, sT1, sM0, sSrc, sDst, sIt, sFlagV, sSrcStep, sDstStep, sDstStep2 = range(16, 27)
    vL, vSrc, vDst, vFlag, vT0, vT1, vT2, vT3, vFv = range(1, 10)
    vRd = 10
    vFr = 20
    vAcc = 52
    vPk = 84

def pi_lane(A, dst, src, t0, t1):
    A(f"""v_and_b32 {v(dst)}, 19, {v(src)}
    v_bfe_u32 {v(t0)}, {v(src)}, 2, 1
    v_bfe_u32 {v(t1)}, {v(src)}, 3, 1
    v_lshl_add_u32 {v(dst)}, {v(t0)}, 3, {v(dst)}
    v_lshl_add_u32 {v(dst)}, {v(t1)}, 2, {v(dst)}""")

def perm16(A, dst, src, t0, with_t):
    A(f"""v_bfe_u32 {v(t0)}, {v(src)}, 2, 2
    v_and_b32 {v(dst)}, 3, {v(src)}
    v_lshl_add_u32 {v(dst)}, {v(t0)}, 3, {v(dst)}""")
    if with_t:
        A(f"""v_bfe_u32 {v(t0)}, {v(src)}, 4, 1
        v_lshl_add_u32 {v(dst)}, {v(t0)}, 2, {v(dst)}""")

def aw(t, ks): return (ks * 2 + t) * 4

NSLOT = 20
PNT = [0]
def load_weights_tr(A, R, sW, sOff, rowbytes, mid=None, pre=4, touch=0, tch=None):
    sh = rowbytes.bit_length() - 1
    A(f"""
    v_lshrrev_b32 {v(R.vT0)}, 2, {v(R.vL)}
    v_and_b32 {v(R.vT1)}, 3, {v(R.vL)}
    v_lshlrev_b32 {v(R.vT3)}, 4, {v(R.vT1)}
    v_lshl_add_u32 {v(R.vT2)}, {v(R.vT0)}, {sh}, {v(R.vT3)}
    s_mul_i32 {s(R.sM0)}, {s(R.sWv)}, {NSLOT*2048}
    """)
    def dma(j):
        for q in range(2):
            A(f"s_add_u32 m0, {s(R.sM0)}, {(j % NSLOT)*2048 + q*1024}")
            A(f"buffer_load_dwordx4 {v(R.vT2)}, {s(sW,4)}, {s(sOff)} offen{' nt' if PNT[0] & 1 else ''} lds")
            A(f"s_add_u32 {s(sOff)}, {s(sOff)}, {16*rowbytes}")
    vq = []
    def tc(c):
        if c < 8 and touch: tch(c); vq.append(-1)
    def dmat(j):
        dma(j); vq.extend([j] * 2)
    for c in range(touch): tc(c)
    for j in range(pre): dmat(j)
    A(f"""v_bfe_u32 {v(R.vT0)}, {v(R.vL)}, 2, 2
    v_lshrrev_b32 {v(R.vT1)}, 4, {v(R.vL)}
    v_lshl_add_u32 {v(R.vT0)}, {v(R.vT1)}, 3, {v(R.vT0)}
    v_lshl_add_u32 {v(R.vT3)}, {v(R.vT0)}, 6, {v(R.vT3)}
    v_add_u32 {v(R.vT3)}, {s(R.sM0)}, {v(R.vT3)}
    """)
    if mid: mid(len(vq))
    for j in range(pre, NSLOT): dmat(j)
    issued = NSLOT
    for j in range(32):
        A(f"s_waitcnt vmcnt({vq[::-1].index(j)})")
        for tt in range(2):
            for hh in range(2):
                A(f"ds_read_b64_tr_b16 {a(aw(tt, j) + 2*hh, 2)}, {v(R.vT3)} offset:{(j % NSLOT)*2048 + hh*256 + tt*8}")
        if j and issued < 32:
            A("s_waitcnt lgkmcnt(4)")
            dmat(issued); issued += 1
        elif j & 1: A("s_waitcnt lgkmcnt(7)")
    A("s_waitcnt lgkmcnt(0)")

def setup_reads(A, R):
    A(f"""
    v_and_b32 {v(R.vT0)}, 15, {v(R.vL)}
    v_bfe_u32 {v(R.vT1)}, {v(R.vL)}, 1, 3
    v_lshrrev_b32 {v(R.vT2)}, 4, {v(R.vL)}
    v_xor_b32 {v(R.vT1)}, {v(R.vT1)}, {v(R.vT2)}
    v_lshlrev_b32 {v(R.vT1)}, 4, {v(R.vT1)}
    v_lshl_add_u32 {v(R.vRd)}, {v(R.vT0)}, 7, {v(R.vT1)}
    s_lshl_b32 {s(R.sM0)}, {s(R.sWv)}, 10
    v_xor_b32 {v(R.vRd+1)}, 64, {v(R.vRd)}
    """)
    for kk in range(2): A(f"v_add_u32 {v(R.vRd+2+kk)}, 0x10000, {v(R.vRd+kk)}")

def dma_rows(A, R, vrow, vchunk):
    A(f"""
    v_lshrrev_b32 {v(vrow)}, 3, {v(R.vL)}
    s_lshl_b32 {s(R.sT0)}, {s(R.sWv)}, 3
    v_add_u32 {v(vrow)}, {s(R.sT0)}, {v(vrow)}
    v_bfe_u32 {v(vchunk)}, {v(vrow)}, 1, 3
    v_xor_b32 {v(vchunk)}, {v(vchunk)}, {v(R.vL)}
    v_and_b32 {v(vchunk)}, 7, {v(vchunk)}
    """)

def stream_loop(A, R, name, nseg, vtype, dma, store, flag=True, scale=None, loader=False, ttoff=2048, extra=None):
    def dm(H, b):
        return dma(H & 1, b, (H & 3) * 32768 + b * 4096)
    def rd(H, i):
        sl = H & 3; b = i >> 2; kk = (i >> 1) & 1; tt = i & 1
        return f"ds_read_b128 {v(R.vFr + 4*(i & 7), 4)}, {v(R.vRd + kk + 2*(sl >> 1))} offset:{(sl & 1)*32768 + b*4096 + tt*ttoff}"
    adv = [f"s_add_u32 {s(R.sSrc)}, {s(R.sSrc)}, {s(R.sSrcStep)}"]
    top = f"{name}_top"; ent = f"{name}_ent"
    nst = 2
    if loader: flag = False; nst = 0
    def epi(acc):
        o = []
        for r in range(8):
            if scale is not None:
                o.append([f"v_mul_f32 {v(acc+2*r)}, {scale}, {v(acc+2*r)}", f"v_mul_f32 {v(acc+2*r+1)}, {scale}, {v(acc+2*r+1)}",
                          f"v_cvt_pk_bf16_f32 {v(R.vPk+r)}, {v(acc+2*r)}, {v(acc+2*r+1)}"])
            else:
                o.append([f"v_cvt_pk_bf16_f32 {v(R.vPk+r)}, {v(acc+2*r)}, {v(acc+2*r+1)}"])
        return o
    def flagst():
        return [f"v_mov_b32 {v(R.vFv)}, {s(R.sFlagV)}", f"s_add_u32 {s(R.sFlagV)}, {s(R.sFlagV)}, 1",
                f"buffer_store_dword {v(R.vFv)}, {v(R.vFlag)}, {s(R.sWS,4)}, 0 offen sc1"]
    A(f"""s_mov_b32 {s(R.sDstStep2)}, {s(R.sDstStep)}
    s_sub_u32 {s(R.sDstStep)}, {s(R.sDst)}, {OOB}
    s_mov_b32 {s(R.sDst)}, {OOB}
    s_mov_b32 {s(R.sFlagV)}, 0
    s_mov_b32 {s(R.sIt)}, 0""")
    for H in range(3):
        for b in range(8 if H < 2 else 3):
            for x in dm(H, b): A(x)
        if H == 1:
            for x in adv: A(x)
    if flag:
        for x in flagst(): A(x)
        A(f"s_mov_b32 {s(R.sFlagV)}, 0")
    A(f"s_waitcnt vmcnt({12 if flag else 11})")
    A("s_barrier")
    if not loader:
        for i in range(7): A(rd(0, i))
    A(".p2align 6")
    A.label(top)
    for H in range(4):
        acc = R.vAcc + 16 * (H >> 1); pacc = R.vAcc + 16 * (1 - (H >> 1))
        fill = {i: [] for i in range(32)}
        for k, b in enumerate(range(3, 8)): fill[1 + 2*k] += dm(H + 2, b)
        if H & 1: fill[10] += adv
        for k, b in enumerate(range(3)): fill[26 + 2*k] += dm(H + 3, b)
        if loader: pass
        elif not (H & 1):
            e = epi(pacc)
            for r in range(8): fill[10 + r] += e[r]
            fill[15] += store(0); fill[19] += store(1)
            fill[20] += [f"s_add_u32 {s(R.sDst)}, {s(R.sDst)}, {s(R.sDstStep)}", f"s_mov_b32 {s(R.sDstStep)}, {s(R.sDstStep2)}"]
        elif flag:
            fill[27] += flagst()
        inflight = 8 + (nst + (1 if flag else 0) if not (H & 1) else 0)
        if extra and (H == 0 or callable(extra)):
            ex = extra(H) if callable(extra) else extra
            fill[22] += ex; inflight += sum(x.startswith('buffer_') for x in ex)
        for i in range(32):
            if loader:
                if i == 25:
                    A(f"s_waitcnt vmcnt({inflight})")
                    A("s_barrier")
                for x in fill[i]: A(x)
                continue
            A(f"s_waitcnt lgkmcnt(6)")
            x = v(R.vFr + 4 * (i & 7), 4); tt = i & 1; ks = (H & 1) * 16 + (i >> 1)
            for t in range(2):
                w = a(aw(t, ks), 4)
                d = v(acc + (t*8 + tt*4 if vtype else tt*8 + t*4), 4)
                A(f"v_mfma_f32_16x16x32_bf16 {d}, {x if vtype else w}, {w if vtype else x}, {0 if ks == 0 else d}")
                if t == 0:
                    if i == 25:
                        A(f"s_waitcnt vmcnt({inflight})")
                        A("s_barrier")
                    A(rd(H, i + 7) if i + 7 < 32 else rd(H + 1, i + 7 - 32))
                    if fill[i] and fill[i][0].startswith("s_add_u32 m0"): A(fill[i].pop(0))
            for x in fill[i]: A(x)
    A(f"""s_add_u32 {s(R.sIt)}, {s(R.sIt)}, 2
    s_cmp_lt_u32 {s(R.sIt)}, {nseg}
    s_cbranch_scc1 {top}""")
    if loader:
        A("s_waitcnt vmcnt(0)")
        return
    for e in epi(R.vAcc + 16):
        for x in e: A(x)
    for x in store(0) + store(1): A(x)
    A("s_waitcnt vmcnt(0) lgkmcnt(0)")
    if flag:
        for x in flagst(): A(x)

def gen_P(A, sMat, sHead, done, ts=False, rdv=None, mid=None, pre=4, touch=1, prr=0):
    R = SR
    sP = 28
    A(f"""
    s_load_dwordx2 {s(R.sO,2)}, s[0:1], {KA_WQ}
    s_load_dwordx2 {s(sP,2)}, s[0:1], {KA_WK}
    s_load_dwordx2 {s(sP+2,2)}, s[0:1], {KA_WV}
    s_load_dwordx2 {s(R.sX,2)}, s[0:1], {KA_BX}
    s_mov_b32 {s(R.sX+2)}, {4*MB}
    s_mov_b32 {s(R.sX+3)}, 0x20000
    s_mov_b32 {s(R.sO+2)}, {8*MB}
    s_mov_b32 {s(R.sO+3)}, 0x20000
    s_waitcnt lgkmcnt(0)
    s_cmp_eq_u32 {s(sMat)}, 1
    s_cselect_b64 {s(R.sO,2)}, {s(sP,2)}, {s(R.sO,2)}
    s_cmp_eq_u32 {s(sMat)}, 2
    s_cselect_b64 {s(R.sO,2)}, {s(sP+2,2)}, {s(R.sO,2)}
    s_lshl_b32 {s(sP)}, {s(sHead)}, 2
    s_add_u32 {s(sP)}, {s(sP)}, {s(R.sWv)}          ; blk
    s_lshl_b32 {s(R.sSrc)}, {s(sP)}, 6
    """)
    def tch(c):
        A(f"""s_and_b32 {s(R.sT0)}, {s(sHead)}, 3
        s_lshl_b32 {s(R.sT0)}, {s(R.sT0)}, 8
        v_add_lshl_u32 {v(R.vSrc)}, v0, {s(R.sT0)}, 13
        s_andn2_b32 {s(R.sT0)}, {s(sHead)}, 3
        s_lshl_b32 {s(R.sT0)}, {s(R.sT0)}, 8
        buffer_load_dword v253, {v(R.vSrc)}, {s(R.sO,4)}, {s(R.sT0)} offen offset:384""")
    load_weights_tr(A, R, R.sO, R.sSrc, 8192, mid, pre, touch, tch)
    if rdv: rdv()
    if ts: tstamp(A, R, 1)
    setup_reads(A, R)
    dma_rows(A, R, R.vT2, R.vT3)
    perm16(A, R.vSrc, R.vT2, R.vT0, True)
    perm16(A, R.vDst, R.vL, R.vT0, False)
    A(f"""
    v_lshlrev_b32 {v(R.vSrc)}, 11, {v(R.vSrc)}
    v_lshl_add_u32 {v(R.vSrc)}, {v(R.vT3)}, 4, {v(R.vSrc)}
    v_and_b32 {v(R.vT0)}, {48 - 32 * QL[0]}, {v(R.vL)}
    v_lshl_add_u32 {v(R.vDst)}, {v(R.vDst)}, {6 - QL[0]}, {v(R.vT0)}
    v_and_b32 {v(R.vT0)}, {32 * QL[0]}, {v(R.vL)}
    v_lshl_add_u32 {v(R.vDst)}, {v(R.vT0)}, 5, {v(R.vDst)}
    s_mul_i32 {s(R.sDst)}, {s(sP)}, {BLK}
    s_mul_i32 {s(R.sT1)}, {s(sMat)}, {QKV_STRIDE}
    s_add_u32 {s(R.sDst)}, {s(R.sDst)}, {s(R.sT1)}
    s_lshl_b32 {s(R.sT1)}, {s(sMat)}, 7
    s_add_u32 {s(R.sT0)}, {s(sP)}, {s(R.sT1)}
    s_lshl_b32 {s(R.sT0)}, {s(R.sT0)}, 7
    s_add_u32 {s(R.sT0)}, {s(R.sT0)}, {WS_FLAG + FLAG_P}
    v_mov_b32 {v(R.vFlag)}, {s(R.sT0)}
    v_mov_b32 {v(R.vT0)}, {OOB}
    v_cmp_eq_u32 vcc, 0, {v(R.vL)}
    v_cndmask_b32 {v(R.vFlag)}, {v(R.vT0)}, {v(R.vFlag)}, vcc
    v_lshlrev_b32 v252, 7, {v(R.vL)}
    s_cmp_eq_u32 {s(sMat)}, 0
    s_cselect_b32 {s(R.sSrc)}, 0, 32
    v_cmp_gt_u32 vcc, {s(R.sSrc)}, {v(R.vL)}
    v_cndmask_b32 v252, {v(R.vT0)}, v252, vcc
    s_mov_b32 {s(R.sSrc)}, 0
    s_mov_b32 {s(R.sSrcStep)}, 65536
    s_mov_b32 {s(R.sDstStep)}, 2048
    s_barrier
    s_cmp_eq_u32 {s(sMat)}, 2
    s_cbranch_scc1 P_v
    """)
    def dma(half, b, lds):
        off = half * 1024 + b * 128
        return [f"s_add_u32 m0, {s(R.sM0)}, {lds - off}", f"buffer_load_dwordx4 {v(R.vSrc)}, {s(R.sX,4)}, {s(R.sSrc)} offen offset:{off} lds"]
    def store(u):
        return [f"buffer_store_dwordx4 {v(R.vPk+4*u,4)}, {v(R.vDst)}, {s(R.sWS,4)}, {s(R.sDst)} offen offset:{(256 >> QL[0])*u} sc1"]
    ex = None
    if prr:
        ex = [f"s_sub_u32 {s(sP+1)}, {s(R.sDst)}, {2048 * (prr & 15)}", f"s_cmp_ge_u32 {s(R.sIt)}, {(prr & 15) + 1}", f"s_cselect_b32 {s(sP+1)}, {s(sP+1)}, {OOB}",
              f"buffer_load_dword v253, v252, {s(R.sWS,4)}, {s(sP+1)} offen{' sc1' if prr < 16 else ' sc0 sc1'}"]
    stream_loop(A, R, "P_qk", 64, False, dma, store, extra=ex)
    A(f"s_branch {done}")
    A.label("P_v")
    stream_loop(A, R, "P_v", 64, True, dma, store, extra=ex)
    A(f"s_branch {done}")

def common_entry(A, R, nwg, end):
    A(f"""
    s_cmp_ge_u32 s2, {nwg}
    s_cbranch_scc1 {end}
    s_load_dwordx2 {s(R.sWS,2)}, s[0:1], {KA_WS}
    v_lshrrev_b32 {v(R.vT0)}, 6, v0
    v_and_b32 {v(R.vL)}, 63, v0
    v_readfirstlane_b32 {s(R.sWv)}, {v(R.vT0)}
    s_mov_b32 {s(R.sWS+2)}, {WS_BYTES}
    s_mov_b32 {s(R.sWS+3)}, 0x20000
    s_waitcnt lgkmcnt(0)
    """)

def tstamp(A, R, k, sT=74, vt=252):
    A(f"""s_memrealtime {s(sT,2)}
    s_memtime {s(sT+2,2)}
    s_lshl_b32 {s(sT+4)}, s2, 2
    s_add_u32 {s(sT+4)}, {s(sT+4)}, {s(R.sWv)}
    s_lshl_b32 {s(sT+4)}, {s(sT+4)}, 6
    s_add_u32 {s(sT+4)}, {s(sT+4)}, {WS_STAMP + 12*MB + 8*k}
    s_waitcnt lgkmcnt(0)
    v_mov_b32 {v(vt+2)}, {s(sT)}
    v_mov_b32 {v(vt+3)}, {s(sT+2)}
    v_mov_b32 {v(vt)}, 0
    buffer_store_dwordx2 {v(vt+2,2)}, {v(vt)}, {s(R.sWS,4)}, {s(sT+4)} offen
    s_waitcnt vmcnt(0)""")
```

```python
import sys
from build import *
from stream import *
from attn import *
from fft import *
import os
if os.environ.get("R7"): from recur7 import gen_recur
else: from recur6 import gen_recur
from proto import *

def dbgdump(A, sWS, sWv, sel, base, mask):
    L = A.newlabel("dd")
    A(f"""s_cmp_lg_u32 s2, {sel}
    s_cbranch_scc1 {L}
    s_cmp_lg_u32 {s(sWv)}, 0
    s_cbranch_scc1 {L}
    s_mov_b64 exec, {mask}
    v_lshlrev_b32 v10, 3, v0
    v_add_u32 v10, {WS_STAMP + 12*MB + sel*256}, v10
    buffer_load_dword v11, v10, {s(sWS,4)}, 0 offen sc1
    v_mbcnt_lo_u32_b32 v12, {mask}, 0
    v_add_lshl_u32 v12, v12, {base}, 2
    s_waitcnt vmcnt(0)
    global_store_dword v12, v11, {s(sDbg,2)} sc1
    s_waitcnt vmcnt(0)""".replace(f"v_mbcnt_lo_u32_b32 v12, {mask}, 0", f"v_mbcnt_lo_u32_b32 v12, exec_lo, 0"))
    A.label(L)

def gen(ts=False, notu=0, **kw):
    A = Asm(); R = SR
    PNT[0] = kw.pop("pnt", 0); QL[0] = kw.pop("ql", 1)
    sG, sI, sGive, sCu, sSide = 90, 91, 92, 93, 89
    os_ = kw.pop('os', 1)
    entry(A, "W_end", kw.pop("xmap", 1))
    A("""s_bitcmp1_b32 s3, 2
    s_cbranch_scc0 R_entry""")
    common_entry(A, R, 256, "W_end")
    if ts: tstamp(A, R, 0)
    A(f"""s_lshr_b32 {s(sG)}, s2, 6
    s_bfe_u32 {s(sI)}, s2, 0x30003
    s_lshl_b32 {s(sI)}, {s(sI)}, 2
    s_and_b32 {s(R.sT0)}, s3, 3
    s_add_u32 {s(sI)}, {s(sI)}, {s(R.sT0)}
    s_lshl_b32 {s(sCu)}, {s(R.sT0)}, 3
    s_lshr_b32 {s(R.sT0)}, {s(sI)}, 2
    s_add_u32 {s(sCu)}, {s(sCu)}, {s(R.sT0)}
    s_mov_b32 {s(sGive)}, 0
    s_lshl_b32 {s(R.sT0)}, {s(sCu)}, 2
    s_add_u32 {s(R.sT0)}, {s(R.sT0)}, {s(R.sWv)}            ; 4 idx + w
    s_lshl_b32 {s(R.sT1)}, {s(sG)}, 7
    s_add_u32 {s(R.sT1)}, {s(R.sT1)}, {s(R.sT0)}
    s_lshl_b32 {s(R.sT1)}, {s(R.sT1)}, 7
    s_add_u32 {s(R.sT1)}, {s(R.sT1)}, {WS_FLAG + FLAG_P}
    s_lshl_b32 {s(R.sSrc)}, {s(R.sT0)}, 7
    s_add_u32 {s(R.sSrc)}, {s(R.sSrc)}, {WS_FLAG + FLAG_T}
    s_cmp_eq_u32 {s(sG)}, 3
    s_cselect_b32 {s(R.sT1)}, {s(R.sSrc)}, {s(R.sT1)}
    s_cselect_b64 exec, 7, 1
    v_mov_b32 {v(R.vT0)}, {s(R.sT1)}
    s_and_b32 {s(R.sT1)}, {s(R.sT0)}, 31
    s_lshl_b32 {s(R.sT1)}, {s(R.sT1)}, 2
    s_lshr_b32 {s(R.sSrc)}, {s(sCu)}, 3
    s_add_u32 {s(R.sT1)}, {s(R.sT1)}, {s(R.sSrc)}
    s_lshl_b32 {s(R.sT1)}, {s(R.sT1)}, 7
    s_add_u32 {s(R.sT1)}, {s(R.sT1)}, {WS_FLAG + FLAG_F}
    v_writelane_b32 {v(R.vT0)}, {s(R.sT1)}, 1
    s_lshl_b32 {s(R.sT1)}, {s(R.sT0)}, 7
    s_add_u32 {s(R.sT1)}, {s(R.sT1)}, {WS_FLAG + FLAG_F2}
    v_writelane_b32 {v(R.vT0)}, {s(R.sT1)}, 2
    v_mov_b32 {v(R.vT1)}, 0
    buffer_store_dword {v(R.vT1)}, {v(R.vT0)}, {s(R.sWS,4)}, 0 offen sc1
    s_mov_b64 exec, -1
    s_cmp_eq_u32 {s(sG)}, 3
    s_cbranch_scc1 W_F
    s_load_dwordx2 {s(R.sX,2)}, s[0:1], {KA_BX}
    s_mov_b32 {s(R.sX+2)}, {4*MB}
    s_mov_b32 {s(R.sX+3)}, 0x20000
    s_lshr_b32 {s(R.sT0)}, s2, 3
    s_lshl_b32 {s(R.sT0)}, {s(R.sT0)}, 15
    v_lshlrev_b32 {v(R.vT0)}, 7, v0
    s_waitcnt lgkmcnt(0)
    buffer_load_dword v254, {v(R.vT0)}, {s(R.sX,4)}, {s(R.sT0)} offen""")
    def rdv(): rendezvous(A, R.vL, R.sT0, R.sT1, R.vT0, R.vT1, R.vFv, sGive, SPIN, sSide)
    def reg(n):
        A(f"""s_waitcnt vmcnt({n})
        s_barrier""")
        register(A, R.sWv, R.sT0, R.sT1, R.vT0, R.vT1)
    qlate = kw.pop("qlate", 1)
    def notq(f):
        def g(*x):
            L = A.newlabel("nq")
            if qlate: A(f"""s_cmp_eq_u32 {s(sG)}, 0
            s_cbranch_scc1 {L}""")
            f(*x)
            A.label(L)
        return g
    if qlate:
        A(f"""s_cmp_lg_u32 {s(sG)}, 0
        s_cbranch_scc1 W_P""")
        A("""s_waitcnt vmcnt(0)
        s_barrier""")
        vote(A, R, sI)
        reg(0)
        A.label("W_P")
    touch = kw.pop("ptouch", 1)
    gen_P(A, sG, sCu, "W_U", ts=ts, mid=notq(lambda n: (reg(n + 1), A('s_barrier'))), pre=kw.pop('ppre', 2), touch=touch, prr=kw.pop('prr', 0), alt=kw.pop('palt', 0))
    A.label("W_U")
    rdv()
    if ts: tstamp(A, R, 2)
    if notu & 1: A("s_branch W_fin")
    gen_U64(A, sG, sCu, "W_fin", sGive, ts=ts, usl=kw.pop("usl", 2), touch=kw.pop("utouch", 2), rot=kw.pop("rot", 0), tpf=kw.pop("tpf", 0), its=kw.get("its", 0), early=kw.get("tearly", 0), gsh=kw.pop("gsh", 2), csp=kw.pop("csp", 0), fl=kw.pop("fl", 1), os_=os_, sSide=sSide, um=kw.pop('um', 24))
    A.label("W_F")
    if not qlate:
        A("""s_waitcnt vmcnt(0)
        s_barrier""")
        vote(A, R, sI)
    reg(0)
    ft = kw.pop("ft", 0)
    def ftouch():
        A(f"""s_load_dwordx2 {s(R.sX,2)}, s[0:1], {KA_WO}
        s_load_dwordx2 {s(R.sO,2)}, s[0:1], {KA_WQ}
        s_mov_b32 {s(R.sX+2)}, {8*MB}
        s_mov_b32 {s(R.sX+3)}, 0x20000
        s_mov_b32 {s(R.sO+2)}, {8*MB}
        s_mov_b32 {s(R.sO+3)}, 0x20000
        s_lshl_b32 {s(R.sT0)}, {s(sCu)}, 18
        v_lshlrev_b32 {v(R.vT0)}, 7, v0
        s_waitcnt lgkmcnt(0)""")
        for k in range(8):
            if ft & 2: A(f"buffer_load_dword {v(220+k)}, {v(R.vT0)}, {s(R.sO,4)}, {s(R.sT0)} offen")
            if ft & 1: A(f"buffer_load_dword {v(228+k)}, {v(R.vT0)}, {s(R.sX,4)}, {s(R.sT0)} offen")
            A(f"s_add_u32 {s(R.sT0)}, {s(R.sT0)}, 32768")
    if ft & 3 and not ft & 4: ftouch()
    gen_F(A, sCu, "W_T", sGive, hook=ftouch if ft & 4 else None, rdv=rdv, ts=ts, wt0=kw.pop("wt0", 5), stg=kw.pop("stg", 0), at=kw.pop("at", 4), xs=kw.pop("xs", 0), ai=kw.pop("ai", 1), wl=kw.pop("wl", 0), sk=kw.pop("sk", 1), its=kw.get("its", 0))
    A.label("W_T")
    if ts: tstamp(A, R, 6)
    if notu & 2: A("s_branch W_fin")
    gen_T(A, sCu, "W_fin", sGive, early=kw.pop("tearly", 0), os_=os_, sPar=sSide, **{k: kw.pop(k) for k in ("tfree", "tpat", "its", "tl", "tsl") if k in kw})
    A.label("W_fin")
    if ts: tstamp(A, R, 7)
    if ts == 2:
        dbgdump(A, R.sWS, R.sWv, 64 + 12, 3, 0x8f); dbgdump(A, R.sWS, R.sWv, 192 + 12, 8, 0xff)
    A.label("W_end")
    A("s_endpgm")
    A.label("R_entry")
    class RR: sWS = 4; sWv = 14
    def rts(k):
        tstamp(A, RR, k, vt=112 if os.environ.get("R7") else 248)
        if ts == 2 and k == 2: dbgdump(A, RR.sWS, RR.sWv, 8, 0, 7)
    gen_recur(A, ts=rts if ts else None, **kw)
    return A

if __name__ == "__main__":
    kw = {}
    for x in sys.argv[2:]:
        k, val = x.split("="); kw[k] = int(val, 0)
    A = gen(**kw)
    name = NAME + "_kernel"
    txt = assemble_file([(name, 256, 256, LDS_BYTES)], [kernel_text(name, A)])
    open(sys.argv[1], "w").write(txt)
```

```python
from asmlib import *
from layout import *

class SR:
    sWS = 4
    sX = 8
    sO = 12
    sWv, sT0, sT1, sM0, sSrc, sDst, sIt, sFlagV, sSrcStep, sDstStep, sDstStep2 = range(16, 27)
    vL, vSrc, vDst, vFlag, vT0, vT1, vT2, vT3, vFv = range(1, 10)
    vRd = 10
    vFr = 20
    vAcc = 52
    vPk = 84

def pi_lane(A, dst, src, t0, t1):
    A(f"""v_and_b32 {v(dst)}, 19, {v(src)}
    v_bfe_u32 {v(t0)}, {v(src)}, 2, 1
    v_bfe_u32 {v(t1)}, {v(src)}, 3, 1
    v_lshl_add_u32 {v(dst)}, {v(t0)}, 3, {v(dst)}
    v_lshl_add_u32 {v(dst)}, {v(t1)}, 2, {v(dst)}""")

def perm16(A, dst, src, t0, with_t):
    A(f"""v_bfe_u32 {v(t0)}, {v(src)}, 2, 2
    v_and_b32 {v(dst)}, 3, {v(src)}
    v_lshl_add_u32 {v(dst)}, {v(t0)}, 3, {v(dst)}""")
    if with_t:
        A(f"""v_bfe_u32 {v(t0)}, {v(src)}, 4, 1
        v_lshl_add_u32 {v(dst)}, {v(t0)}, 2, {v(dst)}""")

def aw(t, ks): return (ks * 2 + t) * 4

NSLOT = 20
PNT = [0]
def load_weights_tr(A, R, sW, sOff, rowbytes, mid=None, pre=4, touch=0, tch=None, alt=0):
    sh = rowbytes.bit_length() - 1
    A(f"""
    v_lshrrev_b32 {v(R.vT0)}, 2, {v(R.vL)}
    v_and_b32 {v(R.vT1)}, 3, {v(R.vL)}
    v_lshlrev_b32 {v(R.vT3)}, 4, {v(R.vT1)}
    v_lshl_add_u32 {v(R.vT2)}, {v(R.vT0)}, {sh}, {v(R.vT3)}
    s_mul_i32 {s(R.sM0)}, {s(R.sWv)}, {NSLOT*2048}
    """)
    Lo = A.newlabel("wodd"); Le = A.newlabel("weven")
    if alt: A(f"""s_bitcmp1_b32 {s(R.sWv)}, 0
    s_cbranch_scc1 {Lo}""")
    for odd in range(2 if alt else 1):
        if odd: A(f"""s_branch {Le}
        {Lo}:
        s_add_u32 {s(sOff)}, {s(sOff)}, {alt*32*rowbytes}""")
        def dma(j):
            for q in range(2):
                A(f"s_add_u32 m0, {s(R.sM0)}, {(j % NSLOT)*2048 + q*1024}")
                A(f"buffer_load_dwordx4 {v(R.vT2)}, {s(sW,4)}, {s(sOff)} offen{' nt' if PNT[0] & 1 else ''} lds")
                A(f"s_add_u32 {s(sOff)}, {s(sOff)}, {(16*rowbytes - (1024*rowbytes if odd and q and j == 31 - alt else 0)) & 0xffffffff}")
        vq = []
        def tc(c):
            if c < 8 and touch: tch(c); vq.append(-1)
        def dmat(j):
            dma(j); vq.extend([j] * 2)
        for c in range(touch): tc(c)
        for j in range(pre): dmat(j)
        A(f"""v_bfe_u32 {v(R.vT0)}, {v(R.vL)}, 2, 2
        v_lshrrev_b32 {v(R.vT1)}, 4, {v(R.vL)}
        v_lshl_add_u32 {v(R.vT0)}, {v(R.vT1)}, 3, {v(R.vT0)}
        v_lshl_add_u32 {v(R.vT3)}, {v(R.vT0)}, 6, {v(R.vT3)}
        v_add_u32 {v(R.vT3)}, {s(R.sM0)}, {v(R.vT3)}
        """)
        if mid: mid(len(vq))
        for j in range(pre, NSLOT): dmat(j)
        issued = NSLOT
        for j in range(32):
            A(f"s_waitcnt vmcnt({vq[::-1].index(j)})")
            for tt in range(2):
                for hh in range(2):
                    A(f"ds_read_b64_tr_b16 {a(aw(tt, (j + alt * odd) & 31) + 2*hh, 2)}, {v(R.vT3)} offset:{(j % NSLOT)*2048 + hh*256 + tt*8}")
            if j and issued < 32:
                A("s_waitcnt lgkmcnt(4)")
                dmat(issued); issued += 1
            elif j & 1: A("s_waitcnt lgkmcnt(7)")
        A("s_waitcnt lgkmcnt(0)")
    A.label(Le)

def setup_reads(A, R):
    A(f"""
    v_and_b32 {v(R.vT0)}, 15, {v(R.vL)}
    v_bfe_u32 {v(R.vT1)}, {v(R.vL)}, 1, 3
    v_lshrrev_b32 {v(R.vT2)}, 4, {v(R.vL)}
    v_xor_b32 {v(R.vT1)}, {v(R.vT1)}, {v(R.vT2)}
    v_lshlrev_b32 {v(R.vT1)}, 4, {v(R.vT1)}
    v_lshl_add_u32 {v(R.vRd)}, {v(R.vT0)}, 7, {v(R.vT1)}
    s_lshl_b32 {s(R.sM0)}, {s(R.sWv)}, 10
    v_xor_b32 {v(R.vRd+1)}, 64, {v(R.vRd)}
    """)
    for kk in range(2): A(f"v_add_u32 {v(R.vRd+2+kk)}, 0x10000, {v(R.vRd+kk)}")

def dma_rows(A, R, vrow, vchunk):
    A(f"""
    v_lshrrev_b32 {v(vrow)}, 3, {v(R.vL)}
    s_lshl_b32 {s(R.sT0)}, {s(R.sWv)}, 3
    v_add_u32 {v(vrow)}, {s(R.sT0)}, {v(vrow)}
    v_bfe_u32 {v(vchunk)}, {v(vrow)}, 1, 3
    v_xor_b32 {v(vchunk)}, {v(vchunk)}, {v(R.vL)}
    v_and_b32 {v(vchunk)}, 7, {v(vchunk)}
    """)

def stream_loop(A, R, name, nseg, vtype, dma, store, flag=True, scale=None, loader=False, ttoff=2048, extra=None, extra2=None):
    def dm(H, b):
        return dma(H & 1, b, (H & 3) * 32768 + b * 4096)
    def rd(H, i):
        sl = H & 3; b = i >> 2; kk = (i >> 1) & 1; tt = i & 1
        return f"ds_read_b128 {v(R.vFr + 4*(i & 7), 4)}, {v(R.vRd + kk + 2*(sl >> 1))} offset:{(sl & 1)*32768 + b*4096 + tt*ttoff}"
    adv = [f"s_add_u32 {s(R.sSrc)}, {s(R.sSrc)}, {s(R.sSrcStep)}"]
    top = f"{name}_top"; ent = f"{name}_ent"
    nst = 2
    if loader: flag = False; nst = 0
    def epi(acc):
        o = []
        for r in range(8):
            if scale is not None:
                o.append([f"v_mul_f32 {v(acc+2*r)}, {scale}, {v(acc+2*r)}", f"v_mul_f32 {v(acc+2*r+1)}, {scale}, {v(acc+2*r+1)}",
                          f"v_cvt_pk_bf16_f32 {v(R.vPk+r)}, {v(acc+2*r)}, {v(acc+2*r+1)}"])
            else:
                o.append([f"v_cvt_pk_bf16_f32 {v(R.vPk+r)}, {v(acc+2*r)}, {v(acc+2*r+1)}"])
        return o
    def flagst():
        return [f"v_mov_b32 {v(R.vFv)}, {s(R.sFlagV)}", f"s_add_u32 {s(R.sFlagV)}, {s(R.sFlagV)}, 1",
                f"buffer_store_dword {v(R.vFv)}, {v(R.vFlag)}, {s(R.sWS,4)}, 0 offen sc1"]
    A(f"""s_mov_b32 {s(R.sDstStep2)}, {s(R.sDstStep)}
    s_sub_u32 {s(R.sDstStep)}, {s(R.sDst)}, {OOB}
    s_mov_b32 {s(R.sDst)}, {OOB}
    s_mov_b32 {s(R.sFlagV)}, 0
    s_mov_b32 {s(R.sIt)}, 0""")
    for H in range(3):
        for b in range(8 if H < 2 else 3):
            for x in dm(H, b): A(x)
        if H == 1:
            for x in adv: A(x)
    if flag:
        for x in flagst(): A(x)
        A(f"s_mov_b32 {s(R.sFlagV)}, 0")
    A(f"s_waitcnt vmcnt({12 if flag else 11})")
    A("s_barrier")
    if not loader:
        for i in range(7): A(rd(0, i))
    A(".p2align 6")
    A.label(top)
    for H in range(4):
        acc = R.vAcc + 16 * (H >> 1); pacc = R.vAcc + 16 * (1 - (H >> 1))
        fill = {i: [] for i in range(32)}
        for k, b in enumerate(range(3, 8)): fill[1 + 2*k] += dm(H + 2, b)
        if H & 1: fill[10] += adv
        for k, b in enumerate(range(3)): fill[26 + 2*k] += dm(H + 3, b)
        if loader: pass
        elif not (H & 1):
            e = epi(pacc)
            for r in range(8): fill[10 + r] += e[r]
            fill[15] += store(0); fill[19] += store(1)
            fill[20] += [f"s_add_u32 {s(R.sDst)}, {s(R.sDst)}, {s(R.sDstStep)}", f"s_mov_b32 {s(R.sDstStep)}, {s(R.sDstStep2)}"]
        elif flag:
            fill[27] += flagst()
        inflight = 8 + (nst + (1 if flag else 0) if not (H & 1) else 0)
        if extra and (H == 0 or callable(extra)):
            ex = extra(H) if callable(extra) else extra
            fill[22] += ex; inflight += sum(x.startswith('buffer_') for x in ex)
        for i, ex in (extra2(H) if extra2 else []):
            fill[i] += ex; inflight += sum(x.startswith('buffer_') for x in ex)
        for i in range(32):
            if loader:
                if i == 25:
                    A(f"s_waitcnt vmcnt({inflight})")
                    A("s_barrier")
                for x in fill[i]: A(x)
                continue
            A(f"s_waitcnt lgkmcnt(6)")
            x = v(R.vFr + 4 * (i & 7), 4); tt = i & 1; ks = (H & 1) * 16 + (i >> 1)
            for t in range(2):
                w = a(aw(t, ks), 4)
                d = v(acc + (t*8 + tt*4 if vtype else tt*8 + t*4), 4)
                A(f"v_mfma_f32_16x16x32_bf16 {d}, {x if vtype else w}, {w if vtype else x}, {0 if ks == 0 else d}")
                if t == 0:
                    if i == 25:
                        A(f"s_waitcnt vmcnt({inflight})")
                        A("s_barrier")
                    A(rd(H, i + 7) if i + 7 < 32 else rd(H + 1, i + 7 - 32))
                    if fill[i] and fill[i][0].startswith("s_add_u32 m0"): A(fill[i].pop(0))
            for x in fill[i]: A(x)
    A(f"""s_add_u32 {s(R.sIt)}, {s(R.sIt)}, 2
    s_cmp_lt_u32 {s(R.sIt)}, {nseg}
    s_cbranch_scc1 {top}""")
    if loader:
        A("s_waitcnt vmcnt(0)")
        return
    for e in epi(R.vAcc + 16):
        for x in e: A(x)
    for x in store(0) + store(1): A(x)
    A("s_waitcnt vmcnt(0) lgkmcnt(0)")
    if flag:
        for x in flagst(): A(x)

def gen_P(A, sMat, sHead, done, ts=False, rdv=None, mid=None, pre=4, touch=1, prr=0, alt=0):
    R = SR
    sP = 28
    A(f"""
    s_load_dwordx2 {s(R.sO,2)}, s[0:1], {KA_WQ}
    s_load_dwordx2 {s(sP,2)}, s[0:1], {KA_WK}
    s_load_dwordx2 {s(sP+2,2)}, s[0:1], {KA_WV}
    s_load_dwordx2 {s(R.sX,2)}, s[0:1], {KA_BX}
    s_mov_b32 {s(R.sX+2)}, {4*MB}
    s_mov_b32 {s(R.sX+3)}, 0x20000
    s_mov_b32 {s(R.sO+2)}, {8*MB}
    s_mov_b32 {s(R.sO+3)}, 0x20000
    s_waitcnt lgkmcnt(0)
    s_cmp_eq_u32 {s(sMat)}, 1
    s_cselect_b64 {s(R.sO,2)}, {s(sP,2)}, {s(R.sO,2)}
    s_cmp_eq_u32 {s(sMat)}, 2
    s_cselect_b64 {s(R.sO,2)}, {s(sP+2,2)}, {s(R.sO,2)}
    s_lshl_b32 {s(sP)}, {s(sHead)}, 2
    s_add_u32 {s(sP)}, {s(sP)}, {s(R.sWv)}          ; blk
    s_lshl_b32 {s(R.sSrc)}, {s(sP)}, 6
    """)
    def tch(c):
        A(f"""s_and_b32 {s(R.sT0)}, {s(sHead)}, 3
        s_lshl_b32 {s(R.sT0)}, {s(R.sT0)}, 8
        v_add_lshl_u32 {v(R.vSrc)}, v0, {s(R.sT0)}, 13
        s_andn2_b32 {s(R.sT0)}, {s(sHead)}, 3
        s_lshl_b32 {s(R.sT0)}, {s(R.sT0)}, 8
        buffer_load_dword v253, {v(R.vSrc)}, {s(R.sO,4)}, {s(R.sT0)} offen offset:384""")
    load_weights_tr(A, R, R.sO, R.sSrc, 8192, mid, pre, touch, tch, alt)
    if rdv: rdv()
    if ts: tstamp(A, R, 1)
    setup_reads(A, R)
    dma_rows(A, R, R.vT2, R.vT3)
    perm16(A, R.vSrc, R.vT2, R.vT0, True)
    perm16(A, R.vDst, R.vL, R.vT0, False)
    A(f"""
    v_lshlrev_b32 {v(R.vSrc)}, 11, {v(R.vSrc)}
    v_lshl_add_u32 {v(R.vSrc)}, {v(R.vT3)}, 4, {v(R.vSrc)}
    v_and_b32 {v(R.vT0)}, {48 - 32 * QL[0]}, {v(R.vL)}
    v_lshl_add_u32 {v(R.vDst)}, {v(R.vDst)}, {6 - QL[0]}, {v(R.vT0)}
    v_and_b32 {v(R.vT0)}, {32 * QL[0]}, {v(R.vL)}
    v_lshl_add_u32 {v(R.vDst)}, {v(R.vT0)}, 5, {v(R.vDst)}
    s_mul_i32 {s(R.sDst)}, {s(sP)}, {BLK}
    s_mul_i32 {s(R.sT1)}, {s(sMat)}, {QKV_STRIDE}
    s_add_u32 {s(R.sDst)}, {s(R.sDst)}, {s(R.sT1)}
    s_lshl_b32 {s(R.sT1)}, {s(sMat)}, 7
    s_add_u32 {s(R.sT0)}, {s(sP)}, {s(R.sT1)}
    s_lshl_b32 {s(R.sT0)}, {s(R.sT0)}, 7
    s_add_u32 {s(R.sT0)}, {s(R.sT0)}, {WS_FLAG + FLAG_P}
    v_mov_b32 {v(R.vFlag)}, {s(R.sT0)}
    v_mov_b32 {v(R.vT0)}, {OOB}
    v_cmp_eq_u32 vcc, 0, {v(R.vL)}
    v_cndmask_b32 {v(R.vFlag)}, {v(R.vT0)}, {v(R.vFlag)}, vcc
    v_lshlrev_b32 v252, 7, {v(R.vL)}
    s_cmp_eq_u32 {s(sMat)}, 0
    s_cselect_b32 {s(R.sSrc)}, 0, 32
    v_cmp_gt_u32 vcc, {s(R.sSrc)}, {v(R.vL)}
    v_cndmask_b32 v252, {v(R.vT0)}, v252, vcc
    s_mov_b32 {s(R.sSrc)}, 0
    s_mov_b32 {s(R.sSrcStep)}, 65536
    s_mov_b32 {s(R.sDstStep)}, 2048
    s_barrier
    s_cmp_eq_u32 {s(sMat)}, 2
    s_cbranch_scc1 P_v
    """)
    def dma(half, b, lds):
        off = half * 1024 + b * 128
        return [f"s_add_u32 m0, {s(R.sM0)}, {lds - off}", f"buffer_load_dwordx4 {v(R.vSrc)}, {s(R.sX,4)}, {s(R.sSrc)} offen offset:{off} lds"]
    def store(u):
        return [f"buffer_store_dwordx4 {v(R.vPk+4*u,4)}, {v(R.vDst)}, {s(R.sWS,4)}, {s(R.sDst)} offen offset:{(256 >> QL[0])*u} sc1"]
    ex = None
    if prr:
        ex = [f"s_sub_u32 {s(sP+1)}, {s(R.sDst)}, {2048 * (prr & 15)}", f"s_cmp_ge_u32 {s(R.sIt)}, {(prr & 15) + 1}", f"s_cselect_b32 {s(sP+1)}, {s(sP+1)}, {OOB}",
              f"buffer_load_dword v253, v252, {s(R.sWS,4)}, {s(sP+1)} offen{' sc1' if prr < 16 else ' sc0 sc1'}"]
    stream_loop(A, R, "P_qk", 64, False, dma, store, extra=ex)
    A(f"s_branch {done}")
    A.label("P_v")
    stream_loop(A, R, "P_v", 64, True, dma, store, extra=ex)
    A(f"s_branch {done}")

def common_entry(A, R, nwg, end):
    A(f"""
    s_cmp_ge_u32 s2, {nwg}
    s_cbranch_scc1 {end}
    s_load_dwordx2 {s(R.sWS,2)}, s[0:1], {KA_WS}
    v_lshrrev_b32 {v(R.vT0)}, 6, v0
    v_and_b32 {v(R.vL)}, 63, v0
    v_readfirstlane_b32 {s(R.sWv)}, {v(R.vT0)}
    s_mov_b32 {s(R.sWS+2)}, {WS_BYTES}
    s_mov_b32 {s(R.sWS+3)}, 0x20000
    s_waitcnt lgkmcnt(0)
    """)

def tstamp(A, R, k, sT=74, vt=252):
    A(f"""s_memrealtime {s(sT,2)}
    s_memtime {s(sT+2,2)}
    s_lshl_b32 {s(sT+4)}, s2, 2
    s_add_u32 {s(sT+4)}, {s(sT+4)}, {s(R.sWv)}
    s_lshl_b32 {s(sT+4)}, {s(sT+4)}, 6
    s_add_u32 {s(sT+4)}, {s(sT+4)}, {WS_STAMP + 12*MB + 8*k}
    s_waitcnt lgkmcnt(0)
    v_mov_b32 {v(vt+2)}, {s(sT)}
    v_mov_b32 {v(vt+3)}, {s(sT+2)}
    v_mov_b32 {v(vt)}, 0
    buffer_store_dwordx2 {v(vt+2,2)}, {v(vt)}, {s(R.sWS,4)}, {s(sT+4)} offen
    s_waitcnt vmcnt(0)""")
```

```python
from asmlib import *
from layout import *
from stream import *
import struct, math
def f32bits(x): return struct.unpack("<I", struct.pack("<f", x))[0]
SPIN = 1 << 20
LD = ""

def idump(A, R, vv):
    A(f"""s_lshl_b32 {s(R.sT0)}, s2, 10
    s_add_u32 {s(R.sT0)}, {s(R.sT0)}, {WS_STAMP + 13*MB}
    v_lshlrev_b32 {v(R.vT0)}, 2, v0
    buffer_store_dword {v(vv)}, {v(R.vT0)}, {s(R.sWS,4)}, {s(R.sT0)} offen""")

def gen_T(A, sHead, done, sGive, tfree=0, tpat=0, its=0, tl=60, early=1, tsl=0, os_=0, sPar=None):
    its = its == 1
    R = SR
    sSeg, sC, sCnt, sQ, sKm, sOo, sNx, sHave = 28, 29, 30, 31, 32, 33, 34, 35
    sMask = 36
    sQn, sKn = 68, 69
    vQa, vKa, vKma, vVma, vOa, vFa, vFl, vTf, vMx, vSm = range(10, 20)
    aQ = lambda b: 96*b
    aK = lambda b: 96*b + 32
    aV = lambda b: 96*b + 64
    vKM = lambda b: 20 + 48*b
    vVM = lambda b: 52 + 48*b
    vS, vSM, vP = 116, 132, 148
    vO = 160
    vPk = 224
    pi_lane(A, R.vT2, R.vL, R.vT0, R.vT1)
    A(f"""
    v_lshrrev_b32 {v(R.vT0)}, 5, {v(R.vL)}            ; h2
    v_and_b32 {v(R.vT1)}, 31, {v(R.vL)}               ; q / row
    v_lshlrev_b32 {v(R.vT3)}, 4, {v(R.vT0)}
    v_lshl_add_u32 {v(vQa)}, {v(R.vT1)}, 6, {v(R.vT3)}
    v_lshl_add_u32 {v(vKa)}, {v(R.vT2)}, 6, {v(R.vT3)}
    v_mov_b32 {v(vTf)}, {OOB}
    v_cmp_gt_u32 vcc, 8, {v(R.vT1)}
    v_cndmask_b32 {v(vKma)}, {v(vTf)}, {v(vQa)}, vcc
    v_lshlrev_b32 {v(vVma)}, 3, {v(R.vT0)}
    v_lshl_add_u32 {v(vVma)}, {v(R.vT2)}, 4, {v(vVma)}
    ; O address: (q>>4)*128K + h2*256 + (q&15)*16
    v_and_b32 {v(vOa)}, 15, {v(R.vL)}
    v_lshlrev_b32 {v(vOa)}, 4, {v(vOa)}
    v_lshl_add_u32 {v(vOa)}, {v(R.vT0)}, 8, {v(vOa)}
    v_bfe_u32 {v(R.vT3)}, {v(R.vL)}, 4, 1
    v_lshl_add_u32 {v(vOa)}, {v(R.vT3)}, {18 if os_ else 17}, {v(vOa)}
    v_lshrrev_b32 {v(vFa)}, 2, {v(R.vL)}
    v_and_b32 {v(R.vT3)}, 3, {v(R.vL)}
    v_lshl_add_u32 {v(vFa)}, {v(vFa)}, 7, {v(R.vT3)}
    s_lshl_b32 {s(R.sT0)}, {s(sHead)}, 2
    v_add_u32 {v(vFa)}, {s(R.sT0)}, {v(vFa)}
    v_lshlrev_b32 {v(vFa)}, 7, {v(vFa)}
    v_add_u32 {v(vFa)}, {WS_FLAG + FLAG_P}, {v(vFa)}
    v_cmp_gt_u32 vcc, 16, {v(R.vL)}
    v_cndmask_b32 {v(vFa)}, {v(vTf)}, {v(vFa)}, vcc
    v_mov_b32 {v(vFl)}, 0
    s_add_u32 {s(R.sT1)}, {s(R.sWv)}, {s(R.sT0)}
    s_lshl_b32 {s(R.sT1)}, {s(R.sT1)}, 7
    s_add_u32 {s(R.sT1)}, {s(R.sT1)}, {WS_FLAG + FLAG_T}
    v_lshl_add_u32 {v(R.vFlag)}, {v(R.vL)}, 2, {s(R.sT1)}
    v_cmp_gt_u32 vcc, 32, {v(R.vL)}
    v_cndmask_b32 {v(R.vFlag)}, {v(vTf)}, {v(R.vFlag)}, vcc
    v_lshlrev_b32 {v(R.vT0)}, 3, {v(R.vT0)}
    v_sub_u32 {v(R.vT1)}, {v(R.vT1)}, {v(R.vT0)}      ; q - 8*h2 (signed)
    s_mov_b32 {s(sC)}, {f32bits(128 ** -0.5 * math.log2(math.e))}
    s_mov_b32 {s(sSeg)}, {s(R.sWv)}
    s_mul_i32 {s(sQ)}, {s(R.sT0)}, {BLK}
    s_lshl_b32 {s(R.sT1)}, {s(sSeg)}, 11
    s_add_u32 {s(sQ)}, {s(sQ)}, {s(R.sT1)}
    s_mul_i32 {s(sKm)}, {s(R.sT0)}, {MBLK}
    s_lshl_b32 {s(R.sT1)}, {s(sSeg)}, 9
    s_add_u32 {s(sKm)}, {s(sKm)}, {s(R.sT1)}
    s_add_u32 {s(sKm)}, {s(sKm)}, {WS_KM}
    s_lshl_b32 {s(sOo)}, {s(sSeg)}, 18
    s_lshl_b32 {s(R.sT1)}, {s(sHead)}, 12
    s_add_u32 {s(sOo)}, {s(sOo)}, {s(R.sT1)}
    s_add_u32 {s(sOo)}, {s(sOo)}, {WS_O}
    v_mov_b32 {v(vTf)}, 0xff800000
    s_mov_b32 {s(sHave)}, 0
    v_mov_b32 {v(R.vFv)}, 0
    """)
    if os_:
        assert not early
        A(f"""s_lshl_b32 {s(sOo)}, {s(sSeg)}, 19
        s_lshr_b32 {s(R.sT1)}, {s(sHead)}, 1
        s_lshl_b32 {s(R.sT1)}, {s(R.sT1)}, 14
        s_add_u32 {s(sOo)}, {s(sOo)}, {s(R.sT1)}
        s_and_b32 {s(R.sT1)}, {s(sHead)}, 1
        s_lshl_b32 {s(R.sT1)}, {s(R.sT1)}, 12
        s_add_u32 {s(sOo)}, {s(sOo)}, {s(R.sT1)}
        s_add_u32 {s(sOo)}, {s(sOo)}, {WS_O2 + (8192 if os_ == 1 else 0)}
        s_xor_b32 {s(sOo)}, {s(sOo)}, {s(sPar)}""")
    if QL[0]: A(f"""v_and_b32 {v(vQa)}, 31, {v(R.vL)}
    v_lshlrev_b32 {v(vQa)}, 5, {v(vQa)}
    v_lshl_add_u32 {v(vQa)}, {v(R.vT0)}, 1, {v(vQa)}
    v_lshlrev_b32 {v(vKa)}, 5, {v(R.vT2)}
    v_lshl_add_u32 {v(vKa)}, {v(R.vT0)}, 1, {v(vKa)}""")
    if tpat == 1: A(f"""v_lshlrev_b32 {v(vQa)}, 4, {v(R.vL)}
    v_lshlrev_b32 {v(vKa)}, 4, {v(R.vL)}""")
    if tpat == 2: A(f"""v_and_b32 {v(vQa)}, 31, {v(R.vL)}
    v_lshlrev_b32 {v(vQa)}, 5, {v(vQa)}
    v_lshl_add_u32 {v(vQa)}, {v(R.vT0)}, 1, {v(vQa)}
    v_mov_b32 {v(vKa)}, {v(vQa)}""")
    if tpat == 3: A(f"""v_lshlrev_b32 {v(vKa)}, 4, {v(R.vT2)}
    v_lshl_add_u32 {v(vKa)}, {v(R.vT0)}, 6, {v(vKa)}
    v_mov_b32 {v(vQa)}, {v(vKa)}""")
    RM = 0 if tfree else 0xf000
    for r in range(16): A(f"v_cmp_le_i32 {s(sMask+2*r,2)}, {16*(r>>3) + (r&7)}, {v(R.vT1)}")
    for b in range(2):
        for es in range(4):
            A(f"v_mov_b32 {v(vVM(b)+4*es+2)}, 0"); A(f"v_mov_b32 {v(vVM(b)+4*es+3)}, 0")
    A(f"v_mov_b32 {v(vP+10)}, 0"); A(f"v_mov_b32 {v(vP+11)}, 0")
    ldfl = f"buffer_load_dword {v(vFl)}, {v(vFa)}, {s(R.sWS,4)}, 0 offen sc1"
    stfl = f"buffer_store_dword {v(R.vFv)}, {v(R.vFlag)}, {s(R.sWS,4)}, 0 offen sc1"
    def spin(name, sNeed, mask, ok, slp):
        return [f"s_mov_b32 {s(sCnt)}, {s(sGive)}", f"{name}:",
                f"v_cmp_ge_u32 vcc, {s(sNeed)}, {v(vFl)}", f"s_and_b32 {s(R.sT0)}, vcc_lo, {mask}", f"s_cbranch_scc0 {ok}",
                f"s_cmp_ge_u32 {s(sCnt)}, {SPIN}", f"s_cselect_b32 {s(sGive)}, {SPIN}, {s(sGive)}", f"s_cbranch_scc1 {ok}",
                f"s_add_u32 {s(sCnt)}, {s(sCnt)}, 1", ldfl, f"s_sleep {slp}", "s_waitcnt vmcnt(0)", f"s_branch {name}"]
    def ldq(b, so):
        o = []
        for mat, reg, va in ((0, aQ(b), vQa), (1, aK(b), vKa), (2, aV(b), vKa)):
            for es in range(4):
                o.append([f"s_add_u32 {s(R.sT0)}, {s(so)}, {mat*QKV_STRIDE + es*BLK}"] +
                         [f"buffer_load_dwordx4 {a(reg+(es*2+u)*4,4)}, {v(va)}, {s(R.sWS,4)}, {s(R.sT0)} offen offset:{(1024 if tpat or QL[0] else 32)*u}{LD}" for u in range(2)])
        return o
    def ldm(b, so):
        o = []
        for es in range(4):
            o.append([f"s_add_u32 {s(R.sT0)}, {s(so)}, {es*MBLK}", f"s_add_u32 {s(R.sT1)}, {s(so)}, {es*MBLK + WS_VMT - WS_KM}"] +
                     [f"buffer_load_dwordx4 {v(vKM(b)+(es*2+u)*4,4)}, {v(vKma)}, {s(R.sWS,4)}, {s(R.sT0)} offen offset:{32*u}{LD}" for u in range(2)] +
                     [f"buffer_load_dwordx2 {v(vVM(b)+4*es,2)}, {v(vVma)}, {s(R.sWS,4)}, {s(R.sT1)} offen{LD}"])
        return o
    def x32(op, x):
        A(f"""v_mov_b32 {v(R.vT0)}, {v(x)}
        v_permlane32_swap_b32 {v(x)}, {v(R.vT0)}
        {op} {v(x)}, {v(x)}, {v(R.vT0)}""")
    if early:
        for r in range(4): A(f"v_mov_b32 {v(vPk+r)}, -1")
        A(f"s_add_u32 {s(R.sT0)}, {s(sOo)}, {60 << 18}")
        for k in range(8): A(f"buffer_store_dwordx4 {v(vPk,4)}, {v(vOa)}, {s(R.sWS,4)}, {s(R.sT0)} offen offset:{512*k} sc1")
    for x in spin("T_p", sSeg, 0xfff, "T_pk", 8): A(x)
    A.label("T_pk")
    for g in ldq(0, sQ):
        for x in g: A(x)
    tails = []
    def ist():
        if its: A(f"""s_memrealtime s[72:73]
        s_waitcnt lgkmcnt(0)
        v_writelane_b32 {v(R.vSrc)}, s72, m0
        s_add_u32 m0, m0, 1""")
    if its: A("s_mov_b32 m0, 0")
    for b in range(2):
        A.label(f"T_top{b}")
        ist()
        A(f"""s_cmp_eq_u32 {s(sHave)}, 0
        s_cbranch_scc1 T_slow{b}""")
        A.label(f"T_go{b}")
        A(f"""s_add_u32 {s(sNx)}, {s(sSeg)}, 4
        s_min_u32 {s(sQn)}, {s(sNx)}, 63
        s_waitcnt vmcnt(8)
        v_cmp_ge_u32 vcc, {s(sQn)}, {v(vFl)}
        s_and_b32 {s(R.sT0)}, vcc_lo, 0xfff
        s_cbranch_scc1 T_pw{b}""")
        A.label(f"T_pok{b}")
        ist()
        A(f"""s_add_u32 {s(sQ)}, {s(sQ)}, {4*2048}
        s_add_u32 {s(sKm)}, {s(sKm)}, {4*512}
        s_and_b32 {s(R.sT0)}, vcc_lo, {RM}
        s_cselect_b32 {s(sHave)}, 0, 1
        s_cselect_b32 {s(sKn)}, {OOB}, {s(sKm)}
        s_cmp_lt_u32 {s(sNx)}, 64
        s_cselect_b32 {s(sQn)}, {s(sQ)}, {OOB}
        s_cselect_b32 {s(sKn)}, {s(sKn)}, {OOB}
        {ldfl}""")
        tails.append([f"T_slow{b}:", "s_waitcnt vmcnt(0)", stfl] + ([f"s_cmp_ge_u32 {s(sSeg)}, {tl}", "s_cbranch_scc1 T_last"] if b else []) + spin(f"T_s{b}", sSeg, RM, f"T_sk{b}", 2) + [f"T_sk{b}:"] +
                     [x for g in ldm(b, sKm) for x in g] + ["s_waitcnt vmcnt(0)", f"s_branch T_go{b}"])
        tails.append([f"T_pw{b}:"] + spin(f"T_q{b}", sQn, 0xfff, f"T_pok{b}", 8))
        nx = ldq(1 - b, sQn) + ldm(1 - b, sKn)
        for k in range(8):
            A(f"v_mfma_f32_32x32x16_bf16 {v(vS,16)}, {a(aK(b)+4*k,4)}, {a(aQ(b)+4*k,4)}, {v(vS,16) if k else 0}")
            for x in nx.pop(0): A(x)
        for k in range(8):
            A(f"v_mfma_f32_32x32x16_bf16 {v(vSM,16)}, {v(vKM(b)+4*k,4)}, {a(aQ(b)+4*k,4)}, {v(vSM,16) if k else 0}")
            for x in nx.pop(0): A(x)
        ist()
        for r in range(16): A(f"v_cndmask_b32 {v(vS+r)}, {v(vTf)}, {v(vS+r)}, {s(sMask+2*r,2)}")
        A(f"v_max3_f32 {v(vMx)}, {v(vS)}, {v(vS+1)}, {v(vS+2)}")
        for r in range(3, 19, 2): A(f"v_max3_f32 {v(vMx)}, {v(vMx)}, {v(vS+r)}, {v(vS+r+1)}")
        A(f"v_max_f32 {v(vMx)}, {v(vMx)}, {v(vS+19)}")
        x32("v_max_f32", vMx)
        A(f"v_mul_f32 {v(vMx)}, {s(sC)}, {v(vMx)}")
        for r in range(20): A(f"v_fma_f32 {v(vS+r)}, {v(vS+r)}, {s(sC)}, -{v(vMx)}")
        for r in range(20): A(f"v_exp_f32 {v(vS+r)}, {v(vS+r)}")
        A("s_waitcnt vmcnt(37)")
        ist()
        A(stfl)
        A(f"v_add_f32 {v(vSm)}, {v(vS)}, {v(vS+1)}")
        A(f"v_add_f32 {v(R.vT1)}, {v(vS+2)}, {v(vS+3)}")
        for r in range(4, 20, 2):
            A(f"v_add_f32 {v(vSm)}, {v(vSm)}, {v(vS+r)}")
            A(f"v_add_f32 {v(R.vT1)}, {v(R.vT1)}, {v(vS+r+1)}")
        A(f"v_add_f32 {v(vSm)}, {v(vSm)}, {v(R.vT1)}")
        x32("v_add_f32", vSm)
        A(f"v_rcp_f32 {v(vSm)}, {v(vSm)}")
        for r in range(20): A(f"v_mul_f32 {v(vS+r)}, {v(vS+r)}, {v(vSm)}")
        for r in range(10): A(f"v_cvt_pk_bf16_f32 {v(vP+r)}, {v(vS+2*r)}, {v(vS+2*r+1)}")
        def epi(e):
            for r in range(8): A(f"v_cvt_pk_bf16_f32 {v(vPk+8*e+r)}, {v(vO+16*e+2*r)}, {v(vO+16*e+2*r+1)}")
            for u in range(2): A(f"buffer_store_dwordx4 {v(vPk+8*e+4*u,4)}, {v(vOa)}, {s(R.sWS,4)}, {s(sOo)} offen offset:{1024*e + 512*u} sc1")
        for es in range(4):
            d = v(vO + 16*es, 16)
            A(f"v_mfma_f32_32x32x16_bf16 {d}, {a(aV(b)+8*es,4)}, {v(vP,4)}, 0")
            A(f"v_mfma_f32_32x32x16_bf16 {d}, {a(aV(b)+8*es+4,4)}, {v(vP+4,4)}, {d}")
            A(f"v_mfma_f32_32x32x16_bf16 {d}, {v(vVM(b)+4*es,4)}, {v(vP+8,4)}, {d}")
            if es >= 1: epi(es - 1)
        A(f"v_add_u32 {v(R.vFv)}, 1, {v(R.vFv)}")
        epi(3)
        A(f"""s_mov_b32 {s(sSeg)}, {s(sNx)}
        s_add_u32 {s(sOo)}, {s(sOo)}, {4 << (19 if os_ else 18)}""")
        if os_: A(f"s_xor_b32 {s(sOo)}, {s(sOo)}, 8192")
    A(f"""s_cmp_lt_u32 {s(sSeg)}, 64
    s_cbranch_scc1 T_top0
    T_fin:
    s_waitcnt vmcnt(0)
    {stfl}""")
    if its: idump(A, R, R.vSrc)
    A(f"s_branch {done}")
    for t in tails:
        for x in t: A(x)
    A.label("T_last")
    vMr, vAl = vKM(0), vKM(0) + 1
    for k in range(8): A(f"v_mfma_f32_32x32x16_bf16 {v(vS,16)}, {a(aK(1)+4*k,4)}, {a(aQ(1)+4*k,4)}, {v(vS,16) if k else 0}")
    for r in range(16): A(f"v_cndmask_b32 {v(vS+r)}, {v(vTf)}, {v(vS+r)}, {s(sMask+2*r,2)}")
    A(f"v_max3_f32 {v(vMr)}, {v(vS)}, {v(vS+1)}, {v(vS+2)}")
    for r in range(3, 15, 2): A(f"v_max3_f32 {v(vMr)}, {v(vMr)}, {v(vS+r)}, {v(vS+r+1)}")
    A(f"v_max_f32 {v(vMr)}, {v(vMr)}, {v(vS+15)}")
    x32("v_max_f32", vMr)
    A(f"v_mul_f32 {v(vMx)}, {s(sC)}, {v(vMr)}")
    for r in range(16): A(f"v_fma_f32 {v(vS+r)}, {v(vS+r)}, {s(sC)}, -{v(vMx)}")
    for r in range(16): A(f"v_exp_f32 {v(vS+r)}, {v(vS+r)}")
    A(f"v_add_f32 {v(vSm)}, {v(vS)}, {v(vS+1)}")
    for r in range(2, 16): A(f"v_add_f32 {v(vSm)}, {v(vSm)}, {v(vS+r)}")
    for r in range(8): A(f"v_cvt_pk_bf16_f32 {v(vP+r)}, {v(vS+2*r)}, {v(vS+2*r+1)}")
    for es in range(4):
        d = v(vO + 16*es, 16)
        A(f"v_mfma_f32_32x32x16_bf16 {d}, {a(aV(1)+8*es,4)}, {v(vP,4)}, 0")
        A(f"v_mfma_f32_32x32x16_bf16 {d}, {a(aV(1)+8*es+4,4)}, {v(vP+4,4)}, {d}")
    A(f"""s_cmp_ge_u32 {s(sSeg)}, 61
    s_cselect_b64 {s(sMask+12,2)}, 0xffff, 0
    s_sub_u32 {s(sNx)}, {s(sSeg)}, 2""")
    for es in range(4):
        A(f"s_add_u32 {s(sMask+es)}, {s(sKm)}, {es*MBLK}")
        A(f"s_add_u32 {s(sMask+4+es)}, {s(sKm)}, {es*MBLK + WS_VMT - WS_KM}")
    A(f"v_add_u32 {v(R.vFv)}, 1, {v(R.vFv)}")
    for x in spin("T_l0", sNx, RM, "T_l1", 2): A(x)
    def mx(regs, d):
        r = list(regs); o = [f"v_max3_u32 {v(d)}, {v(r[0])}, {v(r[1])}, {v(r[2])}"]; r = r[3:]
        while len(r) >= 2: o.append(f"v_max3_u32 {v(d)}, {v(d)}, {v(r[0])}, {v(r[1])}"); r = r[2:]
        if r: o.append(f"v_max_u32 {v(d)}, {v(d)}, {v(r[0])}")
        return o
    A.label("T_l2")
    for x in mx(list(range(vKM(1), vKM(1) + 32)) + [R.vT1], R.vT0): A(x)
    A(f"""v_cmp_eq_u32 vcc, -1, {v(R.vT0)}
    s_cbranch_vccz T_l3
    s_add_u32 {s(sCnt)}, {s(sCnt)}, 1
    s_cmp_ge_u32 {s(sCnt)}, {SPIN}
    s_cbranch_scc1 T_l3""")
    if tsl: A(f"s_sleep {tsl}")
    A.label("T_l1")
    for k in range(8): A(f"buffer_load_dwordx4 {v(vKM(1)+4*k,4)}, {v(vKma)}, {s(R.sWS,4)}, {s(sMask + k//2)} offen offset:{32*(k & 1)} sc1")
    for es in range(4): A(f"buffer_load_dwordx2 {v(vVM(1)+4*es,2)}, {v(vVma)}, {s(R.sWS,4)}, {s(sMask+4+es)} offen sc1")
    for k in range(8):
        A(f"s_waitcnt vmcnt({11 - k})")
        A(f"v_mfma_f32_32x32x16_bf16 {v(vSM,16)}, {v(vKM(1)+4*k,4)}, {a(aQ(1)+4*k,4)}, {v(vSM,16) if k else 0}")
    A("s_waitcnt vmcnt(0)")
    for x in mx([vVM(1) + 4*es + e for es in range(4) for e in range(2)], R.vT1): A(x)
    A(f"""v_cmp_eq_u32 {s(sMask+8,2)}, -1, {v(R.vT1)}
    v_cmp_u_f32 {s(sMask+10,2)}, {v(vSM)}, {v(vSM+1)}
    v_cmp_u_f32 vcc, {v(vSM+2)}, {v(vSM+3)}
    v_max3_f32 {v(vMx)}, {v(vSM)}, {v(vSM+1)}, {v(vMr)}
    s_or_b64 {s(sMask+8,2)}, {s(sMask+8,2)}, {s(sMask+10,2)}
    v_max3_f32 {v(vMx)}, {v(vSM+2)}, {v(vSM+3)}, {v(vMx)}
    s_or_b64 vcc, vcc, {s(sMask+8,2)}
    s_cbranch_vccnz T_l2""")
    A.label("T_l3")
    ist(); ist()
    x32("v_max_f32", vMx)
    A(f"v_mul_f32 {v(vMx)}, {s(sC)}, {v(vMx)}")
    A(f"v_fma_f32 {v(vAl)}, {v(vMr)}, {s(sC)}, -{v(vMx)}")
    for r in range(4): A(f"v_fma_f32 {v(vSM+r)}, {v(vSM+r)}, {s(sC)}, -{v(vMx)}")
    A(f"v_exp_f32 {v(vAl)}, {v(vAl)}")
    for r in range(4): A(f"v_exp_f32 {v(vSM+r)}, {v(vSM+r)}")
    A(f"""v_fma_f32 {v(vSm)}, {v(vSm)}, {v(vAl)}, {v(vSM)}
    v_add_f32 {v(R.vT1)}, {v(vSM+1)}, {v(vSM+2)}
    v_add_f32 {v(vSm)}, {v(vSm)}, {v(vSM+3)}
    v_add_f32 {v(vSm)}, {v(vSm)}, {v(R.vT1)}""")
    x32("v_add_f32", vSm)
    A(f"v_rcp_f32 {v(vSm)}, {v(vSm)}")
    A(f"v_mul_f32 {v(vAl)}, {v(vAl)}, {v(vSm)}")
    for r in range(4): A(f"v_mul_f32 {v(vSM+r)}, {v(vSM+r)}, {v(vSm)}")
    for r in range(2): A(f"v_cvt_pk_bf16_f32 {v(vP+8+r)}, {v(vSM+2*r)}, {v(vSM+2*r+1)}")
    if early == 2: A(f"""s_mov_b64 exec, {s(sMask+12,2)}
    {stfl}
    s_mov_b64 exec, -1
    s_sleep 40""")
    for es in range(4):
        for r in range(16): A(f"v_mul_f32 {v(vO+16*es+r)}, {v(vO+16*es+r)}, {v(vAl)}")
        A(f"v_mfma_f32_32x32x16_bf16 {v(vO+16*es,16)}, {v(vVM(1)+4*es,4)}, {v(vP+8,4)}, {v(vO+16*es,16)}")
        if es >= 1: epi(es - 1)
    epi(3)
    if early: A(f"""s_mov_b64 exec, {s(sMask+12,2)}
    {stfl}
    s_mov_b64 exec, -1""")
    ist()
    A("s_branch T_fin")

def gen_U(A, sGrp, sCol, done, sGive, ngrp=3, ts=False, uw=0, usl=2):
    R = SR
    sN, sCnt, sLd, sOut, sPar, sNx = 28, 29, 30, 31, 32, 33
    vLa, vFa, vFl, vOa, vLw, vLr = range(10, 16)
    vAcc = 16
    vRed = 24
    vF = 64
    A(f"""
    s_load_dwordx2 {s(R.sX,2)}, s[0:1], {KA_WO}
    s_load_dwordx2 {s(R.sO,2)}, s[0:1], {KA_OUT}
    s_mov_b32 {s(R.sX+2)}, {8*MB}
    s_mov_b32 {s(R.sX+3)}, 0x20000
    s_mov_b32 {s(R.sO+2)}, {8*MB}
    s_mov_b32 {s(R.sO+3)}, 0x20000
    s_lshl_b32 {s(R.sSrc)}, {s(R.sWv)}, 21
    s_lshl_b32 {s(R.sT0)}, {s(sCol)}, 6
    s_add_u32 {s(R.sSrc)}, {s(R.sSrc)}, {s(R.sT0)}
    s_waitcnt lgkmcnt(0)
    s_barrier
    """)
    load_weights_tr(A, R, R.sX, R.sSrc, 2048)
    if ts: tstamp(A, R, 3)
    A(f"""
    v_lshlrev_b32 {v(vLr)}, 4, {v(R.vL)}
    s_lshl_b32 {s(R.sT0)}, {s(R.sWv)}, 15
    v_add_u32 {v(vLa)}, {s(R.sT0)}, {v(vLr)}
    s_lshl_b32 {s(R.sT0)}, {s(R.sWv)}, 11
    v_add_u32 {v(vLw)}, {s(R.sT0)}, {v(vLr)}
    v_bfe_u32 {v(vFa)}, {v(R.vL)}, 3, 2
    v_and_b32 {v(R.vT0)}, 7, {v(R.vL)}
    v_lshlrev_b32 {v(R.vT0)}, 9, {v(R.vT0)}
    v_lshl_add_u32 {v(vFa)}, {v(vFa)}, 7, {v(R.vT0)}
    s_lshl_b32 {s(R.sT0)}, {s(R.sWv)}, 12
    s_add_u32 {s(R.sT0)}, {s(R.sT0)}, {WS_FLAG + FLAG_T}
    v_add_u32 {v(vFa)}, {s(R.sT0)}, {v(vFa)}
    v_mov_b32 {v(vFl)}, 0
    v_and_b32 {v(vOa)}, 15, {v(R.vL)}
    v_and_b32 {v(R.vT0)}, 48, {v(R.vL)}
    v_lshl_add_u32 {v(vOa)}, {v(vOa)}, 12, {v(R.vT0)}
    s_lshl_b32 {s(R.sT0)}, {s(sCol)}, 6
    s_add_u32 {s(R.sT0)}, {s(R.sT0)}, 2048
    v_add_u32 {v(vOa)}, {s(R.sT0)}, {v(vOa)}
    s_mov_b32 {s(sN)}, {s(sGrp)}
    s_mov_b32 {s(sPar)}, 0
    s_barrier
    """)
    def ready(sItem):
        return [f"s_lshr_b32 {s(R.sT0)}, {s(sItem)}, 3",
                f"v_cmp_ge_u32 vcc, {s(R.sT0)}, {v(vFl)}",
                f"s_lshl_b32 {s(R.sT1)}, {s(sItem)}, 2",
                f"s_and_b32 {s(R.sT1)}, {s(R.sT1)}, 24",
                f"s_lshr_b32 {s(R.sT0)}, vcc_lo, {s(R.sT1)}",
                f"s_and_b32 {s(R.sT0)}, {s(R.sT0)}, 0xff"]
    def ld(ks):
        o = []
        if ks % 4 == 0 and ks: o.append(f"s_add_u32 {s(sLd)}, {s(sLd)}, 4096")
        o.append(f"buffer_load_dwordx4 {v(vF+4*ks,4)}, {v(vLa)}, {s(R.sWS,4)}, {s(sLd)} offen offset:{(ks%4)*1024}{LD}")
        return o
    def setld(sItem):
        return [f"s_lshl_b32 {s(sLd)}, {s(sItem)}, 17", f"s_add_u32 {s(sLd)}, {s(sLd)}, {WS_O}"]
    if uw:
        A(f"""U_uw:
        s_sleep 100
        s_mov_b64 exec, 0xffffffff
        buffer_load_dword {v(vFl)}, {v(vFa)}, {s(R.sWS,4)}, 0 offen sc1
        s_waitcnt vmcnt(0)
        v_cmp_gt_u32 vcc, 16, {v(vFl)}
        s_mov_b64 exec, -1
        s_add_u32 {s(sPar)}, {s(sPar)}, 1
        s_cmp_gt_u32 {s(sPar)}, 1000
        s_cbranch_scc1 U_uw2
        s_cbranch_vccnz U_uw
        U_uw2:
        s_mov_b32 {s(sPar)}, 0""")
    ust = ["s_memrealtime s[72:73]", "s_waitcnt lgkmcnt(0)", f"v_writelane_b32 {v(R.vT2)}, s72, m0", "s_add_u32 m0, m0, 1"] if its else []
    if its: A("s_mov_b32 m0, 0")
    A(f"s_mov_b32 {s(sTry)}, 0")
    A.label("U_wait")
    A(f"s_mov_b32 {s(sCnt)}, {s(sGive)}")
    A.label("U_fl")
    for x in ready(sN): A(x)
    A(f"""s_cbranch_scc0 U_go
    s_cmp_ge_u32 {s(sCnt)}, {SPIN}
    s_cselect_b32 {s(sGive)}, {SPIN}, {s(sGive)}
    s_cbranch_scc1 U_go
    s_lshl_b32 {s(R.sT0)}, {s(R.sT0)}, {s(R.sT1)}
    s_cmp_eq_u32 {s(sCnt)}, 0
    s_cselect_b32 exec_lo, -1, {s(R.sT0)}
    s_mov_b32 exec_hi, 0
    s_add_u32 {s(sCnt)}, {s(sCnt)}, 1
    buffer_load_dword {v(vFl)}, {v(vFa)}, {s(R.sWS,4)}, 0 offen sc1
    s_mov_b64 exec, -1
    s_sleep {usl}
    s_waitcnt vmcnt(0)
    s_branch U_fl""")
    A.label("U_go")
    if early: A(f"""s_cmp_eq_u32 {s(sTry)}, 0
    s_cbranch_scc1 U_g2
    buffer_inv sc1
    s_waitcnt vmcnt(0)
    U_g2:""")
    for x in setld(sN): A(x)
    for ks in range(32):
        for x in ld(ks): A(x)
    A.label("U_item")
    for x in ust: A(x)
    A(f"s_add_u32 {s(sNx)}, {s(sN)}, {ngrp}")
    for x in ready(sNx): A(x)
    A("s_cbranch_scc1 U_b")
    def mm(ks):
        for t in range(2):
            d = v(vAcc + 4*t, 4)
            A(f"v_mfma_f32_16x16x32_bf16 {d}, {a(aw(t, ks),4)}, {v(vF+4*ks,4)}, {d if ks else 0}")
    def fin(nxt):
        L = A.newlabel("Uf")
        A(f"""s_lshl_b32 {s(sOut)}, {s(sN)}, 16
        v_add_u32 {v(R.vT0)}, {s(sPar)}, {v(vLw)}
        v_add_u32 {v(R.vT1)}, {s(sPar)}, {v(vLr)}
        s_xor_b32 {s(sPar)}, {s(sPar)}, 8192
        s_mov_b32 {s(sN)}, {s(sNx)}
        ds_write_b128 {v(R.vT0)}, {v(vAcc,4)}
        ds_write_b128 {v(R.vT0)}, {v(vAcc+4,4)} offset:1024
        s_waitcnt lgkmcnt(0)
        s_barrier
        s_cmp_lg_u32 {s(R.sWv)}, 0
        s_cbranch_scc1 {L}""")
        for k in range(6): A(f"ds_read_b128 {v(vRed+4*k,4)}, {v(R.vT1)} offset:{2048 + 1024*k}")
        A("s_waitcnt lgkmcnt(4)")
        for r in range(8): A(f"v_add_f32 {v(vRed+r)}, {v(vAcc+r)}, {v(vRed+r)}")
        A("s_waitcnt lgkmcnt(0)")
        for r in range(8): A(f"v_add_f32 {v(vRed+8+r)}, {v(vRed+8+r)}, {v(vRed+16+r)}")
        for r in range(8): A(f"v_add_f32 {v(vRed+r)}, {v(vRed+r)}, {v(vRed+8+r)}")
        for r in range(4): A(f"v_cvt_pk_bf16_f32 {v(vRed+24+r)}, {v(vRed+2*r)}, {v(vRed+2*r+1)}")
        A(f"buffer_store_dwordx4 {v(vRed+24,4)}, {v(vOa)}, {s(R.sO,4)}, {s(sOut)} offen")
        A.label(L)
        A(f"""s_cmp_lt_u32 {s(sN)}, 128
        s_cbranch_scc1 {nxt}
        s_branch {done}""")
    for x in setld(sNx): A(x)
    for ks in range(32):
        A(f"s_waitcnt vmcnt({31 if ks == 0 else 30})")
        mm(ks)
        if ks:
            for x in ld(ks - 1): A(x)
    A("s_nop 7")
    for x in ld(31): A(x)
    fin("U_item")
    A.label("U_b")
    for ks in range(32):
        A(f"s_waitcnt vmcnt({31 - ks})")
        mm(ks)
    fin("U_wait")

def gen_U64(A, sG, sI, done, sGive, ts=False, usl=2, touch=1, rot=1, tpf=12, its=0, early=1, gsh=2, csp=1, fl=1, os_=0, sSide=None, um=0):
    R = SR
    NG = 6
    sN, sCnt, sLd, sOut, sPar, sNx, sPend, sCol, sTry, sRot, sTp = range(28, 39)
    vLa, vFa, vFl, vOa, vLw, vLr = range(10, 16)
    vTa, vPf, vTx = R.vSrc, R.vDst, R.vFlag
    vTr = R.vT3
    vAcc, vSt, vRed, vF, vW = 16, 32, 48, 64, 128
    RED = 131072
    A(f"""
    s_load_dwordx2 {s(R.sX,2)}, s[0:1], {KA_WO}
    s_load_dwordx2 {s(R.sO,2)}, s[0:1], {KA_OUT}
    s_mov_b32 {s(R.sX+2)}, {8*MB}
    s_mov_b32 {s(R.sX+3)}, 0x20000
    s_mov_b32 {s(R.sO+2)}, {8*MB}
    s_mov_b32 {s(R.sO+3)}, 0x20000
    s_lshl_b32 {s(R.sT0)}, {s(sG)}, 2
    s_lshr_b32 {s(R.sT0)}, {(0, 0x084, 0x808, 0x480)[csp]}, {s(R.sT0)}
    s_add_u32 {s(sCol)}, {s(sI)}, {s(R.sT0)}
    s_and_b32 {s(sCol)}, {s(sCol)}, 15
    s_lshr_b32 {s(sN)}, {s(sI)}, 4
    s_lshl_b32 {s(R.sT0)}, {s(sG)}, 2
    s_lshr_b32 {s(R.sT0)}, {sum(2 * ((g + gsh) % 3) << 4*g for g in range(3))}, {s(R.sT0)}
    s_and_b32 {s(R.sT0)}, {s(R.sT0)}, 15
    s_add_u32 {s(sN)}, {s(sN)}, {s(R.sT0)}
    s_cmp_ge_u32 {s(sN)}, 4
    s_cselect_b32 {s(R.sT0)}, {um}, 0
    s_add_u32 {s(sN)}, {s(sN)}, {s(R.sT0)}
    s_lshl_b32 {s(R.sSrc)}, {s(R.sWv)}, 21
    s_lshl_b32 {s(R.sT0)}, {s(sCol)}, 7
    s_add_u32 {s(R.sSrc)}, {s(R.sSrc)}, {s(R.sT0)}
    v_lshrrev_b32 {v(R.vT0)}, 2, {v(R.vL)}
    v_and_b32 {v(R.vT1)}, 3, {v(R.vL)}
    v_lshlrev_b32 {v(R.vT2)}, 4, {v(R.vT1)}
    v_lshl_add_u32 {v(R.vT2)}, {v(R.vT0)}, 11, {v(R.vT2)}
    v_lshlrev_b32 {v(vTr)}, 3, {v(R.vT1)}
    v_bfe_u32 {v(R.vT0)}, {v(R.vL)}, 2, 2
    v_lshrrev_b32 {v(R.vT1)}, 4, {v(R.vL)}
    v_lshl_add_u32 {v(R.vT0)}, {v(R.vT1)}, 3, {v(R.vT0)}
    v_lshl_add_u32 {v(vTr)}, {v(R.vT0)}, 6, {v(vTr)}
    s_lshl_b32 {s(R.sM0)}, {s(R.sWv)}, 15
    v_add_u32 {v(vTr)}, {s(R.sM0)}, {v(vTr)}
    s_and_b32 {s(sRot)}, {s(sI)}, {7 if rot else 0}
    s_lshl_b32 {s(sRot)}, {s(sRot)}, 18
    s_waitcnt lgkmcnt(0)
    s_barrier
    """)
    units = [(0, ks) for ks in range(32)] + [(1, ks) for ks in range(0, 32, 2)] + [(1, ks) for ks in range(1, 32, 2)]
    if fl:
        vTq = (vTr, vTa, vPf, vTx)
        vTa, vPf, vTx = R.vT2, R.vT1, R.vFv
        assert not (tpf and its)
        A(f"""v_lshrrev_b32 {v(R.vT0)}, 3, {v(R.vL)}
        v_and_b32 {v(R.vT1)}, 3, {v(R.vT0)}
        v_lshlrev_b32 {v(R.vT1)}, 1, {v(R.vT1)}
        v_xor_b32 {v(R.vT1)}, {v(R.vT1)}, {v(R.vL)}
        v_and_b32 {v(R.vT1)}, 7, {v(R.vT1)}
        v_lshlrev_b32 {v(R.vT1)}, 4, {v(R.vT1)}
        v_lshl_add_u32 {v(R.vT2)}, {v(R.vT0)}, 11, {v(R.vT1)}
        v_xor_b32 {v(vRed+1)}, 32, {v(R.vT2)}
        v_bfe_u32 {v(R.vT0)}, {v(R.vL)}, 2, 2
        v_lshrrev_b32 {v(R.vT1)}, 4, {v(R.vL)}
        v_lshl_add_u32 {v(vTr)}, {v(R.vT1)}, 3, {v(R.vT0)}
        v_lshl_add_u32 {v(vTr)}, {v(vTr)}, 7, {s(R.sM0)}
        v_and_b32 {v(R.vT1)}, 1, {v(R.vT1)}
        v_xor_b32 {v(R.vT0)}, {v(R.vT0)}, {v(R.vT1)}
        v_lshl_add_u32 {v(vTr)}, {v(R.vT0)}, 5, {v(vTr)}
        v_and_b32 {v(R.vT1)}, 3, {v(R.vL)}
        v_lshl_add_u32 {v(vTr)}, {v(R.vT1)}, 3, {v(vTr)}""")
        for k in range(1, 4): A(f"v_xor_b32 {v(vTq[k])}, {32*k}, {v(vTr)}")
        units = [ks for ks in range(32) if ks & 3 != 3] + list(range(3, 32, 4))
    def wreg(ks, o, n):
        j = units.index(ks)
        return a(16*j + o, n) if j < 16 else v(vW + 16*(j - 16) + o, n) if j < 24 else v(vSt + o, n)
    def dmaf(j):
        for q in range(4):
            A(f"s_add_u32 m0, {s(R.sM0)}, {(j & 7)*4096 + q*1024}")
            A(f"s_add_u32 {s(R.sT0)}, {s(R.sSrc)}, {(units[j]*32 + q*8)*2048}")
            A(f"buffer_load_dwordx4 {v(vRed+1 if q & 1 else R.vT2)}, {s(R.sX,4)}, {s(R.sT0)} offen lds")
    def trf(ks):
        return [f"ds_read_b64_tr_b16 {wreg(ks, 4*t + 2*hh, 2)}, {v(vTq[t])} offset:{(units.index(ks) & 7)*4096 + hh*512}" for t in range(4) for hh in range(2)]
    def dma(j):
        h, ks = units[j]
        for q in range(2):
            A(f"s_add_u32 m0, {s(R.sM0)}, {(j & 15)*2048 + q*1024}")
            A(f"s_add_u32 {s(R.sT0)}, {s(sRot)}, {(ks*32 + q*16)*2048 + h*64}")
            A(f"s_bitset0_b32 {s(R.sT0)}, 21")
            A(f"s_add_u32 {s(R.sT0)}, {s(R.sT0)}, {s(R.sSrc)}")
            A(f"buffer_load_dwordx4 {v(R.vT2)}, {s(R.sX,4)}, {s(R.sT0)} offen lds")
    def trd(dst, slot):
        return [f"ds_read_b64_tr_b16 {dst(4*tt + 2*hh)}, {v(vTr)} offset:{slot*2048 + hh*256 + tt*32}" for tt in range(2) for hh in range(2)]
    if touch:
        A(f"""s_sub_u32 {s(R.sT0)}, {s(sG)}, 1
        s_and_b32 {s(R.sT0)}, {s(R.sT0)}, 3
        s_lshl_b32 {s(R.sT0)}, {s(R.sT0)}, 3
        s_and_b32 {s(R.sT1)}, {s(sI)}, 7
        s_add_u32 {s(R.sT0)}, {s(R.sT0)}, {s(R.sT1)}
        s_lshl_b32 {s(R.sT0)}, {s(R.sT0)}, 8
        v_add_lshl_u32 {v(R.vT0)}, v0, {s(R.sT0)}, 11
        s_and_b32 {s(R.sT0)}, {s(sI)}, 8
        s_lshl_b32 {s(R.sT0)}, {s(R.sT0)}, 7
        buffer_load_dword {v(vRed)}, {v(R.vT0)}, {s(R.sX,4)}, {s(R.sT0)} offen offset:384""")
        if csp and touch > 1: A(f"""s_xor_b32 {s(R.sT0)}, {s(R.sT0)}, 1024
        buffer_load_dword {v(vRed)}, {v(R.vT0)}, {s(R.sX,4)}, {s(R.sT0)} offen offset:384""")
    if fl:
        for j in range(8): dmaf(j)
        for j in range(24):
            A(f"s_waitcnt vmcnt({28 if j == 0 else 24})")
            for i, x in enumerate(trf(units[j])):
                A(x)
                if j and i == 3:
                    A("s_waitcnt lgkmcnt(4)")
                    dmaf(j + 7)
        A("s_waitcnt lgkmcnt(0)")
        dmaf(31)
    for j in range(0 if fl else 16): dma(j)
    for j in range(0 if fl else 48):
        h, ks = units[j]
        A(f"s_waitcnt vmcnt({30 if j == 0 else 28})")
        for x in trd((lambda o: a(ks*8 + o, 2)) if h == 0 else (lambda o: v(vW + ks*4 + o, 2)), j & 15): A(x)
        if j:
            A("s_waitcnt lgkmcnt(4)")
            dma(j + 15)
    if not fl:
        A("s_waitcnt lgkmcnt(0)")
        dma(63)
    if tpf:
        A(f"""s_lshl_b32 {s(R.sT0)}, {s(sI)}, 2
        s_add_u32 {s(R.sT0)}, {s(R.sT0)}, {s(R.sWv)}
        s_lshl_b32 {s(R.sT1)}, {s(R.sT0)}, 7
        s_add_u32 {s(R.sT1)}, {s(R.sT1)}, {WS_FLAG + FLAG_P}
        v_lshrrev_b32 {v(R.vT0)}, 4, {v(R.vL)}
        v_lshlrev_b32 {v(vTx)}, 14, {v(R.vT0)}
        v_mov_b32 {v(vPf)}, 0
        s_mov_b32 exec_hi, 0xffff
        buffer_load_dword {v(vPf)}, {v(vTx)}, {s(R.sWS,4)}, {s(R.sT1)} offen sc1
        s_mov_b32 exec_hi, -1
        s_mul_i32 {s(R.sT0)}, {s(R.sT0)}, {BLK}
        v_mul_u32_u24 {v(vTa)}, {QKV_STRIDE >> 7}, {v(R.vT0)}
        v_and_b32 {v(R.vT0)}, 15, {v(R.vL)}
        v_add_lshl_u32 {v(vTa)}, {v(vTa)}, {v(R.vT0)}, 7
        v_add_u32 {v(vTa)}, {s(R.sT0)}, {v(vTa)}""")
    A(f"""
    s_lshr_b32 {s(sRot)}, {s(sRot)}, 6
    s_add_u32 {s(sRot)}, {s(sRot)}, {WS_O}
    v_lshlrev_b32 {v(vLr)}, 4, {v(R.vL)}
    v_add_u32 {v(vLa)}, {s(R.sM0)}, {v(vLr)}
    s_lshl_b32 {s(R.sT0)}, {s(R.sWv)}, 10
    s_add_u32 {s(R.sT0)}, {s(R.sT0)}, {RED}
    v_add_u32 {v(vLw)}, {s(R.sT0)}, {v(vLr)}
    s_lshl_b32 {s(R.sT0)}, {s(R.sWv)}, 12
    s_add_u32 {s(R.sT1)}, {s(R.sT0)}, {RED + 0x4000}
    v_add_u32 {v(vLr)}, {s(R.sT1)}, {v(vLr)}
    v_bfe_u32 {v(vFa)}, {v(R.vL)}, 3, 2
    v_and_b32 {v(R.vT0)}, 7, {v(R.vL)}
    v_lshlrev_b32 {v(R.vT0)}, 9, {v(R.vT0)}
    v_lshl_add_u32 {v(vFa)}, {v(vFa)}, 7, {v(R.vT0)}
    s_add_u32 {s(R.sT0)}, {s(R.sT0)}, {WS_FLAG + FLAG_T}
    v_add_u32 {v(vFa)}, {s(R.sT0)}, {v(vFa)}
    v_mov_b32 {v(vFl)}, 0
    v_and_b32 {v(vOa)}, 15, {v(R.vL)}
    v_lshrrev_b32 {v(R.vT0)}, 4, {v(R.vL)}
    v_lshlrev_b32 {v(R.vT0)}, 3, {v(R.vT0)}
    v_lshl_add_u32 {v(vOa)}, {v(vOa)}, 12, {v(R.vT0)}
    s_lshl_b32 {s(R.sT0)}, {s(sCol)}, 7
    s_lshl_b32 {s(R.sT1)}, {s(R.sWv)}, 5
    s_add_u32 {s(R.sT0)}, {s(R.sT0)}, {s(R.sT1)}
    s_add_u32 {s(R.sT0)}, {s(R.sT0)}, 2048
    v_add_u32 {v(vOa)}, {s(R.sT0)}, {v(vOa)}
    s_waitcnt vmcnt(0)
    """)
    if os_:
        assert not rot
        A(f"""v_add_u32 {v(vLa)}, {s(R.sM0)}, {v(vLa)}
        s_xor_b32 {s(sRot)}, {s(sSide)}, {WS_O2 + (8192 if os_ == 1 else 0)}""")
    if ts: tstamp(A, R, 3, vt=48)
    def ready(sItem):
        return [f"s_lshr_b32 {s(R.sT0)}, {s(sItem)}, 3",
                f"v_cmp_ge_u32 vcc, {s(R.sT0)}, {v(vFl)}",
                f"s_lshl_b32 {s(R.sT1)}, {s(sItem)}, 2",
                f"s_and_b32 {s(R.sT1)}, {s(R.sT1)}, 24",
                f"s_lshr_b32 {s(R.sT0)}, vcc_lo, {s(R.sT1)}",
                f"s_and_b32 {s(R.sT0)}, {s(R.sT0)}, 0xff"]
    ldfl = f"buffer_load_dword {v(vFl)}, {v(vFa)}, {s(R.sWS,4)}, 0 offen sc1"
    def ld(ks):
        o = []
        if ks % 4 == 0 and ks: o += [f"s_add_u32 {s(sLd)}, {s(sLd)}, {12288 if os_ and ks % 8 == 0 else 4096}"] + ([f"s_bitset0_b32 {s(sLd)}, 15"] if rot else [])
        o.append(f"buffer_load_dwordx4 {v(vF+4*(ks&15),4)}, {v(vLa)}, {s(R.sWS,4)}, {s(sLd)} offen offset:{(ks%4)*1024}{LD}")
        return o
    def setld(sItem):
        if os_: return [f"s_mul_i32 {s(sLd)}, {s(sItem)}, {(1 << 18) + (1 << 10)}", f"s_and_b32 {s(sLd)}, {s(sLd)}, {0x1fc0000 + 8192}", f"s_xor_b32 {s(sLd)}, {s(sLd)}, {s(sRot)}"]
        return [f"s_lshl_b32 {s(sLd)}, {s(sItem)}, 17", f"s_add_u32 {s(sLd)}, {s(sLd)}, {s(sRot)}"]
    rrd = [f"ds_read_b128 {v(vRed+4*k,4)}, {v(vLr)} offset:{1024*k}" for k in range(4)]
    radd = [f"v_add_f32 {v(vRed+r)}, {v(vRed+r)}, {v(vRed+4+r)}" for r in range(4)] + [f"v_add_f32 {v(vRed+8+r)}, {v(vRed+8+r)}, {v(vRed+12+r)}" for r in range(4)] + \
           [f"v_add_f32 {v(vRed+r)}, {v(vRed+r)}, {v(vRed+8+r)}" for r in range(4)] + [f"v_cvt_pk_bf16_f32 {v(vRed+4+r)}, {v(vRed+2*r)}, {v(vRed+2*r+1)}" for r in range(2)]
    ost = f"buffer_store_dwordx2 {v(vRed+4,2)}, {v(vOa)}, {s(R.sO,4)}, {s(sOut)} offen"
    flip = [f"v_xor_b32 {v(vLr)}, 0x4000, {v(vLr)}"]
    ust = ["s_memrealtime s[72:73]", "s_waitcnt lgkmcnt(0)", f"v_writelane_b32 {v(R.vT2)}, s72, m0", "s_add_u32 m0, m0, 1"] if its else []
    if its: A("s_mov_b32 m0, 0")
    A(f"s_mov_b32 {s(sTry)}, 0")
    A.label("U_wait")
    A(f"s_mov_b32 {s(sCnt)}, {s(sGive)}")
    A.label("U_fl")
    for x in ready(sN): A(x)
    A(f"""s_cbranch_scc0 U_go
    s_cmp_ge_u32 {s(sCnt)}, {SPIN}
    s_cselect_b32 {s(sGive)}, {SPIN}, {s(sGive)}
    s_cbranch_scc1 U_go
    s_lshl_b32 {s(R.sT0)}, {s(R.sT0)}, {s(R.sT1)}
    s_cmp_eq_u32 {s(sCnt)}, 0
    s_cselect_b32 exec_lo, -1, {s(R.sT0)}
    s_mov_b32 exec_hi, 0
    s_add_u32 {s(sCnt)}, {s(sCnt)}, 1
    {ldfl}
    s_mov_b64 exec, -1
    s_sleep {usl}
    s_waitcnt vmcnt(0)
    s_branch U_fl""")
    A.label("U_go")
    if early: A(f"""s_cmp_eq_u32 {s(sTry)}, 0
    s_cbranch_scc1 U_g2
    buffer_inv sc1
    s_waitcnt vmcnt(0)
    U_g2:""")
    for x in setld(sN): A(x)
    for ks in range(15):
        for x in ld(ks): A(x)
    A(f"""s_mov_b32 {s(sPend)}, 0
    s_mov_b32 {s(sOut)}, {OOB}""")
    for x in [] if fl else trd(lambda o: v(vSt + o, 2), 0): A(x)
    for k in range(4): A(rrd[k])
    A(".p2align 6")
    A.label("U_item")
    for x in ust: A(x)
    vq = [("L", k) for k in range(15)]; lq = [("W", 1)] * (0 if fl else 4) + [("P", 0)] * 4
    def vwait(tag):
        n = len(vq) - 1 - vq.index(tag); del vq[:len(vq) - n]
        return f"s_waitcnt vmcnt({n})"
    def lwait(tag):
        n = lq[::-1].index(tag); del lq[:len(lq) - n]
        return f"s_waitcnt lgkmcnt({n})"
    for ks in range(32):
        fill = [[], [], [], []]
        A(vwait(("L", ks)))
        fill[0] += ld((ks + 15) & 31); tagv = [("L", ks + 15)]
        if ks & 3 == 3 or (ks & 1 and not fl):
            pre2 = lwait(("W", ks))
        else:
            pre2 = None
        tagl = []
        if ks == 0:
            fill[0] += [f"s_cmp_lt_u32 {s(sN)}, {um}", f"s_cselect_b32 {s(sNx)}, 4, {NG}"]
            fill[1] += [f"s_add_u32 {s(sNx)}, {s(sN)}, {s(sNx)}"] + ready(sNx)[:4]
            fill[2] += ready(sNx)[4:] + [f"s_lshl_b32 exec_lo, {s(R.sT0)}, {s(R.sT1)}", "s_mov_b32 exec_hi, 0", ldfl, "s_mov_b64 exec, -1"]; tagv.append(("F", 0))
        if ks == 2:
            fill[1] += [lwait(("P", 0)), f"s_cmp_eq_u32 {s(sPend)}, 0", "s_cbranch_scc1 U_nb", "s_barrier", "U_nb:"]
            fill[2] += rrd[:2]; fill[3] += rrd[2:]; tagl += [("R", 0)] * 4
        if ks == 4:
            fill[0] += [lwait(("R", 0))]
        if 4 <= ks < 8:
            q = radd[4*(ks-4):4*(ks-4)+4]
            for i, x in enumerate(q): fill[1 + i//2].append(x)
        if ks == 8:
            fill[1] += [ost] + flip; tagv.append(("S", 0))
        if ks == 16:
            fill[1] += ready(sNx)[:4]
            fill[2] += setld(sNx) + ready(sNx)[4:] + [f"s_cselect_b32 {s(sPend)}, 0, 1", f"s_cselect_b32 {s(sLd)}, {OOB}, {s(sLd)}"]
        if ks == 14 and tpf:
            fill[1] += [f"s_lshr_b32 {s(sTp)}, {s(sNx)}, 1", f"s_add_u32 {s(sTp)}, {s(sTp)}, {tpf}", f"v_cmp_lt_u32 vcc, {s(sTp)}, {v(vPf)}"]
            fill[2] += [f"s_lshl_b32 {s(sTp)}, {s(sTp)}, 11", f"v_cndmask_b32 {v(vTx)}, 2.0, {v(vTa)}, vcc"]
        if ks == 16 and tpf:
            fill[3] += [f"buffer_load_dword {v(R.vT0)}, {v(vTx)}, {s(R.sWS,4)}, {s(sTp)} offen"]; tagv.append(("T", 0))
        if fl:
            if ks & 3 < 2:
                t_ = trf(ks | 3)[4*(ks & 1):4*(ks & 1) + 4]
                fill[1] += t_[:1]; fill[2] += t_[1:2]; fill[3] += t_[2:]; tagl += [("W", ks | 3)] * 4
        elif ks & 1 == 0:
            pass
        else:
            k2 = (ks + 2) & 31
            t_ = trd(lambda o: v(vSt + 8*((k2 >> 1) & 1) + o, 2), k2 >> 1)
            fill[0] += t_[:2]; fill[1] += t_[2:]; tagl += [("W", ks + 2)] * 4
        b = v(vF + 4*(ks & 15), 4)
        for t in range(4):
            d = v(vAcc + 4*t, 4)
            w = a(ks*8 + 4*t, 4) if t < 2 else (v(vSt + 8*((ks >> 1) & 1) + 4*(t-2), 4) if ks & 1 else v(vW + ks*4 + 4*(t-2), 4))
            if fl: w = wreg(ks, 4*t, 4)
            if t == 0 and pre2: A(pre2)
            A(f"v_mfma_f32_16x16x32_bf16 {d}, {w}, {b}, {d if ks else 0}")
            for x in fill[t]: A(x)
        vq += tagv; lq += tagl
    if tpf: assert vq.pop(0) == ("T", 0)
    assert [k for _, k in vq] == list(range(32, 47)), vq
    for x in ust: A(x)
    A(f"""s_lshl_b32 {s(sOut)}, {s(sN)}, 16
    s_mov_b32 {s(sN)}, {s(sNx)}
    s_cmp_eq_u32 {s(sPend)}, 1""")
    for t in range(4): A(f"ds_write_b128 {v(vLw)}, {v(vAcc+4*t,4)} offset:{4096*t}")
    A(f"""v_xor_b32 {v(vLw)}, 0x4000, {v(vLw)}
    s_cbranch_scc1 U_item
    s_waitcnt lgkmcnt(0)
    s_barrier""")
    for x in rrd: A(x)
    A("s_waitcnt lgkmcnt(0)")
    for x in radd: A(x)
    A(f"""{ost}
    s_cmp_lt_u32 {s(sN)}, 128
    s_cbranch_scc1 U_wait""")
    if early:
        A(f"""v_cmp_u_f32 vcc, {v(vRed)}, {v(vRed)}
        s_lshr_b32 {s(sN)}, {s(sOut)}, 16
        s_add_u32 {s(sTry)}, {s(sTry)}, 1
        v_or_b32 {v(vFa)}, 64, {v(vFa)}
        s_cmp_lg_u64 vcc, 0
        s_cselect_b32 {s(R.sT0)}, 1, 0
        v_mov_b32 {v(vAcc)}, {s(R.sT0)}
        v_and_b32 {v(R.vT0)}, {RED + 0x4000}, {v(vLw)}
        ds_write_b32 {v(vLw)}, {v(vAcc)}
        s_waitcnt lgkmcnt(0)
        s_barrier
        ds_read2st64_b32 {v(vAcc,2)}, {v(R.vT0)} offset0:0 offset1:4
        ds_read2st64_b32 {v(vAcc+2,2)}, {v(R.vT0)} offset0:8 offset1:12
        s_waitcnt lgkmcnt(0)
        v_and_b32 {v(vAcc)}, {v(vAcc)}, {v(vAcc+1)}
        v_and_b32 {v(vAcc+2)}, {v(vAcc+2)}, {v(vAcc+3)}
        v_and_b32 {v(vAcc)}, {v(vAcc)}, {v(vAcc+2)}
        v_cmp_ne_u32 vcc, 0, {v(vAcc)}
        s_cbranch_vccz U_end
        s_waitcnt vmcnt(0)
        v_mov_b32 {v(vFl)}, 0
        s_cmp_lt_u32 {s(sTry)}, 5
        s_cbranch_scc1 U_wait
        U_end:""")
    if its: idump(A, R, R.vT2)
    A(f"s_branch {done}")
```

```python
from asmlib import *
from layout import *
from stream import *
import struct, math
def f32bits(x): return struct.unpack("<I", struct.pack("<f", x))[0]
SPIN = 1 << 20
YS = 2048 + 128
BLKY = 64 * YS + 512
ZCH = 32768 + 256

def gen_dft_weights(A, R, vB, vD1, vD2, vInc, nks, derive):
    vP = 48; vC = 56; vK = 64; vX = 68
    for ks in range(nks):
        for t in range(2):
            A(f"v_fract_f32 {v(vP)}, {v(vB+t)}")
            for j in range(1, 8):
                A(f"v_add_f32 {v(vP+j)}, {v(vP+j-1)}, {v((vD1 if j & 1 else vD2)+t)}")
                A(f"v_cos_f32 {v(vC+j-1)}, {v(vP+j-1)}")
            A(f"v_cos_f32 {v(vC+7)}, {v(vP+7)}")
            A(f"v_add_f32 {v(vB+t)}, {v(vP)}, {v(vInc+t)}")
            for j in range(4): A(f"v_cvt_pk_bf16_f32 {v(vK+j)}, {v(vC+2*j)}, {v(vC+2*j+1)}")
            for j in range(4): A(f"v_accvgpr_write_b32 {a(aw(t, ks)+j)}, {v(vK+j)}")
            for q in range(1, 32 // nks):
                for j in range(4):
                    for x in derive(t, q, vX + j, vK + j): A(x)
                for j in range(4): A(f"v_accvgpr_write_b32 {a(aw(t, ks + q*nks)+j)}, {v(vX+j)}")

def wait_flags(A, R, name, vFa, nl, thr, sGive, sCnt):
    m = (1 << nl) - 1
    A(f"s_mov_b32 {s(sCnt)}, {s(sGive)}")
    A.label(name)
    A(f"""buffer_load_dword {v(R.vT0)}, {v(vFa)}, {s(R.sWS,4)}, 0 offen sc1
    s_waitcnt vmcnt(0)
    v_cmp_gt_u32 vcc, {thr}, {v(R.vT0)}""")
    if nl == 64: A("s_cmp_lg_u64 vcc, 0")
    else: A(f"s_and_b32 {s(R.sT0)}, vcc_lo, {m}")
    A(f"""s_cbranch_scc0 {name}_ok
    s_cmp_ge_u32 {s(sCnt)}, {SPIN}
    s_cselect_b32 {s(sGive)}, {SPIN}, {s(sGive)}
    s_cbranch_scc1 {name}_ok
    s_add_u32 {s(sCnt)}, {s(sCnt)}, 1
    s_sleep 8
    s_branch {name}""")
    A.label(name + "_ok")

def gen_F(A, sCu, done, sGive, rdv=None, ts=False, wt0=2, its=0, hook=None, stg=0, at=4, xs=0, ai=-1, wl=0, sk=0):
    R = SR
    def ist():
        if its == 2: A(f"""s_memrealtime s[72:73]
        s_mov_b32 m0, s70
        s_waitcnt lgkmcnt(0)
        v_writelane_b32 {v(R.vFv)}, s72, m0
        s_add_u32 s70, s70, 1""")
    if its == 2: A('s_mov_b32 s70, 0')
    sTg, sBlk, sCnt, sT2 = 28, 29, 30, 31
    vB, vD1, vD2, vInc = 30, 32, 34, 36
    vM = 40
    sPa, sPb, sAx, sBx, sWr, sWi = 32, 33, 40, 44, 48, 52
    A(f"""
    s_load_dwordx2 {s(sWr,2)}, s[0:1], {KA_WR}
    s_load_dwordx2 {s(sWi,2)}, s[0:1], {KA_WI}
    s_mov_b32 {s(sWr+2)}, {2048*1026}
    s_mov_b32 {s(sWr+3)}, 0x20000
    s_mov_b32 {s(sWi+2)}, {2048*1026}
    s_mov_b32 {s(sWi+3)}, 0x20000
    s_load_dwordx2 {s(sAx,2)}, s[0:1], {KA_AX}
    s_load_dwordx2 {s(sBx,2)}, s[0:1], {KA_BX}
    s_mov_b32 {s(sAx+2)}, {4*MB}
    s_mov_b32 {s(sAx+3)}, 0x20000
    s_mov_b32 {s(sBx+2)}, {4*MB}
    s_mov_b32 {s(sBx+3)}, 0x20000
    s_lshr_b32 {s(sTg)}, {s(sCu)}, 3
    s_and_b32 {s(sBlk)}, {s(sCu)}, 7
    s_lshl_b32 {s(sBlk)}, {s(sBlk)}, 2
    s_add_u32 {s(sBlk)}, {s(sBlk)}, {s(R.sWv)}
    """)
    def colidx(dst):
        perm16(A, dst, R.vL, R.vT0, False)
        A(f"""s_lshl_b32 {s(R.sT0)}, {s(sBlk)}, 5
        v_add_u32 {v(dst)}, {s(R.sT0)}, {v(dst)}""")
    colidx(R.vT2)
    A(f"""v_lshrrev_b32 {v(R.vT3)}, 4, {v(R.vL)}
    v_cvt_f32_u32 {v(R.vT3)}, {v(R.vT3)}
    s_mov_b32 {s(sT2)}, {f32bits(1/1024)}""")
    for t in range(2):
        A(f"""v_add_u32 {v(R.vT0)}, {4*t}, {v(R.vT2)}
        v_lshrrev_b32 {v(R.vT1)}, 1, {v(R.vT0)}
        v_and_b32 {v(vB+t)}, 1, {v(R.vT0)}
        v_cmp_eq_u32 vcc, 1, {v(R.vT0)}
        v_mov_b32 {v(R.vT0)}, 512
        v_cndmask_b32 {v(R.vT1)}, {v(R.vT1)}, {v(R.vT0)}, vcc
        v_cndmask_b32 {v(vB+t)}, {v(vB+t)}, 0, vcc
        v_add_u32 {v(R.vT0)}, {v(R.vT1)}, {v(vB+t)}
        v_bfe_i32 {v(vM+t)}, {v(R.vT0)}, 1, 1
        v_add_u32 {v(R.vT0)}, {v(R.vT1)}, {v(R.vT0)}
        v_bfe_i32 {v(vM+2+t)}, {v(R.vT0)}, 1, 1
        v_add_u32 {v(R.vT0)}, {v(R.vT1)}, {v(R.vT0)}
        v_bfe_i32 {v(vM+4+t)}, {v(R.vT0)}, 1, 1
        v_and_b32 {v(vM+t)}, 0x80008000, {v(vM+t)}
        v_and_b32 {v(vM+2+t)}, 0x80008000, {v(vM+2+t)}
        v_and_b32 {v(vM+4+t)}, 0x80008000, {v(vM+4+t)}
        v_cvt_f32_u32 {v(R.vT1)}, {v(R.vT1)}
        v_cvt_f32_u32 {v(vB+t)}, {v(vB+t)}
        v_mul_f32 {v(vD1+t)}, {s(sT2)}, {v(R.vT1)}
        v_mul_f32 {v(vB+t)}, 0x3e800000, {v(vB+t)}
        v_mov_b32 {v(vD2+t)}, {v(vD1+t)}
        v_mul_f32 {v(vInc+t)}, 0x42000000, {v(vD1+t)}
        v_mul_f32 {v(R.vT0)}, 0x41000000, {v(vD1+t)}
        v_fma_f32 {v(vB+t)}, {v(R.vT0)}, {v(R.vT3)}, {v(vB+t)}""")
    def der1(t, q, dst, src):
        return [f"v_xor_b32_dpp {v(dst)}, {v(src)}, {v(vM+2*q-2+t)} quad_perm:[0,1,3,2] row_mask:0xf bank_mask:0xf" if q & 1 else f"v_xor_b32 {v(dst)}, {v(src)}, {v(vM+2*q-2+t)}"]
    gen_dft_weights(A, R, vB, vD1, vD2, vInc, 8, der1)
    if hook: hook()
    A(f"""s_and_b32 {s(R.sT0)}, {s(sTg)}, 1
    s_lshl_b32 {s(R.sT0)}, {s(R.sT0)}, 15
    s_lshr_b32 {s(R.sT1)}, {s(sTg)}, 1
    s_lshl_b32 {s(R.sT1)}, {s(R.sT1)}, 21
    s_add_u32 {s(R.sT0)}, {s(R.sT0)}, {s(R.sT1)}
    s_lshl_b32 {s(R.sT1)}, {s(sBlk)}, 16
    s_add_u32 {s(R.sT0)}, {s(R.sT0)}, {s(R.sT1)}
    v_lshlrev_b32 {v(15)}, 7, {v(R.vL)}
    s_waitcnt lgkmcnt(0)""")
    sTa = 35
    A(f"s_mov_b32 {s(sTa)}, {s(R.sT0)}")
    for k in range(at if ai < 0 else 0):
        A(f"buffer_load_dword {v(248+k)}, {v(15)}, {s(sAx,4)}, {s(R.sT0)} offen")
        A(f"s_add_u32 {s(R.sT0)}, {s(R.sT0)}, 8192")
    sTx = 34
    A(f"""s_lshl_b32 {s(sTx)}, {s(sCu)}, 2
    s_add_u32 {s(sTx)}, {s(sTx)}, {s(R.sWv)}
    s_lshl_b32 {s(sTx)}, {s(sTx)}, 13
    s_sub_u32 {s(sTx)}, {s(sTx)}, {256*1024 + xs*MB}
    v_mov_b32 {v(247)}, {v(15)}""")
    xt = [f"buffer_load_dword {v(248)}, {v(247)}, {s(sBx,4)}, {s(sTx)} offen", f"s_add_u32 {s(sTx)}, {s(sTx)}, {MB}"]
    if wt0 >= 0:
        A(f"""s_lshl_b32 {s(R.sT0)}, {s(sBlk)}, 6
        v_add_u32 {v(246)}, {s(R.sT0)}, {v(R.vL)}
        v_mul_u32_u24 {v(246)}, 1026, {v(246)}
        s_lshl_b32 {s(R.sT0)}, {s(sTg)}, 8
        v_add_u32 {v(246)}, {s(R.sT0)}, {v(246)}
        v_and_b32 {v(246)}, -4, {v(246)}""")
        xt += [f"s_sub_u32 {s(sT2)}, {s(R.sIt)}, {2*wt0}", f"s_lshl_b32 {s(sT2)}, {s(sT2)}, 6", f"s_cmp_lt_u32 {s(sT2)}, 384", f"s_cselect_b32 {s(sT2)}, {s(sT2)}, {OOB}",
               f"buffer_load_dword {v(249)}, {v(246)}, {s(sWr,4)}, {s(sT2)} offen", f"buffer_load_dword {v(250)}, {v(246)}, {s(sWi,4)}, {s(sT2)} offen"]
    if ai >= 0:
        xt += [f"s_cmp_eq_u32 {s(R.sIt)}, {2*ai}", f"s_cselect_b32 {s(sT2)}, {s(sTa)}, {OOB}"]
        for k in range(4): xt += [f"buffer_load_dword {v(251)}, {v(247)}, {s(sAx,4)}, {s(sT2)} offen", f"s_add_u32 {s(sT2)}, {s(sT2)}, 8192"]
    if sk:
        o = [f"s_cmp_lt_u32 {s(sTx)}, {4*MB}", "s_cbranch_scc0 F1s0", " " + xt[0], "F1s0:", xt[1]]; n = 0
        for x in xt[2:]:
            if n and x.startswith("s_cmp_eq"): o.append(f"F1s{n}:")
            if x.startswith("s_cselect"): n += 1; o += [x, f"s_cbranch_scc0 F1s{n}"]
            else: o.append(" " + x)
        xt = o + [f"F1s{n}:"]
    if stg:
        xt0 = xt
        xt = lambda H: [f"s_cmp_eq_u32 {s(R.sWv)}, {H}", "s_cselect_b64 exec, -1, 0"] + [x for x in xt0 if H == 3 or x != xt0[1]] + ["s_mov_b64 exec, -1"]
    vIn, vLa, sWb = (96 if wl else 60), 19, 36
    def win(g, h, jj, m): return vIn + 4 * (((g*2 + h)*4 + jj)*2 + m)
    def wload(H):
        return [(4 + 8*m, [f"s_cmp_ge_u32 {s(R.sIt)}, 8", f"s_cbranch_scc1 F1w{H}{m}", f"F1r{H}{m}:"]) for m in range(2)]
    def wtail():
        A("s_branch F1wx")
        for H in range(4):
            for m, srd in enumerate((sWr, sWi)):
                A.label(f"F1w{H}{m}")
                for k in range(4):
                    g, h, jj = k >> 1, k & 1, H
                    if k < 3: A(f"""s_cmp_eq_u32 {s(R.sIt)}, {8 + 2*k}
                    s_cbranch_scc0 F1n{H}{m}{k}""")
                    A(f"""s_add_u32 {s(sT2)}, {s(sWb)}, {((2*jj + g)*64 + 512*h)*1026}
                    buffer_load_dwordx4 {v(win(g, h, jj, m),4)}, {v(vLa)}, {s(srd,4)}, {s(sT2)} offen
                    s_branch F1r{H}{m}""")
                    if k < 3: A.label(f"F1n{H}{m}{k}")
        A.label("F1wx")
    if wl:
        A(f"v_lshrrev_b32 {v(R.vT3)}, 1, {v(R.vL)}")
        pi_lane(A, vLa, R.vT3, R.vT0, R.vT1)
        A(f"""v_mul_u32_u24 {v(vLa)}, 1026, {v(vLa)}
        v_and_b32 {v(R.vT0)}, 1, {v(R.vL)}
        v_lshl_add_u32 {v(vLa)}, {v(R.vT0)}, 4, {v(vLa)}
        s_lshr_b32 {s(R.sT0)}, {s(R.sWv)}, 1
        s_and_b32 {s(R.sT1)}, {s(R.sWv)}, 1
        s_lshl_b32 {s(R.sT0)}, {s(R.sT0)}, 5
        s_lshl_b32 {s(R.sT1)}, {s(R.sT1)}, 10
        s_add_u32 {s(R.sT0)}, {s(R.sT0)}, {s(R.sT1)}
        s_mul_i32 {s(sWb)}, {s(R.sT0)}, 1026
        s_lshl_b32 {s(R.sT0)}, {s(sCu)}, 5
        s_add_u32 {s(sWb)}, {s(sWb)}, {s(R.sT0)}""")
    A(f"""
    s_load_dwordx2 {s(R.sX,2)}, s[0:1], {KA_AX}
    s_mov_b32 {s(R.sX+2)}, {4*MB}
    s_mov_b32 {s(R.sX+3)}, 0x20000
    s_waitcnt lgkmcnt(0)
    """)
    if ts: tstamp(A, R, 1)
    setup_reads(A, R)
    dma_rows(A, R, R.vT2, R.vT3)
    perm16(A, R.vSrc, R.vT2, R.vT0, True)
    perm16(A, R.vDst, R.vL, R.vT0, False)
    A(f"""
    v_lshlrev_b32 {v(R.vSrc)}, 16, {v(R.vSrc)}
    v_lshl_add_u32 {v(R.vSrc)}, {v(R.vT3)}, 4, {v(R.vSrc)}
    v_and_b32 {v(R.vT0)}, 48, {v(R.vL)}
    v_lshl_add_u32 {v(R.vDst)}, {v(R.vDst)}, 6, {v(R.vT0)}
    s_mul_i32 {s(R.sDst)}, {s(sBlk)}, {BLKY}
    s_mul_i32 {s(R.sT0)}, {s(sTg)}, {16 * YS}
    s_add_u32 {s(R.sDst)}, {s(R.sDst)}, {s(R.sT0)}
    s_add_u32 {s(R.sDst)}, {s(R.sDst)}, {WS_Y}
    s_and_b32 {s(R.sSrc)}, {s(sTg)}, 1
    s_lshl_b32 {s(R.sSrc)}, {s(R.sSrc)}, 15
    s_lshr_b32 {s(R.sT0)}, {s(sTg)}, 1
    s_lshl_b32 {s(R.sT0)}, {s(R.sT0)}, 21
    s_add_u32 {s(R.sSrc)}, {s(R.sSrc)}, {s(R.sT0)}
    s_mov_b32 {s(R.sSrcStep)}, 2048
    s_mov_b32 {s(R.sDstStep)}, {YS}
    s_barrier
    """)
    def dma1(half, b, lds):
        off = half * 1024 + b * 128
        return [f"s_add_u32 m0, {s(R.sM0)}, {lds - off}", f"buffer_load_dwordx4 {v(R.vSrc)}, {s(R.sX,4)}, {s(R.sSrc)} offen offset:{off} lds"]
    def store1(u):
        return [f"buffer_store_dwordx4 {v(R.vPk+4*u,4)}, {v(R.vDst)}, {s(R.sWS,4)}, {s(R.sDst)} offen offset:{256*u} sc1"]
    stream_loop(A, R, "F1", 16, True, dma1, store1, flag=False, extra=xt, extra2=wload if wl else None)
    if wl: wtail()
    if rdv: rdv()
    A("s_barrier")
    def setflag(sIdx, base):
        A(f"""s_lshl_b32 {s(R.sT0)}, {s(sIdx)}, 7
        s_add_u32 {s(R.sT0)}, {s(R.sT0)}, {WS_FLAG + base}
        v_lshl_add_u32 {v(R.vT0)}, {v(R.vL)}, 2, {s(R.sT0)}
        v_mov_b32 {v(R.vT1)}, 1
        s_mov_b64 exec, 0xffffffff
        buffer_store_dword {v(R.vT1)}, {v(R.vT0)}, {s(R.sWS,4)}, 0 offen sc1
        s_mov_b64 exec, -1""")
    A(f"""s_lshl_b32 {s(sT2)}, {s(sBlk)}, 2
    s_add_u32 {s(sT2)}, {s(sT2)}, {s(sTg)}""")
    setflag(sT2, FLAG_F)
    if ts: tstamp(A, R, 2)
    ist()
    vPi, vH, vAd, vSh, vWa, vLa = 10, 11, 12, 13, 14, 19
    v512, vOut = 220, 236
    aC64, aS64, aN64, aC32, aS32, aN32, aOut = 0, 32, 64, 96, 104, 112, 120
    vTw = 160
    vAc, vOp, vZ = 32, 96, 128
    vZa, vPf, vHf, vSo = 15, 16, 17, 18
    pi_lane(A, vPi, R.vL, R.vT0, R.vT1)
    A(f"v_lshrrev_b32 {v(R.vT3)}, 1, {v(R.vL)}")
    pi_lane(A, vLa, R.vT3, R.vT0, R.vT1)
    A(f"""
    s_load_dwordx2 {s(R.sO,2)}, s[0:1], {KA_OUT}
    s_mov_b32 {s(R.sO+2)}, {8*MB}
    s_mov_b32 {s(R.sO+3)}, 0x20000
    v_lshrrev_b32 {v(vH)}, 5, {v(R.vL)}
    v_lshl_add_u32 {v(vAd)}, {v(vH)}, 9, {v(vPi)}             ; pi + 512 h
    v_mul_u32_u24 {v(vAd)}, 1026, {v(vAd)}
    v_and_b32 {v(vSh)}, 1, {v(R.vL)}
    v_lshlrev_b32 {v(vSh)}, 4, {v(vSh)}
    v_lshlrev_b32 {v(vWa)}, 4, {v(R.vL)}
    s_lshr_b32 {s(R.sT0)}, {s(R.sWv)}, 1
    s_and_b32 {s(R.sT1)}, {s(R.sWv)}, 1
    s_lshl_b32 {s(R.sT0)}, {s(R.sT0)}, 5
    s_lshl_b32 {s(R.sT1)}, {s(R.sT1)}, 10
    s_add_u32 {s(R.sT0)}, {s(R.sT0)}, {s(R.sT1)}
    s_mul_i32 {s(R.sSrc)}, {s(R.sT0)}, 1026
    s_lshl_b32 {s(R.sT0)}, {s(sCu)}, 5
    s_add_u32 {s(R.sSrc)}, {s(R.sSrc)}, {s(R.sT0)}
    v_mul_u32_u24 {v(vLa)}, 1026, {v(vLa)}
    v_add_u32 {v(vLa)}, {v(vLa)}, {v(vSh)}
    s_mov_b32 {s(sPa)}, 0x05040100
    s_mov_b32 {s(sPb)}, 0x07060302
    v_cvt_f32_u32 {v(vPf)}, {v(vPi)}
    v_lshlrev_b32 {v(vHf)}, 3, {v(vH)}
    v_cvt_f32_u32 {v(vHf)}, {v(vHf)}
""")
    ist()
    def cap(f):
        n = len(A.ins); f(); o = [x.text for x in A.ins[n:]]; del A.ins[n:]; return o
    def merge(X, Y):
        o = []; k = 0
        for i, g in enumerate(X):
            o += g; e = (i + 1) * len(Y) // len(X); o += Y[k:e]; k = e
        return o
    lds_ = []
    for g in range(2):
        for h in range(2):
            for jj in range(4):
                for m, srd in enumerate((sWr, sWi)):
                    lds_.append(([] if m else [f"s_add_u32 {s(R.sT0)}, {s(R.sSrc)}, {((2*jj + g)*64 + 512*h)*1026}"]) +
                                [f"buffer_load_dwordx4 {v(win(g, h, jj, m),4)}, {v(vLa)}, {s(srd,4)}, {s(R.sT0)} offen"])
    def consts(dC, dS, dN, add, N, nks):
        A(f"""v_add_f32 {v(R.vT0)}, {f32bits(float(add))}, {v(vPf)}
        v_mul_f32 {v(R.vT0)}, {f32bits(1.0/N)}, {v(R.vT0)}
        v_mul_f32 {v(R.vT1)}, {v(R.vT0)}, {v(vHf)}
        v_mul_f32 {v(R.vT2)}, 0x41800000, {v(R.vT0)}""")
        for ks in range(nks):
            A(f"v_fract_f32 {v(vAc)}, {v(R.vT1)}")
            for j in range(1, 8): A(f"v_add_f32 {v(vAc+j)}, {v(vAc+j-1)}, {v(R.vT0)}")
            A(f"v_add_f32 {v(R.vT1)}, {v(vAc)}, {v(R.vT2)}")
            for j in range(8):
                A(f"v_cos_f32 {v(vAc+8+j)}, {v(vAc+j)}"); A(f"v_sin_f32 {v(vAc+16+j)}, {v(vAc+j)}")
            if N == 32:
                for j in range(16): A(f"v_mul_f32 {v(vAc+8+j)}, {f32bits(2.0**-10)}, {v(vAc+8+j)}")
            for j in range(4):
                A(f"v_cvt_pk_bf16_f32 {v(vAc+24)}, {v(vAc+8+2*j)}, {v(vAc+9+2*j)}")
                A(f"v_cvt_pk_bf16_f32 {v(vAc+25)}, {v(vAc+16+2*j)}, {v(vAc+17+2*j)}")
                A(f"v_accvgpr_write_b32 {a(dC+4*ks+j)}, {v(vAc+24)}")
                A(f"v_xor_b32 {v(vAc+26)}, 0x80008000, {v(vAc+25)}")
                A(f"v_accvgpr_write_b32 {a(dS+4*ks+j)}, {v(vAc+25)}")
                A(f"v_accvgpr_write_b32 {a(dN+4*ks+j)}, {v(vAc+26)}")
    def allc():
        for t in range(2): consts(aC64 + 16*t, aS64 + 16*t, aN64 + 16*t, 32*t, 64, 4)
        consts(aC32, aS32, aN32, 0, 32, 2)
    for x in cap(allc) if wl else merge(lds_, cap(allc)): A(x)
    ist()
    A(f"""s_lshl_b32 {s(R.sT0)}, {s(R.sWv)}, 11
    v_lshlrev_b32 {v(R.vT0)}, 12, {v(vSh)}
    v_lshl_add_u32 {v(R.vT0)}, {v(R.vT3)}, 4, {v(R.vT0)}
    v_add_u32 {v(R.vT0)}, {s(R.sT0)}, {v(R.vT0)}
    s_cmp_eq_u32 {s(R.sWv)}, 0
    s_cselect_b32 {s(R.sT0)}, 0, 10240
    s_add_u32 {s(R.sT0)}, {s(R.sT0)}, 0x20000
    v_add_u32 {v(vSh)}, {s(R.sT0)}, {v(vWa)}""")
    for g in range(2):
        for h in range(2):
            A(f"s_waitcnt vmcnt({24 - 16*g - 8*h})")
            for cc in range(8):
                o = vOut + 4*(cc & 3)
                for jj in range(4):
                    A(f"v_perm_b32 {v(o + jj)}, {v(win(g, h, jj, 1) + cc//2)}, {v(win(g, h, jj, 0) + cc//2)}, {s(sPb if cc & 1 else sPa)}")
                A(f"ds_write_b128 {v(R.vT0)}, {v(o,4)} offset:{cc*8192 + g*1024 + h*512}")
    ist()
    sZr, sZi, sSc, sWo, sPass, sNp, sMsk = 32, 33, 34, 35, 36, 37, 38
    A(f"""
    v_mul_u32_u24 {v(vZa)}, {YS}, {v(vPi)}
    v_lshl_add_u32 {v(vZa)}, {v(vH)}, 4, {v(vZa)}
    v_lshlrev_b32 {v(vSo)}, 12, {v(vH)}
    v_lshl_add_u32 {v(vSo)}, {v(vPi)}, 4, {v(vSo)}
    s_mul_i32 {s(sZr)}, {s(sCu)}, {BLKY}
    s_lshl_b32 {s(R.sT0)}, {s(R.sWv)}, 9
    s_add_u32 {s(sZr)}, {s(sZr)}, {s(R.sT0)}
    s_add_u32 {s(sZr)}, {s(sZr)}, {WS_Y}
    s_add_u32 {s(sZi)}, {s(sZr)}, 64
    s_lshl_b32 {s(sT2)}, {s(sCu)}, 2
    s_add_u32 {s(sT2)}, {s(sT2)}, {s(R.sWv)}
    s_lshl_b32 {s(sWo)}, {s(R.sWv)}, 15
    s_mov_b32 {s(sMsk)}, 0xffff0000
    s_mov_b32 {s(sPass)}, 0
    s_cmp_eq_u32 {s(sT2)}, 0
    s_cselect_b32 {s(sNp)}, 5, 4
    s_cselect_b32 {s(sZi)}, {OOB}, {s(sZi)}
    s_cselect_b32 {s(sSc)}, 1024, {OOB}
    v_and_b32 {v(R.vT3)}, 3, {v(R.vL)}
    v_lshlrev_b32 {v(R.vT3)}, 7, {v(R.vT3)}
    s_lshl_b32 {s(R.sT0)}, {s(sCu)}, 9
    s_add_u32 {s(R.sT0)}, {s(R.sT0)}, {WS_FLAG + FLAG_F}
    v_add_u32 {v(R.vT3)}, {s(R.sT0)}, {v(R.vT3)}
    s_waitcnt lgkmcnt(0)
    """)
    wait_flags(A, R, "F2_w", R.vT3, 4, 1, sGive, sCnt)
    zl = []
    for im, so in ((0, sZr), (1, sZi)):
        for ks in range(4):
            zl.append(([f"s_add_u32 {s(R.sT0)}, {s(so)}, {32 * YS}"] if ks == 2 else []) +
                      [f"buffer_load_dwordx4 {v(vZ + 16*im + 4*ks,4)}, {v(vZa)}, {s(R.sWS,4)}, {s(so if ks < 2 else R.sT0)} offen offset:{32*(ks&1)}"])
    ist()
    for g in zl:
        for x in g: A(x)
    ist()
    for k, (pa, ra) in enumerate(((0, 0), (32, 0), (0, 32))):
        A(f"""v_add_f32 {v(R.vT0)}, {f32bits(float(pa))}, {v(vPf)}
        v_mul_f32 {v(R.vT0)}, {f32bits(1.0/2048)}, {v(R.vT0)}""")
        for r in range(16):
            A(f"""v_add_f32 {v(R.vT1)}, {f32bits(float(16*(r>>3) + (r&7) + ra))}, {v(vHf)}
            v_mul_f32 {v(R.vT1)}, {v(R.vT1)}, {v(R.vT0)}
            v_cos_f32 {v(vTw+32*k+r)}, {v(R.vT1)}
            v_sin_f32 {v(vTw+32*k+16+r)}, {v(R.vT1)}""")
    ist()
    A("s_barrier")
    if ts: tstamp(A, R, 3, vt=24)
    def op(t_or_ks, im, u=None):
        ks = t_or_ks if u is None else 2*t_or_ks + u
        return v(vOp + 16*im + 4*ks, 4)
    def zop(ks, im): return v(vZ + 16*im + 4*ks, 4)
    def acc(t, im): return vAc + 32*t + 16*im
    def MF(d, x, y, first): return [f"v_mfma_f32_32x32x16_bf16 {v(d,16)}, {x}, {y}, {0 if first else v(d,16)}"]
    def cm(t, r, c, sn, sign):
        re, im = acc(t, 0) + r, acc(t, 1) + r; T = 20 + 2*(r & 2)
        return [f"v_mul_f32 {v(T+2*k+e)}, {v((re, im)[k]+e)}, {v(c+e)}" for e in range(2) for k in range(2)] + \
               [f"v_fma_f32 {v(T+2*k+e)}, {'-' if (sign > 0) == (k == 0) else ''}{v((im, re)[k]+e)}, {v(sn+e)}, {v(T+2*k+e)}" for e in range(2) for k in range(2)] + \
               [f"v_cvt_pk_bf16_f32 {v(vOp + 8*t + r//2)}, {v(T)}, {v(T+1)}", f"v_cvt_pk_bf16_f32 {v(vOp + 16 + 8*t + r//2)}, {v(T+2)}, {v(T+3)}"]
    def VT(t, c0, sign): return [x for r in range(0, 16, 2) for x in cm(t, r, c0 + r, c0 + 16 + r, sign)]
    def VW(t):
        o = ["s_waitcnt lgkmcnt(0)"]
        for r in range(0, 16, 2):
            for e in range(2):
                w = vOp + 16*e + 8*t + r//2
                o += [f"v_lshlrev_b32 {v(28+e)}, 16, {v(w)}", f"v_and_b32 {v(30+e)}, {s(sMsk)}, {v(w)}"]
            o += cm(t, r, 28, 30, +1)
        return o
    def VO(t): return [f"v_cvt_pk_bf16_f32 {v(acc(t,0)+r)}, {v(acc(t,0)+r)}, {v(acc(t,1)+r)}" for r in range(16)]
    def wrd(t): return [f"ds_read_b128 {v(vOp + 16*g + 8*t + 4*hh,4)}, {v(vLa)} offset:{(2*t + hh)*2048 + g*1024}" for hh in range(2) for g in range(2)]
    def M1(t): return [x for ks in range(4) for x in (MF(acc(t, 0), zop(ks, 0), a(aC64+16*t+4*ks, 4), ks == 0), MF(acc(t, 1), zop(ks, 1), a(aC64+16*t+4*ks, 4), ks == 0),
                                                     MF(acc(t, 0), zop(ks, 1), a(aS64+16*t+4*ks, 4), False), MF(acc(t, 1), zop(ks, 0), a(aN64+16*t+4*ks, 4), False))]
    def M2(t): return [x for u in range(2) for x in (MF(acc(t, 0), a(aC32+4*u, 4), op(t, 0, u), u == 0), MF(acc(t, 1), a(aC32+4*u, 4), op(t, 1, u), u == 0),
                                                    MF(acc(t, 0), a(aS32+4*u, 4), op(t, 1, u), False), MF(acc(t, 1), a(aN32+4*u, 4), op(t, 0, u), False))]
    def M3(t): return [x for u in range(2) for x in (MF(acc(t, 0), op(t, 0, u), a(aC32+4*u, 4), u == 0), MF(acc(t, 1), op(t, 1, u), a(aC32+4*u, 4), u == 0),
                                                    MF(acc(t, 0), op(t, 1, u), a(aN32+4*u, 4), False), MF(acc(t, 1), op(t, 0, u), a(aS32+4*u, 4), False))]
    def M4(t): return [x for ks in range(4) for x in (MF(acc(t, 0), a(aC64+16*t+4*ks, 4), op(ks, 0), ks == 0), MF(acc(t, 1), a(aC64+16*t+4*ks, 4), op(ks, 1), ks == 0),
                                                     MF(acc(t, 0), a(aN64+16*t+4*ks, 4), op(ks, 1), False), MF(acc(t, 1), a(aS64+16*t+4*ks, 4), op(ks, 0), False))]
    def slot(M, V, lead=2, tail=()):
        M = [list(x) for x in M]; M[-1] += list(tail)
        for x in sum(M[:lead], []) + merge(M[lead:], V): A(x)
    nxt = f"""s_add_u32 {s(sPass)}, {s(sPass)}, 1
    s_add_u32 {s(sZr)}, {s(sZr)}, 128
    s_add_u32 {s(sZi)}, {s(sZr)}, 64
    s_cmp_eq_u32 {s(sPass)}, 4
    s_cselect_b32 {s(sZr)}, {WS_Y + 64}, {s(sZr)}
    s_cselect_b32 {s(sZi)}, {OOB}, {s(sZi)}
    s_cmp_lt_u32 {s(sPass)}, {s(sNp)}
    s_cselect_b32 {s(sZr)}, {s(sZr)}, {OOB}
    s_cselect_b32 {s(sZi)}, {s(sZi)}, {OOB}
    v_add_u32 {v(vLa)}, {s(sWo)}, {v(vWa)}""".split("\n")
    a5 = 248
    v5 = (2, 3, 4, 7, 8, 10, 11, 16)
    c5 = [[f"s_add_u32 {s(R.sT1)}, {s(sSc)}, {i*64*1026}", f"buffer_load_ushort {a(a5 + (i >> 1) + 4*(i & 1))}, {v(vAd)}, {s(sWr,4)}, {s(R.sT1)} offen",
           f"buffer_load_ushort {v(v5[i])}, {v(vAd)}, {s(sWi,4)}, {s(R.sT1)} offen"] for i in range(8)]
    nxt = [f"ds_write_b128 {v(vSh)}, {a(a5,4)}", f"ds_write_b128 {v(vSh)}, {a(a5+4,4)} offset:1024"] + \
          [f"ds_write_b16 {v(vSh)}, {v(v5[i])} offset:{(i & 1)*1024 + (i >> 1)*4 + 2}" for i in range(8)] + [f"v_add_u32 {v(vSh)}, 2048, {v(vSh)}"] + nxt
    def w5(M, ks):
        M = [list(x) for x in M]
        for k in ks: M[k] += c5.pop(0)
        return M
    A(".p2align 6")
    A.label("F2_top")
    ist()
    A("s_waitcnt vmcnt(0)")
    ist()
    slot(M1(0), [x.strip() for x in nxt])
    slot(w5(M1(1), (1,)), VT(0, vTw, -1))
    slot([m + g for m, g in zip(M2(0), zl)], VT(1, vTw + 32, -1), tail=["s_nop 1"] + wrd(0))
    ist()
    slot(w5(M2(1), (1,)), VW(0), tail=["s_nop 1"] + wrd(1))
    slot(w5(M3(0), (1,)), VW(1))
    slot(w5(M3(1), (1,)), VT(0, vTw, +1))
    slot(w5(M4(0)[:8], (1,)), VT(1, vTw + 64, +1))
    slot(w5(M4(0)[8:] + M4(1), (0, 4, 8)), VO(0), lead=10)
    for x in VO(1): A(x)
    for p in range(1, 5):
        A(f"""s_cmp_eq_u32 {s(sPass)}, {p + 1}
        s_cbranch_scc1 F2_o{p}""")
    for p in range(5):
        if p: A.label(f"F2_o{p}")
        for k in range(32):
            w = acc(k >> 4, 0) + (k & 15)
            if p < 4:
                A(f"v_accvgpr_write_b32 {a(aOut+4*k+p)}, {v(w)}")
            else:
                A(f"v_accvgpr_read_b32 {v(R.vT0)}, {a(aOut+4*k)}")
                A(f"v_lshlrev_b32 {v(R.vT1)}, 16, {v(w)}")
                A(f"v_bfi_b32 {v(R.vT0)}, {s(sMsk)}, {v(R.vT1)}, {v(R.vT0)}")
                A(f"v_accvgpr_write_b32 {a(aOut+4*k)}, {v(R.vT0)}")
        if p < 4: A("s_branch F2_nx")
    A.label("F2_nx")
    A(f"""s_add_u32 {s(sWo)}, {s(sWo)}, 8192
    s_bitcmp1_b32 {s(sPass)}, 0
    s_cselect_b32 {s(R.sT0)}, 0, {(2048 - 32)*1026}
    s_add_u32 {s(sSc)}, {s(sSc)}, {1024*1026}
    s_sub_u32 {s(sSc)}, {s(sSc)}, {s(R.sT0)}
    s_cmp_eq_u32 {s(sPass)}, 4
    s_cselect_b32 {s(sWo)}, {16*8192 + 2048}, {s(sWo)}
    s_cselect_b32 {s(sSc)}, {OOB}, {s(sSc)}
    s_cmp_lt_u32 {s(sPass)}, {s(sNp)}
    s_cbranch_scc1 F2_top
    s_mul_i32 {s(R.sDst)}, {s(sT2)}, {ZCH}
    s_add_u32 {s(R.sDst)}, {s(R.sDst)}, {WS_Z}""")
    ist()
    for t in range(2):
        for r in range(16):
            o = (32*t + 16*(r >> 3) + (r & 7)) * 512
            if r % 8 == 0: A(f"s_add_u32 {s(R.sT0)}, {s(R.sDst)}, {o}")
            A(f"buffer_store_dwordx4 {a(aOut+4*(16*t+r),4)}, {v(vSo)}, {s(R.sWS,4)}, {s(R.sT0)} offen offset:{(r&7)*512} sc1")
    ist()
    A("s_waitcnt vmcnt(0)")
    ist()
    setflag(sT2, FLAG_F2)
    if ts: tstamp(A, R, 4)
    colidx(R.vT2)
    A(f"""v_lshrrev_b32 {v(R.vT3)}, 4, {v(R.vL)}
    v_cvt_f32_u32 {v(R.vT3)}, {v(R.vT3)}
    s_mov_b32 {s(sT2)}, {f32bits(1/1024)}
    v_and_b32 {v(38)}, 1, {v(R.vT2)}""")
    for t in range(2):
        A(f"""v_add_u32 {v(R.vT0)}, {4*t}, {v(R.vT2)}
        v_cvt_f32_u32 {v(R.vT1)}, {v(R.vT0)}
        v_mul_f32 {v(R.vT1)}, {s(sT2)}, {v(R.vT1)}
        v_mov_b32 {v(vD1+t)}, 0x3e800000
        v_sub_f32 {v(vD2+t)}, {v(R.vT1)}, {v(vD1+t)}
        v_mul_f32 {v(vInc+t)}, 0x41800000, {v(R.vT1)}
        v_mul_f32 {v(R.vT0)}, 4.0, {v(R.vT1)}
        v_mul_f32 {v(vB+t)}, {v(R.vT0)}, {v(R.vT3)}""")
    A(f"""v_lshlrev_b32 {v(vM)}, 4, {v(38)}
    v_bfe_u32 {v(R.vT0)}, {v(R.vT2)}, 1, 1
    v_add_u32 {v(R.vT1)}, 1, {v(R.vT2)}
    v_bfe_u32 {v(R.vT1)}, {v(R.vT1)}, 1, 1
    v_lshlrev_b32 {v(R.vT0)}, 15, {v(R.vT0)}
    v_lshl_or_b32 {v(vM+1)}, {v(R.vT1)}, 31, {v(R.vT0)}""")
    gen_dft_weights(A, R, vB, vD1, vD2, vInc, 16, lambda t, q, dst, src: [f"v_alignbit_b32 {v(dst)}, {v(src)}, {v(src)}, {v(vM)}", f"v_xor_b32 {v(dst)}, {v(dst)}, {v(vM+1)}"])
    A(f"""v_lshlrev_b32 {v(R.vT1)}, 31, {v(38)}
    v_or_b32 {v(R.vT1)}, 0x3f003f00, {v(R.vT1)}
    v_cmp_gt_u32 vcc, 16, {v(R.vL)}""")
    for t in range(2):
        A(f"""v_accvgpr_read_b32 {v(R.vT0)}, {a(aw(t,0))}
        v_cndmask_b32 {v(R.vT0)}, {v(R.vT0)}, {v(R.vT1)}, vcc
        v_accvgpr_write_b32 {a(aw(t,0))}, {v(R.vT0)}""")
    A(f"""
    v_and_b32 {v(R.vT0)}, 15, {v(R.vL)}
    v_lshrrev_b32 {v(R.vT1)}, 4, {v(R.vL)}
    v_lshlrev_b32 {v(R.vT0)}, 4, {v(R.vT0)}
    v_lshl_add_u32 {v(R.vRd)}, {v(R.vT1)}, 9, {v(R.vT0)}
    v_add_u32 {v(R.vRd+1)}, 2048, {v(R.vRd)}
    v_add_u32 {v(R.vRd+2)}, 0x10000, {v(R.vRd)}
    v_add_u32 {v(R.vRd+3)}, 0x10000, {v(R.vRd+1)}
    s_lshl_b32 {s(R.sM0)}, {s(R.sWv)}, 10
    s_lshl_b32 {s(R.sT0)}, {s(R.sWv)}, 1
    v_lshrrev_b32 {v(R.vT3)}, 5, {v(R.vL)}
    v_add_u32 {v(R.vT3)}, {s(R.sT0)}, {v(R.vT3)}
    v_and_b32 {v(R.vT2)}, 31, {v(R.vL)}
    v_mul_u32_u24 {v(R.vSrc)}, {ZCH}, {v(R.vT3)}
    v_lshl_add_u32 {v(R.vSrc)}, {v(R.vT2)}, 4, {v(R.vSrc)}
    v_and_b32 {v(R.vDst)}, 15, {v(R.vL)}
    v_and_b32 {v(R.vT0)}, 48, {v(R.vL)}
    v_lshl_add_u32 {v(R.vDst)}, {v(R.vDst)}, 12, {v(R.vT0)}
    v_add_u32 {v(R.vFlag)}, 0x10000, {v(R.vDst)}
    s_lshl_b32 {s(R.sDst)}, {s(sTg)}, 21
    s_lshl_b32 {s(R.sT0)}, {s(sBlk)}, 6
    s_add_u32 {s(R.sDst)}, {s(R.sDst)}, {s(R.sT0)}
    s_lshl_b32 {s(R.sSrc)}, {s(sTg)}, 13
    s_add_u32 {s(R.sSrc)}, {s(R.sSrc)}, {WS_Z}
    s_mov_b32 {s(R.sSrcStep)}, 512
    s_mov_b32 {s(R.sDstStep)}, {32*4096}
    v_and_b32 {v(R.vT2)}, 31, {v(R.vL)}
    v_lshlrev_b32 {v(R.vT2)}, 7, {v(R.vT2)}
    s_lshl_b32 {s(R.sT0)}, {s(R.sWv)}, 12
    s_add_u32 {s(R.sT0)}, {s(R.sT0)}, {WS_FLAG + FLAG_F2}
    v_add_u32 {v(R.vT2)}, {s(R.sT0)}, {v(R.vT2)}
    """)
    ist()
    if its == 2:
        from attn import idump
        idump(A, R, R.vFv)
    wait_flags(A, R, "F3_w0", R.vT2, 64, 1, sGive, sCnt)
    A("s_barrier")
    if ts: tstamp(A, R, 5)
    def dma3(half, b, lds):
        return [f"s_add_u32 m0, {s(R.sM0)}, {lds}", f"s_add_u32 {s(R.sT0)}, {s(R.sSrc)}, {(half*8 + b)*8*ZCH}",
                f"buffer_load_dwordx4 {v(R.vSrc)}, {s(R.sWS,4)}, {s(R.sT0)} offen lds"]
    def store3(u):
        return [f"buffer_store_dwordx4 {v(R.vPk+4*u,4)}, {v(R.vFlag if u else R.vDst)}, {s(R.sO,4)}, {s(R.sDst)} offen"]
    stream_loop(A, R, "F3", 16, False, dma3, store3, flag=False, ttoff=256)
    A(f"s_branch {done}")
```
